```python
import torch

def _softmax(x, axis=-1):
    return torch.softmax(x, dim=axis)
def _gelu(x):
    return torch.nn.functional.gelu(x, approximate="tanh")
def _silu(x):
    return torch.nn.functional.silu(x)
def _sigmoid(x):
    return torch.sigmoid(x)
def _layernorm(x, axis=-1, eps=1e-5):
    m = x.mean(dim=axis, keepdim=True)
    v = x.var(dim=axis, keepdim=True, unbiased=False)
    return (x - m) / torch.sqrt(v + eps)
def _scatter_add(tgt, idx, src, axis=0):
    return tgt.clone().index_add_(axis, idx, src)
def _segment_sum(src, seg, n):
    out = torch.zeros((n,) + src.shape[1:], dtype=src.dtype)
    return out.index_add_(0, seg, src)
def _pad(x, pw):
    flat = tuple(v for pair in reversed(pw) for v in pair)
    return torch.nn.functional.pad(x, flat)

kernel_name = 'concat_heads__gqa_block_cached__mha_block_cached__near_ridge'

def setup_inputs():

    _w = (lambda a: (lambda t: t.to(torch.bfloat16) if t.is_floating_point() else t)(torch.as_tensor(a)))
    def _A_setup():
        B, Sq, D = 16, 112, 640
        Hq, Hkv, Sk, Dh = 32, 32, 512, 128
        assert Hq % Hkv == 0, (Hq, Hkv)
        return {
            "x": _w((lambda *s: torch.randn(*s, dtype=torch.bfloat16) * 0.8)(B, Sq, D)),
            "k_cache": _w((lambda *s: torch.randn(*s, dtype=torch.bfloat16) * 0.8)(B, Hkv, Sk, Dh)),
            "v_cache": _w((lambda *s: torch.randn(*s, dtype=torch.bfloat16) * 0.05)(B, Hkv, Sk, Dh)),
            "wq": _w((lambda *s: torch.randn(*s, dtype=torch.bfloat16) * 0.8)(D, Hq * Dh) * (D ** -0.5)),
            "wo": _w((lambda *s: torch.randn(*s, dtype=torch.bfloat16) * 0.05)(Hq * Dh, D) * ((Hq * Dh) ** -0.5)),
        }
    _A_in = _A_setup()

    def _B_setup():
        B, Sq, D = 16, 112, 640
        H, Sk, Dh = 32, 512, 128
        return {
            "x": _w((lambda *s: torch.randn(*s, dtype=torch.bfloat16) * 0.8)(B, Sq, D)),
            "k_cache": _w((lambda *s: torch.randn(*s, dtype=torch.bfloat16) * 0.8)(B, H, Sk, Dh)),
            "v_cache": _w((lambda *s: torch.randn(*s, dtype=torch.bfloat16) * 0.05)(B, H, Sk, Dh)),
            "wq": _w((lambda *s: torch.randn(*s, dtype=torch.bfloat16) * 0.8)(D, H * Dh) * (D ** -0.5)),
            "wo": _w((lambda *s: torch.randn(*s, dtype=torch.bfloat16) * 0.05)(H * Dh, D) * ((H * Dh) ** -0.5)),
        }
    _B_in = _B_setup()

    return {
        "A_x": _A_in["x"],
        "A_k_cache": _A_in["k_cache"],
        "A_v_cache": _A_in["v_cache"],
        "A_wq": _A_in["wq"],
        "A_wo": _A_in["wo"],
        "B_x": _B_in["x"],
        "B_k_cache": _B_in["k_cache"],
        "B_v_cache": _B_in["v_cache"],
        "B_wq": _B_in["wq"],
        "B_wo": _B_in["wo"],
    }

def reference(A_x, A_k_cache, A_v_cache, A_wq, A_wo, B_x, B_k_cache, B_v_cache, B_wq, B_wo):
    def _A_ref(x, k_cache, v_cache, wq, wo):
        B, Sq, D = x.shape
        Hq, Dh = 32, 128
        Hkv = k_cache.shape[1]
        rep = Hq // Hkv
        q = (lambda x, *d: x.permute(*d))((x @ wq).reshape(B, Sq, Hq, Dh), 0, 2, 1, 3)
        k = (lambda x, n, axis: torch.repeat_interleave(x, n, dim=axis))(k_cache, rep, axis=1)
        v = (lambda x, n, axis: torch.repeat_interleave(x, n, dim=axis))(v_cache, rep, axis=1)
        scores = torch.einsum("bhqd,bhkd->bhqk", q, k) * (Dh ** -0.5)
        p = _softmax(scores, axis=-1)
        o = torch.einsum("bhqk,bhkd->bhqd", p, v)
        return (lambda x, *d: x.permute(*d))(o, 0, 2, 1, 3).reshape(B, Sq, Hq * Dh) @ wo

    def _B_ref(x, k_cache, v_cache, wq, wo):
        B, Sq, D = x.shape
        H, Dh = 32, 128
        q = (lambda x, *d: x.permute(*d))((x @ wq).reshape(B, Sq, H, Dh), 0, 2, 1, 3)
        scores = torch.einsum("bhqd,bhkd->bhqk", q, k_cache) * (Dh ** -0.5)
        p = _softmax(scores, axis=-1)
        o = torch.einsum("bhqk,bhkd->bhqd", p, v_cache)
        return (lambda x, *d: x.permute(*d))(o, 0, 2, 1, 3).reshape(B, Sq, H * Dh) @ wo

    a = _A_ref(A_x, A_k_cache, A_v_cache, A_wq, A_wo)
    b = _B_ref(B_x, B_k_cache, B_v_cache, B_wq, B_wo)
    return torch.concatenate([a, b], axis=-1)
```

```python
import re

RE_REG = re.compile(r'\b([vas])\[(\d+):(\d+)\]|\b([vas])(\d+)\b')

def regs_of(tok):
    tok = tok.strip()
    out = set()
    if tok in ('vcc',):
        return {('s', 'vcc')}
    if tok == 'exec':
        return {('s', 'exec')}
    if tok == 'm0':
        return {('s', 'm0')}
    m = re.fullmatch(r'-?\|?([vas])\[(\d+):(\d+)\]\|?', tok)
    if m:
        return {(m.group(1), i) for i in range(int(m.group(2)), int(m.group(3)) + 1)}
    m = re.fullmatch(r'-?\|?([vas])(\d+)\|?', tok)
    if m:
        return {(m.group(1), int(m.group(2)))}
    return out

TRANS = ('v_exp_f32', 'v_log_f32', 'v_rcp_f32', 'v_rsq_f32', 'v_sqrt_f32', 'v_sin_f32', 'v_cos_f32')

class Ins:
    __slots__ = ('text', 'op', 'kind', 'rd', 'wr', 'tag', 'wait', 'passes', 'srcc', 'srcab', 'dst', 'states', 'label', 'wide_store_data', 'optional')
    def __init__(self, text, tag=None):
        self.text = text
        self.tag = tag
        self.wait = None
        self.rd = set(); self.wr = set()
        self.passes = 0; self.srcc = set(); self.srcab = set(); self.dst = set()
        self.states = 1
        self.label = None
        self.wide_store_data = set()
        self.optional = False
        t = text.split(';')[0].strip()
        if t.endswith(':'):
            self.kind = 'label'; self.op = ''; self.label = t[:-1]; self.states = 0
            return
        if not t or t.startswith('.'):
            self.kind = 'directive'; self.op = ''; self.states = 0
            return
        parts = t.split(None, 1)
        op = parts[0]; self.op = op
        ops = []
        if len(parts) > 1:
            ops = [x.strip() for x in parts[1].split(',')]
            last = ops[-1].split()
            ops[-1] = last[0]
            mods = last[1:]
        else:
            mods = []
        base = re.sub(r'_e(32|64)$', '', op)
        if op.startswith('v_mfma'):
            self.kind = 'mfma'
            self.passes = 8 if '32x32x16' in op else 4
            self.dst = regs_of(ops[0]); self.wr = set(self.dst)
            self.srcab = regs_of(ops[1]) | regs_of(ops[2])
            self.srcc = regs_of(ops[3])
            self.rd = self.srcab | self.srcc
        elif op.startswith('ds_read') or op.startswith('ds_bpermute') or op.startswith('ds_swizzle'):
            self.kind = 'lds'
            self.wr = regs_of(ops[0])
            for o in ops[1:]: self.rd |= regs_of(o)
        elif op.startswith('ds_write') or op.startswith('ds_add'):
            self.kind = 'lds'
            for o in ops: self.rd |= regs_of(o)
        elif op.startswith('buffer_load') or op.startswith('global_load'):
            self.kind = 'vmem'
            if 'lds' in mods or op.startswith('global_load_lds'):
                for o in ops: self.rd |= regs_of(o)
                self.rd.add(('s', 'm0'))
                self.kind = 'dma'
            else:
                self.wr = regs_of(ops[0])
                for o in ops[1:]: self.rd |= regs_of(o)
        elif op.startswith('buffer_store') or op.startswith('global_store'):
            self.kind = 'vmem'
            for o in ops: self.rd |= regs_of(o)
            if 'x4' in op or 'x3' in op:
                self.wide_store_data = regs_of(ops[0]) if op.startswith('buffer') else regs_of(ops[1])
        elif op.startswith('buffer_atomic') or op.startswith('global_atomic'):
            self.kind = 'vmem'
            for o in ops: self.rd |= regs_of(o)
            if 'sc0' in mods: self.wr = regs_of(ops[0])
        elif op.startswith('buffer_wbl2') or op.startswith('buffer_inv'):
            self.kind = 'vmem'
        elif op.startswith('v_'):
            self.kind = 'valu'
            if base.startswith('v_cmp'):
                self.wr = regs_of(ops[0])
                for o in ops[1:]: self.rd |= regs_of(o)
            elif base.startswith('v_permlane32_swap') or base.startswith('v_permlane16_swap'):
                self.wr = regs_of(ops[0]) | regs_of(ops[1]); self.rd = set(self.wr)
            elif base in ('v_add_co_u32', 'v_addc_co_u32', 'v_sub_co_u32'):
                self.wr = regs_of(ops[0]) | regs_of(ops[1])
                for o in ops[2:]: self.rd |= regs_of(o)
            else:
                self.wr = regs_of(ops[0])
                for o in ops[1:]: self.rd |= regs_of(o)
                if base in ('v_fmac_f32',): self.rd |= self.wr
                if base == 'v_cndmask_b32' and len(ops) == 3: self.rd.add(('s', 'vcc'))
        elif op == 's_nop':
            self.kind = 'nop'; self.states = int(ops[0], 0) + 1
        elif op == 's_waitcnt':
            self.kind = 'wait'
        elif op == 's_barrier':
            self.kind = 'barrier'
        elif op.startswith('s_cbranch') or op in ('s_branch', 's_setpc_b64', 's_swappc_b64', 's_endpgm'):
            self.kind = 'branch'
            for o in ops: self.rd |= regs_of(o)
            if op == 's_swappc_b64': self.wr = regs_of(ops[0])
        elif op.startswith('s_load') or op.startswith('s_mem'):
            self.kind = 'smem'
            self.wr = regs_of(ops[0])
            for o in ops[1:]: self.rd |= regs_of(o)
        elif op.startswith('s_'):
            self.kind = 'salu'
            if op.startswith('s_cmp') or op in ('s_setprio', 's_sleep', 's_bitcmp1_b32', 's_bitcmp0_b32'):
                for o in ops: self.rd |= regs_of(o)
            else:
                self.wr = regs_of(ops[0])
                for o in ops[1:]: self.rd |= regs_of(o)
                if 'saveexec' in op: self.wr.add(('s', 'exec'))
        else:
            raise ValueError('cannot parse: ' + text)

    def is_trans(self):
        return self.kind == 'valu' and re.sub(r'_e(32|64)$', '', self.op) in TRANS

def need_states(prev, cur):
    n = 0
    vg = lambda s: {r for r in s if r[0] in 'va'}
    sg = lambda s: {r for r in s if r[0] == 's'}
    if prev.kind == 'valu':
        w = vg(prev.wr)
        if cur.kind == 'mfma' and (w & cur.rd): n = max(n, 2)
        if cur.kind == 'valu':
            if cur.op.startswith('v_permlane') and (w & cur.rd): n = max(n, 2)
            if (cur.op.startswith('v_readfirstlane') or cur.op.startswith('v_readlane')) and (w & cur.rd): n = max(n, 1)
            if prev.is_trans() and not cur.is_trans() and (w & cur.rd): n = max(n, 1)
            if 'dpp' in cur.text and (w & cur.rd): n = max(n, 2)
        ws = sg(prev.wr)
        if ws:
            if cur.kind in ('vmem', 'dma') and (ws & cur.rd): n = max(n, 5)
            if cur.kind == 'valu' and (ws & cur.rd): n = max(n, 2)
            if cur.kind in ('salu', 'branch') and (ws & cur.rd): n = max(n, 1)
            if cur.kind == 'branch' and 'vcc' in cur.op and ('s', 'vcc') in ws: n = max(n, 5)
    if prev.kind == 'mfma':
        big = prev.passes == 8
        d = prev.dst
        if cur.kind == 'mfma':
            if d & cur.srcab: n = max(n, 12 if big else 8)
            if d & cur.srcc:
                if not (cur.srcc == d and cur.passes == prev.passes): n = max(n, 10 if big else 6)
            if (d & cur.dst) and not (cur.srcc == d and cur.dst == d) :
                if cur.dst != d or cur.passes != prev.passes: n = max(n, 10 if big else 6)
        elif cur.kind in ('valu', 'vmem', 'dma', 'lds'):
            if d & (cur.rd | cur.wr): n = max(n, 12 if big else 8)
            if cur.kind == 'valu' and (prev.srcc & cur.wr): n = max(n, 7 if big else 3)
    if prev.kind == 'salu' and ('s', 'm0') in prev.wr and cur.kind == 'dma': n = max(n, 1)
    if prev.kind == 'salu' and ('s', 'exec') in prev.wr and cur.kind == 'valu' and 'dpp' in cur.text: n = max(n, 0)
    if prev.kind == 'vmem' and prev.wide_store_data:
        if cur.kind == 'valu' and (prev.wide_store_data & cur.wr): n = max(n, 2)
        elif cur.kind in ('mfma', 'lds', 'vmem') and (prev.wide_store_data & cur.wr): n = max(n, 2)
    return n

MAXLOOK = 24

class Prog:
    def __init__(self):
        self.ins = []
        self.nops = 0
    def raw(self, text, tag=None):
        i = Ins(text, tag); self.ins.append(i); return i
    def I(self, text, tag=None):
        cur = Ins(text, tag)
        self.ins.append(cur)
        return cur
    def pad(self):
        old = self.ins; self.ins = []
        for cur in old:
            if cur.kind not in ('label', 'directive'):
                k = self.need(cur)
                if k > 0: self.nops += k
                while k > 0:
                    m = min(k, 16)
                    self.ins.append(Ins('s_nop %d' % (m - 1)))
                    k -= m
            self.ins.append(cur)
    def need(self, cur):
        dist = 0; need = 0
        for p in reversed(self.ins):
            if dist >= MAXLOOK: break
            if p.kind in ('label', 'directive'): continue
            r = need_states(p, cur) - dist
            if r > need: need = r
            dist += p.states
        return need
    def wait_lgkm(self, tag):
        i = Ins('s_waitcnt lgkmcnt(0)'); i.wait = ('lgkm', tag); self.ins.append(i); return i
    def wait_vm(self, tag):
        i = Ins('s_waitcnt vmcnt(0)'); i.wait = ('vm', tag); self.ins.append(i); return i
    def label(self, name):
        self.ins.append(Ins(name + ':'))
    def text(self):
        out = []
        for i in self.ins:
            if i.kind == 'label' or i.kind == 'directive': out.append(i.text)
            else: out.append('    ' + i.text)
        return '\n'.join(out)

def counts_for(ins):
    if ins.kind == 'lds': return 'lgkm'
    if ins.kind in ('vmem', 'dma'): return 'vm'
    return None

def resolve_waits(sequence):
    vals = {}
    hist = {'lgkm': [], 'vm': []}
    for ins in sequence:
        c = counts_for(ins)
        if c: hist[c].append(ins.tag)
        if ins.kind == 'smem': hist['lgkm'].append('__smem__')
        if ins.wait:
            cls, tag = ins.wait
            h = hist[cls]
            tags = tag if isinstance(tag, (list, tuple, set)) else [tag]
            n = None
            if tag == 'ALL': n = 0
            else:
                for t in tags:
                    k = None
                    for j in range(len(h) - 1, -1, -1):
                        if h[j] == t: k = len(h) - 1 - j; break
                    if k is None: continue
                    n = k if n is None else min(n, k)
            if n is None: continue
            vals[id(ins)] = min(vals.get(id(ins), 99), n)
    needed = set()
    out = {'lgkm': 0, 'vm': 0}
    smem_pending = False
    for ins in sequence:
        c = counts_for(ins)
        if c: out[c] += 1
        if ins.kind == 'smem': smem_pending = True; out['lgkm'] += 2
        if ins.wait:
            cls = ins.wait[0]
            n = vals.get(id(ins))
            if n is None:
                continue
            mx = 15 if cls == 'lgkm' else 63
            n = min(n, mx)
            if cls == 'lgkm' and smem_pending: n = 0
            ins.text = 's_waitcnt %s(%d)' % ('lgkmcnt' if cls == 'lgkm' else 'vmcnt', n)
            if out[cls] > n:
                needed.add(id(ins)); out[cls] = n
                if cls == 'lgkm' and n == 0: smem_pending = False
        elif ins.kind == 'wait':
            m = re.search(r'lgkmcnt\((\d+)\)', ins.text)
            if m:
                out['lgkm'] = min(out['lgkm'], int(m.group(1)))
                if int(m.group(1)) == 0: smem_pending = False
            m = re.search(r'vmcnt\((\d+)\)', ins.text)
            if m: out['vm'] = min(out['vm'], int(m.group(1)))
    for ins in sequence:
        if ins.wait and id(ins) not in needed: ins.optional = True

def drop_optional(prog):
    prog.ins = [i for i in prog.ins if not i.optional]

def check_hazards(sequence, name=''):
    seq = [i for i in sequence if i.kind not in ('label', 'directive')]
    bad = 0
    for k, cur in enumerate(seq):
        dist = 0
        for j in range(k - 1, max(-1, k - 40), -1):
            p = seq[j]
            r = need_states(p, cur)
            if r > dist:
                print('HAZARD %s: [%s] -> [%s] need %d have %d' % (name, p.text, cur.text, r, dist)); bad += 1
            dist += p.states
            if dist >= MAXLOOK: break
    return bad
```

```python
from asmlib import *

SLOT = 53248
KOFF, VOFF, WOFF = 0, 16384, 32768
NSLOT = 3
LDS_BYTES = 163840
O_UNIT = 28672

QACC = 0; OACC = 64; SB = (128, 160); Q = 192
KA = 224; VA = 232; WA = 236; KD = 240; VD = 244; WD = 245; OST = 246; L0 = 247; L1 = 248
LT = 249; T0 = 250; T1 = 251; T2 = 252; T3 = 253; T4 = 254; T5 = 255
XA = 0; POOL = 160; NPOOL = 8
sK = 8; sV = 12; sW = 16; sO = 20; sX = 24
sWAVE = 28; sKo = 29; sVo = 30; sWo = 31; sRd = 32; sDelta = 33; sHead = 35
sWrK = 34; sWrW = 50; sT = 36; sT2 = 37; sW4096 = 38; sW5120 = 39; sOo = 40; sC = 41; sSlot = 42; sWrap = 43
sM = 44
sRet = 46
sHb = 48
sI = 49
QSCALE = 0x3e0293ee
import struct, math
QSCALE = struct.unpack('<I', struct.pack('<f', math.log2(math.e) / math.sqrt(128.0)))[0]

def vr(b, n): return 'v[%d:%d]' % (b, b + n - 1)
def ar(b, n): return 'a[%d:%d]' % (b, b + n - 1)

class M:
    def __init__(self, d, b, c0, reads, first_use=None):
        self.d = d; self.b = b; self.c0 = c0; self.reads = reads
        self.first_use = first_use

def mf_S(buf):
    out = []
    for T in range(2):
        for ks in range(8):
            out.append(M(vr(buf + 16 * T, 16), vr(Q + 4 * ks, 4), ks == 0,
                         [('ds_read_b128', 0, 4, KA + ks, KOFF + T * 8192)]))
    return out

def mf_Q(g, dtmajor=False):
    out = []
    order = [(ks, dt) for dt in range(4) for ks in range(5)] if dtmajor else [(ks, dt) for ks in range(5) for dt in range(4)]
    for (ks, dt) in order:
        if True:
            out.append(M(vr(QACC + 16 * dt, 16), ar(XA + 4 * (5 * g + ks), 4), g == 0 and ks == 0,
                         [('ds_read_b64_tr_b16', 2 * e, 2, WA + dt, WOFF + (16 * ks + 4 * e) * 256) for e in range(2)]))
    return out

def mf_PV(g, dtmajor=False):
    buf = SB[g & 1]
    out = []
    order = [(k, dt) for dt in range(4) for k in range(4)] if dtmajor else [(k, dt) for k in range(4) for dt in range(4)]
    for (k, dt) in order:
        T, half = k >> 1, k & 1
        if True:
            out.append(M(vr(OACC + 16 * dt, 16), vr(buf + 16 * T + 8 * half, 4), g == 0 and k == 0,
                         [('ds_read_b64_tr_b16', 2 * e, 2, VA + dt, VOFF + (16 * k + 8 * e) * 256) for e in range(2)]))
    return out

def softmax_ops(g):
    buf = SB[g & 1]
    chunks = []
    for k in range(4):
        T, half = k >> 1, k & 1
        b = buf + 16 * T + 8 * half
        ops = []
        for i in range(8): ops.append('v_exp_f32_e32 v%d, v%d' % (b + i, b + i))
        for i in range(8):
            l = L0 if i % 2 == 0 else L1
            ops.append('v_add_f32_e32 v%d, v%d, v%d' % (l, b + i, l))
        for j in range(4): ops.append('v_cvt_pk_bf16_f32 v%d, v%d, v%d' % (b + j, b + 2 * j, b + 2 * j + 1))
        e, a, c = ops[:8], ops[8:16], ops[16:]
        seq = [e[0], e[1]]
        for i in range(2, 8): seq += [e[i], a[i - 2]]
        seq += [a[6], a[7]] + c
        chunks.append(seq)
    return chunks

def qconv_ops(dts=range(4)):
    ops = []
    for dt in dts:
        for r in range(16): ops.append('v_mul_f32_e32 v%d, s%d, v%d' % (QACC + 16 * dt + r, sC, QACC + 16 * dt + r))
        for half in range(2):
            ks = 2 * dt + half
            for j in range(4):
                r = QACC + 16 * dt + 8 * half + 2 * j
                ops.append('v_cvt_pk_bf16_f32 v%d, v%d, v%d' % (Q + 4 * ks + j, r, r + 1))
    return ops

def ofin_ops(dts=range(4)):
    ops = []
    for dt in dts:
        b = OACC + 16 * dt
        for r in range(16): ops.append('v_mul_f32_e32 v%d, v%d, v%d' % (b + r, LT, b + r))
        for j in range(8): ops.append('v_cvt_pk_bf16_f32 v%d, v%d, v%d' % (b + j, b + 2 * j, b + 2 * j + 1))
        ops.append('s_add_u32 s%d, s%d, %d' % (sT, sOo, dt * 7168))
        for half in range(2):
            if not EXP.get('nost'): ops.append(('buffer_store_dwordx4 %s, v%d, s[%d:%d], s%d offen offset:%d %s' % (vr(b + 4 * half, 4), OST, sO, sO + 3, sT, half * 512, STPOL), 'ost'))
    if 3 in dts: ops.append('s_add_u32 s%d, s%d, %d' % (sOo, sOo, O_UNIT))
    return ops

def dma_K(tag):
    ops = ['s_mov_b32 m0, s%d' % sWrK]
    for j in range(4):
        ops.append(('buffer_load_dwordx4 v%d, s[%d:%d], s%d offen offset:%d %s lds' % (KD + j, sK, sK + 3, sKo, j * 1024, KVPOL), tag))
    ops.append('s_add_u32 s%d, s%d, 16384' % (sKo, sKo))
    return ops

def dma_V(tag):
    ops = ['s_add_u32 m0, s%d, %d' % (sWrK, VOFF)]
    for j in range(4):
        ops.append(('buffer_load_dwordx4 v%d, s[%d:%d], s%d offen offset:%d %s lds' % (VD, sV, sV + 3, sVo, j * 1024, KVPOL), tag))
    ops.append('s_add_u32 s%d, s%d, 16384' % (sVo, sVo))
    return ops

STPOL = ''
WPOL = ''
KVPOL = 'nt'
def dma_W(tag):
    ops = ['s_mov_b32 m0, s%d' % sWrW]
    for j in range(4):
        if j == 0:
            ops.append(('buffer_load_dwordx4 v%d, s[%d:%d], s%d offen offset:0 %s lds' % (WD, sW, sW + 3, sWo, WPOL), tag))
        else:
            ops.append('s_add_u32 s%d, s%d, %d' % (sT2, sWo, j * (32768 - 1024)))
            ops.append(('buffer_load_dwordx4 v%d, s[%d:%d], s%d offen offset:%d %s lds' % (WD, sW, sW + 3, sT2, j * 1024, WPOL), tag))
    ops.append('s_add_u32 m0, s%d, 4096' % sWrW)
    ops.append('s_add_u32 s%d, s%d, %d' % (sT2, sWo, 4 * 32768))
    ops.append(('buffer_load_dwordx4 v%d, s[%d:%d], s%d offen offset:0 %s lds' % (WD, sW, sW + 3, sT2, WPOL), tag))
    ops.append('s_add_u32 s%d, s%d, %d' % (sWo, sWo, 80 * 8192))
    return ops

def set_wr(base):
    return ['s_add_u32 s%d, s%d, %d' % (sWrK, sW4096, base), 's_add_u32 s%d, s%d, %d' % (sWrW, sW5120, base)]

def ring_advance():
    return ['s_add_u32 s%d, s%d, s%d' % (sWrK, sRd, sW4096),
            's_add_u32 s%d, s%d, s%d' % (sWrW, sRd, sW5120),
            's_add_u32 s%d, s%d, s%d' % (sRd, sRd, sSlot),
            's_cmp_eq_u32 s%d, %d' % (sRd, NSLOT * SLOT),
            's_cselect_b32 s%d, s%d, s%d' % (sDelta, sWrap, sSlot),
            's_cselect_b32 s%d, 0, s%d' % (sRd, sRd)]

def cost_of(op):
    if callable(op): return 60
    t = op[0] if isinstance(op, tuple) else op
    if t.startswith('buffer_'): return 20
    if t.startswith('v_exp') or t.startswith('v_rcp'): return 8
    return 4

class Step:
    def __init__(self, name, mf, paced=None, fixed=None):
        self.name = name; self.mf = mf
        self.paced = paced or []
        self.fixed = fixed or {}

STAMP = False
EXP = {}
D_AHEAD = 6
D_BAR = 3
WAITW = 2
BUDGET = 26

class Emitter:
    def __init__(self, P):
        self.P = P
        self.fr = 0
        self.uid = 0
    def emit_op(self, op):
        if isinstance(op, tuple):
            if op[0] == 'WAITVM': self.P.wait_vm(op[1])
            elif op[0] == 'WAITLGKM': self.P.wait_lgkm(op[1])
            else: self.P.I(op[0], op[1])
        elif callable(op): op(self.P)
        else: self.P.I(op)
    def issue_reads(self, m, upd):
        P = self.P
        c = 0
        m.frag = POOL + 4 * (self.fr % NPOOL); self.fr += 1
        self.uid += 1; m.tag = 'f%d' % (self.uid); m.issued = True
        for (op, off, n, addr, imm) in m.reads:
            if addr in upd:
                P.I('v_add_u32_e32 v%d, s%d, v%d' % (addr, sDelta, addr)); upd.discard(addr); c += 4
            P.I('%s %s, v%d offset:%d' % (op, ar(m.frag + off, n), addr, imm), m.tag); c += 4
        return c
    def boundary(self, nxt):
        P = self.P
        P.wait_lgkm('ALL')
        if STAMP:
            P.I('%s s[72:73]' % ('s_memrealtime' if EXP.get('rt') else 's_memtime')); P.I('s_waitcnt lgkmcnt(0)')
            P.I('s_mov_b32 m0, s74'); P.I('v_writelane_b32 v%d, s72, m0' % T4)
        P.wait_vm('ld_' + nxt.name)
        P.I('s_barrier')
        if STAMP:
            P.I('s_memtime s[72:73]'); P.I('s_waitcnt lgkmcnt(0)')
            P.I('s_mov_b32 m0, s74'); P.I('v_writelane_b32 v%d, s72, m0' % T5)
            P.I('s_add_u32 s74, s74, 1')
        for o in ring_advance(): P.I(o)
        return set(list(range(KA, KA + 8)) + list(range(VA, VA + 4)) + list(range(WA, WA + 4)))
    def run(self, steps, nxt_after, pre_issued, upd, valu):
        P = self.P
        allm = []
        for si, s in enumerate(steps):
            for i, m in enumerate(s.mf): allm.append((si, i, m))
        n = len(allm)
        tail = [(len(steps), i, m) for i, m in enumerate(nxt_after.mf)] if nxt_after else []
        seq = allm + tail
        first_of = {}
        for k, (si, i, m) in enumerate(seq):
            if i == 0: first_of[si] = k
        nread = pre_issued
        entered = 0
        vq = list(valu); vp = 0
        ppos = 0
        for k in range(n):
            si, i, m = allm[k]
            s = steps[si]
            if i == 0: ppos = 0
            used = 0
            tgt = k
            if i % WAITW == 0:
                for d in range(1, WAITW):
                    if k + d < n and allm[k + d][0] == si and k + d < nread: tgt = k + d
            P.wait_lgkm(seq[tgt][2].tag)
            if i % WAITW == 0: used += 4
            c = '0' if m.c0 else m.d
            if not getattr(m, 'skip', False) or (k % int(EXP['skipm']) == 0): P.I('v_mfma_f32_32x32x16_bf16 %s, %s, %s, %s' % (m.d, ar(m.frag, 4), m.b, c))
            nm = len(s.mf)
            last = nm - 2 - D_BAR
            if EXP.get('dmaend') and s.name[0] == 'G': last = int(EXP['dmaend'])
            if i <= last:
                want = len(s.paced) if i == last else int(math.ceil(len(s.paced) * (i + 1) / float(last + 1)))
                while ppos < want:
                    used += cost_of(s.paced[ppos]); self.emit_op(s.paced[ppos]); ppos += 1
            for o in s.fixed.get(i, []):
                used += cost_of(o); self.emit_op(o)
            if si + 1 in first_of and k == first_of[si + 1] - 1 - D_BAR and entered == si:
                assert ppos == len(s.paced)
                for a in sorted(upd): P.I('v_add_u32_e32 v%d, s%d, v%d' % (a, sDelta, a)); used += 4
                nx = steps[si + 1] if si + 1 < len(steps) else nxt_after
                upd = self.boundary(nx); entered = si + 1; used += 40
            while nread < len(seq) and nread <= k + D_AHEAD and seq[nread][0] <= entered and (seq[nread][0] < len(steps) or nread - n < D_BAR):
                used += self.issue_reads(seq[nread][2], upd); nread += 1
            while vp < len(vq) and (vq[vp][2] <= k or (vq[vp][1] <= k and used + cost_of(vq[vp][0]) <= BUDGET)):
                used += cost_of(vq[vp][0]); self.emit_op(vq[vp][0]); vp += 1
        assert vp == len(vq), (vp, len(vq))
        return upd

def check_and_hook(P):
    P.I('v_add_f32_e32 v%d, v%d, v%d' % (LT, L0, L1))
    P.I('v_mov_b32_e32 v%d, v%d' % (T0, LT))
    P.I('v_mov_b32_e32 v%d, 0' % L0)
    P.I('v_mov_b32_e32 v%d, 0' % L1)
    P.I('v_permlane32_swap_b32_e32 v%d, v%d' % (LT, T0))
    P.I('v_add_f32_e32 v%d, v%d, v%d' % (LT, LT, T0))
    P.I('v_cmp_le_f32_e32 vcc, 0x33800000, v%d' % LT)
    P.I('s_nop 0')
    P.I('s_mov_b64 s[%d:%d], vcc' % (sM, sM + 1))
    P.I('v_cmp_ge_f32_e32 vcc, 0x4b800000, v%d' % LT)
    P.I('s_nop 0')
    P.I('s_and_b64 s[%d:%d], s[%d:%d], vcc' % (sM, sM + 1, sM, sM + 1))
    P.I('s_cmp_eq_u64 s[%d:%d], -1' % (sM, sM + 1))
    if not (EXP.get('nosm') or EXP.get('skipm') or EXP.get('nokv')):
        P.I('s_cbranch_scc1 L_fast_ok')
        P.I('s_branch L_slow')
    P.label('L_slow_ret')
    P.label('L_fast_ok')
    P.I('v_rcp_f32_e32 v%d, v%d' % (LT, LT))

def nm(k, gg): return 'ld_%s%d' % (k, gg)
XR = SB[0]
XR2 = SB[0] + 8
XV = SB[0] + 16
X_SLOT = [0, 1, 2, 0, 2]

def dma_x(kt):
    ops = []
    for j in range(8):
        ops.append('s_add_u32 m0, s70, %d' % (X_SLOT[kt] * SLOT + j * 1024))
        ops.append('s_mov_b32 s7, %d' % (j * 4 * 1280 + kt * 256))
        ops.append(('buffer_load_dwordx4 v%d, s[%d:%d], s7 offen %s lds' % (XV + (j & 3), sX, sX + 3, XPOL), 'x%d' % kt))
    return ops

def read_x(kt):
    ops = [('WAITVM', 'x%d' % kt)]
    for ks in range(8):
        if X_SLOT[kt] == 2: a, off = XR2 + ks, 0
        else: a, off = XR + ks, X_SLOT[kt] * SLOT
        ops.append(('ds_read_b128 %s, v%d offset:%d' % (ar(XA + 4 * (8 * kt + ks), 4), a, off), 'xr%d' % kt))
    return ops
XPOL = ''

def const_wr(slot, ops_fn, tag):
    return ['s_add_u32 s%d, s%d, %d' % (sT, sW4096, slot * SLOT)] + [o.replace('s%d' % sWrK, 's%d' % sT) if isinstance(o, str) else o for o in ops_fn(tag)]

def make_step(kind, g):
    name = '%s%d' % (kind, g)
    if kind == 'P':
        mf = mf_Q(g, dtmajor=(g == 7))
        paced = []; fixed = {}
        if 1 <= g <= 5: paced += dma_W(nm('P', g + 2))
        if g == 0: fixed[4] = read_x(1)
        if g == 1: paced += dma_x(3)
        if g == 2: fixed[2] = read_x(2); paced += [('WAITLGKM', 'xr2')] + dma_x(4)
        if g == 3: paced += const_wr(1, dma_K0, nm('P', 7)); fixed[8] = read_x(3)
        if g == 4: paced += const_wr(0, dma_K2, nm('G', 1)) + const_wr(0, dma_V1, nm('G', 1)); fixed[8] = read_x(4)
        if g == 5: paced += const_wr(2, dma_K1, nm('G', 0)) + const_wr(2, dma_V0, nm('G', 0))
        if g == 6: paced += ['s_add_u32 s%d, s%d, %d' % (sWo, sWo, (256 - 8 * 80 * 8192) & 0xffffffff)] + dma_W(nm('G', 0))
        if g == 7:
            paced += dma_W(nm('G', 1))
            mf = mf + mf_S(SB[0])
        return Step(name, mf, paced, fixed)
    tgt = nm('G', (g + 2) % 8)
    loads = []
    if g == 6:
        loads += ['s_add_u32 s%d, s%d, %d' % (sWo, sWo, (256 - 8 * 80 * 8192) & 0xffffffff),
                  's_cmp_ge_u32 s%d, 2' % sHead,
                  's_cselect_b32 s%d, 0, s%d' % (sW + 2, sW + 2)]
    if EXP.get('nokv') is None: loads += dma_K(tgt) + dma_V(tgt)
    if EXP.get('now') is None: loads += dma_W(tgt)
    if g < 7: mf = mf_S(SB[(g + 1) & 1]) + mf_Q(g) + mf_PV(g)
    else: mf = mf_Q(7, True) + mf_PV(7, True) + mf_S(SB[0])
    if EXP.get('skipm'):
        for m in mf: m.skip = True
    return Step(name, mf, loads)

def with_soff(ops, reg, val):
    out = ['s_mov_b32 s%d, %d' % (sI, val)]
    for o in ops:
        if isinstance(o, tuple): out.append((o[0].replace(', s%d offen' % reg, ', s%d offen' % sI), o[1]))
        elif o.startswith('s_add_u32 s%d, s%d' % (reg, reg)): continue
        else: out.append(o)
    return out
def dma_K0(tag): return with_soff(dma_K(tag), sKo, 0)
def dma_K1(tag): return with_soff(dma_K(tag), sKo, 1 * 16384)
def dma_K2(tag): return with_soff(dma_K(tag), sKo, 2 * 16384)
def dma_V0(tag): return with_soff(dma_V(tag), sVo, 0)
def dma_V1(tag): return with_soff(dma_V(tag), sVo, 16384)

def valu_prologue(base7):
    q = []
    for dt in range(4):
        for o in qconv_ops([dt]): q.append((o, base7 + 5 * dt + 4 + 3, base7 + 19 + 2 * dt))
    return q

def valu_head():
    q = []
    for g in range(8):
        sm = softmax_ops(g)
        if EXP.get('nosm'): sm = [[], [], [], []]
        for c in range(4):
            est = 0 if g == 0 else 52 * (g - 1) + 8 * ((c >> 1) + 1) + 2
            ddl = 52 * g + 35 + 4 * c if g < 7 else 52 * 7 + 6
            for o in sm[c]: q.append((o, est, ddl))
    b = 52 * 7
    q.append((check_and_hook, b, b + 6))
    for dt in range(4):
        for o in qconv_ops([dt]): q.append((o, b + 5 * dt + 4 + 3, b + 35 + 2 * dt))
        if dt >= 1: pass
    for dt in range(4):
        for o in ofin_ops([dt]): q.append((o, b + 20 + 4 * dt + 3 + 3, b + 51))
    return q

def slow_path(P):
    S0, S1 = SB
    P.label('L_slow')
    P.I('s_nop 15'); P.I('s_nop 15')
    P.I('v_mbcnt_lo_u32_b32 v%d, -1, 0' % T0)
    P.I('v_mbcnt_hi_u32_b32 v%d, -1, v%d' % (T0, T0))
    P.I('v_and_b32_e32 v%d, 31, v%d' % (T1, T0))
    P.I('v_lshrrev_b32_e32 v%d, 5, v%d' % (T2, T0))
    P.I('v_lshlrev_b32_e32 v%d, 8, v%d' % (T3, T1))
    P.I('v_lshl_add_u32 v%d, v%d, 4, v%d' % (T3, T2, T3))
    P.I('v_lshlrev_b32_e32 v%d, 10, v%d' % (T4, T2))
    P.I('v_lshl_add_u32 v%d, v%d, 1, v%d' % (T4, T1, T4))
    P.I('v_add_u32_e32 v%d, 0x1000, v%d' % (T5, T4))
    P.I('s_lshl_b32 s%d, s%d, 17' % (sHb, sHead))
    def s_tile():
        for ks in range(8):
            P.I('buffer_load_dwordx4 %s, v%d, s[%d:%d], s%d offen offset:%d' % (vr(S0 + 4 * ks, 4), T3, sK, sK + 3, sT2, ks * 32))
        P.I('s_waitcnt vmcnt(0)')
        for ks in range(8):
            P.I('v_mfma_f32_32x32x16_bf16 %s, %s, %s, %s' % (vr(S1, 16), vr(S0 + 4 * ks, 4), vr(Q + 4 * ks, 4), '0' if ks == 0 else vr(S1, 16)))
        P.I('s_nop 15')
    P.I('v_mov_b32_e32 v%d, 0xff800000' % T0)
    P.I('s_mov_b32 s%d, 0' % sI)
    P.label('L_slow_max')
    P.I('s_lshl_b32 s%d, s%d, 13' % (sT2, sI))
    P.I('s_add_u32 s%d, s%d, s%d' % (sT2, sT2, sHb))
    s_tile()
    for r in range(0, 16, 2): P.I('v_max3_f32 v%d, v%d, v%d, v%d' % (T0, T0, S1 + r, S1 + r + 1))
    P.I('s_add_u32 s%d, s%d, 1' % (sI, sI))
    P.I('s_cmp_lt_u32 s%d, 16' % sI)
    P.I('s_cbranch_scc1 L_slow_max')
    P.I('v_mov_b32_e32 v%d, v%d' % (T1, T0))
    P.I('s_nop 1')
    P.I('v_permlane32_swap_b32_e32 v%d, v%d' % (T0, T1))
    P.I('v_max_f32_e32 v%d, v%d, v%d' % (T0, T0, T1))
    P.I('v_mov_b32_e32 v%d, 0' % LT)
    for r in range(64): P.I('v_mov_b32_e32 v%d, 0' % (OACC + r))
    P.I('s_mov_b32 s%d, 0' % sI)
    P.label('L_slow_pv')
    P.I('s_lshl_b32 s%d, s%d, 13' % (sT2, sI))
    P.I('s_add_u32 s%d, s%d, s%d' % (sT2, sT2, sHb))
    s_tile()
    for r in range(16): P.I('v_sub_f32_e32 v%d, v%d, v%d' % (S1 + r, S1 + r, T0))
    for r in range(16): P.I('v_exp_f32_e32 v%d, v%d' % (S1 + r, S1 + r))
    P.I('s_nop 0')
    for r in range(16): P.I('v_add_f32_e32 v%d, v%d, v%d' % (LT, LT, S1 + r))
    for half in range(2):
        for j in range(4):
            r = S1 + 8 * half + 2 * j
            P.I('v_cvt_pk_bf16_f32 v%d, v%d, v%d' % (S1 + 8 * half + j, r, r + 1))
    for half in range(2):
        for dt in range(4):
            for i in range(8):
                P.I('buffer_load_ushort v%d, v%d, s[%d:%d], s%d offen offset:%d' % (S0 + i, T4 if half == 0 else T5, sV, sV + 3, sT2, (8 * (i >> 2) + (i & 3)) * 256 + dt * 64))
            P.I('s_waitcnt vmcnt(0)')
            for j in range(4):
                P.I('v_lshl_or_b32 v%d, v%d, 16, v%d' % (S0 + 8 + j, S0 + 2 * j + 1, S0 + 2 * j))
            P.I('s_nop 1')
            P.I('v_mfma_f32_32x32x16_bf16 %s, %s, %s, %s' % (vr(OACC + 16 * dt, 16), vr(S0 + 8, 4), vr(S1 + 8 * half, 4), vr(OACC + 16 * dt, 16)))
            P.I('s_nop 7')
    P.I('s_add_u32 s%d, s%d, 1' % (sI, sI))
    P.I('s_cmp_lt_u32 s%d, 16' % sI)
    P.I('s_cbranch_scc1 L_slow_pv')
    P.I('v_mov_b32_e32 v%d, v%d' % (T1, LT))
    P.I('s_nop 1')
    P.I('v_permlane32_swap_b32_e32 v%d, v%d' % (LT, T1))
    P.I('v_add_f32_e32 v%d, v%d, v%d' % (LT, LT, T1))
    for T in range(2):
        for half in range(2):
            for j in range(4): P.I('v_mov_b32_e32 v%d, 0' % (S1 + 16 * T + 8 * half + j))
    P.I('s_nop 15')
    P.I('s_branch L_slow_ret')

def gen_k1(name='attn_kernel'):
    P = Prog()
    P.I('s_cmp_ge_u32 s2, 256')
    P.I('s_cbranch_scc1 L_end')
    P.I('s_load_dwordx8 s[52:59], s[0:1], 0')
    P.I('s_load_dwordx8 s[60:67], s[0:1], 40')
    P.I('s_load_dwordx2 s[68:69], s[0:1], 96')
    if STAMP:
        P.I('s_memtime s[76:77]'); P.I('s_memrealtime s[78:79]'); P.I('s_mov_b32 s74, 4')
    P.I('v_lshrrev_b32_e32 v1, 6, v0')
    P.I('v_and_b32_e32 v0, 63, v0')
    P.I('s_and_b32 s3, s2, 7')
    P.I('v_readfirstlane_b32 s%d, v1' % sWAVE)
    P.I('s_lshr_b32 s4, s2, 3')
    P.I('s_lshr_b32 s5, s3, 2')
    P.I('s_and_b32 s6, s3, 3')
    P.I('s_lshl_b32 s6, s6, 1')
    P.I('s_and_b32 s7, s4, 1')
    P.I('s_add_u32 s6, s6, s7')
    P.I('s_lshr_b32 s4, s4, 1')
    P.I('s_waitcnt lgkmcnt(0)')
    if STAMP:
        P.I('s_memtime s[72:73]'); P.I('s_waitcnt lgkmcnt(0)'); P.I('v_writelane_b32 v%d, s72, 0' % T4)
    P.I('s_cmp_eq_u32 s5, 0')
    for i in range(8): P.I('s_cselect_b32 s%d, s%d, s%d' % (52 + i, 52 + i, 60 + i))
    P.I('s_mul_i32 s7, s4, 143360')
    P.I('s_add_u32 s%d, s52, s7' % sX); P.I('s_addc_u32 s%d, s53, 0' % (sX + 1))
    P.I('s_mov_b32 s%d, 143360' % (sX + 2)); P.I('s_mov_b32 s%d, 0x20000' % (sX + 3))
    P.I('s_lshl_b32 s7, s4, 5'); P.I('s_lshl_b32 s70, s6, 2'); P.I('s_add_u32 s7, s7, s70')
    P.I('s_lshl_b32 s71, s7, 17')
    P.I('s_add_u32 s%d, s54, s71' % sK); P.I('s_addc_u32 s%d, s55, 0' % (sK + 1))
    P.I('s_mov_b32 s%d, 524288' % (sK + 2)); P.I('s_mov_b32 s%d, 0x20000' % (sK + 3))
    P.I('s_add_u32 s%d, s56, s71' % sV); P.I('s_addc_u32 s%d, s57, 0' % (sV + 1))
    P.I('s_mov_b32 s%d, 524288' % (sV + 2)); P.I('s_mov_b32 s%d, 0x20000' % (sV + 3))
    P.I('s_lshl_b32 s71, s70, 8')
    P.I('s_add_u32 s%d, s58, s71' % sW); P.I('s_addc_u32 s%d, s59, 0' % (sW + 1))
    P.I('s_sub_u32 s%d, 5242880, s71' % (sW + 2)); P.I('s_mov_b32 s%d, 0x20000' % (sW + 3))
    P.I('s_lshl_b32 s71, s5, 9'); P.I('s_add_u32 s71, s71, s7')
    P.I('s_mul_i32 s71, s71, %d' % O_UNIT)
    P.I('s_add_u32 s%d, s68, s71' % sO); P.I('s_addc_u32 s%d, s69, 0' % (sO + 1))
    P.I('s_mov_b32 s%d, %d' % (sO + 2, 4 * O_UNIT)); P.I('s_mov_b32 s%d, 0x20000' % (sO + 3))
    P.I('s_lshl_b32 s%d, s%d, 12' % (sW4096, sWAVE))
    P.I('s_mul_i32 s%d, s%d, 5120' % (sW5120, sWAVE))
    P.I('s_add_u32 s%d, s%d, %d' % (sW5120, sW5120, WOFF))
    P.I('v_and_b32_e32 v3, 15, v0'); P.I('v_lshrrev_b32_e32 v4, 4, v0')
    E = Emitter(P)
    P.I('s_lshl_b32 s70, s%d, 13' % sWAVE)
    P.I('s_mul_i32 s71, s%d, %d' % (sWAVE, 32 * 1280))
    P.I('v_mul_u32_u24_e32 v11, 1280, v4')
    for jj in range(4):
        P.I('v_add_u32_e32 v5, %d, v4' % (4 * jj))
        P.I('v_xor_b32_e32 v5, v5, v3'); P.I('v_lshlrev_b32_e32 v5, 4, v5')
        P.I('v_add3_u32 v%d, v5, v11, s71' % (XV + jj))
    P.I('v_lshlrev_b32_e32 v5, 2, v4'); P.I('v_xor_b32_e32 v5, v5, v3'); P.I('v_lshlrev_b32_e32 v5, 4, v5')
    P.I('s_mul_i32 s7, s%d, %d' % (sWAVE, 20 * 8192))
    P.I('v_lshl_add_u32 v11, v4, 13, v5'); P.I('v_add_u32_e32 v%d, s7, v11' % WD)
    P.I('v_lshl_add_u32 v11, v4, 8, v5'); P.I('v_add_u32_e32 v%d, s%d, v11' % (VD, sW4096))
    P.I('s_mov_b32 s%d, 0' % sWo)
    for n in range(3):
        for o in dma_x(n): E.emit_op(o)
        for o in set_wr(n * SLOT): P.I(o)
        for o in dma_W('ld_P%d' % n): E.emit_op(o)
    if STAMP:
        P.I('s_memtime s[72:73]'); P.I('s_waitcnt lgkmcnt(0)'); P.I('v_writelane_b32 v%d, s72, 1' % T4)
    P.I('s_mov_b32 s%d, %d' % (sSlot, SLOT)); P.I('s_mov_b32 s%d, %d' % (sWrap, (-2 * SLOT) & 0xffffffff))
    P.I('s_mov_b32 s%d, 0x%x' % (sC, QSCALE))
    P.I('s_mov_b32 s%d, 0' % sOo); P.I('s_mov_b32 s%d, 0' % sHead)
    P.I('v_and_b32_e32 v1, 31, v0'); P.I('v_lshrrev_b32_e32 v2, 5, v0')
    for ks in range(8):
        P.I('v_add_u32_e32 v5, %d, v2' % (2 * ks))
        P.I('v_xor_b32_e32 v5, v5, v3')
        P.I('v_lshlrev_b32_e32 v5, 4, v5')
        P.I('v_lshl_add_u32 v%d, v1, 8, v5' % (KA + ks))
    for ks in range(8):
        P.I('v_add_u32_e32 v%d, s70, v%d' % (XR + ks, KA + ks))
        P.I('v_add_u32_e32 v%d, %d, v%d' % (XR2 + ks, 2 * SLOT, XR + ks))
    P.I('v_lshrrev_b32_e32 v6, 2, v3')
    P.I('v_and_b32_e32 v7, 3, v0')
    P.I('v_and_b32_e32 v8, 1, v4')
    P.I('v_lshl_add_u32 v9, v2, 2, v6'); P.I('v_lshlrev_b32_e32 v9, 8, v9')
    P.I('v_lshl_add_u32 v9, v8, 5, v9'); P.I('v_lshl_add_u32 v9, v7, 3, v9')
    P.I('v_lshl_add_u32 v10, v2, 3, v6'); P.I('v_lshlrev_b32_e32 v10, 8, v10')
    P.I('v_lshl_add_u32 v10, v8, 5, v10')
    P.I('v_and_b32_e32 v11, 1, v7'); P.I('v_lshl_add_u32 v10, v11, 4, v10')
    P.I('v_lshrrev_b32_e32 v11, 1, v7'); P.I('v_lshl_add_u32 v10, v11, 3, v10')
    for dt in range(4):
        P.I('v_xor_b32_e32 v11, %d, v6' % dt)
        P.I('v_lshl_add_u32 v%d, v11, 6, v9' % (VA + dt))
        P.I('v_lshl_add_u32 v%d, v11, 6, v10' % (WA + dt))
    for j in range(4):
        P.I('v_add_u32_e32 v5, %d, v4' % (4 * j))
        P.I('v_xor_b32_e32 v5, v5, v3'); P.I('v_lshlrev_b32_e32 v5, 4, v5')
        P.I('v_lshl_add_u32 v5, v4, 8, v5')
        P.I('v_add_u32_e32 v%d, s%d, v5' % (KD + j, sW4096))
    P.I('s_lshl_b32 s7, s%d, 1' % sWAVE)
    P.I('v_add_u32_e32 v5, s7, v8')
    P.I('v_lshlrev_b32_e32 v11, 10, v5'); P.I('v_lshl_add_u32 v11, v2, 8, v11'); P.I('v_lshl_add_u32 v11, v3, 4, v11')
    P.I('v_cmp_gt_u32_e32 vcc, 7, v5')
    P.I('v_mov_b32_e32 v12, 0x40000000')
    P.I('v_cndmask_b32_e32 v%d, v12, v11, vcc' % OST)
    P.I('v_mov_b32_e32 v%d, 0' % L0); P.I('v_mov_b32_e32 v%d, 0' % L1)
    P.I('s_mov_b32 s%d, %d' % (sKo, 3 * 16384)); P.I('s_mov_b32 s%d, %d' % (sVo, 2 * 16384))
    P.I('s_mov_b32 s%d, 0' % sRd)
    for o in read_x(0): E.emit_op(o)
    if STAMP:
        P.I('s_memtime s[72:73]'); P.I('s_waitcnt lgkmcnt(0)'); P.I('v_writelane_b32 v%d, s72, 1' % T5); P.I('v_writelane_b32 v%d, s76, 0' % T5)
    P.wait_vm('ld_P0')
    P.I('s_barrier')
    if STAMP:
        P.I('s_memtime s[72:73]'); P.I('s_waitcnt lgkmcnt(0)')
        P.I('v_writelane_b32 v%d, s72, 2' % T5)
    psteps = [make_step('P', g) for g in range(8)]
    gsteps = [make_step('G', g) for g in range(8)]
    for i in range(D_BAR): E.issue_reads(psteps[0].mf[i], set())
    g0 = make_step('G', 0)
    upd = E.run(psteps, g0, D_BAR, set(), valu_prologue(7 * 20))
    pro_end = len(P.ins)
    for i in range(D_BAR):
        gsteps[0].mf[i].frag = g0.mf[i].frag; gsteps[0].mf[i].tag = 'g0pre%d' % i
    for ins in P.ins:
        for i in range(D_BAR):
            if ins.tag == g0.mf[i].tag: ins.tag = 'g0pre%d' % i
    P.label('L_head')
    g0n = make_step('G', 0)
    upd_in = set(upd)
    upd2 = E.run(gsteps, g0n, D_BAR, set(upd), valu_head())
    assert upd2 == upd_in, (upd2, upd_in)
    for i in range(D_BAR):
        assert g0n.mf[i].frag == g0.mf[i].frag
        for ins in P.ins:
            if ins.tag == g0n.mf[i].tag: ins.tag = 'g0pre%d' % i
    P.I('s_add_u32 s%d, s%d, 1' % (sHead, sHead))
    P.I('s_cmp_lt_u32 s%d, 4' % sHead)
    P.I('s_cbranch_scc1 L_head')
    body_end = len(P.ins)
    P.I('s_waitcnt vmcnt(0) lgkmcnt(0)')
    if STAMP:
        P.I('s_memtime s[72:73]'); P.I('s_memrealtime s[80:81]'); P.I('s_waitcnt lgkmcnt(0)')
        P.I('v_writelane_b32 v%d, s72, 62' % T5)
        P.I('v_writelane_b32 v%d, s78, 62' % T4); P.I('v_writelane_b32 v%d, s80, 63' % T4)
        P.I('s_lshl_b32 s72, s2, 2'); P.I('s_add_u32 s72, s72, s%d' % sWAVE); P.I('s_lshl_b32 s72, s72, 9')
        P.I('s_add_u32 s72, s72, 0x4000000')
        P.I('s_add_u32 s68, s68, s72'); P.I('s_addc_u32 s69, s69, 0')
        P.I('v_mbcnt_lo_u32_b32 v0, -1, 0'); P.I('v_mbcnt_hi_u32_b32 v0, -1, v0'); P.I('v_lshlrev_b32_e32 v0, 2, v0')
        P.I('global_store_dword v0, v%d, s[68:69]' % T4)
        P.I('global_store_dword v0, v%d, s[68:69] offset:256' % T5)
        P.I('s_waitcnt vmcnt(0)')
    P.I('s_branch L_end')
    slow_begin = len(P.ins)
    slow_path(P)
    P.label('L_end')
    P.I('s_endpgm')
    pro = P.ins[:pro_end]; body = P.ins[pro_end:body_end]
    resolve_waits(pro + body + body + body)
    drop_optional(P)
    P.pad()
    idx = [k for k, i in enumerate(P.ins) if i.label == 'L_head'][0]
    idx2 = [k for k, i in enumerate(P.ins) if i.op == 's_cbranch_scc1' and 'L_head' in i.text][0]
    body = P.ins[idx:idx2 + 1]
    bad = check_hazards(P.ins[:idx] + body + body, name)
    assert bad == 0
    return P

if __name__ == '__main__':
    P = gen_k1()
    print(P.text())
```

```python
from asmlib import *

SLOT = 53248
KOFF, VOFF, WOFF = 0, 16384, 32768
NSLOT = 3
LDS_BYTES = 163840
O_UNIT = 28672

QACC = 0; OACC = 64; SB = (128, 160); Q = 192
KA = 224; VA = 232; WA = 236; KD = 240; VD = 244; WD = 245; OST = 246; L0 = 247; L1 = 248
LT = 249; T0 = 250; T1 = 251; T2 = 252; T3 = 253; T4 = 254; T5 = 255
XA = 0; POOL = 160; NPOOL = 8
sK = 8; sV = 12; sW = 16; sO = 20; sX = 24
sWAVE = 28; sKo = 29; sVo = 30; sWo = 31; sRd = 32; sDelta = 33; sHead = 35
sWrK = 34; sWrW = 50; sT = 36; sT2 = 37; sW4096 = 38; sW5120 = 39; sOo = 40; sC = 41; sSlot = 42; sWrap = 43
sM = 44
sRet = 46
sHb = 48
sI = 49
QSCALE = 0x3e0293ee
import struct, math
QSCALE = struct.unpack('<I', struct.pack('<f', math.log2(math.e) / math.sqrt(128.0)))[0]

def vr(b, n): return 'v[%d:%d]' % (b, b + n - 1)
def ar(b, n): return 'a[%d:%d]' % (b, b + n - 1)

class M:
    def __init__(self, d, b, c0, reads, first_use=None):
        self.d = d; self.b = b; self.c0 = c0; self.reads = reads
        self.first_use = first_use

def mf_S(buf):
    out = []
    for T in range(2):
        for ks in range(8):
            out.append(M(vr(buf + 16 * T, 16), vr(Q + 4 * ks, 4), ks == 0,
                         [('ds_read_b128', 0, 4, KA + ks, KOFF + T * 8192)]))
    return out

def mf_Q(g, dtmajor=False):
    out = []
    order = [(ks, dt) for dt in range(4) for ks in range(5)] if dtmajor else [(ks, dt) for ks in range(5) for dt in range(4)]
    for (ks, dt) in order:
        if True:
            out.append(M(vr(QACC + 16 * dt, 16), ar(XA + 4 * (5 * g + ks), 4), g == 0 and ks == 0,
                         [('ds_read_b64_tr_b16', 2 * e, 2, WA + dt, WOFF + (16 * ks + 4 * e) * 256) for e in range(2)]))
    return out

def mf_PV(g, dtmajor=False):
    buf = SB[g & 1]
    out = []
    order = [(k, dt) for dt in range(4) for k in range(4)] if dtmajor else [(k, dt) for k in range(4) for dt in range(4)]
    for (k, dt) in order:
        T, half = k >> 1, k & 1
        if True:
            out.append(M(vr(OACC + 16 * dt, 16), vr(buf + 16 * T + 8 * half, 4), g == 0 and k == 0,
                         [('ds_read_b64_tr_b16', 2 * e, 2, VA + dt, VOFF + (16 * k + 8 * e) * 256) for e in range(2)]))
    return out

def softmax_ops(g):
    buf = SB[g & 1]
    chunks = []
    for k in range(4):
        T, half = k >> 1, k & 1
        b = buf + 16 * T + 8 * half
        ops = []
        for i in range(8): ops.append('v_exp_f32_e32 v%d, v%d' % (b + i, b + i))
        for i in range(8):
            l = L0 if i % 2 == 0 else L1
            ops.append('v_add_f32_e32 v%d, v%d, v%d' % (l, b + i, l))
        for j in range(4): ops.append('v_cvt_pk_bf16_f32 v%d, v%d, v%d' % (b + j, b + 2 * j, b + 2 * j + 1))
        e, a, c = ops[:8], ops[8:16], ops[16:]
        seq = [e[0], e[1]]
        for i in range(2, 8): seq += [e[i], a[i - 2]]
        seq += [a[6], a[7]] + c
        chunks.append(seq)
    return chunks

def qconv_ops(dts=range(4)):
    ops = []
    for dt in dts:
        for r in range(16): ops.append('v_mul_f32_e32 v%d, s%d, v%d' % (QACC + 16 * dt + r, sC, QACC + 16 * dt + r))
        for half in range(2):
            ks = 2 * dt + half
            for j in range(4):
                r = QACC + 16 * dt + 8 * half + 2 * j
                ops.append('v_cvt_pk_bf16_f32 v%d, v%d, v%d' % (Q + 4 * ks + j, r, r + 1))
    return ops

def ofin_ops(dts=range(4)):
    ops = []
    for dt in dts:
        b = OACC + 16 * dt
        for r in range(16): ops.append('v_mul_f32_e32 v%d, v%d, v%d' % (b + r, LT, b + r))
        for j in range(8): ops.append('v_cvt_pk_bf16_f32 v%d, v%d, v%d' % (b + j, b + 2 * j, b + 2 * j + 1))
    return ops

STASH = [192, 224, 0, 32]
def stash(P):
    for h in range(3):
        P.I('s_cmp_eq_u32 s%d, %d' % (sHead, h)); P.I('s_cbranch_scc1 L_st%d' % h)
    for h in (3, 0, 1, 2):
        if h != 3: P.label('L_st%d' % h)
        for dt in range(4):
            for j in range(8): P.I('v_accvgpr_write_b32 a%d, v%d' % (STASH[h] + 8 * dt + j, OACC + 16 * dt + j))
        if h != 2: P.I('s_branch L_st_done')
    P.label('L_st_done')

def dma_K(tag):
    ops = ['s_mov_b32 m0, s%d' % sWrK]
    for j in range(4):
        ops.append(('buffer_load_dwordx4 v%d, s[%d:%d], s%d offen offset:%d %s lds' % (KD + j, sK, sK + 3, sKo, j * 1024, KVPOL), tag))
    ops.append('s_add_u32 s%d, s%d, 16384' % (sKo, sKo))
    return ops

def dma_V(tag):
    ops = ['s_add_u32 m0, s%d, %d' % (sWrK, VOFF)]
    for j in range(4):
        ops.append(('buffer_load_dwordx4 v%d, s[%d:%d], s%d offen offset:%d %s lds' % (VD, sV, sV + 3, sVo, j * 1024, KVPOL), tag))
    ops.append('s_add_u32 s%d, s%d, 16384' % (sVo, sVo))
    return ops

STPOL = ''
WPOL = ''
KVPOL = 'nt'
def dma_W(tag):
    ops = ['s_mov_b32 m0, s%d' % sWrW]
    for j in range(4):
        if j == 0:
            ops.append(('buffer_load_dwordx4 v%d, s[%d:%d], s%d offen offset:0 %s lds' % (WD, sW, sW + 3, sWo, WPOL), tag))
        else:
            ops.append('s_add_u32 s%d, s%d, %d' % (sT2, sWo, j * (32768 - 1024)))
            ops.append(('buffer_load_dwordx4 v%d, s[%d:%d], s%d offen offset:%d %s lds' % (WD, sW, sW + 3, sT2, j * 1024, WPOL), tag))
    ops.append('s_add_u32 m0, s%d, 4096' % sWrW)
    ops.append('s_add_u32 s%d, s%d, %d' % (sT2, sWo, 4 * 32768))
    ops.append(('buffer_load_dwordx4 v%d, s[%d:%d], s%d offen offset:0 %s lds' % (WD, sW, sW + 3, sT2, WPOL), tag))
    ops.append('s_add_u32 s%d, s%d, %d' % (sWo, sWo, 80 * 8192))
    return ops

def set_wr(base):
    return ['s_add_u32 s%d, s%d, %d' % (sWrK, sW4096, base), 's_add_u32 s%d, s%d, %d' % (sWrW, sW5120, base)]

def ring_advance():
    return ['s_add_u32 s%d, s%d, s%d' % (sWrK, sRd, sW4096),
            's_add_u32 s%d, s%d, s%d' % (sWrW, sRd, sW5120),
            's_add_u32 s%d, s%d, s%d' % (sRd, sRd, sSlot),
            's_cmp_eq_u32 s%d, %d' % (sRd, NSLOT * SLOT),
            's_cselect_b32 s%d, s%d, s%d' % (sDelta, sWrap, sSlot),
            's_cselect_b32 s%d, 0, s%d' % (sRd, sRd)]

def cost_of(op):
    if callable(op): return 100
    t = op[0] if isinstance(op, tuple) else op
    if t.startswith('buffer_'): return 20
    if t.startswith('v_exp') or t.startswith('v_rcp'): return 8
    return 4

class Step:
    def __init__(self, name, mf, paced=None, fixed=None):
        self.name = name; self.mf = mf
        self.paced = paced or []
        self.fixed = fixed or {}

STAMP = False
EXP = {}
D_AHEAD = 6
D_BAR = 3
WAITW = 2
BUDGET = 26

class Emitter:
    def __init__(self, P):
        self.P = P
        self.fr = 0
        self.uid = 0
        self.addr_regs = list(range(KA, KA + 8)) + list(range(VA, VA + 4)) + list(range(WA, WA + 4))
    def emit_op(self, op):
        if isinstance(op, tuple):
            if op[0] == 'WAITVM': self.P.wait_vm(op[1])
            elif op[0] == 'WAITLGKM': self.P.wait_lgkm(op[1])
            else: self.P.I(op[0], op[1])
        elif callable(op): op(self.P)
        else: self.P.I(op)
    def issue_reads(self, m, upd):
        P = self.P
        c = 0
        m.frag = POOL + 4 * (self.fr % NPOOL); self.fr += 1
        self.uid += 1; m.tag = 'f%d' % (self.uid); m.issued = True
        for (op, off, n, addr, imm) in m.reads:
            if addr in upd:
                P.I('v_add_u32_e32 v%d, s%d, v%d' % (addr, sDelta, addr)); upd.discard(addr); c += 4
            P.I('%s %s, v%d offset:%d' % (op, ar(m.frag + off, n), addr, imm), m.tag); c += 4
        return c
    def boundary(self, nxt):
        P = self.P
        P.wait_lgkm('ALL')
        if STAMP and nxt.name[0] != 'O':
            P.I('%s s[72:73]' % ('s_memrealtime' if EXP.get('rt') else 's_memtime')); P.I('s_waitcnt lgkmcnt(0)')
            P.I('s_mov_b32 m0, s74'); P.I('v_writelane_b32 v%d, s72, m0' % T4)
        P.wait_vm('ld_' + nxt.name)
        P.I('s_barrier')
        if STAMP and nxt.name[0] != 'O':
            P.I('s_memtime s[72:73]'); P.I('s_waitcnt lgkmcnt(0)')
            P.I('s_mov_b32 m0, s74'); P.I('v_writelane_b32 v%d, s72, m0' % T5)
            P.I('s_add_u32 s74, s74, 1')
        for o in ring_advance(): P.I(o)
        return set(self.addr_regs)
    def run(self, steps, nxt_after, pre_issued, upd, valu):
        P = self.P
        allm = []
        for si, s in enumerate(steps):
            for i, m in enumerate(s.mf): allm.append((si, i, m))
        n = len(allm)
        tail = [(len(steps), i, m) for i, m in enumerate(nxt_after.mf)] if nxt_after else []
        seq = allm + tail
        first_of = {}
        for k, (si, i, m) in enumerate(seq):
            if i == 0: first_of[si] = k
        nread = pre_issued
        entered = 0
        vq = list(valu); vp = 0
        ppos = 0
        for k in range(n):
            si, i, m = allm[k]
            s = steps[si]
            if i == 0: ppos = 0
            used = 0
            tgt = k
            if i % WAITW == 0:
                for d in range(1, WAITW):
                    if k + d < n and allm[k + d][0] == si and k + d < nread: tgt = k + d
            P.wait_lgkm(seq[tgt][2].tag)
            if i % WAITW == 0: used += 4
            c = '0' if m.c0 else m.d
            if not getattr(m, 'skip', False) or (k % int(EXP['skipm']) == 0): P.I('v_mfma_f32_32x32x16_bf16 %s, %s, %s, %s' % (m.d, ar(m.frag, 4), m.b, c))
            nm = len(s.mf)
            last = nm - 2 - D_BAR
            if EXP.get('dmaend') and s.name[0] == 'G': last = int(EXP['dmaend'])
            if i <= last:
                want = len(s.paced) if i == last else int(math.ceil(len(s.paced) * (i + 1) / float(last + 1)))
                while ppos < want:
                    used += cost_of(s.paced[ppos]); self.emit_op(s.paced[ppos]); ppos += 1
            for o in s.fixed.get(i, []):
                used += cost_of(o); self.emit_op(o)
            if si + 1 in first_of and k == first_of[si + 1] - 1 - D_BAR and entered == si:
                assert ppos == len(s.paced)
                for a in sorted(upd): P.I('v_add_u32_e32 v%d, s%d, v%d' % (a, sDelta, a)); used += 4
                nx = steps[si + 1] if si + 1 < len(steps) else nxt_after
                upd = self.boundary(nx); entered = si + 1; used += 40
            while nread < len(seq) and nread <= k + D_AHEAD and seq[nread][0] <= entered and (seq[nread][0] < len(steps) or nread - n < D_BAR):
                used += self.issue_reads(seq[nread][2], upd); nread += 1
            while vp < len(vq) and (vq[vp][2] <= k or (vq[vp][1] <= k and used + cost_of(vq[vp][0]) <= BUDGET)):
                used += cost_of(vq[vp][0]); self.emit_op(vq[vp][0]); vp += 1
        assert vp == len(vq), (vp, len(vq))
        return upd

def check_and_hook(P):
    P.I('v_add_f32_e32 v%d, v%d, v%d' % (LT, L0, L1))
    P.I('v_mov_b32_e32 v%d, v%d' % (T0, LT))
    P.I('v_mov_b32_e32 v%d, 0' % L0)
    P.I('v_mov_b32_e32 v%d, 0' % L1)
    P.I('v_permlane32_swap_b32_e32 v%d, v%d' % (LT, T0))
    P.I('v_add_f32_e32 v%d, v%d, v%d' % (LT, LT, T0))
    P.I('v_cmp_le_f32_e32 vcc, 0x33800000, v%d' % LT)
    P.I('s_nop 0')
    P.I('s_mov_b64 s[%d:%d], vcc' % (sM, sM + 1))
    P.I('v_cmp_ge_f32_e32 vcc, 0x4b800000, v%d' % LT)
    P.I('s_nop 0')
    P.I('s_and_b64 s[%d:%d], s[%d:%d], vcc' % (sM, sM + 1, sM, sM + 1))
    P.I('s_cmp_eq_u64 s[%d:%d], -1' % (sM, sM + 1))
    if not (EXP.get('nosm') or EXP.get('skipm') or EXP.get('nokv')):
        P.I('s_cbranch_scc1 L_fast_ok')
        P.I('s_branch L_slow')
    P.label('L_slow_ret')
    P.label('L_fast_ok')
    P.I('v_rcp_f32_e32 v%d, v%d' % (LT, LT))

def nm(k, gg): return 'ld_%s%d' % (k, gg)
XR = SB[0]
XR2 = SB[0] + 8
XV = SB[0] + 16
X_SLOT = [0, 1, 2, 0, 2]

def dma_x(kt):
    ops = []
    for j in range(8):
        ops.append('s_add_u32 m0, s70, %d' % (X_SLOT[kt] * SLOT + j * 1024))
        ops.append('s_mov_b32 s7, %d' % (j * 4 * 1280 + kt * 256))
        ops.append(('buffer_load_dwordx4 v%d, s[%d:%d], s7 offen %s lds' % (XV + (j & 3), sX, sX + 3, XPOL), 'x%d' % kt))
    return ops

def read_x(kt):
    ops = [('WAITVM', 'x%d' % kt)]
    for ks in range(8):
        if X_SLOT[kt] == 2: a, off = XR2 + ks, 0
        else: a, off = XR + ks, X_SLOT[kt] * SLOT
        ops.append(('ds_read_b128 %s, v%d offset:%d' % (ar(XA + 4 * (8 * kt + ks), 4), a, off), 'xr%d' % kt))
    return ops
XPOL = ''

def const_wr(slot, ops_fn, tag):
    return ['s_add_u32 s%d, s%d, %d' % (sT, sW4096, slot * SLOT)] + [o.replace('s%d' % sWrK, 's%d' % sT) if isinstance(o, str) else o for o in ops_fn(tag)]

def make_step(kind, g):
    name = '%s%d' % (kind, g)
    if kind == 'P':
        mf = mf_Q(g, dtmajor=(g == 7))
        paced = []; fixed = {}
        if 1 <= g <= 5: paced += dma_W(nm('P', g + 2))
        if g == 0: fixed[4] = read_x(1)
        if g == 1: paced += dma_x(3)
        if g == 2: fixed[2] = read_x(2); paced += [('WAITLGKM', 'xr2')] + dma_x(4)
        if g == 3: paced += const_wr(1, dma_K0, nm('P', 7)); fixed[8] = read_x(3)
        if g == 4: paced += const_wr(0, dma_K2, nm('G', 1)) + const_wr(0, dma_V1, nm('G', 1)); fixed[8] = read_x(4)
        if g == 5: paced += const_wr(2, dma_K1, nm('G', 0)) + const_wr(2, dma_V0, nm('G', 0))
        if g == 6: paced += ['s_add_u32 s%d, s%d, %d' % (sWo, sWo, (256 - 8 * 80 * 8192) & 0xffffffff)] + dma_W(nm('G', 0))
        if g == 7:
            paced += dma_W(nm('G', 1))
            mf = mf + mf_S(SB[0])
        return Step(name, mf, paced, fixed)
    tgt = nm('G', (g + 2) % 8)
    loads = []
    if g == 6:
        loads += ['s_add_u32 s%d, s%d, %d' % (sWo, sWo, (256 - 8 * 80 * 8192) & 0xffffffff),
                  's_cmp_ge_u32 s%d, 2' % sHead,
                  's_cselect_b32 s%d, 0, s%d' % (sW + 2, sW + 2)]
    if EXP.get('nokv') is None: loads += dma_K(tgt) + dma_V(tgt)
    if EXP.get('now') is None: loads += dma_W(tgt)
    if g < 7: mf = mf_S(SB[(g + 1) & 1]) + mf_Q(g) + mf_PV(g)
    else: mf = mf_Q(7, True) + mf_PV(7, True) + mf_S(SB[0])
    if EXP.get('skipm'):
        for m in mf: m.skip = True
    return Step(name, mf, loads)

def with_soff(ops, reg, val):
    out = ['s_mov_b32 s%d, %d' % (sI, val)]
    for o in ops:
        if isinstance(o, tuple): out.append((o[0].replace(', s%d offen' % reg, ', s%d offen' % sI), o[1]))
        elif o.startswith('s_add_u32 s%d, s%d' % (reg, reg)): continue
        else: out.append(o)
    return out
def dma_K0(tag): return with_soff(dma_K(tag), sKo, 0)
def dma_K1(tag): return with_soff(dma_K(tag), sKo, 1 * 16384)
def dma_K2(tag): return with_soff(dma_K(tag), sKo, 2 * 16384)
def dma_V0(tag): return with_soff(dma_V(tag), sVo, 0)
def dma_V1(tag): return with_soff(dma_V(tag), sVo, 16384)

def valu_prologue(base7):
    q = []
    for dt in range(4):
        for o in qconv_ops([dt]): q.append((o, base7 + 5 * dt + 4 + 3, base7 + 19 + 2 * dt))
    return q

def valu_head():
    q = []
    for g in range(8):
        sm = softmax_ops(g)
        if EXP.get('nosm'): sm = [[], [], [], []]
        for c in range(4):
            est = 0 if g == 0 else 52 * (g - 1) + 8 * ((c >> 1) + 1) + 2
            ddl = 52 * g + 35 + 4 * c if g < 7 else 52 * 7 + 6
            for o in sm[c]: q.append((o, est, ddl))
    b = 52 * 7
    q.append((check_and_hook, b, b + 6))
    for dt in range(4):
        for o in qconv_ops([dt]): q.append((o, b + 5 * dt + 4 + 3, b + 35 + 2 * dt))
        if dt >= 1: pass
    for dt in range(4):
        for o in ofin_ops([dt]): q.append((o, b + 20 + 4 * dt + 3 + 3, b + 51))
    q.append((stash, b + 20, b + 51))
    return q

OA = WA
PK = SB[0]
PART = 163840
sNg = 51
def mf_O(hh):
    out = []
    order = [(ks, nt) for nt in range(4) for ks in range(8)] if hh in (0, 3) else [(ks, nt) for ks in range(8) for nt in range(4)]
    for (ks, nt) in order:
        out.append(M(vr(QACC + 16 * nt, 16), ar(STASH[hh] + 4 * ks, 4), hh == 0 and ks == 0,
                     [('ds_read_b64_tr_b16', 2 * e, 2, OA + nt, (16 * ks + 8 * e) * 256) for e in range(2)]))
    return out

def dma_O(tag, adv):
    ops = ['s_mov_b32 m0, s%d' % sWrK]
    for j in range(8):
        if j == 4: ops.append('s_add_u32 m0, s%d, 4096' % sWrK)
        ops.append('s_add_u32 s%d, s%d, %d' % (sT2, sWo, j * 5120 - (j & 3) * 1024))
        ops.append(('buffer_load_dwordx4 v%d, s[%d:%d], s%d offen offset:%d %s lds' % (VD, sW, sW + 3, sT2, (j & 3) * 1024, OPOL), tag))
    ops.append('s_add_u32 s%d, s%d, %d' % (sWo, sWo, adv & 0xffffffff))
    return ops
OPOL = ''
PSTPOL = ''

def make_ostep(hh):
    tgt = 'ld_O%d' % ((hh + 2) % 4)
    adv = 163840 if (hh + 2) % 4 != 3 else 256 - 3 * 163840
    pre = []
    if hh == 2:
        pre = ['s_cmp_ge_u32 s%d, 4' % sNg, 's_cselect_b32 s%d, 0, s%d' % (sW + 2, sW + 2)]
    return Step('O%d' % hh, mf_O(hh), pre + dma_O(tgt, adv))

def valu_o():
    q = []
    b = 96
    for nt in range(4):
        est = b + 8 * nt + 7 + 3
        for j in range(8):
            q.append(('v_cvt_pk_bf16_f32 v%d, v%d, v%d' % (PK + 8 * nt + j, QACC + 16 * nt + 2 * j, QACC + 16 * nt + 2 * j + 1), est, 127))
        for half in range(2):
            q.append(('s_add_u32 s%d, s%d, %d' % (sT, sOo, (nt * 2 + half) * 4096), est, 127))
            q.append((('buffer_store_dwordx4 %s, v%d, s[%d:%d], s%d offen %s' % (vr(PK + 8 * nt + 4 * half, 4), OST, sO, sO + 3, sT, PSTPOL), 'pst'), est, 127))
    q.append(('s_add_u32 s%d, s%d, %d' % (sOo, sOo, 8 * 4096), b, 127))
    return [(o[0] if False else o[0], o[1], o[2]) for o in q]

def oproj_phase(P, E):
    P.I('s_waitcnt vmcnt(0) lgkmcnt(0)')
    P.I('s_barrier')
    P.I('v_mbcnt_lo_u32_b32 v0, -1, 0'); P.I('v_mbcnt_hi_u32_b32 v0, -1, v0')
    P.I('v_and_b32_e32 v3, 15, v0'); P.I('v_lshrrev_b32_e32 v4, 4, v0'); P.I('v_lshrrev_b32_e32 v2, 5, v0')
    P.I('v_lshrrev_b32_e32 v6, 2, v3'); P.I('v_and_b32_e32 v7, 3, v0'); P.I('v_and_b32_e32 v8, 1, v4')
    P.I('v_lshlrev_b32_e32 v5, 2, v4'); P.I('v_xor_b32_e32 v5, v5, v3'); P.I('v_lshlrev_b32_e32 v5, 4, v5')
    P.I('v_mul_u32_u24_e32 v11, 1280, v4')
    P.I('s_mul_i32 s7, s%d, %d' % (sWAVE, 32 * 1280))
    P.I('v_add3_u32 v%d, v5, v11, s7' % VD)
    P.I('s_mov_b32 s%d, s82' % sW); P.I('s_mov_b32 s%d, s83' % (sW + 1))
    P.I('s_mov_b32 s%d, 655360' % (sW + 2)); P.I('s_mov_b32 s%d, 0x20000' % (sW + 3))
    P.I('s_lshl_b32 s%d, s%d, 13' % (sW4096, sWAVE))
    P.I('s_mov_b32 s%d, 0' % sWo)
    for n in range(2):
        P.I('s_add_u32 s%d, s%d, %d' % (sWrK, sW4096, n * SLOT))
        for o in dma_O('ld_O%d' % n, 163840): E.emit_op(o)
    P.I('v_lshl_add_u32 v10, v2, 2, v6'); P.I('v_lshlrev_b32_e32 v10, 8, v10')
    P.I('v_lshl_add_u32 v10, v8, 5, v10')
    P.I('v_and_b32_e32 v11, 1, v7'); P.I('v_lshl_add_u32 v10, v11, 4, v10')
    P.I('v_lshrrev_b32_e32 v11, 1, v7'); P.I('v_lshl_add_u32 v10, v11, 3, v10')
    for nt in range(4):
        P.I('v_xor_b32_e32 v11, %d, v6' % nt)
        P.I('v_lshl_add_u32 v%d, v11, 6, v10' % (OA + nt))
    P.I('s_lshl_b32 s7, s%d, 10' % sWAVE)
    P.I('v_lshlrev_b32_e32 v11, 4, v0'); P.I('v_add_u32_e32 v11, s7, v11')
    P.I('v_and_b32_e32 v5, 31, v0'); P.I('s_lshl_b32 s7, s%d, 5' % sWAVE); P.I('v_add_u32_e32 v5, s7, v5')
    P.I('v_cmp_gt_u32_e32 vcc, 112, v5')
    P.I('v_mov_b32_e32 v12, 0x40000000')
    P.I('v_cndmask_b32_e32 v%d, v12, v11, vcc' % OST)
    P.I('s_mov_b32 s%d, 0' % sOo); P.I('s_mov_b32 s%d, 0' % sNg)
    P.I('s_mov_b32 s%d, 0' % sRd)
    P.I('s_add_u32 s%d, s%d, %d' % (sWrK, sW4096, 2 * SLOT))
    P.wait_vm('ld_O0')
    P.I('s_barrier')
    E.addr_regs = list(range(OA, OA + 4))
    osteps = [make_ostep(hh) for hh in range(4)]
    o0 = make_ostep(0)
    for i in range(D_BAR): E.issue_reads(osteps[0].mf[i], set())
    first = [(osteps[0].mf[i].tag, osteps[0].mf[i].frag) for i in range(D_BAR)]
    for i in range(D_BAR):
        for ins in P.ins:
            if ins.tag == first[i][0]: ins.tag = 'o0pre%d' % i
        osteps[0].mf[i].tag = 'o0pre%d' % i
    n0 = len(P.ins)
    P.label('L_ng')
    upd_in = set()
    upd = E.run(osteps, o0, D_BAR, set(range(OA + 1, OA + 4)) if False else set(), valu_o())
    for a in sorted(upd): P.I('v_add_u32_e32 v%d, s%d, v%d' % (a, sDelta, a))
    for i in range(D_BAR):
        assert o0.mf[i].frag == first[i][1], (o0.mf[i].frag, first[i][1])
        for ins in P.ins:
            if ins.tag == o0.mf[i].tag: ins.tag = 'o0pre%d' % i
    P.I('s_add_u32 s%d, s%d, 1' % (sNg, sNg))
    P.I('s_cmp_lt_u32 s%d, 5' % sNg)
    P.I('s_cbranch_scc1 L_ng')
    n1 = len(P.ins)
    return n0, n1

def slow_path(P):
    S0, S1 = SB
    P.label('L_slow')
    P.I('s_nop 15'); P.I('s_nop 15')
    P.I('v_mbcnt_lo_u32_b32 v%d, -1, 0' % T0)
    P.I('v_mbcnt_hi_u32_b32 v%d, -1, v%d' % (T0, T0))
    P.I('v_and_b32_e32 v%d, 31, v%d' % (T1, T0))
    P.I('v_lshrrev_b32_e32 v%d, 5, v%d' % (T2, T0))
    P.I('v_lshlrev_b32_e32 v%d, 8, v%d' % (T3, T1))
    P.I('v_lshl_add_u32 v%d, v%d, 4, v%d' % (T3, T2, T3))
    P.I('v_lshlrev_b32_e32 v%d, 10, v%d' % (T4, T2))
    P.I('v_lshl_add_u32 v%d, v%d, 1, v%d' % (T4, T1, T4))
    P.I('v_add_u32_e32 v%d, 0x1000, v%d' % (T5, T4))
    P.I('s_lshl_b32 s%d, s%d, 17' % (sHb, sHead))
    def s_tile():
        for ks in range(8):
            P.I('buffer_load_dwordx4 %s, v%d, s[%d:%d], s%d offen offset:%d' % (vr(S0 + 4 * ks, 4), T3, sK, sK + 3, sT2, ks * 32))
        P.I('s_waitcnt vmcnt(0)')
        for ks in range(8):
            P.I('v_mfma_f32_32x32x16_bf16 %s, %s, %s, %s' % (vr(S1, 16), vr(S0 + 4 * ks, 4), vr(Q + 4 * ks, 4), '0' if ks == 0 else vr(S1, 16)))
        P.I('s_nop 15')
    P.I('v_mov_b32_e32 v%d, 0xff800000' % T0)
    P.I('s_mov_b32 s%d, 0' % sI)
    P.label('L_slow_max')
    P.I('s_lshl_b32 s%d, s%d, 13' % (sT2, sI))
    P.I('s_add_u32 s%d, s%d, s%d' % (sT2, sT2, sHb))
    s_tile()
    for r in range(0, 16, 2): P.I('v_max3_f32 v%d, v%d, v%d, v%d' % (T0, T0, S1 + r, S1 + r + 1))
    P.I('s_add_u32 s%d, s%d, 1' % (sI, sI))
    P.I('s_cmp_lt_u32 s%d, 16' % sI)
    P.I('s_cbranch_scc1 L_slow_max')
    P.I('v_mov_b32_e32 v%d, v%d' % (T1, T0))
    P.I('s_nop 1')
    P.I('v_permlane32_swap_b32_e32 v%d, v%d' % (T0, T1))
    P.I('v_max_f32_e32 v%d, v%d, v%d' % (T0, T0, T1))
    P.I('v_mov_b32_e32 v%d, 0' % LT)
    for r in range(64): P.I('v_mov_b32_e32 v%d, 0' % (OACC + r))
    P.I('s_mov_b32 s%d, 0' % sI)
    P.label('L_slow_pv')
    P.I('s_lshl_b32 s%d, s%d, 13' % (sT2, sI))
    P.I('s_add_u32 s%d, s%d, s%d' % (sT2, sT2, sHb))
    s_tile()
    for r in range(16): P.I('v_sub_f32_e32 v%d, v%d, v%d' % (S1 + r, S1 + r, T0))
    for r in range(16): P.I('v_exp_f32_e32 v%d, v%d' % (S1 + r, S1 + r))
    P.I('s_nop 0')
    for r in range(16): P.I('v_add_f32_e32 v%d, v%d, v%d' % (LT, LT, S1 + r))
    for half in range(2):
        for j in range(4):
            r = S1 + 8 * half + 2 * j
            P.I('v_cvt_pk_bf16_f32 v%d, v%d, v%d' % (S1 + 8 * half + j, r, r + 1))
    for half in range(2):
        for dt in range(4):
            for i in range(8):
                P.I('buffer_load_ushort v%d, v%d, s[%d:%d], s%d offen offset:%d' % (S0 + i, T4 if half == 0 else T5, sV, sV + 3, sT2, (8 * (i >> 2) + (i & 3)) * 256 + dt * 64))
            P.I('s_waitcnt vmcnt(0)')
            for j in range(4):
                P.I('v_lshl_or_b32 v%d, v%d, 16, v%d' % (S0 + 8 + j, S0 + 2 * j + 1, S0 + 2 * j))
            P.I('s_nop 1')
            P.I('v_mfma_f32_32x32x16_bf16 %s, %s, %s, %s' % (vr(OACC + 16 * dt, 16), vr(S0 + 8, 4), vr(S1 + 8 * half, 4), vr(OACC + 16 * dt, 16)))
            P.I('s_nop 7')
    P.I('s_add_u32 s%d, s%d, 1' % (sI, sI))
    P.I('s_cmp_lt_u32 s%d, 16' % sI)
    P.I('s_cbranch_scc1 L_slow_pv')
    P.I('v_mov_b32_e32 v%d, v%d' % (T1, LT))
    P.I('s_nop 1')
    P.I('v_permlane32_swap_b32_e32 v%d, v%d' % (LT, T1))
    P.I('v_add_f32_e32 v%d, v%d, v%d' % (LT, LT, T1))
    for T in range(2):
        for half in range(2):
            for j in range(4): P.I('v_mov_b32_e32 v%d, 0' % (S1 + 16 * T + 8 * half + j))
    P.I('s_nop 15')
    P.I('s_branch L_slow_ret')

def gen_k1(name='attn_kernel'):
    P = Prog()
    P.I('s_cmp_ge_u32 s2, 256')
    P.I('s_cbranch_scc1 L_end')
    P.I('s_load_dwordx8 s[52:59], s[0:1], 0')
    P.I('s_load_dwordx8 s[60:67], s[0:1], 40')
    P.I('s_load_dwordx2 s[68:69], s[0:1], 96')
    P.I('s_load_dwordx2 s[82:83], s[0:1], 32')
    P.I('s_load_dwordx2 s[84:85], s[0:1], 72')
    if STAMP:
        P.I('s_memtime s[76:77]'); P.I('s_memrealtime s[78:79]'); P.I('s_mov_b32 s74, 4')
    P.I('v_lshrrev_b32_e32 v1, 6, v0')
    P.I('v_and_b32_e32 v0, 63, v0')
    P.I('s_and_b32 s3, s2, 7')
    P.I('v_readfirstlane_b32 s%d, v1' % sWAVE)
    P.I('s_lshr_b32 s4, s2, 3')
    P.I('s_lshr_b32 s5, s3, 2')
    P.I('s_and_b32 s6, s3, 3')
    P.I('s_lshl_b32 s6, s6, 1')
    P.I('s_and_b32 s7, s4, 1')
    P.I('s_add_u32 s6, s6, s7')
    P.I('s_lshr_b32 s4, s4, 1')
    P.I('s_waitcnt lgkmcnt(0)')
    if STAMP:
        P.I('s_memtime s[72:73]'); P.I('s_waitcnt lgkmcnt(0)'); P.I('v_writelane_b32 v%d, s72, 0' % T4)
    P.I('s_cmp_eq_u32 s5, 0')
    for i in range(8): P.I('s_cselect_b32 s%d, s%d, s%d' % (52 + i, 52 + i, 60 + i))
    P.I('s_cselect_b32 s82, s82, s84'); P.I('s_cselect_b32 s83, s83, s85')
    P.I('s_mul_i32 s7, s4, 143360')
    P.I('s_add_u32 s%d, s52, s7' % sX); P.I('s_addc_u32 s%d, s53, 0' % (sX + 1))
    P.I('s_mov_b32 s%d, 143360' % (sX + 2)); P.I('s_mov_b32 s%d, 0x20000' % (sX + 3))
    P.I('s_lshl_b32 s7, s4, 5'); P.I('s_lshl_b32 s70, s6, 2'); P.I('s_add_u32 s7, s7, s70')
    P.I('s_lshl_b32 s71, s7, 17')
    P.I('s_add_u32 s%d, s54, s71' % sK); P.I('s_addc_u32 s%d, s55, 0' % (sK + 1))
    P.I('s_mov_b32 s%d, 524288' % (sK + 2)); P.I('s_mov_b32 s%d, 0x20000' % (sK + 3))
    P.I('s_add_u32 s%d, s56, s71' % sV); P.I('s_addc_u32 s%d, s57, 0' % (sV + 1))
    P.I('s_mov_b32 s%d, 524288' % (sV + 2)); P.I('s_mov_b32 s%d, 0x20000' % (sV + 3))
    P.I('s_lshl_b32 s71, s70, 8')
    P.I('s_add_u32 s%d, s58, s71' % sW); P.I('s_addc_u32 s%d, s59, 0' % (sW + 1))
    P.I('s_sub_u32 s%d, 5242880, s71' % (sW + 2)); P.I('s_mov_b32 s%d, 0x20000' % (sW + 3))
    P.I('s_mul_i32 s71, s70, 163840')
    P.I('s_add_u32 s82, s82, s71'); P.I('s_addc_u32 s83, s83, 0')
    P.I('s_lshl_b32 s71, s5, 4'); P.I('s_add_u32 s71, s71, s4'); P.I('s_lshl_b32 s71, s71, 3'); P.I('s_add_u32 s71, s71, s6')
    P.I('s_mul_i32 s71, s71, %d' % PART)
    P.I('s_add_u32 s%d, s68, s71' % sO); P.I('s_addc_u32 s%d, s69, 0' % (sO + 1))
    P.I('s_mov_b32 s%d, %d' % (sO + 2, PART)); P.I('s_mov_b32 s%d, 0x20000' % (sO + 3))
    P.I('s_lshl_b32 s%d, s%d, 12' % (sW4096, sWAVE))
    P.I('s_mul_i32 s%d, s%d, 5120' % (sW5120, sWAVE))
    P.I('s_add_u32 s%d, s%d, %d' % (sW5120, sW5120, WOFF))
    P.I('v_and_b32_e32 v3, 15, v0'); P.I('v_lshrrev_b32_e32 v4, 4, v0')
    E = Emitter(P)
    P.I('s_lshl_b32 s70, s%d, 13' % sWAVE)
    P.I('s_mul_i32 s71, s%d, %d' % (sWAVE, 32 * 1280))
    P.I('v_mul_u32_u24_e32 v11, 1280, v4')
    for jj in range(4):
        P.I('v_add_u32_e32 v5, %d, v4' % (4 * jj))
        P.I('v_xor_b32_e32 v5, v5, v3'); P.I('v_lshlrev_b32_e32 v5, 4, v5')
        P.I('v_add3_u32 v%d, v5, v11, s71' % (XV + jj))
    P.I('v_lshlrev_b32_e32 v5, 2, v4'); P.I('v_xor_b32_e32 v5, v5, v3'); P.I('v_lshlrev_b32_e32 v5, 4, v5')
    P.I('s_mul_i32 s7, s%d, %d' % (sWAVE, 20 * 8192))
    P.I('v_lshl_add_u32 v11, v4, 13, v5'); P.I('v_add_u32_e32 v%d, s7, v11' % WD)
    P.I('v_lshl_add_u32 v11, v4, 8, v5'); P.I('v_add_u32_e32 v%d, s%d, v11' % (VD, sW4096))
    P.I('s_mov_b32 s%d, 0' % sWo)
    for n in range(3):
        for o in dma_x(n): E.emit_op(o)
        for o in set_wr(n * SLOT): P.I(o)
        for o in dma_W('ld_P%d' % n): E.emit_op(o)
    if STAMP:
        P.I('s_memtime s[72:73]'); P.I('s_waitcnt lgkmcnt(0)'); P.I('v_writelane_b32 v%d, s72, 1' % T4)
    P.I('s_mov_b32 s%d, %d' % (sSlot, SLOT)); P.I('s_mov_b32 s%d, %d' % (sWrap, (-2 * SLOT) & 0xffffffff))
    P.I('s_mov_b32 s%d, 0x%x' % (sC, QSCALE))
    P.I('s_mov_b32 s%d, 0' % sOo); P.I('s_mov_b32 s%d, 0' % sHead)
    P.I('v_and_b32_e32 v1, 31, v0'); P.I('v_lshrrev_b32_e32 v2, 5, v0')
    for ks in range(8):
        P.I('v_add_u32_e32 v5, %d, v2' % (2 * ks))
        P.I('v_xor_b32_e32 v5, v5, v3')
        P.I('v_lshlrev_b32_e32 v5, 4, v5')
        P.I('v_lshl_add_u32 v%d, v1, 8, v5' % (KA + ks))
    for ks in range(8):
        P.I('v_add_u32_e32 v%d, s70, v%d' % (XR + ks, KA + ks))
        P.I('v_add_u32_e32 v%d, %d, v%d' % (XR2 + ks, 2 * SLOT, XR + ks))
    P.I('v_lshrrev_b32_e32 v6, 2, v3')
    P.I('v_and_b32_e32 v7, 3, v0')
    P.I('v_and_b32_e32 v8, 1, v4')
    P.I('v_lshl_add_u32 v9, v2, 2, v6'); P.I('v_lshlrev_b32_e32 v9, 8, v9')
    P.I('v_lshl_add_u32 v9, v8, 5, v9'); P.I('v_lshl_add_u32 v9, v7, 3, v9')
    P.I('v_lshl_add_u32 v10, v2, 3, v6'); P.I('v_lshlrev_b32_e32 v10, 8, v10')
    P.I('v_lshl_add_u32 v10, v8, 5, v10')
    P.I('v_and_b32_e32 v11, 1, v7'); P.I('v_lshl_add_u32 v10, v11, 4, v10')
    P.I('v_lshrrev_b32_e32 v11, 1, v7'); P.I('v_lshl_add_u32 v10, v11, 3, v10')
    for dt in range(4):
        P.I('v_xor_b32_e32 v11, %d, v6' % dt)
        P.I('v_lshl_add_u32 v%d, v11, 6, v9' % (VA + dt))
        P.I('v_lshl_add_u32 v%d, v11, 6, v10' % (WA + dt))
    for j in range(4):
        P.I('v_add_u32_e32 v5, %d, v4' % (4 * j))
        P.I('v_xor_b32_e32 v5, v5, v3'); P.I('v_lshlrev_b32_e32 v5, 4, v5')
        P.I('v_lshl_add_u32 v5, v4, 8, v5')
        P.I('v_add_u32_e32 v%d, s%d, v5' % (KD + j, sW4096))
    P.I('s_lshl_b32 s7, s%d, 1' % sWAVE)
    P.I('v_add_u32_e32 v5, s7, v8')
    P.I('v_lshlrev_b32_e32 v11, 10, v5'); P.I('v_lshl_add_u32 v11, v2, 8, v11'); P.I('v_lshl_add_u32 v11, v3, 4, v11')
    P.I('v_cmp_gt_u32_e32 vcc, 7, v5')
    P.I('v_mov_b32_e32 v12, 0x40000000')
    P.I('v_cndmask_b32_e32 v%d, v12, v11, vcc' % OST)
    P.I('v_mov_b32_e32 v%d, 0' % L0); P.I('v_mov_b32_e32 v%d, 0' % L1)
    P.I('s_mov_b32 s%d, %d' % (sKo, 3 * 16384)); P.I('s_mov_b32 s%d, %d' % (sVo, 2 * 16384))
    P.I('s_mov_b32 s%d, 0' % sRd)
    for o in read_x(0): E.emit_op(o)
    if STAMP:
        P.I('s_memtime s[72:73]'); P.I('s_waitcnt lgkmcnt(0)'); P.I('v_writelane_b32 v%d, s72, 1' % T5); P.I('v_writelane_b32 v%d, s76, 0' % T5)
    P.wait_vm('ld_P0')
    P.I('s_barrier')
    if STAMP:
        P.I('s_memtime s[72:73]'); P.I('s_waitcnt lgkmcnt(0)')
        P.I('v_writelane_b32 v%d, s72, 2' % T5)
    psteps = [make_step('P', g) for g in range(8)]
    gsteps = [make_step('G', g) for g in range(8)]
    for i in range(D_BAR): E.issue_reads(psteps[0].mf[i], set())
    g0 = make_step('G', 0)
    upd = E.run(psteps, g0, D_BAR, set(), valu_prologue(7 * 20))
    pro_end = len(P.ins)
    for i in range(D_BAR):
        gsteps[0].mf[i].frag = g0.mf[i].frag; gsteps[0].mf[i].tag = 'g0pre%d' % i
    for ins in P.ins:
        for i in range(D_BAR):
            if ins.tag == g0.mf[i].tag: ins.tag = 'g0pre%d' % i
    P.label('L_head')
    g0n = make_step('G', 0)
    upd_in = set(upd)
    upd2 = E.run(gsteps, g0n, D_BAR, set(upd), valu_head())
    assert upd2 == upd_in, (upd2, upd_in)
    for i in range(D_BAR):
        assert g0n.mf[i].frag == g0.mf[i].frag
        for ins in P.ins:
            if ins.tag == g0n.mf[i].tag: ins.tag = 'g0pre%d' % i
    P.I('s_add_u32 s%d, s%d, 1' % (sHead, sHead))
    P.I('s_cmp_lt_u32 s%d, 4' % sHead)
    P.I('s_cbranch_scc1 L_head')
    body_end = len(P.ins)
    if STAMP:
        P.I('s_waitcnt lgkmcnt(0)'); P.I('s_memtime s[72:73]'); P.I('s_waitcnt lgkmcnt(0)'); P.I('v_writelane_b32 v%d, s72, 61' % T5)
    on0, on1 = oproj_phase(P, E)
    P.I('s_waitcnt vmcnt(0) lgkmcnt(0)')
    if STAMP:
        P.I('s_memtime s[72:73]'); P.I('s_memrealtime s[80:81]'); P.I('s_waitcnt lgkmcnt(0)')
        P.I('v_writelane_b32 v%d, s72, 62' % T5)
        P.I('v_writelane_b32 v%d, s78, 62' % T4); P.I('v_writelane_b32 v%d, s80, 63' % T4)
        P.I('s_lshl_b32 s72, s2, 2'); P.I('s_add_u32 s72, s72, s%d' % sWAVE); P.I('s_lshl_b32 s72, s72, 9')
        P.I('s_add_u32 s72, s72, 0x4000000')
        P.I('s_add_u32 s68, s68, s72'); P.I('s_addc_u32 s69, s69, 0')
        P.I('v_mbcnt_lo_u32_b32 v0, -1, 0'); P.I('v_mbcnt_hi_u32_b32 v0, -1, v0'); P.I('v_lshlrev_b32_e32 v0, 2, v0')
        P.I('global_store_dword v0, v%d, s[68:69]' % T4)
        P.I('global_store_dword v0, v%d, s[68:69] offset:256' % T5)
        P.I('s_waitcnt vmcnt(0)')
    P.I('s_branch L_end')
    slow_begin = len(P.ins)
    slow_path(P)
    P.label('L_end')
    P.I('s_endpgm')
    pro = P.ins[:pro_end]; body = P.ins[pro_end:body_end]
    mid = P.ins[body_end:on0]; obody = P.ins[on0:on1]
    resolve_waits(pro + body + body + body + mid + obody + obody + obody)
    drop_optional(P)
    P.pad()
    idx = [k for k, i in enumerate(P.ins) if i.label == 'L_head'][0]
    idx2 = [k for k, i in enumerate(P.ins) if i.op == 's_cbranch_scc1' and 'L_head' in i.text][0]
    body = P.ins[idx:idx2 + 1]
    bad = check_hazards(P.ins[:idx] + body + body, name)
    idx = [k for k, i in enumerate(P.ins) if i.label == 'L_ng'][0]
    idx2 = [k for k, i in enumerate(P.ins) if i.op == 's_cbranch_scc1' and 'L_ng' in i.text][0]
    body = P.ins[idx:idx2 + 1]
    bad += check_hazards(P.ins[idx - 60:idx] + body + body, name)
    assert bad == 0
    return P

if __name__ == '__main__':
    P = gen_k1()
    print(P.text())
```

```python
from asmlib import *
PART = 163840
LDS_BYTES = 0
GRID = 640
WSOFF = 0
LPOL = ''
SPOL = ''

def gen_k3():
    P = Prog()
    P.I('s_cmp_ge_u32 s2, %d' % GRID)
    P.I('s_cbranch_scc1 L_end')
    P.I('s_load_dwordx2 s[4:5], s[0:1], 80')
    P.I('s_load_dwordx2 s[6:7], s[0:1], 96')
    P.I('v_lshrrev_b32_e32 v1, 6, v0')
    P.I('v_and_b32_e32 v0, 63, v0')
    P.I('s_mul_i32 s3, s2, 52429'); P.I('s_lshr_b32 s3, s3, 20')
    P.I('v_readfirstlane_b32 s16, v1')
    P.I('s_mul_i32 s17, s3, 20'); P.I('s_sub_u32 s17, s2, s17')
    P.I('s_lshr_b32 s18, s17, 2')
    P.I('s_and_b32 s19, s17, 3')
    P.I('s_waitcnt lgkmcnt(0)')
    P.I('s_mul_i32 s20, s3, %d' % (8 * PART))
    if WSOFF: P.I('s_add_u32 s20, s20, %d' % WSOFF)
    P.I('s_add_u32 s8, s6, s20'); P.I('s_addc_u32 s9, s7, 0')
    P.I('s_mov_b32 s10, %d' % (8 * PART)); P.I('s_mov_b32 s11, 0x20000')
    P.I('s_lshl_b32 s21, s18, 3'); P.I('s_lshl_b32 s22, s16, 1'); P.I('s_add_u32 s21, s21, s22'); P.I('s_lshl_b32 s21, s21, 12')
    P.I('s_lshl_b32 s22, s19, 10'); P.I('s_add_u32 s21, s21, s22')
    P.I('v_lshlrev_b32_e32 v2, 4, v0')
    for half in range(2):
        for hg in range(8):
            P.I('s_add_u32 s22, s21, %d' % (hg * PART + half * 4096))
            r = 16 + (half * 8 + hg) * 4
            P.I('buffer_load_dwordx4 v[%d:%d], v2, s[8:11], s22 offen %s' % (r, r + 3, LPOL), 'ld%d_%d' % (half, hg))
    P.I('s_mov_b32 s12, s4'); P.I('s_mov_b32 s13, s5'); P.I('s_mov_b32 s14, %d' % (16 * 112 * 2560)); P.I('s_mov_b32 s15, 0x20000')
    P.I('s_lshr_b32 s23, s3, 4')
    P.I('s_and_b32 s24, s3, 15')
    P.I('v_and_b32_e32 v3, 31, v0'); P.I('s_lshl_b32 s25, s19, 5'); P.I('v_add_u32_e32 v3, s25, v3')
    P.I('v_lshrrev_b32_e32 v4, 5, v0')
    P.I('s_mul_i32 s26, s24, %d' % (112 * 2560)); P.I('s_mul_i32 s27, s23, 1280'); P.I('s_add_u32 s26, s26, s27')
    P.I('s_lshl_b32 s27, s18, 8'); P.I('s_add_u32 s26, s26, s27')
    P.I('s_lshl_b32 s27, s16, 6'); P.I('s_add_u32 s26, s26, s27')
    P.I('v_mul_u32_u24_e32 v5, 2560, v3'); P.I('v_lshl_add_u32 v5, v4, 4, v5')
    P.I('v_cmp_gt_u32_e32 vcc, 112, v3')
    P.I('v_mov_b32_e32 v6, 0x40000000')
    P.I('v_cndmask_b32_e32 v5, v6, v5, vcc')
    for half in range(2):
        acc = 80 + half * 8
        for hg in range(8):
            P.wait_vm('ld%d_%d' % (half, hg))
            r = 16 + (half * 8 + hg) * 4
            for j in range(4):
                if hg == 0:
                    P.I('v_lshlrev_b32_e32 v%d, 16, v%d' % (acc + 2 * j, r + j))
                    P.I('v_and_b32_e32 v%d, 0xffff0000, v%d' % (acc + 2 * j + 1, r + j))
                else:
                    P.I('v_lshlrev_b32_e32 v7, 16, v%d' % (r + j))
                    P.I('v_and_b32_e32 v8, 0xffff0000, v%d' % (r + j))
                    P.I('v_add_f32_e32 v%d, v%d, v7' % (acc + 2 * j, acc + 2 * j))
                    P.I('v_add_f32_e32 v%d, v%d, v8' % (acc + 2 * j + 1, acc + 2 * j + 1))
        o = 96 + half * 4
        for j in range(4): P.I('v_cvt_pk_bf16_f32 v%d, v%d, v%d' % (o + j, acc + 2 * j, acc + 2 * j + 1))
        P.I('buffer_store_dwordx4 v[%d:%d], v5, s[12:15], s26 offen offset:%d %s' % (o, o + 3, half * 32, SPOL), 'st')
    P.I('s_waitcnt vmcnt(0)')
    P.label('L_end')
    P.I('s_endpgm')
    resolve_waits(P.ins)
    drop_optional(P)
    P.pad()
    assert check_hazards(P.ins, 'k3') == 0
    return P

if __name__ == '__main__':
    print(gen_k3().text())
```

```python
import sys, os
sys.path.insert(0, os.path.dirname(os.path.abspath(__file__)))
import k1

NAME = 'concat_heads__gqa_block_cached__mha_block_cached__near_ridge'
REF = 'cdna_kernels/%s.s.ref' % NAME

def header_comments():
    out = []
    for l in open(REF).read().splitlines():
        if not l.startswith(';'): break
        if '@launch' in l or l.startswith('; Override') or l.startswith('; grid='): continue
        out.append(l)
    return out

def kernel_text(name, body, nv=512, acc=256, nsgpr=102):
    t = ['.globl %s' % name, '.p2align 8', '.type %s,@function' % name, '%s:' % name, body]
    return '\n'.join(t)

def descriptor(name, nv, acc, nsgpr=102):
    return '''.amdhsa_kernel %s
  .amdhsa_next_free_vgpr %d
  .amdhsa_next_free_sgpr %d
  .amdhsa_accum_offset %d
  .amdhsa_group_segment_fixed_size 0
  .amdhsa_kernarg_size 104
  .amdhsa_user_sgpr_count 2
  .amdhsa_user_sgpr_kernarg_segment_ptr 1
  .amdhsa_system_sgpr_workgroup_id_x 1
.end_amdhsa_kernel''' % (name, nv, nsgpr, acc)

def build(kernels):
    out = header_comments()
    for (name, body, grid, block, lds, nv, acc) in kernels:
        out.append('; @launch kernel=%s grid=(%d,1,1) block=(%d,1,1) lds=%d' % (name, grid, block, lds))
    out.append('.amdgcn_target "amdgcn-amd-amdhsa--gfx950"')
    out.append('.text')
    for (name, body, grid, block, lds, nv, acc) in kernels:
        out.append(kernel_text(name, body))
    out.append('.section .rodata,"a"')
    for (name, body, grid, block, lds, nv, acc) in kernels:
        out.append('.p2align 6')
        out.append(descriptor(name, nv, acc))
    return '\n'.join(out) + '\n'

def relabel(text, prefix):
    import re
    return re.sub(r'\bL_', prefix + '_', text)

def apply_env(mods):
    for m in mods:
        if os.environ.get('STAMP') and hasattr(m, 'STAMP'): m.STAMP = True
    for kv in os.environ.get('EXP', '').split(','):
        if '=' in kv:
            k, v = kv.split('=')
            hit = False
            for m in mods:
                if hasattr(m, k):
                    setattr(m, k, type(getattr(m, k))(v.replace('+', ' '))); hit = True
            if not hit:
                for m in mods:
                    if hasattr(m, 'EXP'): m.EXP[k] = v

if __name__ == '__main__':
    which = sys.argv[1] if len(sys.argv) > 1 else 'a'
    dst = sys.argv[2] if len(sys.argv) > 2 else 'cdna_kernels/%s.s' % NAME
    ks = []
    if which == 'k1':
        apply_env([k1])
        P1 = k1.gen_k1()
        ks.append(('attn_kernel', relabel(P1.text(), 'A'), 256, 256, k1.LDS_BYTES, 512, 256))
    elif which == 'a':
        import k1a, k3
        apply_env([k1a, k3])
        P1 = k1a.gen_k1()
        ks.append(('attn_kernel', relabel(P1.text(), 'A'), 256, 256, k1a.LDS_BYTES, 512, 256))
        P3 = k3.gen_k3()
        ks.append(('red_kernel', relabel(P3.text(), 'R'), k3.GRID, 256, 0, 104, 104))
        for i in range(int(os.environ.get('NOPK', '0'))):
            ks.append(('nop%d_kernel' % i, '    s_endpgm', int(os.environ.get('NOPG', '1')), 64, 0, 8, 8))
    open(dst, 'w').write(build(ks))
    print('wrote', dst, os.path.getsize(dst), 'bytes; nops', P1.nops)
```

```python
from asmlib import *

SLOT = 53248
KOFF, VOFF, WOFF = 0, 16384, 32768
NSLOT = 3
LDS_BYTES = 163840
O_UNIT = 28672

QACC = 0; OACC = 64; SB = (128, 160); Q = 192
KA = 224; VA = 232; WA = 236; KD = 240; VD = 244; WD = 245; OST = 246; L0 = 247; L1 = 248
LT = 249; T0 = 250; T1 = 251; T2 = 252; T3 = 253; T4 = 254; T5 = 255
XA = 0; POOL = 160; NPOOL = 8
sK = 8; sV = 12; sW = 16; sO = 20; sX = 24
sWAVE = 28; sKo = 29; sVo = 30; sWo = 31; sRd = 32; sDelta = 33; sHead = 35
sWrK = 34; sWrW = 50; sT = 36; sT2 = 37; sW4096 = 38; sW5120 = 39; sOo = 40; sC = 41; sSlot = 42; sWrap = 43
sM = 44
sRet = 46
sHb = 48
sI = 49
QSCALE = 0x3e0293ee
import struct, math
QSCALE = struct.unpack('<I', struct.pack('<f', math.log2(math.e) / math.sqrt(128.0)))[0]

def vr(b, n): return 'v[%d:%d]' % (b, b + n - 1)
def ar(b, n): return 'a[%d:%d]' % (b, b + n - 1)

class M:
    def __init__(self, d, b, c0, reads, first_use=None):
        self.d = d; self.b = b; self.c0 = c0; self.reads = reads
        self.first_use = first_use

def mf_S(buf):
    out = []
    for T in range(2):
        for ks in range(8):
            out.append(M(vr(buf + 16 * T, 16), vr(Q + 4 * ks, 4), ks == 0,
                         [('ds_read_b128', 0, 4, KA + ks, KOFF + T * 8192)]))
    return out

def mf_Q(g, dtmajor=False):
    out = []
    order = [(ks, dt) for dt in range(4) for ks in range(5)] if dtmajor else [(ks, dt) for ks in range(5) for dt in range(4)]
    for (ks, dt) in order:
        if True:
            out.append(M(vr(QACC + 16 * dt, 16), ar(XA + 4 * (5 * g + ks), 4), g == 0 and ks == 0,
                         [('ds_read_b64_tr_b16', 2 * e, 2, WA + dt, WOFF + (16 * ks + 4 * e) * 256) for e in range(2)]))
    return out

def mf_PV(g, dtmajor=False):
    buf = SB[g & 1]
    out = []
    order = [(k, dt) for dt in range(4) for k in range(4)] if dtmajor else [(k, dt) for k in range(4) for dt in range(4)]
    for (k, dt) in order:
        T, half = k >> 1, k & 1
        if True:
            out.append(M(vr(OACC + 16 * dt, 16), vr(buf + 16 * T + 8 * half, 4), g == 0 and k == 0,
                         [('ds_read_b64_tr_b16', 2 * e, 2, VA + dt, VOFF + (16 * k + 8 * e) * 256) for e in range(2)]))
    return out

def softmax_ops(g):
    buf = SB[g & 1]
    chunks = []
    for k in range(4):
        T, half = k >> 1, k & 1
        b = buf + 16 * T + 8 * half
        ops = []
        for i in range(8): ops.append('v_exp_f32_e32 v%d, v%d' % (b + i, b + i))
        for i in range(8):
            l = L0 if i % 2 == 0 else L1
            ops.append('v_add_f32_e32 v%d, v%d, v%d' % (l, b + i, l))
        for j in range(4): ops.append('v_cvt_pk_bf16_f32 v%d, v%d, v%d' % (b + j, b + 2 * j, b + 2 * j + 1))
        e, a, c = ops[:8], ops[8:16], ops[16:]
        seq = [e[0], e[1]]
        for i in range(2, 8): seq += [e[i], a[i - 2]]
        seq += [a[6], a[7]] + c
        chunks.append(seq)
    return chunks

def qconv_ops(dts=range(4)):
    ops = []
    for dt in dts:
        for r in range(16): ops.append('v_mul_f32_e32 v%d, s%d, v%d' % (QACC + 16 * dt + r, sC, QACC + 16 * dt + r))
        for half in range(2):
            ks = 2 * dt + half
            for j in range(4):
                r = QACC + 16 * dt + 8 * half + 2 * j
                ops.append('v_cvt_pk_bf16_f32 v%d, v%d, v%d' % (Q + 4 * ks + j, r, r + 1))
    return ops

def ofin_ops(dts=range(4)):
    ops = []
    for dt in dts:
        b = OACC + 16 * dt
        for r in range(16): ops.append('v_mul_f32_e32 v%d, v%d, v%d' % (b + r, LT, b + r))
        for j in range(8): ops.append('v_cvt_pk_bf16_f32 v%d, v%d, v%d' % (b + j, b + 2 * j, b + 2 * j + 1))
    return ops

STASH = [192, 224, 0, 32]
def stash(P):
    for h in range(3):
        P.I('s_cmp_eq_u32 s%d, %d' % (sHead, h)); P.I('s_cbranch_scc1 L_st%d' % h)
    for h in (3, 0, 1, 2):
        if h != 3: P.label('L_st%d' % h)
        for dt in range(4):
            for j in range(8): P.I('v_accvgpr_write_b32 a%d, v%d' % (STASH[h] + 8 * dt + j, OACC + 16 * dt + j))
        if h != 2: P.I('s_branch L_st_done')
    P.label('L_st_done')

def dma_K(tag):
    ops = ['s_mov_b32 m0, s%d' % sWrK]
    for j in range(4):
        ops.append(('buffer_load_dwordx4 v%d, s[%d:%d], s%d offen offset:%d %s lds' % (KD + j, sK, sK + 3, sKo, j * 1024, KVPOL), tag))
    ops.append('s_add_u32 s%d, s%d, 16384' % (sKo, sKo))
    return ops

def dma_V(tag):
    ops = ['s_add_u32 m0, s%d, %d' % (sWrK, VOFF)]
    for j in range(4):
        ops.append(('buffer_load_dwordx4 v%d, s[%d:%d], s%d offen offset:%d %s lds' % (VD, sV, sV + 3, sVo, j * 1024, KVPOL), tag))
    ops.append('s_add_u32 s%d, s%d, 16384' % (sVo, sVo))
    return ops

STPOL = ''
WPOL = ''
KVPOL = 'nt'
def dma_W(tag):
    ops = ['s_mov_b32 m0, s%d' % sWrW]
    for j in range(4):
        if j == 0:
            ops.append(('buffer_load_dwordx4 v%d, s[%d:%d], s%d offen offset:0 %s lds' % (WD, sW, sW + 3, sWo, WPOL), tag))
        else:
            ops.append('s_add_u32 s%d, s%d, %d' % (sT2, sWo, j * (32768 - 1024)))
            ops.append(('buffer_load_dwordx4 v%d, s[%d:%d], s%d offen offset:%d %s lds' % (WD, sW, sW + 3, sT2, j * 1024, WPOL), tag))
    ops.append('s_add_u32 m0, s%d, 4096' % sWrW)
    ops.append('s_add_u32 s%d, s%d, %d' % (sT2, sWo, 4 * 32768))
    ops.append(('buffer_load_dwordx4 v%d, s[%d:%d], s%d offen offset:0 %s lds' % (WD, sW, sW + 3, sT2, WPOL), tag))
    ops.append('s_add_u32 s%d, s%d, %d' % (sWo, sWo, 80 * 8192))
    return ops

def set_wr(base):
    return ['s_add_u32 s%d, s%d, %d' % (sWrK, sW4096, base), 's_add_u32 s%d, s%d, %d' % (sWrW, sW5120, base)]

def ring_advance():
    return ['s_add_u32 s%d, s%d, s%d' % (sWrK, sRd, sW4096),
            's_add_u32 s%d, s%d, s%d' % (sWrW, sRd, sW5120),
            's_add_u32 s%d, s%d, s%d' % (sRd, sRd, sSlot),
            's_cmp_eq_u32 s%d, %d' % (sRd, NSLOT * SLOT),
            's_cselect_b32 s%d, s%d, s%d' % (sDelta, sWrap, sSlot),
            's_cselect_b32 s%d, 0, s%d' % (sRd, sRd)]

def cost_of(op):
    if callable(op): return 100
    t = op[0] if isinstance(op, tuple) else op
    if t.startswith('buffer_'): return 20
    if t.startswith('v_exp') or t.startswith('v_rcp'): return 8
    return 4

class Step:
    def __init__(self, name, mf, paced=None, fixed=None):
        self.name = name; self.mf = mf
        self.paced = paced or []
        self.fixed = fixed or {}

STAMP = False
EXP = {}
D_AHEAD = 6
D_BAR = 3
WAITW = 2
BUDGET = 26

class Emitter:
    def __init__(self, P):
        self.P = P
        self.fr = 0
        self.uid = 0
        self.addr_regs = list(range(KA, KA + 8)) + list(range(VA, VA + 4)) + list(range(WA, WA + 4))
    def emit_op(self, op):
        if isinstance(op, tuple):
            if op[0] == 'WAITVM': self.P.wait_vm(op[1])
            elif op[0] == 'WAITLGKM': self.P.wait_lgkm(op[1])
            else: self.P.I(op[0], op[1])
        elif callable(op): op(self.P)
        else: self.P.I(op)
    def issue_reads(self, m, upd):
        P = self.P
        c = 0
        m.frag = POOL + 4 * (self.fr % NPOOL); self.fr += 1
        self.uid += 1; m.tag = 'f%d' % (self.uid); m.issued = True
        for (op, off, n, addr, imm) in m.reads:
            if addr in upd:
                P.I('v_add_u32_e32 v%d, s%d, v%d' % (addr, sDelta, addr)); upd.discard(addr); c += 4
            P.I('%s %s, v%d offset:%d' % (op, ar(m.frag + off, n), addr, imm), m.tag); c += 4
        return c
    def boundary(self, nxt):
        P = self.P
        P.wait_lgkm('ALL')
        if STAMP and ((nxt.name[0] == 'O') == bool(EXP.get('ostamp'))):
            P.I('%s s[72:73]' % ('s_memrealtime' if EXP.get('rt') else 's_memtime')); P.I('s_waitcnt lgkmcnt(0)')
            P.I('s_mov_b32 m0, s74'); P.I('v_writelane_b32 v%d, s72, m0' % T4)
        P.wait_vm('ld_' + nxt.name)
        P.I('s_barrier')
        if STAMP and ((nxt.name[0] == 'O') == bool(EXP.get('ostamp'))):
            P.I('s_memtime s[72:73]'); P.I('s_waitcnt lgkmcnt(0)')
            P.I('s_mov_b32 m0, s74'); P.I('v_writelane_b32 v%d, s72, m0' % T5)
            P.I('s_add_u32 s74, s74, 1')
        for o in ring_advance(): P.I(o)
        return set(self.addr_regs)
    def run(self, steps, nxt_after, pre_issued, upd, valu):
        P = self.P
        allm = []
        for si, s in enumerate(steps):
            for i, m in enumerate(s.mf): allm.append((si, i, m))
        n = len(allm)
        tail = [(len(steps), i, m) for i, m in enumerate(nxt_after.mf)] if nxt_after else []
        seq = allm + tail
        first_of = {}
        for k, (si, i, m) in enumerate(seq):
            if i == 0: first_of[si] = k
        nread = pre_issued
        entered = 0
        vq = list(valu); vp = 0
        ppos = 0
        for k in range(n):
            si, i, m = allm[k]
            s = steps[si]
            if i == 0: ppos = 0
            used = 0
            tgt = k
            if i % WAITW == 0:
                for d in range(1, WAITW):
                    if k + d < n and allm[k + d][0] == si and k + d < nread: tgt = k + d
            P.wait_lgkm(seq[tgt][2].tag)
            if i % WAITW == 0: used += 4
            c = '0' if m.c0 else m.d
            if (not EXP.get('dropm') or s.name[0] != 'G' or k % int(EXP['dropm']) != 0) and (not getattr(m, 'skip', False) or (k % int(EXP['skipm']) == 0)): P.I('v_mfma_f32_32x32x16_bf16 %s, %s, %s, %s' % (m.d, ar(m.frag, 4), m.b, c))
            nm = len(s.mf)
            last = nm - 2 - D_BAR
            if EXP.get('dmaend') and s.name[0] == 'G': last = int(EXP['dmaend'])
            if i <= last:
                want = len(s.paced) if i == last else int(math.ceil(len(s.paced) * (i + 1) / float(last + 1)))
                while ppos < want:
                    used += cost_of(s.paced[ppos]); self.emit_op(s.paced[ppos]); ppos += 1
            for o in s.fixed.get(i, []):
                used += cost_of(o); self.emit_op(o)
            if si + 1 in first_of and k == first_of[si + 1] - 1 - D_BAR and entered == si:
                assert ppos == len(s.paced)
                for a in sorted(upd): P.I('v_add_u32_e32 v%d, s%d, v%d' % (a, sDelta, a)); used += 4
                nx = steps[si + 1] if si + 1 < len(steps) else nxt_after
                upd = self.boundary(nx); entered = si + 1; used += 40
            while nread < len(seq) and nread <= k + D_AHEAD and seq[nread][0] <= entered and (seq[nread][0] < len(steps) or nread - n < D_BAR):
                used += self.issue_reads(seq[nread][2], upd); nread += 1
            while vp < len(vq) and (vq[vp][2] <= k or (vq[vp][1] <= k and used + cost_of(vq[vp][0]) <= BUDGET)):
                used += cost_of(vq[vp][0]); self.emit_op(vq[vp][0]); vp += 1
        assert vp == len(vq), (vp, len(vq))
        return upd

def check_and_hook(P):
    P.I('v_add_f32_e32 v%d, v%d, v%d' % (LT, L0, L1))
    P.I('v_mov_b32_e32 v%d, v%d' % (T0, LT))
    P.I('v_mov_b32_e32 v%d, 0' % L0)
    P.I('v_mov_b32_e32 v%d, 0' % L1)
    P.I('v_permlane32_swap_b32_e32 v%d, v%d' % (LT, T0))
    P.I('v_add_f32_e32 v%d, v%d, v%d' % (LT, LT, T0))
    P.I('v_cmp_le_f32_e32 vcc, 0x33800000, v%d' % LT)
    P.I('s_nop 0')
    P.I('s_mov_b64 s[%d:%d], vcc' % (sM, sM + 1))
    P.I('v_cmp_ge_f32_e32 vcc, 0x4b800000, v%d' % LT)
    P.I('s_nop 0')
    P.I('s_and_b64 s[%d:%d], s[%d:%d], vcc' % (sM, sM + 1, sM, sM + 1))
    P.I('s_cmp_eq_u64 s[%d:%d], -1' % (sM, sM + 1))
    if not (EXP.get('nosm') or EXP.get('skipm') or EXP.get('nokv') or EXP.get('dropm')):
        P.I('s_cbranch_scc1 L_fast_ok')
        P.I('s_branch L_slow')
    P.label('L_slow_ret')
    P.label('L_fast_ok')
    P.I('v_rcp_f32_e32 v%d, v%d' % (LT, LT))

def nm(k, gg): return 'ld_%s%d' % (k, gg)
XR = SB[0]
XR2 = SB[0] + 8
XV = SB[0] + 16
X_SLOT = [0, 1, 2, 0, 2]

def dma_x(kt):
    ops = []
    for j in range(8):
        ops.append('s_add_u32 m0, s70, %d' % (X_SLOT[kt] * SLOT + j * 1024))
        ops.append('s_mov_b32 s7, %d' % (j * 4 * 1280 + kt * 256))
        ops.append(('buffer_load_dwordx4 v%d, s[%d:%d], s7 offen %s lds' % (XV + (j & 3), sX, sX + 3, XPOL), 'x%d' % kt))
    return ops

def read_x(kt):
    ops = [('WAITVM', 'x%d' % kt)]
    for ks in range(8):
        if X_SLOT[kt] == 2: a, off = XR2 + ks, 0
        else: a, off = XR + ks, X_SLOT[kt] * SLOT
        ops.append(('ds_read_b128 %s, v%d offset:%d' % (ar(XA + 4 * (8 * kt + ks), 4), a, off), 'xr%d' % kt))
    return ops
XPOL = ''

def const_wr(slot, ops_fn, tag):
    return ['s_add_u32 s%d, s%d, %d' % (sT, sW4096, slot * SLOT)] + [o.replace('s%d' % sWrK, 's%d' % sT) if isinstance(o, str) else o for o in ops_fn(tag)]

def make_step(kind, g):
    name = '%s%d' % (kind, g)
    if kind == 'P':
        mf = mf_Q(g, dtmajor=(g == 7))
        paced = []; fixed = {}
        if 1 <= g <= 5: paced += dma_W(nm('P', g + 2))
        if g == 0: fixed[4] = read_x(1)
        if g == 1: paced += dma_x(3)
        if g == 2: fixed[2] = read_x(2); paced += [('WAITLGKM', 'xr2')] + dma_x(4)
        if g == 3: paced += const_wr(1, dma_K0, nm('P', 7)); fixed[8] = read_x(3)
        if g == 4: paced += const_wr(0, dma_K2, nm('G', 1)) + const_wr(0, dma_V1, nm('G', 1)); fixed[8] = read_x(4)
        if g == 5: paced += const_wr(2, dma_K1, nm('G', 0)) + const_wr(2, dma_V0, nm('G', 0))
        if g == 6: paced += ['s_add_u32 s%d, s%d, %d' % (sWo, sWo, (256 - 8 * 80 * 8192) & 0xffffffff)] + dma_W(nm('G', 0))
        if g == 7:
            paced += dma_W(nm('G', 1))
            mf = mf + mf_S(SB[0])
        return Step(name, mf, paced, fixed)
    tgt = nm('G', (g + 2) % 8)
    loads = []
    if g == 6:
        loads += ['s_add_u32 s%d, s%d, %d' % (sWo, sWo, (256 - 8 * 80 * 8192) & 0xffffffff),
                  's_cmp_ge_u32 s%d, 2' % sHead,
                  's_cselect_b32 s%d, 0, s%d' % (sW + 2, sW + 2)]
    if EXP.get('nokv') is None: loads += dma_K(tgt) + dma_V(tgt)
    if EXP.get('now') is None: loads += dma_W(tgt)
    if g < 7: mf = mf_S(SB[(g + 1) & 1]) + mf_Q(g) + mf_PV(g)
    else: mf = mf_Q(7, True) + mf_PV(7, True) + mf_S(SB[0])
    if EXP.get('skipm'):
        for m in mf: m.skip = True
    return Step(name, mf, loads)

def with_soff(ops, reg, val):
    out = ['s_mov_b32 s%d, %d' % (sI, val)]
    for o in ops:
        if isinstance(o, tuple): out.append((o[0].replace(', s%d offen' % reg, ', s%d offen' % sI), o[1]))
        elif o.startswith('s_add_u32 s%d, s%d' % (reg, reg)): continue
        else: out.append(o)
    return out
def dma_K0(tag): return with_soff(dma_K(tag), sKo, 0)
def dma_K1(tag): return with_soff(dma_K(tag), sKo, 1 * 16384)
def dma_K2(tag): return with_soff(dma_K(tag), sKo, 2 * 16384)
def dma_V0(tag): return with_soff(dma_V(tag), sVo, 0)
def dma_V1(tag): return with_soff(dma_V(tag), sVo, 16384)

def valu_prologue(base7):
    q = []
    for dt in range(4):
        for o in qconv_ops([dt]): q.append((o, base7 + 5 * dt + 4 + 3, base7 + 19 + 2 * dt))
    return q

def valu_head():
    q = []
    for g in range(8):
        sm = softmax_ops(g)
        if EXP.get('nosm'): sm = [[], [], [], []]
        for c in range(4):
            est = 0 if g == 0 else 52 * (g - 1) + 8 * ((c >> 1) + 1) + 2
            ddl = 52 * g + 35 + 4 * c if g < 7 else 52 * 7 + 6
            for o in sm[c]: q.append((o, est, ddl))
    b = 52 * 7
    q.append((check_and_hook, b, b + 6))
    for dt in range(4):
        for o in qconv_ops([dt]): q.append((o, b + 5 * dt + 4 + 3, b + 35 + 2 * dt))
        if dt >= 1: pass
    for dt in range(4):
        for o in ofin_ops([dt]): q.append((o, b + 20 + 4 * dt + 3 + 3, b + 51))
    q.append((stash, b + 20, b + 51))
    return q

OA = WA
PK = SB[0]
PART = 163840
sNg = 51
def mf_O(hh):
    out = []
    order = [(ks, nt) for nt in range(4) for ks in range(8)] if hh in (0, 3) else [(ks, nt) for ks in range(8) for nt in range(4)]
    for (ks, nt) in order:
        out.append(M(vr(QACC + 16 * nt, 16), ar(STASH[hh] + 4 * ks, 4), hh == 0 and ks == 0,
                     [('ds_read_b64_tr_b16', 2 * e, 2, OA + nt, (16 * ks + 8 * e) * 256) for e in range(2)]))
    return out

def dma_O(tag, adv):
    ops = ['s_mov_b32 m0, s%d' % sWrK]
    for j in range(8):
        if j == 4: ops.append('s_add_u32 m0, s%d, 4096' % sWrK)
        ops.append('s_add_u32 s%d, s%d, %d' % (sT2, sWo, j * 5120 - (j & 3) * 1024))
        ops.append(('buffer_load_dwordx4 v%d, s[%d:%d], s%d offen offset:%d %s lds' % (VD, sW, sW + 3, sT2, (j & 3) * 1024, OPOL), tag))
    ops.append('s_add_u32 s%d, s%d, %d' % (sWo, sWo, adv & 0xffffffff))
    return ops
OPOL = ''
PSTPOL = ''
WSOFF = 0

def make_ostep(hh):
    tgt = 'ld_O%d' % ((hh + 2) % 4)
    adv = 163840 if (hh + 2) % 4 != 3 else 256 - 3 * 163840
    pre = []
    if hh == 2:
        pre = ['s_cmp_ge_u32 s%d, 4' % sNg, 's_cselect_b32 s%d, 0, s%d' % (sW + 2, sW + 2)]
    return Step('O%d' % hh, mf_O(hh), pre + dma_O(tgt, adv))

PKH = [64, 96, 128, 160, 192]
def cvt_variants(P):
    P.I('s_nop 7'); P.I('s_nop 3')
    for ng in range(4):
        P.I('s_cmp_eq_u32 s%d, %d' % (sNg, ng)); P.I('s_cbranch_scc1 L_pk%d' % ng)
    for ng in (4, 0, 1, 2, 3):
        if ng != 4: P.label('L_pk%d' % ng)
        for nt in range(4):
            for j in range(8):
                P.I('v_cvt_pk_bf16_f32 v%d, v%d, v%d' % (PKH[ng] + 8 * nt + j, QACC + 16 * nt + 2 * j, QACC + 16 * nt + 2 * j + 1))
        if ng != 3: P.I('s_branch L_pk_done')
    P.label('L_pk_done')

def final_stores(P):
    for ng in range(5):
        for nt in range(4):
            for half in range(2):
                P.I('s_mov_b32 s%d, %d' % (sT, (ng * 8 + nt * 2 + half) * 4096))
                P.I('buffer_store_dwordx4 %s, v%d, s[%d:%d], s%d offen %s' % (vr(PKH[ng] + 8 * nt + 4 * half, 4), OST, sO, sO + 3, sT, PSTPOL), 'pst')

def valu_o():
    if EXP.get('defer'): return [(cvt_variants, 127, 127)]
    q = []
    b = 96
    for nt in range(4):
        est = b + 8 * nt + 7 + 3
        for j in range(8):
            q.append(('v_cvt_pk_bf16_f32 v%d, v%d, v%d' % (PK + 8 * nt + j, QACC + 16 * nt + 2 * j, QACC + 16 * nt + 2 * j + 1), est, 127))
        for half in range(2):
            q.append(('s_add_u32 s%d, s%d, %d' % (sT, sOo, (nt * 2 + half) * 4096), est, 127))
            q.append((('buffer_store_dwordx4 %s, v%d, s[%d:%d], s%d offen %s' % (vr(PK + 8 * nt + 4 * half, 4), OST, sO, sO + 3, sT, PSTPOL), 'pst'), est, 127))
            if EXP.get('dupst'):
                q.append((('buffer_store_dwordx4 %s, v%d, s[88:91], s%d offen %s' % (vr(PK + 8 * nt + 4 * half, 4), OST, sT, PSTPOL), 'pst'), est, 127))
    q.append(('s_add_u32 s%d, s%d, %d' % (sOo, sOo, 8 * 4096), b, 127))
    return [(o[0] if False else o[0], o[1], o[2]) for o in q]

def oproj_phase(P, E):
    P.I('s_waitcnt vmcnt(0) lgkmcnt(0)')
    P.I('s_barrier')
    P.I('v_mbcnt_lo_u32_b32 v0, -1, 0'); P.I('v_mbcnt_hi_u32_b32 v0, -1, v0')
    P.I('v_and_b32_e32 v3, 15, v0'); P.I('v_lshrrev_b32_e32 v4, 4, v0'); P.I('v_lshrrev_b32_e32 v2, 5, v0')
    P.I('v_lshrrev_b32_e32 v6, 2, v3'); P.I('v_and_b32_e32 v7, 3, v0'); P.I('v_and_b32_e32 v8, 1, v4')
    P.I('v_lshlrev_b32_e32 v5, 2, v4'); P.I('v_xor_b32_e32 v5, v5, v3'); P.I('v_lshlrev_b32_e32 v5, 4, v5')
    P.I('v_mul_u32_u24_e32 v11, 1280, v4')
    P.I('s_mul_i32 s7, s%d, %d' % (sWAVE, 32 * 1280))
    P.I('v_add3_u32 v%d, v5, v11, s7' % VD)
    P.I('s_mov_b32 s%d, s82' % sW); P.I('s_mov_b32 s%d, s83' % (sW + 1))
    P.I('s_mov_b32 s%d, 655360' % (sW + 2)); P.I('s_mov_b32 s%d, 0x20000' % (sW + 3))
    P.I('s_lshl_b32 s%d, s%d, 13' % (sW4096, sWAVE))
    P.I('s_mov_b32 s%d, 0' % sWo)
    for n in range(2):
        P.I('s_add_u32 s%d, s%d, %d' % (sWrK, sW4096, n * SLOT))
        for o in dma_O('ld_O%d' % n, 163840): E.emit_op(o)
    P.I('v_lshl_add_u32 v10, v2, 2, v6'); P.I('v_lshlrev_b32_e32 v10, 8, v10')
    P.I('v_lshl_add_u32 v10, v8, 5, v10')
    P.I('v_and_b32_e32 v11, 1, v7'); P.I('v_lshl_add_u32 v10, v11, 4, v10')
    P.I('v_lshrrev_b32_e32 v11, 1, v7'); P.I('v_lshl_add_u32 v10, v11, 3, v10')
    for nt in range(4):
        P.I('v_xor_b32_e32 v11, %d, v6' % nt)
        P.I('v_lshl_add_u32 v%d, v11, 6, v10' % (OA + nt))
    P.I('s_lshl_b32 s7, s%d, 10' % sWAVE)
    P.I('v_lshlrev_b32_e32 v11, 4, v0'); P.I('v_add_u32_e32 v11, s7, v11')
    P.I('v_and_b32_e32 v5, 31, v0'); P.I('s_lshl_b32 s7, s%d, 5' % sWAVE); P.I('v_add_u32_e32 v5, s7, v5')
    P.I('v_cmp_gt_u32_e32 vcc, 112, v5')
    P.I('v_mov_b32_e32 v12, 0x40000000')
    P.I('v_cndmask_b32_e32 v%d, v12, v11, vcc' % OST)
    P.I('s_mov_b32 s%d, 0' % sOo); P.I('s_mov_b32 s%d, 0' % sNg)
    P.I('s_mov_b32 s%d, 0' % sRd)
    P.I('s_add_u32 s%d, s%d, %d' % (sWrK, sW4096, 2 * SLOT))
    P.wait_vm('ld_O0')
    P.I('s_barrier')
    E.addr_regs = list(range(OA, OA + 4))
    osteps = [make_ostep(hh) for hh in range(4)]
    o0 = make_ostep(0)
    for i in range(D_BAR): E.issue_reads(osteps[0].mf[i], set())
    first = [(osteps[0].mf[i].tag, osteps[0].mf[i].frag) for i in range(D_BAR)]
    for i in range(D_BAR):
        for ins in P.ins:
            if ins.tag == first[i][0]: ins.tag = 'o0pre%d' % i
        osteps[0].mf[i].tag = 'o0pre%d' % i
    n0 = len(P.ins)
    P.label('L_ng')
    upd_in = set()
    upd = E.run(osteps, o0, D_BAR, set(range(OA + 1, OA + 4)) if False else set(), valu_o())
    for a in sorted(upd): P.I('v_add_u32_e32 v%d, s%d, v%d' % (a, sDelta, a))
    for i in range(D_BAR):
        assert o0.mf[i].frag == first[i][1], (o0.mf[i].frag, first[i][1])
        for ins in P.ins:
            if ins.tag == o0.mf[i].tag: ins.tag = 'o0pre%d' % i
    P.I('s_add_u32 s%d, s%d, 1' % (sNg, sNg))
    P.I('s_cmp_lt_u32 s%d, 5' % sNg)
    P.I('s_cbranch_scc1 L_ng')
    n1 = len(P.ins)
    if EXP.get('defer'): final_stores(P)
    return n0, n1

def slow_path(P):
    S0, S1 = SB
    P.label('L_slow')
    P.I('s_nop 15'); P.I('s_nop 15')
    P.I('v_mbcnt_lo_u32_b32 v%d, -1, 0' % T0)
    P.I('v_mbcnt_hi_u32_b32 v%d, -1, v%d' % (T0, T0))
    P.I('v_and_b32_e32 v%d, 31, v%d' % (T1, T0))
    P.I('v_lshrrev_b32_e32 v%d, 5, v%d' % (T2, T0))
    P.I('v_lshlrev_b32_e32 v%d, 8, v%d' % (T3, T1))
    P.I('v_lshl_add_u32 v%d, v%d, 4, v%d' % (T3, T2, T3))
    P.I('v_lshlrev_b32_e32 v%d, 10, v%d' % (T4, T2))
    P.I('v_lshl_add_u32 v%d, v%d, 1, v%d' % (T4, T1, T4))
    P.I('v_add_u32_e32 v%d, 0x1000, v%d' % (T5, T4))
    P.I('s_lshl_b32 s%d, s%d, 17' % (sHb, sHead))
    def s_tile():
        for ks in range(8):
            P.I('buffer_load_dwordx4 %s, v%d, s[%d:%d], s%d offen offset:%d' % (vr(S0 + 4 * ks, 4), T3, sK, sK + 3, sT2, ks * 32))
        P.I('s_waitcnt vmcnt(0)')
        for ks in range(8):
            P.I('v_mfma_f32_32x32x16_bf16 %s, %s, %s, %s' % (vr(S1, 16), vr(S0 + 4 * ks, 4), vr(Q + 4 * ks, 4), '0' if ks == 0 else vr(S1, 16)))
        P.I('s_nop 15')
    P.I('v_mov_b32_e32 v%d, 0xff800000' % T0)
    P.I('s_mov_b32 s%d, 0' % sI)
    P.label('L_slow_max')
    P.I('s_lshl_b32 s%d, s%d, 13' % (sT2, sI))
    P.I('s_add_u32 s%d, s%d, s%d' % (sT2, sT2, sHb))
    s_tile()
    for r in range(0, 16, 2): P.I('v_max3_f32 v%d, v%d, v%d, v%d' % (T0, T0, S1 + r, S1 + r + 1))
    P.I('s_add_u32 s%d, s%d, 1' % (sI, sI))
    P.I('s_cmp_lt_u32 s%d, 16' % sI)
    P.I('s_cbranch_scc1 L_slow_max')
    P.I('v_mov_b32_e32 v%d, v%d' % (T1, T0))
    P.I('s_nop 1')
    P.I('v_permlane32_swap_b32_e32 v%d, v%d' % (T0, T1))
    P.I('v_max_f32_e32 v%d, v%d, v%d' % (T0, T0, T1))
    P.I('v_mov_b32_e32 v%d, 0' % LT)
    for r in range(64): P.I('v_mov_b32_e32 v%d, 0' % (OACC + r))
    P.I('s_mov_b32 s%d, 0' % sI)
    P.label('L_slow_pv')
    P.I('s_lshl_b32 s%d, s%d, 13' % (sT2, sI))
    P.I('s_add_u32 s%d, s%d, s%d' % (sT2, sT2, sHb))
    s_tile()
    for r in range(16): P.I('v_sub_f32_e32 v%d, v%d, v%d' % (S1 + r, S1 + r, T0))
    for r in range(16): P.I('v_exp_f32_e32 v%d, v%d' % (S1 + r, S1 + r))
    P.I('s_nop 0')
    for r in range(16): P.I('v_add_f32_e32 v%d, v%d, v%d' % (LT, LT, S1 + r))
    for half in range(2):
        for j in range(4):
            r = S1 + 8 * half + 2 * j
            P.I('v_cvt_pk_bf16_f32 v%d, v%d, v%d' % (S1 + 8 * half + j, r, r + 1))
    for half in range(2):
        for dt in range(4):
            for i in range(8):
                P.I('buffer_load_ushort v%d, v%d, s[%d:%d], s%d offen offset:%d' % (S0 + i, T4 if half == 0 else T5, sV, sV + 3, sT2, (8 * (i >> 2) + (i & 3)) * 256 + dt * 64))
            P.I('s_waitcnt vmcnt(0)')
            for j in range(4):
                P.I('v_lshl_or_b32 v%d, v%d, 16, v%d' % (S0 + 8 + j, S0 + 2 * j + 1, S0 + 2 * j))
            P.I('s_nop 1')
            P.I('v_mfma_f32_32x32x16_bf16 %s, %s, %s, %s' % (vr(OACC + 16 * dt, 16), vr(S0 + 8, 4), vr(S1 + 8 * half, 4), vr(OACC + 16 * dt, 16)))
            P.I('s_nop 7')
    P.I('s_add_u32 s%d, s%d, 1' % (sI, sI))
    P.I('s_cmp_lt_u32 s%d, 16' % sI)
    P.I('s_cbranch_scc1 L_slow_pv')
    P.I('v_mov_b32_e32 v%d, v%d' % (T1, LT))
    P.I('s_nop 1')
    P.I('v_permlane32_swap_b32_e32 v%d, v%d' % (LT, T1))
    P.I('v_add_f32_e32 v%d, v%d, v%d' % (LT, LT, T1))
    for T in range(2):
        for half in range(2):
            for j in range(4): P.I('v_mov_b32_e32 v%d, 0' % (S1 + 16 * T + 8 * half + j))
    P.I('s_nop 15')
    P.I('s_branch L_slow_ret')

def gen_k1(name='attn_kernel'):
    P = Prog()
    P.I('s_cmp_ge_u32 s2, 256')
    P.I('s_cbranch_scc1 L_end')
    P.I('s_load_dwordx8 s[52:59], s[0:1], 0')
    P.I('s_load_dwordx8 s[60:67], s[0:1], 40')
    P.I('s_load_dwordx2 s[68:69], s[0:1], 96')
    P.I('s_load_dwordx2 s[82:83], s[0:1], 32')
    P.I('s_load_dwordx2 s[84:85], s[0:1], 72')
    if STAMP:
        P.I('s_memtime s[76:77]'); P.I('s_memrealtime s[78:79]'); P.I('s_mov_b32 s74, 4')
    P.I('v_lshrrev_b32_e32 v1, 6, v0')
    P.I('v_and_b32_e32 v0, 63, v0')
    P.I('s_and_b32 s3, s2, 7')
    P.I('v_readfirstlane_b32 s%d, v1' % sWAVE)
    P.I('s_lshr_b32 s4, s2, 3')
    P.I('s_lshr_b32 s5, s3, 2')
    P.I('s_and_b32 s6, s3, 3')
    P.I('s_lshl_b32 s6, s6, 1')
    P.I('s_and_b32 s7, s4, 1')
    P.I('s_add_u32 s6, s6, s7')
    P.I('s_lshr_b32 s4, s4, 1')
    P.I('s_waitcnt lgkmcnt(0)')
    if STAMP:
        P.I('s_memtime s[72:73]'); P.I('s_waitcnt lgkmcnt(0)'); P.I('v_writelane_b32 v%d, s72, 0' % T4)
    P.I('s_cmp_eq_u32 s5, 0')
    for i in range(8): P.I('s_cselect_b32 s%d, s%d, s%d' % (52 + i, 52 + i, 60 + i))
    P.I('s_cselect_b32 s82, s82, s84'); P.I('s_cselect_b32 s83, s83, s85')
    P.I('s_mul_i32 s7, s4, 143360')
    P.I('s_add_u32 s%d, s52, s7' % sX); P.I('s_addc_u32 s%d, s53, 0' % (sX + 1))
    P.I('s_mov_b32 s%d, 143360' % (sX + 2)); P.I('s_mov_b32 s%d, 0x20000' % (sX + 3))
    P.I('s_lshl_b32 s7, s4, 5'); P.I('s_lshl_b32 s70, s6, 2'); P.I('s_add_u32 s7, s7, s70')
    P.I('s_lshl_b32 s71, s7, 17')
    P.I('s_add_u32 s%d, s54, s71' % sK); P.I('s_addc_u32 s%d, s55, 0' % (sK + 1))
    P.I('s_mov_b32 s%d, 524288' % (sK + 2)); P.I('s_mov_b32 s%d, 0x20000' % (sK + 3))
    P.I('s_add_u32 s%d, s56, s71' % sV); P.I('s_addc_u32 s%d, s57, 0' % (sV + 1))
    P.I('s_mov_b32 s%d, 524288' % (sV + 2)); P.I('s_mov_b32 s%d, 0x20000' % (sV + 3))
    P.I('s_lshl_b32 s71, s70, 8')
    P.I('s_add_u32 s%d, s58, s71' % sW); P.I('s_addc_u32 s%d, s59, 0' % (sW + 1))
    P.I('s_sub_u32 s%d, 5242880, s71' % (sW + 2)); P.I('s_mov_b32 s%d, 0x20000' % (sW + 3))
    P.I('s_mul_i32 s71, s70, 163840')
    P.I('s_add_u32 s82, s82, s71'); P.I('s_addc_u32 s83, s83, 0')
    P.I('s_lshl_b32 s71, s5, 4'); P.I('s_add_u32 s71, s71, s4'); P.I('s_lshl_b32 s71, s71, 3'); P.I('s_add_u32 s71, s71, s6')
    P.I('s_mul_i32 s71, s71, %d' % PART)
    if WSOFF: P.I('s_add_u32 s71, s71, %d' % WSOFF)
    P.I('s_add_u32 s%d, s68, s71' % sO); P.I('s_addc_u32 s%d, s69, 0' % (sO + 1))
    P.I('s_mov_b32 s%d, %d' % (sO + 2, PART)); P.I('s_mov_b32 s%d, 0x20000' % (sO + 3))
    if EXP.get('dupst'):
        P.I('s_add_u32 s88, s%d, 0x4000000' % sO); P.I('s_addc_u32 s89, s%d, 0' % (sO + 1)); P.I('s_mov_b32 s90, %d' % PART); P.I('s_mov_b32 s91, 0x20000')
    P.I('s_lshl_b32 s%d, s%d, 12' % (sW4096, sWAVE))
    P.I('s_mul_i32 s%d, s%d, 5120' % (sW5120, sWAVE))
    P.I('s_add_u32 s%d, s%d, %d' % (sW5120, sW5120, WOFF))
    P.I('v_and_b32_e32 v3, 15, v0'); P.I('v_lshrrev_b32_e32 v4, 4, v0')
    E = Emitter(P)
    P.I('s_lshl_b32 s70, s%d, 13' % sWAVE)
    P.I('s_mul_i32 s71, s%d, %d' % (sWAVE, 32 * 1280))
    P.I('v_mul_u32_u24_e32 v11, 1280, v4')
    for jj in range(4):
        P.I('v_add_u32_e32 v5, %d, v4' % (4 * jj))
        P.I('v_xor_b32_e32 v5, v5, v3'); P.I('v_lshlrev_b32_e32 v5, 4, v5')
        P.I('v_add3_u32 v%d, v5, v11, s71' % (XV + jj))
    P.I('v_lshlrev_b32_e32 v5, 2, v4'); P.I('v_xor_b32_e32 v5, v5, v3'); P.I('v_lshlrev_b32_e32 v5, 4, v5')
    P.I('s_mul_i32 s7, s%d, %d' % (sWAVE, 20 * 8192))
    P.I('v_lshl_add_u32 v11, v4, 13, v5'); P.I('v_add_u32_e32 v%d, s7, v11' % WD)
    P.I('v_lshl_add_u32 v11, v4, 8, v5'); P.I('v_add_u32_e32 v%d, s%d, v11' % (VD, sW4096))
    P.I('s_mov_b32 s%d, 0' % sWo)
    for n in range(3):
        for o in dma_x(n): E.emit_op(o)
        for o in set_wr(n * SLOT): P.I(o)
        for o in dma_W('ld_P%d' % n): E.emit_op(o)
    if STAMP:
        P.I('s_memtime s[72:73]'); P.I('s_waitcnt lgkmcnt(0)'); P.I('v_writelane_b32 v%d, s72, 1' % T4)
    P.I('s_mov_b32 s%d, %d' % (sSlot, SLOT)); P.I('s_mov_b32 s%d, %d' % (sWrap, (-2 * SLOT) & 0xffffffff))
    P.I('s_mov_b32 s%d, 0x%x' % (sC, QSCALE))
    P.I('s_mov_b32 s%d, 0' % sOo); P.I('s_mov_b32 s%d, 0' % sHead)
    P.I('v_and_b32_e32 v1, 31, v0'); P.I('v_lshrrev_b32_e32 v2, 5, v0')
    for ks in range(8):
        P.I('v_add_u32_e32 v5, %d, v2' % (2 * ks))
        P.I('v_xor_b32_e32 v5, v5, v3')
        P.I('v_lshlrev_b32_e32 v5, 4, v5')
        P.I('v_lshl_add_u32 v%d, v1, 8, v5' % (KA + ks))
    for ks in range(8):
        P.I('v_add_u32_e32 v%d, s70, v%d' % (XR + ks, KA + ks))
        P.I('v_add_u32_e32 v%d, %d, v%d' % (XR2 + ks, 2 * SLOT, XR + ks))
    P.I('v_lshrrev_b32_e32 v6, 2, v3')
    P.I('v_and_b32_e32 v7, 3, v0')
    P.I('v_and_b32_e32 v8, 1, v4')
    P.I('v_lshl_add_u32 v9, v2, 2, v6'); P.I('v_lshlrev_b32_e32 v9, 8, v9')
    P.I('v_lshl_add_u32 v9, v8, 5, v9'); P.I('v_lshl_add_u32 v9, v7, 3, v9')
    P.I('v_lshl_add_u32 v10, v2, 3, v6'); P.I('v_lshlrev_b32_e32 v10, 8, v10')
    P.I('v_lshl_add_u32 v10, v8, 5, v10')
    P.I('v_and_b32_e32 v11, 1, v7'); P.I('v_lshl_add_u32 v10, v11, 4, v10')
    P.I('v_lshrrev_b32_e32 v11, 1, v7'); P.I('v_lshl_add_u32 v10, v11, 3, v10')
    for dt in range(4):
        P.I('v_xor_b32_e32 v11, %d, v6' % dt)
        P.I('v_lshl_add_u32 v%d, v11, 6, v9' % (VA + dt))
        P.I('v_lshl_add_u32 v%d, v11, 6, v10' % (WA + dt))
    for j in range(4):
        P.I('v_add_u32_e32 v5, %d, v4' % (4 * j))
        P.I('v_xor_b32_e32 v5, v5, v3'); P.I('v_lshlrev_b32_e32 v5, 4, v5')
        P.I('v_lshl_add_u32 v5, v4, 8, v5')
        P.I('v_add_u32_e32 v%d, s%d, v5' % (KD + j, sW4096))
    P.I('s_lshl_b32 s7, s%d, 1' % sWAVE)
    P.I('v_add_u32_e32 v5, s7, v8')
    P.I('v_lshlrev_b32_e32 v11, 10, v5'); P.I('v_lshl_add_u32 v11, v2, 8, v11'); P.I('v_lshl_add_u32 v11, v3, 4, v11')
    P.I('v_cmp_gt_u32_e32 vcc, 7, v5')
    P.I('v_mov_b32_e32 v12, 0x40000000')
    P.I('v_cndmask_b32_e32 v%d, v12, v11, vcc' % OST)
    P.I('v_mov_b32_e32 v%d, 0' % L0); P.I('v_mov_b32_e32 v%d, 0' % L1)
    P.I('s_mov_b32 s%d, %d' % (sKo, 3 * 16384)); P.I('s_mov_b32 s%d, %d' % (sVo, 2 * 16384))
    P.I('s_mov_b32 s%d, 0' % sRd)
    for o in read_x(0): E.emit_op(o)
    if STAMP:
        P.I('s_memtime s[72:73]'); P.I('s_waitcnt lgkmcnt(0)'); P.I('v_writelane_b32 v%d, s72, 1' % T5); P.I('v_writelane_b32 v%d, s76, 0' % T5)
    P.wait_vm('ld_P0')
    P.I('s_barrier')
    if STAMP:
        P.I('s_memtime s[72:73]'); P.I('s_waitcnt lgkmcnt(0)')
        P.I('v_writelane_b32 v%d, s72, 2' % T5)
    psteps = [make_step('P', g) for g in range(8)]
    gsteps = [make_step('G', g) for g in range(8)]
    for i in range(D_BAR): E.issue_reads(psteps[0].mf[i], set())
    g0 = make_step('G', 0)
    upd = E.run(psteps, g0, D_BAR, set(), valu_prologue(7 * 20))
    pro_end = len(P.ins)
    for i in range(D_BAR):
        gsteps[0].mf[i].frag = g0.mf[i].frag; gsteps[0].mf[i].tag = 'g0pre%d' % i
    for ins in P.ins:
        for i in range(D_BAR):
            if ins.tag == g0.mf[i].tag: ins.tag = 'g0pre%d' % i
    P.label('L_head')
    g0n = make_step('G', 0)
    upd_in = set(upd)
    upd2 = E.run(gsteps, g0n, D_BAR, set(upd), valu_head())
    assert upd2 == upd_in, (upd2, upd_in)
    for i in range(D_BAR):
        assert g0n.mf[i].frag == g0.mf[i].frag
        for ins in P.ins:
            if ins.tag == g0n.mf[i].tag: ins.tag = 'g0pre%d' % i
    P.I('s_add_u32 s%d, s%d, 1' % (sHead, sHead))
    P.I('s_cmp_lt_u32 s%d, 4' % sHead)
    P.I('s_cbranch_scc1 L_head')
    body_end = len(P.ins)
    if STAMP:
        P.I('s_waitcnt lgkmcnt(0)'); P.I('s_memtime s[72:73]'); P.I('s_waitcnt lgkmcnt(0)'); P.I('v_writelane_b32 v%d, s72, 61' % T5)
    on0, on1 = oproj_phase(P, E)
    P.I('s_waitcnt vmcnt(0) lgkmcnt(0)')
    if STAMP:
        P.I('s_memtime s[72:73]'); P.I('s_memrealtime s[80:81]'); P.I('s_waitcnt lgkmcnt(0)')
        P.I('v_writelane_b32 v%d, s72, 62' % T5)
        P.I('v_writelane_b32 v%d, s78, 62' % T4); P.I('v_writelane_b32 v%d, s80, 63' % T4)
        P.I('s_lshl_b32 s72, s2, 2'); P.I('s_add_u32 s72, s72, s%d' % sWAVE); P.I('s_lshl_b32 s72, s72, 9')
        P.I('s_add_u32 s72, s72, 0x4000000')
        P.I('s_add_u32 s68, s68, s72'); P.I('s_addc_u32 s69, s69, 0')
        P.I('v_mbcnt_lo_u32_b32 v0, -1, 0'); P.I('v_mbcnt_hi_u32_b32 v0, -1, v0'); P.I('v_lshlrev_b32_e32 v0, 2, v0')
        P.I('global_store_dword v0, v%d, s[68:69]' % T4)
        P.I('global_store_dword v0, v%d, s[68:69] offset:256' % T5)
        P.I('s_waitcnt vmcnt(0)')
    P.I('s_branch L_end')
    slow_begin = len(P.ins)
    slow_path(P)
    P.label('L_end')
    P.I('s_endpgm')
    pro = P.ins[:pro_end]; body = P.ins[pro_end:body_end]
    mid = P.ins[body_end:on0]; obody = P.ins[on0:on1]
    resolve_waits(pro + body + body + body + mid + obody + obody + obody)
    drop_optional(P)
    P.pad()
    idx = [k for k, i in enumerate(P.ins) if i.label == 'L_head'][0]
    idx2 = [k for k, i in enumerate(P.ins) if i.op == 's_cbranch_scc1' and 'L_head' in i.text][0]
    body = P.ins[idx:idx2 + 1]
    bad = check_hazards(P.ins[:idx] + body + body, name)
    idx = [k for k, i in enumerate(P.ins) if i.label == 'L_ng'][0]
    idx2 = [k for k, i in enumerate(P.ins) if i.op == 's_cbranch_scc1' and 'L_ng' in i.text][0]
    body = P.ins[idx:idx2 + 1]
    bad += check_hazards(P.ins[idx - 60:idx] + body + body, name)
    assert bad == 0
    return P

if __name__ == '__main__':
    P = gen_k1()
    print(P.text())
```

```python
from asmlib import *
import struct, math

SLOT = 53248
KOFF, VOFF, WOFF = 0, 16384, 32768
XBASE = 3 * SLOT
NSLOT = 3
LDS_BYTES = 163840
PART = 143360

QACC = 0; OACC = 64; SB = (128, 160); Q = 192
KA = 224; VA = 228; KD = 236; VD = 240; WD = 242; OST = 244; L = 245; LT = 249
T0 = 251; T1 = 252; T2 = 253; T3 = 254; T4 = 255
XR = 128; XR2 = 136; XV = 144
XA = 0; POOL = 160; NPOOL = 8
STASH = [192, 224, 0, 32]
sK = 8; sV = 12; sW = 16; sO = 20; sX = 24
sWAVE = 28; sKo = 29; sVo = 30; sWc = 31; sRd = 32; sDelta = 33; sWrK = 34; sHead = 35
sT = 36; sT2 = 37; sW4096 = 38; sXc = 39; sOo = 40; sC = 41; sSlot = 42; sWrap = 43
sM = 44; sHb = 48; sI = 49; sWr = 50; sNg = 51; sWn = 46; sWo = 47
QSCALE = struct.unpack('<I', struct.pack('<f', math.log2(math.e) / math.sqrt(128.0)))[0]

STAMP = False
EXP = {}
D_AHEAD = 6
D_BAR = 3
WAITW = 2
BUDGET_A = 12
BUDGET_B = 26
KVPOL = 'nt'; WPOL = 'nt'; XPOL = 'nt'; OPOL = ''; PSTPOL = 'sc0 sc1'
ODMA_A = 6
WSOFF = 0

def vr(b, n): return 'v[%d:%d]' % (b, b + n - 1)
def ar(b, n): return 'a[%d:%d]' % (b, b + n - 1)
def qa(u, t): return QACC + (u * 8 + t) * 4
def oa(u, t): return OACC + (u * 8 + t) * 4
def sreg(buf, u, kt): return SB[buf] + (u * 2 + (kt >> 1)) * 8 + (kt & 1) * 4
def preg(buf, u, s): return SB[buf] + (u * 2 + s) * 8
def qf(u, ks): return Q + (u * 4 + ks) * 4
def xf(kk, u): return XA + (kk * 2 + u) * 4

class F:
    def __init__(self, reads, mfmas):
        self.reads = reads
        self.mfmas = mfmas

def tr(e, addr, imm): return ('ds_read_b64_tr_b16', 2 * e, 2, addr, imm)

def fr_S(buf, nq):
    out = []
    for kt in range(4):
        for ks in range(4):
            out.append(F([('ds_read_b128', 0, 4, KA + ks, KOFF + kt * 4096)],
                         [(vr(sreg(buf, u, kt), 4), vr(qf(u, ks), 4), ks == 0) for u in range(nq)]))
    return out

def q_ksteps(g):
    a = g >> 1
    if g % 2 == 0: return [(5 * a, 0, 1), (5 * a + 1, 2, 3)]
    return [(5 * a + 2, 'X', 0), (5 * a + 3, 1, 2), (5 * a + 4, 3, 4)]

def fr_Q(g, nq, tmajor=False):
    ks = q_ksteps(g)
    order = [(k, t) for t in range(8) for k in ks] if tmajor else [(k, t) for k in ks for t in range(8)]
    out = []
    for ((kk, b0, b1), t) in order:
        reads = []
        for e, b in enumerate((b0, b1)):
            if b == 'X': reads.append(tr(e, ('X', VA + t), 0))
            else: reads.append(tr(e, VA + t, WOFF + b * 4096))
        out.append(F(reads, [(vr(qa(u, t), 4), ar(xf(kk, u), 4), kk == 0) for u in range(nq)]))
    return out

def fr_PV(g, nq, tmajor=False):
    buf = g & 1
    order = [(s, t) for t in range(8) for s in range(2)] if tmajor else [(s, t) for s in range(2) for t in range(8)]
    return [F([tr(e, VA + t, VOFF + (2 * s + e) * 4096) for e in range(2)],
              [(vr(oa(u, t), 4), vr(preg(buf, u, s), 4), g == 0 and s == 0) for u in range(nq)]) for (s, t) in order]

def fr_O(hh, nq):
    order = [(s, t) for t in range(8) for s in range(4)] if hh in (0, 3) else [(s, t) for s in range(4) for t in range(8)]
    return [F([tr(e, VA + t, (2 * s + e) * 4096) for e in range(2)],
              [(vr(qa(u, t), 4), ar(STASH[hh] + (u * 4 + s) * 4, 4), hh == 0 and s == 0) for u in range(nq)]) for (s, t) in order]

def softmax_chunk(buf, u, s):
    b = preg(buf, u, s)
    e = ['v_exp_f32_e32 v%d, v%d' % (b + i, b + i) for i in range(8)]
    a = ['v_add_f32_e32 v%d, v%d, v%d' % (L + 2 * u + (i & 1), b + i, L + 2 * u + (i & 1)) for i in range(8)]
    c = ['v_cvt_pk_bf16_f32 v%d, v%d, v%d' % (b + j, b + 2 * j, b + 2 * j + 1) for j in range(4)]
    seq = [e[0], e[1]]
    for i in range(2, 8): seq += [e[i], a[i - 2]]
    return seq + [a[6], a[7]] + c

def swaps(pairs):
    return ['v_permlane32_swap_b32_e32 v%d, v%d' % p for p in pairs] + ['v_permlane16_swap_b32_e32 v%d, v%d' % p for p in pairs]

def qconv(ks, nq):
    ops = []
    for u in range(nq):
        for t in (2 * ks, 2 * ks + 1):
            for r in range(4): ops.append('v_mul_f32_e32 v%d, s%d, v%d' % (qa(u, t) + r, sC, qa(u, t) + r))
    for u in range(nq):
        for t in range(2):
            for j in range(2):
                r = qa(u, 2 * ks + t) + 2 * j
                ops.append('v_cvt_pk_bf16_f32 v%d, v%d, v%d' % (qf(u, ks) + 2 * t + j, r, r + 1))
    ops += swaps([(qf(u, ks) + j, qf(u, ks) + 2 + j) for u in range(nq) for j in range(2)])
    return ops

def ofin(s, nq):
    ops = []
    for u in range(nq):
        b = oa(u, 2 * s)
        for r in range(8): ops.append('v_mul_f32_e32 v%d, v%d, v%d' % (b + r, LT + u, b + r))
        for j in range(4): ops.append('v_cvt_pk_bf16_f32 v%d, v%d, v%d' % (b + j, b + 2 * j, b + 2 * j + 1))
    return ops

class Role:
    def __init__(self, name, nq):
        self.name = name; self.nq = nq
        self.budget = BUDGET_A if nq == 2 else BUDGET_B
    def lab(self, s): return 'L_%s_%s' % (self.name, s)

def mk_stash(R):
    def f(P):
        for h in range(3):
            P.I('s_cmp_eq_u32 s%d, %d' % (sHead, h)); P.I('s_cbranch_scc1 %s' % R.lab('st%d' % h))
        for h in (3, 0, 1, 2):
            if h != 3: P.label(R.lab('st%d' % h))
            for u in range(R.nq):
                for s in range(4):
                    for j in range(4): P.I('v_accvgpr_write_b32 a%d, v%d' % (STASH[h] + (u * 4 + s) * 4 + j, oa(u, 2 * s) + j))
            if h != 2: P.I('s_branch %s' % R.lab('st_done'))
        P.label(R.lab('st_done'))
    return f

def lane_reduce(P, reg, tmp, op):
    P.I('v_mov_b32_e32 v%d, v%d' % (tmp, reg))
    P.I('v_permlane32_swap_b32_e32 v%d, v%d' % (reg, tmp))
    P.I('%s v%d, v%d, v%d' % (op, reg, reg, tmp))
    P.I('v_mov_b32_e32 v%d, v%d' % (tmp, reg))
    P.I('v_permlane16_swap_b32_e32 v%d, v%d' % (reg, tmp))
    P.I('%s v%d, v%d, v%d' % (op, reg, reg, tmp))

def mk_check(R):
    def f(P):
        for u in range(R.nq):
            P.I('v_add_f32_e32 v%d, v%d, v%d' % (LT + u, L + 2 * u, L + 2 * u + 1))
            P.I('v_mov_b32_e32 v%d, 0' % (L + 2 * u)); P.I('v_mov_b32_e32 v%d, 0' % (L + 2 * u + 1))
        for u in range(R.nq): lane_reduce(P, LT + u, T0 + u, 'v_add_f32_e32')
        P.I('s_mov_b64 s[%d:%d], -1' % (sM, sM + 1))
        for u in range(R.nq):
            P.I('v_cmp_le_f32_e32 vcc, 0x33800000, v%d' % (LT + u))
            P.I('s_and_b64 s[%d:%d], s[%d:%d], vcc' % (sM, sM + 1, sM, sM + 1))
            P.I('v_cmp_ge_f32_e32 vcc, 0x4b800000, v%d' % (LT + u))
            P.I('s_and_b64 s[%d:%d], s[%d:%d], vcc' % (sM, sM + 1, sM, sM + 1))
        P.I('s_cmp_eq_u64 s[%d:%d], -1' % (sM, sM + 1))
        if not EXP.get('nohook'):
            P.I('s_cbranch_scc1 %s' % R.lab('fast_ok'))
            P.I('s_branch %s' % R.lab('slow'))
        P.label(R.lab('slow_ret'))
        P.label(R.lab('fast_ok'))
        for u in range(R.nq): P.I('v_rcp_f32_e32 v%d, v%d' % (LT + u, LT + u))
    return f

def dma(v, srd, soff, imm, pol, tag):
    return ('buffer_load_dwordx4 v%d, s[%d:%d], s%d offen offset:%d %s lds' % (v, srd, srd + 3, soff, imm, pol), tag)

def dma_K(tag, wr=sWrK, soff=sKo, adv=True):
    ops = ['s_mov_b32 m0, s%d' % wr]
    ops += [dma(KD + j, sK, soff, j * 1024, KVPOL, tag) for j in range(4)]
    if adv: ops.append('s_add_u32 s%d, s%d, 16384' % (sKo, sKo))
    return ops

def dma_V(tag, wr=sWrK, soff=sVo, adv=True):
    ops = ['s_add_u32 m0, s%d, %d' % (wr, VOFF)]
    ops += [dma(VD + (j & 1), sV, soff, j * 1024, KVPOL, tag) for j in range(4)]
    if adv: ops.append('s_add_u32 s%d, s%d, 16384' % (sVo, sVo))
    return ops

def dma_Wrows(tag, row0, nrows, hreg, dest):
    ops = []
    for j in range(nrows // 4):
        if j % 4 == 0:
            if isinstance(dest, tuple): ops.append('s_add_u32 m0, s%d, %d' % (dest[1], WOFF + (j >> 2) * 4096))
            else: ops.append('s_mov_b32 m0, %d' % (dest + (j >> 2) * 4096))
        ops.append('s_add_u32 s%d, s%d, %d' % (sT2, hreg, row0 * 8192 + j * 32768 - (j & 3) * 1024))
        ops.append(dma(WD + (j & 1), sW, sT2, (j & 3) * 1024, WPOL, tag))
    return ops

def dma_Warea(tag, g, hreg, dest):
    a = g >> 1
    if g % 2 == 0: return dma_Wrows(tag, 160 * a, 64, hreg, dest)
    return dma_Wrows(tag, 160 * a + 80, 80, hreg, dest)
def dma_WX(tag, g, hreg):
    return dma_Wrows(tag, 160 * (g >> 1) + 64, 16, hreg, XBASE)

X_SLOT = [0, 1, 2, 0, 2]
def dma_x(kt, nq):
    ops = []
    for j in range(4 * nq):
        ops.append('s_add_u32 m0, s70, %d' % (X_SLOT[kt] * SLOT + j * 1024))
        ops.append('s_mov_b32 s7, %d' % (j * 5120 + kt * 256))
        ops.append(('buffer_load_dwordx4 v%d, s[%d:%d], s7 offen %s lds' % (XV + (j & 3), sX, sX + 3, XPOL), 'x%d' % kt))
    return ops

def read_x(kt, nq):
    ops = [('WAITVM', 'x%d' % kt)]
    for kq in range(4):
        for u in range(nq):
            for e in range(2):
                if X_SLOT[kt] == 2: a, off = XR2 + 2 * kq + e, 0
                else: a, off = XR + 2 * kq + e, X_SLOT[kt] * SLOT
                d = xf(4 * kt + kq, u) + 2 * e
                ops.append(('ds_read_b64 %s, v%d offset:%d' % (ar(d, 2), a, off + u * 4096), 'xr%d' % kt))
    return ops

def fixed_kv(slot, kind, off, tag):
    fn = dma_K if kind == 'K' else dma_V
    return ['s_add_u32 s%d, s%d, %d' % (sT, sW4096, slot * SLOT), 's_mov_b32 s%d, %d' % (sI, off)] + fn(tag, wr=sT, soff=sI, adv=False)

def ring_advance():
    return ['s_mov_b32 s%d, s%d' % (sWr, sRd),
            's_add_u32 s%d, s%d, s%d' % (sWrK, sRd, sW4096),
            's_add_u32 s%d, s%d, s%d' % (sRd, sRd, sSlot),
            's_cmp_eq_u32 s%d, %d' % (sRd, NSLOT * SLOT),
            's_cselect_b32 s%d, s%d, s%d' % (sDelta, sWrap, sSlot),
            's_cselect_b32 s%d, 0, s%d' % (sRd, sRd)]

def cost_of(op):
    if callable(op): return 60
    t = op[0] if isinstance(op, tuple) else op
    if t.startswith('buffer_'): return 20
    if t.startswith('v_exp') or t.startswith('v_rcp'): return 8
    return 4

class Step:
    def __init__(self, name, fr, paced=None, fixed=None, usesX=False):
        self.name = name; self.fr = fr; self.paced = paced or []; self.fixed = fixed or {}; self.usesX = usesX

def stamp(P, reg, lane, real=False):
    P.I('%s s[72:73]' % ('s_memrealtime' if real else 's_memtime')); P.I('s_waitcnt lgkmcnt(0)')
    if isinstance(lane, int): P.I('v_writelane_b32 v%d, s72, %d' % (reg, lane))
    else: P.I('s_mov_b32 m0, s74'); P.I('v_writelane_b32 v%d, s72, m0' % reg)

class Emitter:
    def __init__(self, P, R):
        self.P = P; self.R = R
        self.fr = 0; self.uid = 0
        self.addr_regs = list(range(KA, KA + 4)) + list(range(VA, VA + 8))
    def emit_op(self, op):
        if isinstance(op, tuple):
            if op[0] == 'WAITVM': self.P.wait_vm(op[1])
            elif op[0] == 'WAITLGKM': self.P.wait_lgkm(op[1])
            else: self.P.I(op[0], op[1])
        elif callable(op): op(self.P)
        else: self.P.I(op)
    def issue_reads(self, f, upd):
        P = self.P; c = 0
        f.frag = POOL + 4 * (self.fr % NPOOL); self.fr += 1
        self.uid += 1; f.tag = '%sf%d' % (self.R.name, self.uid)
        for (op, off, n, addr, imm) in f.reads:
            isx = isinstance(addr, tuple)
            a = addr[1] if isx else addr
            if a in upd:
                P.I('v_add_u32_e32 v%d, s%d, v%d' % (a, sDelta, a)); upd.discard(a); c += 4
            if isx:
                P.I('v_add_u32_e32 v%d, s%d, v%d' % (T2, sXc, a)); c += 4; a = T2
            P.I('%s %s, v%d offset:%d' % (op, ar(f.frag + off, n), a, imm), f.tag); c += 4
        return c
    def boundary(self, nxt):
        P = self.P
        P.wait_lgkm('ALL')
        st = STAMP and not EXP.get('lite') and ((nxt.name[0] == 'O') == bool(EXP.get('ostamp')))
        if st: stamp(P, T3, 'dyn', bool(EXP.get('rt')))
        P.wait_vm('ld_' + nxt.name)
        P.I('s_barrier')
        if st: stamp(P, T4, 'dyn'); P.I('s_add_u32 s74, s74, 1')
        for o in ring_advance(): P.I(o)
        if nxt.usesX: P.I('s_sub_u32 s%d, %d, s%d' % (sXc, XBASE, sRd))
        return set(self.addr_regs)
    def run(self, steps, nxt_after, pre_issued, upd, valu):
        P = self.P; R = self.R
        allf = []
        for si, s in enumerate(steps):
            for i, f in enumerate(s.fr): allf.append((si, i, f))
        n = len(allf)
        seq = allf + [(len(steps), i, f) for i, f in enumerate(nxt_after.fr)]
        first_of = {}
        for k, (si, i, f) in enumerate(seq):
            if i == 0: first_of[si] = k
        nread = pre_issued; entered = 0
        vq = list(valu); vp = 0; ppos = 0
        for k in range(n):
            si, i, f = allf[k]
            s = steps[si]
            if i == 0: ppos = 0
            used = 0
            tgt = k
            if i % WAITW == 0:
                for d in range(1, WAITW):
                    if k + d < n and allf[k + d][0] == si and k + d < nread: tgt = k + d
                used += 4
            P.wait_lgkm(seq[tgt][2].tag)
            for mi, (d, b, c0) in enumerate(f.mfmas):
                if not (EXP.get('dropm') and s.name[0] == 'G' and (k * 2 + mi) % int(EXP['dropm']) == 0):
                    P.I('v_mfma_f32_16x16x32_bf16 %s, %s, %s, %s' % (d, ar(f.frag, 4), b, '0' if c0 else d))
                lastm = mi == len(f.mfmas) - 1
                if lastm:
                    nf = len(s.fr); last = nf - 2 - D_BAR
                    for o in s.fixed.get(i, []):
                        used += cost_of(o); self.emit_op(o)
                    if i <= last:
                        want = len(s.paced) if i == last else int(math.ceil(len(s.paced) * (i + 1) / float(last + 1)))
                        while ppos < want:
                            used += cost_of(s.paced[ppos]); self.emit_op(s.paced[ppos]); ppos += 1
                    if si + 1 in first_of and k == first_of[si + 1] - 1 - D_BAR and entered == si:
                        assert ppos == len(s.paced), (s.name, ppos, len(s.paced))
                        for a in sorted(upd): P.I('v_add_u32_e32 v%d, s%d, v%d' % (a, sDelta, a)); used += 4
                        nx = steps[si + 1] if si + 1 < len(steps) else nxt_after
                        upd = self.boundary(nx); entered = si + 1; used += 40
                if mi == 0:
                    while nread < len(seq) and nread <= k + D_AHEAD and seq[nread][0] <= entered and (seq[nread][0] < len(steps) or nread - n < D_BAR):
                        used += self.issue_reads(seq[nread][2], upd); nread += 1
                while vp < len(vq) and ((lastm and vq[vp][2] <= k) or (vq[vp][1] <= k and used + cost_of(vq[vp][0]) <= R.budget)):
                    used += cost_of(vq[vp][0]); self.emit_op(vq[vp][0]); vp += 1
                if not lastm: used = max(0, used - R.budget)
            while nread < len(seq) and nread <= k + D_AHEAD and seq[nread][0] <= entered and (seq[nread][0] < len(steps) or nread - n < D_BAR):
                self.issue_reads(seq[nread][2], upd); nread += 1
        assert vp == len(vq), (vp, len(vq))
        return upd

def nm(k, g): return 'ld_%s%d' % (k, g)

def make_P(g, R):
    nq = R.nq; B = nq == 1
    fr = fr_Q(g, nq, tmajor=(g == 7))
    paced = []; fixed = {}
    wr = ('slot', sWr)
    if g == 0:
        if B: paced += dma_WX(nm('P', 1), 1, sWc) + dma_Warea(nm('P', 1), 1, sWc, SLOT_C(1))
        paced += dma_x(1, nq)
        if B: paced += dma_Warea(nm('P', 2), 2, sWc, SLOT_C(2))
        paced += dma_x(2, nq)
    if g == 1: fixed[0] = read_x(1, nq)
    if B and 1 <= g <= 5: paced += dma_Warea(nm('P', g + 2), g + 2, sWc, wr)
    if B and g in (2, 4, 6): paced = dma_WX(nm('P', g + 1), g + 1, sWc) + paced
    if g == 1: paced += dma_x(3, nq)
    if g == 2: fixed[0] = read_x(2, nq); paced += [('WAITLGKM', 'xr2')] + dma_x(4, nq)
    if g == 3: paced += fixed_kv(1, 'K', 0, nm('P', 7)); fixed[8] = read_x(3, nq)
    if g == 4: paced += fixed_kv(0, 'K', 2 * 16384, nm('G', 1)) + fixed_kv(0, 'V', 16384, nm('G', 1)); fixed[4] = read_x(4, nq)
    if g == 5: paced += fixed_kv(2, 'K', 16384, nm('G', 0)) + fixed_kv(2, 'V', 0, nm('G', 0))
    if B and g == 6: paced += dma_Warea(nm('G', 0), 0, sWn, wr)
    if B and g == 7: paced += dma_Warea(nm('G', 1), 1, sWn, wr) + ['s_mov_b32 s%d, s%d' % (sWc, sWn), 's_add_u32 s%d, s%d, 256' % (sWn, sWn)]
    if g == 7: fr = fr + fr_S(0, nq)
    return Step('P%d' % g, fr, paced, fixed, usesX=(g % 2 == 1))

def SLOT_C(n): return n * SLOT + WOFF

def make_G(g, R):
    nq = R.nq; B = nq == 1
    tgt = nm('G', (g + 2) % 8)
    paced = []
    if B and g % 2 == 0: paced += dma_WX(nm('G', g + 1), g + 1, sWc)
    if B and g == 6:
        paced += ['s_cmp_ge_u32 s%d, 2' % sHead, 's_cselect_b32 s%d, 0, s%d' % (sW + 2, sW + 2)]
    if not EXP.get('nokv'): paced += dma_K(tgt) + dma_V(tgt)
    if B: paced += dma_Warea(tgt, (g + 2) % 8, sWc if g + 2 < 8 else sWn, ('slot', sWr))
    if B and g == 7: paced += ['s_mov_b32 s%d, s%d' % (sWc, sWn), 's_add_u32 s%d, s%d, 256' % (sWn, sWn)]
    if g < 7: fr = fr_S((g + 1) & 1, nq) + fr_Q(g, nq) + fr_PV(g, nq)
    else: fr = fr_Q(7, nq, True) + fr_PV(7, nq, True) + fr_S(0, nq)
    return Step('G%d' % g, fr, paced, usesX=(g % 2 == 1))

def valu_P(steps, R):
    base7 = sum(len(s.fr) for s in steps[:7])
    q = []
    for ks in range(4):
        for o in qconv(ks, R.nq): q.append((o, base7 + 6 * ks + 5 + 2, base7 + 23))
    return q

def valu_G(steps, R):
    nq = R.nq
    base = [0]
    for s in steps: base.append(base[-1] + len(s.fr))
    q = []
    for g in range(8):
        nqf = 16 if g % 2 == 0 else 24
        for s in range(2):
            for u in range(nq):
                est = 0 if g == 0 else base[g - 1] + 8 * s + 7 + 3
                if g < 7: ddl = base[g] + 16 + nqf + 8 * s - 1
                else: ddl = base[7] + 6
                if not EXP.get('nosm'):
                    for o in softmax_chunk(g & 1, u, s): q.append((o, est, ddl))
    b = base[7]
    q.append((mk_check(R), b, b + 6))
    for ks in range(4):
        for o in qconv(ks, nq): q.append((o, b + 6 * ks + 5 + 2, b + 39))
    for s in range(4):
        for o in ofin(s, nq): q.append((o, b + 24 + 4 * s + 3 + 2, b + 55))
    q.append((mk_stash(R), b + 24, b + 55))
    return q

def odma(tag, adv, R):
    n = ODMA_A if R.nq == 2 else 32 - 3 * ODMA_A
    ops = []
    for i in range(n):
        if i % 4 == 0: ops.append('s_add_u32 m0, s%d, %d' % (sWrK, (i >> 2) * 4096))
        ops.append('s_add_u32 s%d, s%d, %d' % (sT2, sWo, i * 5120 - (i & 3) * 1024))
        ops.append(dma(VD + (i & 1), sW, sT2, (i & 3) * 1024, OPOL, tag))
    ops.append('s_add_u32 s%d, s%d, %d' % (sWo, sWo, adv & 0xffffffff))
    return ops

def make_O(hh, R):
    tgt = 'ld_O%d' % ((hh + 2) % 4)
    adv = 163840 if (hh + 2) % 4 != 3 else 256 - 3 * 163840
    pre = []
    if hh == 2: pre = ['s_cmp_ge_u32 s%d, 4' % sNg, 's_cselect_b32 s%d, 0, s%d' % (sW + 2, sW + 2)]
    return Step('O%d' % hh, fr_O(hh, R.nq), pre + odma(tgt, adv, R))

def valu_O(R):
    q = []; b = 96; PK = SB[0]
    for jp in range(4):
        est = b + 4 * (2 * jp + 1) + 3 + 2
        for u in range(R.nq):
            p = PK + (u * 4 + jp) * 4
            for t in range(2):
                for j in range(2):
                    r = qa(u, 2 * jp + t) + 2 * j
                    q.append(('v_cvt_pk_bf16_f32 v%d, v%d, v%d' % (p + 2 * t + j, r, r + 1), est, 127))
        for u in range(R.nq):
            p = PK + (u * 4 + jp) * 4
            q.append(('s_add_u32 s%d, s%d, %d' % (sT, sOo, (jp * 7 + u) * 1024), est, 127))
            q.append((('buffer_store_dwordx4 %s, v%d, s[%d:%d], s%d offen %s' % (vr(p, 4), OST, sO, sO + 3, sT, PSTPOL), 'pst'), est, 127))
    q.append(('s_add_u32 s%d, s%d, %d' % (sOo, sOo, 4 * 7 * 1024), b, 127))
    return q

def lane_ids(P):
    P.I('v_mbcnt_lo_u32_b32 v0, -1, 0'); P.I('v_mbcnt_hi_u32_b32 v0, -1, v0')
    P.I('v_and_b32_e32 v3, 15, v0'); P.I('v_lshrrev_b32_e32 v4, 4, v0')

def swz8(P, dst, p):
    P.I('v_add_u32_e32 v5, %d, v4' % (4 * p)); P.I('v_lshlrev_b32_e32 v5, 1, v5')
    P.I('v_xor_b32_e32 v5, v5, v3'); P.I('v_lshlrev_b32_e32 v%d, 4, v5' % dst)

def retag(P, start, old, new):
    for ins in P.ins[start:]:
        if ins.tag == old: ins.tag = new
        if ins.wait and ins.wait[1] == old: ins.wait = (ins.wait[0], new)

def oproj_phase(P, E, R):
    nq = R.nq
    P.I('s_waitcnt vmcnt(0) lgkmcnt(0)')
    P.I('s_barrier')
    lane_ids(P)
    if nq == 2: P.I('s_mul_i32 s7, s%d, %d' % (sWAVE, ODMA_A))
    else: P.I('s_mov_b32 s7, %d' % (3 * ODMA_A))
    P.I('s_lshl_b32 s%d, s7, 10' % sW4096)
    P.I('s_mul_i32 s7, s7, 5120')
    P.I('v_mul_u32_u24_e32 v11, 1280, v4')
    for p in range(2):
        swz8(P, 12, p)
        P.I('v_add3_u32 v%d, v12, v11, s7' % (VD + p))
    P.I('s_mov_b32 s%d, s82' % sW); P.I('s_mov_b32 s%d, s83' % (sW + 1))
    P.I('s_mov_b32 s%d, 655360' % (sW + 2)); P.I('s_mov_b32 s%d, 0x20000' % (sW + 3))
    P.I('s_mov_b32 s%d, 0' % sWo)
    for n in range(2):
        P.I('s_add_u32 s%d, s%d, %d' % (sWrK, sW4096, n * SLOT))
        for o in odma('ld_O%d' % n, 163840, R): E.emit_op(o)
    va_regs(P, 0)
    P.I('s_lshl_b32 s7, s%d, 11' % sWAVE)
    P.I('v_lshlrev_b32_e32 v11, 4, v0'); P.I('v_add_u32_e32 v%d, s7, v11' % OST)
    P.I('s_mov_b32 s%d, 0' % sOo); P.I('s_mov_b32 s%d, 0' % sNg); P.I('s_mov_b32 s%d, 0' % sRd)
    P.I('s_add_u32 s%d, s%d, %d' % (sWrK, sW4096, 2 * SLOT))
    P.wait_vm('ld_O0')
    P.I('s_barrier')
    E.addr_regs = list(range(VA, VA + 8))
    osteps = [make_O(hh, R) for hh in range(4)]
    o0 = make_O(0, R)
    n_pre = len(P.ins)
    for i in range(D_BAR): E.issue_reads(osteps[0].fr[i], set())
    first = [(osteps[0].fr[i].tag, osteps[0].fr[i].frag) for i in range(D_BAR)]
    for i in range(D_BAR):
        retag(P, n_pre, first[i][0], '%so0pre%d' % (R.name, i)); osteps[0].fr[i].tag = '%so0pre%d' % (R.name, i)
    n0 = len(P.ins)
    P.label(R.lab('ng'))
    upd = E.run(osteps, o0, D_BAR, set(), valu_O(R))
    for a in sorted(upd): P.I('v_add_u32_e32 v%d, s%d, v%d' % (a, sDelta, a))
    for i in range(D_BAR):
        assert o0.fr[i].frag == first[i][1], (o0.fr[i].frag, first[i][1])
        retag(P, n0, o0.fr[i].tag, '%so0pre%d' % (R.name, i))
    P.I('s_add_u32 s%d, s%d, 1' % (sNg, sNg))
    P.I('s_cmp_lt_u32 s%d, 5' % sNg)
    P.I('s_cbranch_scc1 %s' % R.lab('ng'))
    return n0, len(P.ins)

def va_regs(P, base):
    P.I('v_lshrrev_b32_e32 v6, 2, v3'); P.I('v_and_b32_e32 v7, 3, v0')
    P.I('v_lshl_add_u32 v9, v4, 2, v6'); P.I('v_and_b32_e32 v8, 7, v9')
    P.I('v_lshlrev_b32_e32 v9, 8, v9'); P.I('v_lshl_add_u32 v9, v7, 3, v9')
    for t in range(8):
        P.I('v_xor_b32_e32 v11, %d, v8' % t)
        P.I('v_lshl_add_u32 v%d, v11, 5, v9' % (VA + t))

def slow_path(P, R):
    S0, S1 = SB
    P.label(R.lab('slow'))
    P.I('s_nop 15'); P.I('s_nop 15')
    P.I('v_mbcnt_lo_u32_b32 v%d, -1, 0' % T0); P.I('v_mbcnt_hi_u32_b32 v%d, -1, v%d' % (T0, T0))
    P.I('v_and_b32_e32 v%d, 15, v%d' % (T1, T0)); P.I('v_lshrrev_b32_e32 v%d, 4, v%d' % (T0, T0))
    KO, VO, VO2, MX, TM = S1 + 16, S1 + 17, S1 + 18, S1 + 19, S1 + 20
    P.I('v_lshlrev_b32_e32 v%d, 8, v%d' % (KO, T1)); P.I('v_lshl_add_u32 v%d, v%d, 4, v%d' % (KO, T0, KO))
    P.I('v_lshlrev_b32_e32 v%d, 10, v%d' % (VO, T0)); P.I('v_lshl_add_u32 v%d, v%d, 1, v%d' % (VO, T1, VO))
    P.I('v_add_u32_e32 v%d, 0x1000, v%d' % (VO2, VO))
    P.I('s_lshl_b32 s%d, s%d, 17' % (sHb, sHead))
    def s_tile(u, dst):
        for ks in range(4):
            P.I('buffer_load_dwordx4 %s, v%d, s[%d:%d], s%d offen offset:%d' % (vr(S0 + 4 * ks, 4), KO, sK, sK + 3, sT2, ks * 64))
        P.I('s_waitcnt vmcnt(0)')
        for ks in range(4):
            P.I('v_mfma_f32_16x16x32_bf16 %s, %s, %s, %s' % (vr(dst, 4), vr(S0 + 4 * ks, 4), vr(qf(u, ks), 4), '0' if ks == 0 else vr(dst, 4)))
        P.I('s_nop 15')
    for u in range(R.nq):
        P.I('v_mov_b32_e32 v%d, 0xff800000' % MX)
        P.I('s_mov_b32 s%d, 0' % sI)
        P.label(R.lab('slow_max%d' % u))
        P.I('s_lshl_b32 s%d, s%d, 12' % (sT2, sI)); P.I('s_add_u32 s%d, s%d, s%d' % (sT2, sT2, sHb))
        s_tile(u, S0 + 16)
        P.I('v_max3_f32 v%d, v%d, v%d, v%d' % (MX, MX, S0 + 16, S0 + 17)); P.I('v_max3_f32 v%d, v%d, v%d, v%d' % (MX, MX, S0 + 18, S0 + 19))
        P.I('s_add_u32 s%d, s%d, 1' % (sI, sI)); P.I('s_cmp_lt_u32 s%d, 32' % sI); P.I('s_cbranch_scc1 %s' % R.lab('slow_max%d' % u))
        lane_reduce(P, MX, TM, 'v_max_f32_e32')
        P.I('v_mov_b32_e32 v%d, 0' % (LT + u))
        for r in range(32): P.I('v_mov_b32_e32 v%d, 0' % (oa(u, 0) + r))
        P.I('s_mov_b32 s%d, 0' % sI)
        P.label(R.lab('slow_pv%d' % u))
        P.I('s_lshl_b32 s%d, s%d, 13' % (sT2, sI)); P.I('s_add_u32 s%d, s%d, s%d' % (sT2, sT2, sHb))
        s_tile(u, S0 + 16)
        P.I('s_add_u32 s%d, s%d, 4096' % (sT2, sT2))
        s_tile(u, S0 + 20)
        P.I('s_sub_u32 s%d, s%d, 4096' % (sT2, sT2))
        for r in range(8): P.I('v_sub_f32_e32 v%d, v%d, v%d' % (S0 + 16 + r, S0 + 16 + r, MX))
        for r in range(8): P.I('v_exp_f32_e32 v%d, v%d' % (S0 + 16 + r, S0 + 16 + r))
        P.I('s_nop 0')
        for r in range(8): P.I('v_add_f32_e32 v%d, v%d, v%d' % (LT + u, LT + u, S0 + 16 + r))
        for j in range(4): P.I('v_cvt_pk_bf16_f32 v%d, v%d, v%d' % (S0 + 24 + j, S0 + 16 + 2 * j, S0 + 17 + 2 * j))
        for t in range(8):
            for i in range(8):
                P.I('buffer_load_ushort v%d, v%d, s[%d:%d], s%d offen offset:%d' % (S1 + i, VO if i < 4 else VO2, sV, sV + 3, sT2, (i & 3) * 256 + t * 32))
            P.I('s_waitcnt vmcnt(0)')
            for j in range(4): P.I('v_lshl_or_b32 v%d, v%d, 16, v%d' % (S1 + 8 + j, S1 + 2 * j + 1, S1 + 2 * j))
            P.I('s_nop 1')
            P.I('v_mfma_f32_16x16x32_bf16 %s, %s, %s, %s' % (vr(oa(u, t), 4), vr(S1 + 8, 4), vr(S0 + 24, 4), vr(oa(u, t), 4)))
            P.I('s_nop 7')
        P.I('s_add_u32 s%d, s%d, 1' % (sI, sI)); P.I('s_cmp_lt_u32 s%d, 16' % sI); P.I('s_cbranch_scc1 %s' % R.lab('slow_pv%d' % u))
        lane_reduce(P, LT + u, TM, 'v_add_f32_e32')
    for u in range(R.nq):
        for s in range(2):
            for j in range(4): P.I('v_mov_b32_e32 v%d, 0' % (preg(1, u, s) + j))
    P.I('s_nop 15')
    P.I('s_branch %s' % R.lab('slow_ret'))

def role_code(P, R):
    nq = R.nq
    start = len(P.ins)
    P.label(R.lab('start'))
    E = Emitter(P, R)
    for o in dma_x(0, nq): E.emit_op(o)
    if nq == 1:
        for o in dma_Warea(nm('P', 0), 0, sWc, SLOT_C(0)): E.emit_op(o)
    for ks in range(4):
        P.I('v_add_u32_e32 v5, %d, v4' % (4 * ks)); P.I('v_xor_b32_e32 v5, v5, v3'); P.I('v_lshlrev_b32_e32 v5, 4, v5')
        P.I('v_lshl_add_u32 v%d, v3, 8, v5' % (KA + ks))
    va_regs(P, 0)
    for kq in range(4):
        for e in range(2):
            P.I('v_lshrrev_b32_e32 v5, 1, v4'); P.I('v_add_u32_e32 v5, %d, v5' % (4 * kq + 2 * e))
            P.I('v_xor_b32_e32 v5, v5, v3'); P.I('v_lshlrev_b32_e32 v5, 4, v5')
            P.I('v_lshl_add_u32 v5, v3, 8, v5'); P.I('v_and_b32_e32 v11, 1, v4'); P.I('v_lshl_add_u32 v5, v11, 3, v5')
            P.I('v_add_u32_e32 v%d, s70, v5' % (XR + 2 * kq + e))
            P.I('v_add_u32_e32 v%d, %d, v%d' % (XR2 + 2 * kq + e, 2 * SLOT, XR + 2 * kq + e))
    for j in range(4):
        P.I('v_add_u32_e32 v5, %d, v4' % (4 * j)); P.I('v_xor_b32_e32 v5, v5, v3'); P.I('v_lshlrev_b32_e32 v5, 4, v5')
        P.I('v_lshl_add_u32 v5, v4, 8, v5'); P.I('v_add_u32_e32 v%d, s%d, v5' % (KD + j, sW4096))
    for p in range(2):
        swz8(P, 12, p)
        P.I('v_lshl_add_u32 v12, v4, 8, v12'); P.I('v_add_u32_e32 v%d, s%d, v12' % (VD + p, sW4096))
    for u in range(nq):
        P.I('v_mov_b32_e32 v%d, 0' % (L + 2 * u)); P.I('v_mov_b32_e32 v%d, 0' % (L + 2 * u + 1))
    for o in read_x(0, nq): E.emit_op(o)
    P.wait_vm(nm('P', 0))
    P.I('s_barrier')
    if STAMP: P.I('s_waitcnt lgkmcnt(0)'); stamp(P, T4, 2)
    psteps = [make_P(g, R) for g in range(8)]
    gsteps = [make_G(g, R) for g in range(8)]
    for i in range(D_BAR): E.issue_reads(psteps[0].fr[i], set())
    g0 = make_G(0, R)
    n_pre = len(P.ins)
    upd = E.run(psteps, g0, D_BAR, set(), valu_P(psteps, R))
    for i in range(D_BAR):
        gsteps[0].fr[i].frag = g0.fr[i].frag; gsteps[0].fr[i].tag = '%sg0pre%d' % (R.name, i)
        retag(P, n_pre, g0.fr[i].tag, '%sg0pre%d' % (R.name, i))
    if STAMP: P.I('s_waitcnt lgkmcnt(0)'); stamp(P, T3, 60, True)
    pro_end = len(P.ins)
    P.label(R.lab('head'))
    g0n = make_G(0, R)
    upd2 = E.run(gsteps, g0n, D_BAR, set(upd), valu_G(gsteps, R))
    assert upd2 == upd, (upd2, upd)
    for i in range(D_BAR):
        assert g0n.fr[i].frag == g0.fr[i].frag, (g0n.fr[i].frag, g0.fr[i].frag)
        retag(P, pro_end, g0n.fr[i].tag, '%sg0pre%d' % (R.name, i))
    P.I('s_add_u32 s%d, s%d, 1' % (sHead, sHead))
    P.I('s_cmp_lt_u32 s%d, 4' % sHead)
    P.I('s_cbranch_scc1 %s' % R.lab('head'))
    body_end = len(P.ins)
    if STAMP: P.I('s_waitcnt lgkmcnt(0)'); stamp(P, T4, 61); stamp(P, T3, 61, True)
    on0, on1 = oproj_phase(P, E, R)
    P.I('s_waitcnt vmcnt(0) lgkmcnt(0)')
    if STAMP:
        stamp(P, T4, 62); stamp(P, T3, 63, True)
        P.I('v_writelane_b32 v%d, s78, 62' % T3); P.I('v_writelane_b32 v%d, s76, 0' % T4)
        P.I('s_lshl_b32 s72, s2, 2'); P.I('s_add_u32 s72, s72, s%d' % sWAVE); P.I('s_lshl_b32 s72, s72, 9')
        P.I('s_add_u32 s72, s72, 0x4000000')
        P.I('s_add_u32 s68, s68, s72'); P.I('s_addc_u32 s69, s69, 0')
        P.I('v_mbcnt_lo_u32_b32 v0, -1, 0'); P.I('v_mbcnt_hi_u32_b32 v0, -1, v0'); P.I('v_lshlrev_b32_e32 v0, 2, v0')
        P.I('global_store_dword v0, v%d, s[68:69]' % T3)
        P.I('global_store_dword v0, v%d, s[68:69] offset:256' % T4)
        P.I('s_waitcnt vmcnt(0)')
    P.I('s_endpgm')
    slow_path(P, R)
    end = len(P.ins)
    I = P.ins
    return dict(seq=I[start:pro_end] + I[pro_end:body_end] * 3 + I[body_end:on0] + I[on0:on1] * 3)

def gen_k16(name='attn_kernel'):
    P = Prog()
    P.I('s_cmp_ge_u32 s2, 256')
    P.I('s_cbranch_scc1 L_end')
    P.I('s_load_dwordx8 s[52:59], s[0:1], 0')
    P.I('s_load_dwordx8 s[60:67], s[0:1], 40')
    P.I('s_load_dwordx2 s[68:69], s[0:1], 96')
    P.I('s_load_dwordx2 s[82:83], s[0:1], 32')
    P.I('s_load_dwordx2 s[84:85], s[0:1], 72')
    if STAMP:
        P.I('s_memtime s[76:77]'); P.I('s_memrealtime s[78:79]'); P.I('s_mov_b32 s74, 4')
    P.I('v_lshrrev_b32_e32 v1, 6, v0')
    P.I('v_and_b32_e32 v0, 63, v0')
    P.I('s_and_b32 s3, s2, 7')
    P.I('v_readfirstlane_b32 s%d, v1' % sWAVE)
    P.I('s_lshr_b32 s4, s2, 3'); P.I('s_lshr_b32 s5, s3, 2')
    P.I('s_and_b32 s6, s3, 3'); P.I('s_lshl_b32 s6, s6, 1'); P.I('s_and_b32 s7, s4, 1'); P.I('s_add_u32 s6, s6, s7')
    P.I('s_lshr_b32 s4, s4, 1')
    P.I('v_and_b32_e32 v3, 15, v0'); P.I('v_lshrrev_b32_e32 v4, 4, v0')
    P.I('s_lshl_b32 s70, s%d, 13' % sWAVE)
    P.I('s_mul_i32 s71, s%d, %d' % (sWAVE, 32 * 1280))
    P.I('v_mul_u32_u24_e32 v11, 1280, v4')
    for jj in range(4):
        P.I('v_add_u32_e32 v5, %d, v4' % (4 * jj)); P.I('v_xor_b32_e32 v5, v5, v3'); P.I('v_lshlrev_b32_e32 v5, 4, v5')
        P.I('v_add3_u32 v%d, v5, v11, s71' % (XV + jj))
    for p in range(2):
        swz8(P, 12, p)
        P.I('v_lshl_add_u32 v%d, v4, 13, v12' % (WD + p))
    P.I('s_waitcnt lgkmcnt(0)')
    P.I('s_cmp_eq_u32 s5, 0')
    for i in range(8): P.I('s_cselect_b32 s%d, s%d, s%d' % (52 + i, 52 + i, 60 + i))
    P.I('s_cselect_b32 s82, s82, s84'); P.I('s_cselect_b32 s83, s83, s85')
    P.I('s_mul_i32 s7, s4, 143360')
    P.I('s_add_u32 s%d, s52, s7' % sX); P.I('s_addc_u32 s%d, s53, 0' % (sX + 1))
    P.I('s_mov_b32 s%d, 143360' % (sX + 2)); P.I('s_mov_b32 s%d, 0x20000' % (sX + 3))
    P.I('s_lshl_b32 s86, s6, 2')
    P.I('s_lshl_b32 s71, s86, 8')
    P.I('s_add_u32 s%d, s58, s71' % sW); P.I('s_addc_u32 s%d, s59, 0' % (sW + 1))
    P.I('s_sub_u32 s%d, 5242880, s71' % (sW + 2)); P.I('s_mov_b32 s%d, 0x20000' % (sW + 3))
    P.I('s_mov_b32 s%d, 0' % sWc); P.I('s_mov_b32 s%d, 256' % sWn)
    P.I('s_lshl_b32 s7, s4, 5'); P.I('s_add_u32 s7, s7, s86'); P.I('s_lshl_b32 s71, s7, 17')
    P.I('s_add_u32 s%d, s54, s71' % sK); P.I('s_addc_u32 s%d, s55, 0' % (sK + 1))
    P.I('s_mov_b32 s%d, 524288' % (sK + 2)); P.I('s_mov_b32 s%d, 0x20000' % (sK + 3))
    P.I('s_add_u32 s%d, s56, s71' % sV); P.I('s_addc_u32 s%d, s57, 0' % (sV + 1))
    P.I('s_mov_b32 s%d, 524288' % (sV + 2)); P.I('s_mov_b32 s%d, 0x20000' % (sV + 3))
    P.I('s_mul_i32 s71, s86, 163840')
    P.I('s_add_u32 s82, s82, s71'); P.I('s_addc_u32 s83, s83, 0')
    P.I('s_lshl_b32 s71, s5, 4'); P.I('s_add_u32 s71, s71, s4'); P.I('s_lshl_b32 s71, s71, 3'); P.I('s_add_u32 s71, s71, s6')
    P.I('s_mul_i32 s71, s71, %d' % PART)
    if WSOFF: P.I('s_add_u32 s71, s71, %d' % WSOFF)
    P.I('s_add_u32 s%d, s68, s71' % sO); P.I('s_addc_u32 s%d, s69, 0' % (sO + 1))
    P.I('s_mov_b32 s%d, %d' % (sO + 2, PART)); P.I('s_mov_b32 s%d, 0x20000' % (sO + 3))
    P.I('s_lshl_b32 s%d, s%d, 12' % (sW4096, sWAVE))
    P.I('s_mov_b32 s%d, %d' % (sSlot, SLOT)); P.I('s_mov_b32 s%d, %d' % (sWrap, (-2 * SLOT) & 0xffffffff))
    P.I('s_mov_b32 s%d, 0x%x' % (sC, QSCALE))
    P.I('s_mov_b32 s%d, 0' % sHead); P.I('s_mov_b32 s%d, 0' % sRd)
    P.I('s_mov_b32 s%d, %d' % (sKo, 3 * 16384)); P.I('s_mov_b32 s%d, %d' % (sVo, 2 * 16384))
    P.I('s_cmp_eq_u32 s%d, 3' % sWAVE)
    P.I('s_cbranch_scc0 L_A_start')
    P.I('s_branch L_B_start')
    head = list(P.ins)
    RA, RB = Role('A', 2), Role('B', 1)
    a = role_code(P, RA)
    b = role_code(P, RB)
    P.label('L_end')
    P.I('s_endpgm')
    resolve_waits(head + a['seq'])
    resolve_waits(head + b['seq'])
    drop_optional(P)
    P.pad()
    bad = 0
    for R in (RA, RB):
        for lab in ('head', 'ng'):
            idx = [k for k, i in enumerate(P.ins) if i.label == R.lab(lab)][0]
            idx2 = [k for k, i in enumerate(P.ins) if i.op == 's_cbranch_scc1' and i.text.endswith(R.lab(lab))][0]
            body = P.ins[idx:idx2 + 1]
            bad += check_hazards(P.ins[max(0, idx - 60):idx] + body + body, name)
    assert bad == 0
    return P

if __name__ == '__main__':
    print(gen_k16().text())
```

```python
from asmlib import *

SLOT = 53248
KOFF, VOFF, WOFF = 0, 16384, 32768
NSLOT = 3
LDS_BYTES = 163840
O_UNIT = 28672

QACC = 0; OACC = 64; SB = (128, 160); Q = 192
KA = 224; VA = 232; WA = 236; KD = 240; VD = 244; WD = 245; OST = 246; L0 = 247; L1 = 248
LT = 249; T0 = 250; T1 = 251; T2 = 252; T3 = 253; T4 = 254; T5 = 255
XA = 0; POOL = 160; NPOOL = 8
sK = 8; sV = 12; sW = 16; sO = 20; sX = 24
sWAVE = 28; sKo = 29; sVo = 30; sWo = 31; sRd = 32; sDelta = 33; sHead = 35
sWrK = 34; sWrW = 50; sT = 36; sT2 = 37; sW4096 = 38; sW5120 = 39; sOo = 40; sC = 41; sSlot = 42; sWrap = 43
sM = 44
sRet = 46
sHb = 48
sI = 49
QSCALE = 0x3e0293ee
import struct, math
QSCALE = struct.unpack('<I', struct.pack('<f', math.log2(math.e) / math.sqrt(128.0)))[0]

def vr(b, n): return 'v[%d:%d]' % (b, b + n - 1)
def ar(b, n): return 'a[%d:%d]' % (b, b + n - 1)

class M:
    def __init__(self, d, b, c0, reads, first_use=None):
        self.d = d; self.b = b; self.c0 = c0; self.reads = reads
        self.first_use = first_use

def mf_S(buf):
    out = []
    for T in range(2):
        for ks in range(8):
            out.append(M(vr(buf + 16 * T, 16), vr(Q + 4 * ks, 4), ks == 0,
                         [('ds_read_b128', 0, 4, KA + ks, KOFF + T * 8192)]))
    return out

def mf_Q(g, dtmajor=False):
    out = []
    order = [(ks, dt) for dt in range(4) for ks in range(5)] if dtmajor else [(ks, dt) for ks in range(5) for dt in range(4)]
    for (ks, dt) in order:
        if True:
            out.append(M(vr(QACC + 16 * dt, 16), ar(XA + 4 * (5 * g + ks), 4), g == 0 and ks == 0,
                         [('ds_read_b64_tr_b16', 2 * e, 2, WA + dt, WOFF + (16 * ks + 4 * e) * 256) for e in range(2)]))
    return out

def mf_PV(g, dtmajor=False):
    buf = SB[g & 1]
    out = []
    order = [(k, dt) for dt in range(4) for k in range(4)] if dtmajor else [(k, dt) for k in range(4) for dt in range(4)]
    for (k, dt) in order:
        T, half = k >> 1, k & 1
        if True:
            out.append(M(vr(OACC + 16 * dt, 16), vr(buf + 16 * T + 8 * half, 4), g == 0 and k == 0,
                         [('ds_read_b64_tr_b16', 2 * e, 2, VA + dt, VOFF + (16 * k + 8 * e) * 256) for e in range(2)]))
    return out

def softmax_ops(g):
    buf = SB[g & 1]
    chunks = []
    for k in range(4):
        T, half = k >> 1, k & 1
        b = buf + 16 * T + 8 * half
        ops = []
        for i in range(8): ops.append('v_exp_f32_e32 v%d, v%d' % (b + i, b + i))
        for i in range(8):
            l = L0 if i % 2 == 0 else L1
            ops.append('v_add_f32_e32 v%d, v%d, v%d' % (l, b + i, l))
        for j in range(4): ops.append('v_cvt_pk_bf16_f32 v%d, v%d, v%d' % (b + j, b + 2 * j, b + 2 * j + 1))
        e, a, c = ops[:8], ops[8:16], ops[16:]
        seq = [e[0], e[1]]
        for i in range(2, 8): seq += [e[i], a[i - 2]]
        seq += [a[6], a[7]] + c
        chunks.append(seq)
    return chunks

def qconv_ops(dts=range(4)):
    ops = []
    for dt in dts:
        for r in range(16): ops.append('v_mul_f32_e32 v%d, s%d, v%d' % (QACC + 16 * dt + r, sC, QACC + 16 * dt + r))
        for half in range(2):
            ks = 2 * dt + half
            for j in range(4):
                r = QACC + 16 * dt + 8 * half + 2 * j
                ops.append('v_cvt_pk_bf16_f32 v%d, v%d, v%d' % (Q + 4 * ks + j, r, r + 1))
    return ops

def ofin_ops(dts=range(4)):
    ops = []
    for dt in dts:
        b = OACC + 16 * dt
        for r in range(16): ops.append('v_mul_f32_e32 v%d, v%d, v%d' % (b + r, LT, b + r))
        for j in range(8): ops.append('v_cvt_pk_bf16_f32 v%d, v%d, v%d' % (b + j, b + 2 * j, b + 2 * j + 1))
    return ops

STASH = [192, 224, 0, 32]
def stash(P):
    for h in range(3):
        P.I('s_cmp_eq_u32 s%d, %d' % (sHead, h)); P.I('s_cbranch_scc1 L_st%d' % h)
    for h in (3, 0, 1, 2):
        if h != 3: P.label('L_st%d' % h)
        for dt in range(4):
            for j in range(8): P.I('v_accvgpr_write_b32 a%d, v%d' % (STASH[h] + 8 * dt + j, OACC + 16 * dt + j))
        if h != 2: P.I('s_branch L_st_done')
    P.label('L_st_done')

def dma_K(tag):
    ops = ['s_mov_b32 m0, s%d' % sWrK]
    for j in range(4):
        ops.append(('buffer_load_dwordx4 v%d, s[%d:%d], s%d offen offset:%d %s lds' % (KD + j, sK, sK + 3, sKo, j * 1024, KVPOL), tag))
    ops.append('s_add_u32 s%d, s%d, 16384' % (sKo, sKo))
    return ops

def dma_V(tag):
    ops = ['s_add_u32 m0, s%d, %d' % (sWrK, VOFF)]
    for j in range(4):
        ops.append(('buffer_load_dwordx4 v%d, s[%d:%d], s%d offen offset:%d %s lds' % (VD, sV, sV + 3, sVo, j * 1024, KVPOL), tag))
    ops.append('s_add_u32 s%d, s%d, 16384' % (sVo, sVo))
    return ops

STPOL = ''
WPOL = ''
KVPOL = 'nt'
def dma_W(tag):
    ops = ['s_mov_b32 m0, s%d' % sWrW]
    for j in range(4):
        if j == 0:
            ops.append(('buffer_load_dwordx4 v%d, s[%d:%d], s%d offen offset:0 %s lds' % (WD, sW, sW + 3, sWo, WPOL), tag))
        else:
            ops.append('s_add_u32 s%d, s%d, %d' % (sT2, sWo, j * (32768 - 1024)))
            ops.append(('buffer_load_dwordx4 v%d, s[%d:%d], s%d offen offset:%d %s lds' % (WD, sW, sW + 3, sT2, j * 1024, WPOL), tag))
    ops.append('s_add_u32 m0, s%d, 4096' % sWrW)
    ops.append('s_add_u32 s%d, s%d, %d' % (sT2, sWo, 4 * 32768))
    ops.append(('buffer_load_dwordx4 v%d, s[%d:%d], s%d offen offset:0 %s lds' % (WD, sW, sW + 3, sT2, WPOL), tag))
    ops.append('s_add_u32 s%d, s%d, %d' % (sWo, sWo, 80 * 8192))
    return ops

def set_wr(base):
    return ['s_add_u32 s%d, s%d, %d' % (sWrK, sW4096, base), 's_add_u32 s%d, s%d, %d' % (sWrW, sW5120, base)]

def ring_advance():
    return ['s_add_u32 s%d, s%d, s%d' % (sWrK, sRd, sW4096),
            's_add_u32 s%d, s%d, s%d' % (sWrW, sRd, sW5120),
            's_add_u32 s%d, s%d, s%d' % (sRd, sRd, sSlot),
            's_cmp_eq_u32 s%d, %d' % (sRd, NSLOT * SLOT),
            's_cselect_b32 s%d, s%d, s%d' % (sDelta, sWrap, sSlot),
            's_cselect_b32 s%d, 0, s%d' % (sRd, sRd)]

def cost_of(op):
    if callable(op): return 100
    t = op[0] if isinstance(op, tuple) else op
    if t.startswith('buffer_'): return 20
    if t.startswith('v_exp') or t.startswith('v_rcp'): return 8
    return 4

class Step:
    def __init__(self, name, mf, paced=None, fixed=None):
        self.name = name; self.mf = mf
        self.paced = paced or []
        self.fixed = fixed or {}

STAMP = False
EXP = {}
D_AHEAD = 6
D_BAR = 3
WAITW = 2
BUDGET = 26

class Emitter:
    def __init__(self, P):
        self.P = P
        self.fr = 0
        self.uid = 0
        self.addr_regs = list(range(KA, KA + 8)) + list(range(VA, VA + 4)) + list(range(WA, WA + 4))
    def emit_op(self, op):
        if isinstance(op, tuple):
            if op[0] == 'WAITVM': self.P.wait_vm(op[1])
            elif op[0] == 'WAITLGKM': self.P.wait_lgkm(op[1])
            else: self.P.I(op[0], op[1])
        elif callable(op): op(self.P)
        else: self.P.I(op)
    def issue_reads(self, m, upd):
        P = self.P
        c = 0
        m.frag = POOL + 4 * (self.fr % NPOOL); self.fr += 1
        self.uid += 1; m.tag = 'f%d' % (self.uid); m.issued = True
        for (op, off, n, addr, imm) in m.reads:
            if addr in upd:
                P.I('v_add_u32_e32 v%d, s%d, v%d' % (addr, sDelta, addr)); upd.discard(addr); c += 4
            P.I('%s %s, v%d offset:%d' % (op, ar(m.frag + off, n), addr, imm), m.tag); c += 4
        return c
    def boundary(self, nxt):
        P = self.P
        P.wait_lgkm('ALL')
        if STAMP and not EXP.get('lite') and ((nxt.name[0] == 'O') == bool(EXP.get('ostamp'))):
            P.I('%s s[72:73]' % ('s_memrealtime' if EXP.get('rt') else 's_memtime')); P.I('s_waitcnt lgkmcnt(0)')
            P.I('s_mov_b32 m0, s74'); P.I('v_writelane_b32 v%d, s72, m0' % T4)
        P.wait_vm('ld_' + nxt.name)
        P.I('s_barrier')
        if STAMP and not EXP.get('lite') and ((nxt.name[0] == 'O') == bool(EXP.get('ostamp'))):
            P.I('s_memtime s[72:73]'); P.I('s_waitcnt lgkmcnt(0)')
            P.I('s_mov_b32 m0, s74'); P.I('v_writelane_b32 v%d, s72, m0' % T5)
            P.I('s_add_u32 s74, s74, 1')
        for o in ring_advance(): P.I(o)
        return set(self.addr_regs)
    def run(self, steps, nxt_after, pre_issued, upd, valu):
        P = self.P
        allm = []
        for si, s in enumerate(steps):
            for i, m in enumerate(s.mf): allm.append((si, i, m))
        n = len(allm)
        tail = [(len(steps), i, m) for i, m in enumerate(nxt_after.mf)] if nxt_after else []
        seq = allm + tail
        first_of = {}
        for k, (si, i, m) in enumerate(seq):
            if i == 0: first_of[si] = k
        nread = pre_issued
        entered = 0
        vq = list(valu); vp = 0
        ppos = 0
        for k in range(n):
            si, i, m = allm[k]
            s = steps[si]
            if i == 0: ppos = 0
            used = 0
            tgt = k
            if i % WAITW == 0:
                for d in range(1, WAITW):
                    if k + d < n and allm[k + d][0] == si and k + d < nread: tgt = k + d
            P.wait_lgkm(seq[tgt][2].tag)
            if i % WAITW == 0: used += 4
            c = '0' if m.c0 else m.d
            if (not EXP.get('dropm') or s.name[0] != 'G' or k % int(EXP['dropm']) != 0) and (not getattr(m, 'skip', False) or (k % int(EXP['skipm']) == 0)): P.I('v_mfma_f32_32x32x16_bf16 %s, %s, %s, %s' % (m.d, ar(m.frag, 4), m.b, c))
            nm = len(s.mf)
            last = nm - 2 - D_BAR
            if EXP.get('dmaend') and s.name[0] == 'G': last = int(EXP['dmaend'])
            if i <= last:
                want = len(s.paced) if i == last else int(math.ceil(len(s.paced) * (i + 1) / float(last + 1)))
                while ppos < want:
                    used += cost_of(s.paced[ppos]); self.emit_op(s.paced[ppos]); ppos += 1
            for o in s.fixed.get(i, []):
                used += cost_of(o); self.emit_op(o)
            if si + 1 in first_of and k == first_of[si + 1] - 1 - D_BAR and entered == si:
                assert ppos == len(s.paced)
                for a in sorted(upd): P.I('v_add_u32_e32 v%d, s%d, v%d' % (a, sDelta, a)); used += 4
                nx = steps[si + 1] if si + 1 < len(steps) else nxt_after
                upd = self.boundary(nx); entered = si + 1; used += 40
            while nread < len(seq) and nread <= k + D_AHEAD and seq[nread][0] <= entered and (seq[nread][0] < len(steps) or nread - n < D_BAR):
                used += self.issue_reads(seq[nread][2], upd); nread += 1
            while vp < len(vq) and (vq[vp][2] <= k or (vq[vp][1] <= k and used + cost_of(vq[vp][0]) <= BUDGET)):
                used += cost_of(vq[vp][0]); self.emit_op(vq[vp][0]); vp += 1
        assert vp == len(vq), (vp, len(vq))
        return upd

def check_and_hook(P):
    P.I('v_add_f32_e32 v%d, v%d, v%d' % (LT, L0, L1))
    P.I('v_mov_b32_e32 v%d, v%d' % (T0, LT))
    P.I('v_mov_b32_e32 v%d, 0' % L0)
    P.I('v_mov_b32_e32 v%d, 0' % L1)
    P.I('v_permlane32_swap_b32_e32 v%d, v%d' % (LT, T0))
    P.I('v_add_f32_e32 v%d, v%d, v%d' % (LT, LT, T0))
    P.I('v_cmp_le_f32_e32 vcc, 0x33800000, v%d' % LT)
    P.I('s_nop 0')
    P.I('s_mov_b64 s[%d:%d], vcc' % (sM, sM + 1))
    P.I('v_cmp_ge_f32_e32 vcc, 0x4b800000, v%d' % LT)
    P.I('s_nop 0')
    P.I('s_and_b64 s[%d:%d], s[%d:%d], vcc' % (sM, sM + 1, sM, sM + 1))
    P.I('s_cmp_eq_u64 s[%d:%d], -1' % (sM, sM + 1))
    if not (EXP.get('nosm') or EXP.get('skipm') or EXP.get('nokv') or EXP.get('dropm')):
        P.I('s_cbranch_scc1 L_fast_ok')
        P.I('s_branch L_slow')
    P.label('L_slow_ret')
    P.label('L_fast_ok')
    P.I('v_rcp_f32_e32 v%d, v%d' % (LT, LT))

def nm(k, gg): return 'ld_%s%d' % (k, gg)
XR = SB[0]
XR2 = SB[0] + 8
XV = SB[0] + 16
X_SLOT = [0, 1, 2, 0, 2]

def dma_x(kt):
    ops = []
    for j in range(8):
        ops.append('s_add_u32 m0, s70, %d' % (X_SLOT[kt] * SLOT + j * 1024))
        ops.append('s_mov_b32 s7, %d' % (j * 4 * 1280 + kt * 256))
        ops.append(('buffer_load_dwordx4 v%d, s[%d:%d], s7 offen %s lds' % (XV + (j & 3), sX, sX + 3, XPOL), 'x%d' % kt))
    return ops

def read_x(kt):
    ops = [('WAITVM', 'x%d' % kt)]
    for ks in range(8):
        if X_SLOT[kt] == 2: a, off = XR2 + ks, 0
        else: a, off = XR + ks, X_SLOT[kt] * SLOT
        ops.append(('ds_read_b128 %s, v%d offset:%d' % (ar(XA + 4 * (8 * kt + ks), 4), a, off), 'xr%d' % kt))
    return ops
XPOL = ''

def const_wr(slot, ops_fn, tag):
    return ['s_add_u32 s%d, s%d, %d' % (sT, sW4096, slot * SLOT)] + [o.replace('s%d' % sWrK, 's%d' % sT) if isinstance(o, str) else o for o in ops_fn(tag)]

def make_step(kind, g):
    name = '%s%d' % (kind, g)
    if kind == 'P':
        mf = mf_Q(g, dtmajor=(g == 7))
        paced = []; fixed = {}
        if 1 <= g <= 5: paced += dma_W(nm('P', g + 2))
        if g == 0: fixed[4] = read_x(1)
        if g == 1: paced += dma_x(3)
        if g == 2: fixed[2] = read_x(2); paced += [('WAITLGKM', 'xr2')] + dma_x(4)
        if g == 3: paced += const_wr(1, dma_K0, nm('P', 7)); fixed[8] = read_x(3)
        if g == 4: paced += const_wr(0, dma_K2, nm('G', 1)) + const_wr(0, dma_V1, nm('G', 1)); fixed[8] = read_x(4)
        if g == 5: paced += const_wr(2, dma_K1, nm('G', 0)) + const_wr(2, dma_V0, nm('G', 0))
        if g == 6: paced += ['s_add_u32 s%d, s%d, %d' % (sWo, sWo, (256 - 8 * 80 * 8192) & 0xffffffff)] + dma_W(nm('G', 0))
        if g == 7:
            paced += dma_W(nm('G', 1))
            mf = mf + mf_S(SB[0])
        return Step(name, mf, paced, fixed)
    tgt = nm('G', (g + 2) % 8)
    loads = []
    if g == 6:
        loads += ['s_add_u32 s%d, s%d, %d' % (sWo, sWo, (256 - 8 * 80 * 8192) & 0xffffffff),
                  's_cmp_ge_u32 s%d, 2' % sHead,
                  's_cselect_b32 s%d, 0, s%d' % (sW + 2, sW + 2)]
    if EXP.get('nokv') is None: loads += dma_K(tgt) + dma_V(tgt)
    if EXP.get('now') is None: loads += dma_W(tgt)
    if g < 7: mf = mf_S(SB[(g + 1) & 1]) + mf_Q(g) + mf_PV(g)
    else: mf = mf_Q(7, True) + mf_PV(7, True) + mf_S(SB[0])
    if EXP.get('skipm'):
        for m in mf: m.skip = True
    return Step(name, mf, loads)

def with_soff(ops, reg, val):
    out = ['s_mov_b32 s%d, %d' % (sI, val)]
    for o in ops:
        if isinstance(o, tuple): out.append((o[0].replace(', s%d offen' % reg, ', s%d offen' % sI), o[1]))
        elif o.startswith('s_add_u32 s%d, s%d' % (reg, reg)): continue
        else: out.append(o)
    return out
def dma_K0(tag): return with_soff(dma_K(tag), sKo, 0)
def dma_K1(tag): return with_soff(dma_K(tag), sKo, 1 * 16384)
def dma_K2(tag): return with_soff(dma_K(tag), sKo, 2 * 16384)
def dma_V0(tag): return with_soff(dma_V(tag), sVo, 0)
def dma_V1(tag): return with_soff(dma_V(tag), sVo, 16384)

def valu_prologue(base7):
    q = []
    for dt in range(4):
        for o in qconv_ops([dt]): q.append((o, base7 + 5 * dt + 4 + 3, base7 + 19 + 2 * dt))
    return q

def valu_head():
    q = []
    for g in range(8):
        sm = softmax_ops(g)
        if EXP.get('nosm'): sm = [[], [], [], []]
        for c in range(4):
            est = 0 if g == 0 else 52 * (g - 1) + 8 * ((c >> 1) + 1) + 2
            ddl = 52 * g + 35 + 4 * c if g < 7 else 52 * 7 + 6
            for o in sm[c]: q.append((o, est, ddl))
    b = 52 * 7
    q.append((check_and_hook, b, b + 6))
    for dt in range(4):
        for o in qconv_ops([dt]): q.append((o, b + 5 * dt + 4 + 3, b + 35 + 2 * dt))
        if dt >= 1: pass
    for dt in range(4):
        for o in ofin_ops([dt]): q.append((o, b + 20 + 4 * dt + 3 + 3, b + 51))
    q.append((stash, b + 20, b + 51))
    return q

OA = WA
PK = SB[0]
PART = 163840
sNg = 51
def mf_O(hh):
    out = []
    order = [(ks, nt) for nt in range(4) for ks in range(8)] if hh in (0, 3) else [(ks, nt) for ks in range(8) for nt in range(4)]
    for (ks, nt) in order:
        out.append(M(vr(QACC + 16 * nt, 16), ar(STASH[hh] + 4 * ks, 4), hh == 0 and ks == 0,
                     [('ds_read_b64_tr_b16', 2 * e, 2, OA + nt, (16 * ks + 8 * e) * 256) for e in range(2)]))
    return out

def dma_O(tag, adv):
    ops = ['s_mov_b32 m0, s%d' % sWrK]
    for j in range(8):
        if j == 4: ops.append('s_add_u32 m0, s%d, 4096' % sWrK)
        ops.append('s_add_u32 s%d, s%d, %d' % (sT2, sWo, j * 5120 - (j & 3) * 1024))
        ops.append(('buffer_load_dwordx4 v%d, s[%d:%d], s%d offen offset:%d %s lds' % (VD, sW, sW + 3, sT2, (j & 3) * 1024, OPOL), tag))
    ops.append('s_add_u32 s%d, s%d, %d' % (sWo, sWo, adv & 0xffffffff))
    return ops
OPOL = ''
PSTPOL = ''
WSOFF = 0

def make_ostep(hh):
    tgt = 'ld_O%d' % ((hh + 2) % 4)
    adv = 163840 if (hh + 2) % 4 != 3 else 256 - 3 * 163840
    pre = []
    if hh == 2:
        pre = ['s_cmp_ge_u32 s%d, 4' % sNg, 's_cselect_b32 s%d, 0, s%d' % (sW + 2, sW + 2)]
    return Step('O%d' % hh, mf_O(hh), pre + dma_O(tgt, adv))

PKH = [64, 96, 128, 160, 192]
def cvt_variants(P):
    P.I('s_nop 7'); P.I('s_nop 3')
    for ng in range(4):
        P.I('s_cmp_eq_u32 s%d, %d' % (sNg, ng)); P.I('s_cbranch_scc1 L_pk%d' % ng)
    for ng in (4, 0, 1, 2, 3):
        if ng != 4: P.label('L_pk%d' % ng)
        for nt in range(4):
            for j in range(8):
                P.I('v_cvt_pk_bf16_f32 v%d, v%d, v%d' % (PKH[ng] + 8 * nt + j, QACC + 16 * nt + 2 * j, QACC + 16 * nt + 2 * j + 1))
        if ng != 3: P.I('s_branch L_pk_done')
    P.label('L_pk_done')

def final_stores(P):
    for ng in range(5):
        for nt in range(4):
            for half in range(2):
                P.I('s_mov_b32 s%d, %d' % (sT, (ng * 8 + nt * 2 + half) * 4096))
                P.I('buffer_store_dwordx4 %s, v%d, s[%d:%d], s%d offen %s' % (vr(PKH[ng] + 8 * nt + 4 * half, 4), OST, sO, sO + 3, sT, PSTPOL), 'pst')

def valu_o():
    if EXP.get('defer'): return [(cvt_variants, 127, 127)]
    q = []
    b = 96
    for nt in range(4):
        est = b + 8 * nt + 7 + 3
        for j in range(8):
            q.append(('v_cvt_pk_bf16_f32 v%d, v%d, v%d' % (PK + 8 * nt + j, QACC + 16 * nt + 2 * j, QACC + 16 * nt + 2 * j + 1), est, 127))
        for half in range(2):
            q.append(('s_add_u32 s%d, s%d, %d' % (sT, sOo, (nt * 2 + half) * 4096), est, 127))
            q.append((('buffer_store_dwordx4 %s, v%d, s[%d:%d], s%d offen %s' % (vr(PK + 8 * nt + 4 * half, 4), OST, sO, sO + 3, sT, PSTPOL), 'pst'), est, 127))
            if EXP.get('dupst'):
                q.append((('buffer_store_dwordx4 %s, v%d, s[88:91], s%d offen %s' % (vr(PK + 8 * nt + 4 * half, 4), OST, sT, PSTPOL), 'pst'), est, 127))
    q.append(('s_add_u32 s%d, s%d, %d' % (sOo, sOo, 8 * 4096), b, 127))
    return [(o[0] if False else o[0], o[1], o[2]) for o in q]

def oproj_phase(P, E):
    P.I('s_waitcnt vmcnt(0) lgkmcnt(0)')
    P.I('s_barrier')
    P.I('v_mbcnt_lo_u32_b32 v0, -1, 0'); P.I('v_mbcnt_hi_u32_b32 v0, -1, v0')
    P.I('v_and_b32_e32 v3, 15, v0'); P.I('v_lshrrev_b32_e32 v4, 4, v0'); P.I('v_lshrrev_b32_e32 v2, 5, v0')
    P.I('v_lshrrev_b32_e32 v6, 2, v3'); P.I('v_and_b32_e32 v7, 3, v0'); P.I('v_and_b32_e32 v8, 1, v4')
    P.I('v_lshlrev_b32_e32 v5, 2, v4'); P.I('v_xor_b32_e32 v5, v5, v3'); P.I('v_lshlrev_b32_e32 v5, 4, v5')
    P.I('v_mul_u32_u24_e32 v11, 1280, v4')
    P.I('s_mul_i32 s7, s%d, %d' % (sWAVE, 32 * 1280))
    P.I('v_add3_u32 v%d, v5, v11, s7' % VD)
    P.I('s_mov_b32 s%d, s82' % sW); P.I('s_mov_b32 s%d, s83' % (sW + 1))
    P.I('s_mov_b32 s%d, 655360' % (sW + 2)); P.I('s_mov_b32 s%d, 0x20000' % (sW + 3))
    P.I('s_lshl_b32 s%d, s%d, 13' % (sW4096, sWAVE))
    P.I('s_mov_b32 s%d, 0' % sWo)
    for n in range(2):
        P.I('s_add_u32 s%d, s%d, %d' % (sWrK, sW4096, n * SLOT))
        for o in dma_O('ld_O%d' % n, 163840): E.emit_op(o)
    P.I('v_lshl_add_u32 v10, v2, 2, v6'); P.I('v_lshlrev_b32_e32 v10, 8, v10')
    P.I('v_lshl_add_u32 v10, v8, 5, v10')
    P.I('v_and_b32_e32 v11, 1, v7'); P.I('v_lshl_add_u32 v10, v11, 4, v10')
    P.I('v_lshrrev_b32_e32 v11, 1, v7'); P.I('v_lshl_add_u32 v10, v11, 3, v10')
    for nt in range(4):
        P.I('v_xor_b32_e32 v11, %d, v6' % nt)
        P.I('v_lshl_add_u32 v%d, v11, 6, v10' % (OA + nt))
    P.I('s_lshl_b32 s7, s%d, 10' % sWAVE)
    P.I('v_lshlrev_b32_e32 v11, 4, v0'); P.I('v_add_u32_e32 v11, s7, v11')
    P.I('v_and_b32_e32 v5, 31, v0'); P.I('s_lshl_b32 s7, s%d, 5' % sWAVE); P.I('v_add_u32_e32 v5, s7, v5')
    P.I('v_cmp_gt_u32_e32 vcc, 112, v5')
    P.I('v_mov_b32_e32 v12, 0x40000000')
    P.I('v_cndmask_b32_e32 v%d, v12, v11, vcc' % OST)
    P.I('s_mov_b32 s%d, 0' % sOo); P.I('s_mov_b32 s%d, 0' % sNg)
    P.I('s_mov_b32 s%d, 0' % sRd)
    P.I('s_add_u32 s%d, s%d, %d' % (sWrK, sW4096, 2 * SLOT))
    P.wait_vm('ld_O0')
    P.I('s_barrier')
    E.addr_regs = list(range(OA, OA + 4))
    osteps = [make_ostep(hh) for hh in range(4)]
    o0 = make_ostep(0)
    for i in range(D_BAR): E.issue_reads(osteps[0].mf[i], set())
    first = [(osteps[0].mf[i].tag, osteps[0].mf[i].frag) for i in range(D_BAR)]
    for i in range(D_BAR):
        for ins in P.ins:
            if ins.tag == first[i][0]: ins.tag = 'o0pre%d' % i
        osteps[0].mf[i].tag = 'o0pre%d' % i
    n0 = len(P.ins)
    P.label('L_ng')
    upd_in = set()
    upd = E.run(osteps, o0, D_BAR, set(range(OA + 1, OA + 4)) if False else set(), valu_o())
    for a in sorted(upd): P.I('v_add_u32_e32 v%d, s%d, v%d' % (a, sDelta, a))
    for i in range(D_BAR):
        assert o0.mf[i].frag == first[i][1], (o0.mf[i].frag, first[i][1])
        for ins in P.ins:
            if ins.tag == o0.mf[i].tag: ins.tag = 'o0pre%d' % i
    P.I('s_add_u32 s%d, s%d, 1' % (sNg, sNg))
    P.I('s_cmp_lt_u32 s%d, 5' % sNg)
    P.I('s_cbranch_scc1 L_ng')
    n1 = len(P.ins)
    if EXP.get('defer'): final_stores(P)
    return n0, n1

def slow_path(P):
    S0, S1 = SB
    P.label('L_slow')
    P.I('s_nop 15'); P.I('s_nop 15')
    P.I('v_mbcnt_lo_u32_b32 v%d, -1, 0' % T0)
    P.I('v_mbcnt_hi_u32_b32 v%d, -1, v%d' % (T0, T0))
    P.I('v_and_b32_e32 v%d, 31, v%d' % (T1, T0))
    P.I('v_lshrrev_b32_e32 v%d, 5, v%d' % (T2, T0))
    P.I('v_lshlrev_b32_e32 v%d, 8, v%d' % (T3, T1))
    P.I('v_lshl_add_u32 v%d, v%d, 4, v%d' % (T3, T2, T3))
    P.I('v_lshlrev_b32_e32 v%d, 10, v%d' % (T4, T2))
    P.I('v_lshl_add_u32 v%d, v%d, 1, v%d' % (T4, T1, T4))
    P.I('v_add_u32_e32 v%d, 0x1000, v%d' % (T5, T4))
    P.I('s_lshl_b32 s%d, s%d, 17' % (sHb, sHead))
    def s_tile():
        for ks in range(8):
            P.I('buffer_load_dwordx4 %s, v%d, s[%d:%d], s%d offen offset:%d' % (vr(S0 + 4 * ks, 4), T3, sK, sK + 3, sT2, ks * 32))
        P.I('s_waitcnt vmcnt(0)')
        for ks in range(8):
            P.I('v_mfma_f32_32x32x16_bf16 %s, %s, %s, %s' % (vr(S1, 16), vr(S0 + 4 * ks, 4), vr(Q + 4 * ks, 4), '0' if ks == 0 else vr(S1, 16)))
        P.I('s_nop 15')
    P.I('v_mov_b32_e32 v%d, 0xff800000' % T0)
    P.I('s_mov_b32 s%d, 0' % sI)
    P.label('L_slow_max')
    P.I('s_lshl_b32 s%d, s%d, 13' % (sT2, sI))
    P.I('s_add_u32 s%d, s%d, s%d' % (sT2, sT2, sHb))
    s_tile()
    for r in range(0, 16, 2): P.I('v_max3_f32 v%d, v%d, v%d, v%d' % (T0, T0, S1 + r, S1 + r + 1))
    P.I('s_add_u32 s%d, s%d, 1' % (sI, sI))
    P.I('s_cmp_lt_u32 s%d, 16' % sI)
    P.I('s_cbranch_scc1 L_slow_max')
    P.I('v_mov_b32_e32 v%d, v%d' % (T1, T0))
    P.I('s_nop 1')
    P.I('v_permlane32_swap_b32_e32 v%d, v%d' % (T0, T1))
    P.I('v_max_f32_e32 v%d, v%d, v%d' % (T0, T0, T1))
    P.I('v_mov_b32_e32 v%d, 0' % LT)
    for r in range(64): P.I('v_mov_b32_e32 v%d, 0' % (OACC + r))
    P.I('s_mov_b32 s%d, 0' % sI)
    P.label('L_slow_pv')
    P.I('s_lshl_b32 s%d, s%d, 13' % (sT2, sI))
    P.I('s_add_u32 s%d, s%d, s%d' % (sT2, sT2, sHb))
    s_tile()
    for r in range(16): P.I('v_sub_f32_e32 v%d, v%d, v%d' % (S1 + r, S1 + r, T0))
    for r in range(16): P.I('v_exp_f32_e32 v%d, v%d' % (S1 + r, S1 + r))
    P.I('s_nop 0')
    for r in range(16): P.I('v_add_f32_e32 v%d, v%d, v%d' % (LT, LT, S1 + r))
    for half in range(2):
        for j in range(4):
            r = S1 + 8 * half + 2 * j
            P.I('v_cvt_pk_bf16_f32 v%d, v%d, v%d' % (S1 + 8 * half + j, r, r + 1))
    for half in range(2):
        for dt in range(4):
            for i in range(8):
                P.I('buffer_load_ushort v%d, v%d, s[%d:%d], s%d offen offset:%d' % (S0 + i, T4 if half == 0 else T5, sV, sV + 3, sT2, (8 * (i >> 2) + (i & 3)) * 256 + dt * 64))
            P.I('s_waitcnt vmcnt(0)')
            for j in range(4):
                P.I('v_lshl_or_b32 v%d, v%d, 16, v%d' % (S0 + 8 + j, S0 + 2 * j + 1, S0 + 2 * j))
            P.I('s_nop 1')
            P.I('v_mfma_f32_32x32x16_bf16 %s, %s, %s, %s' % (vr(OACC + 16 * dt, 16), vr(S0 + 8, 4), vr(S1 + 8 * half, 4), vr(OACC + 16 * dt, 16)))
            P.I('s_nop 7')
    P.I('s_add_u32 s%d, s%d, 1' % (sI, sI))
    P.I('s_cmp_lt_u32 s%d, 16' % sI)
    P.I('s_cbranch_scc1 L_slow_pv')
    P.I('v_mov_b32_e32 v%d, v%d' % (T1, LT))
    P.I('s_nop 1')
    P.I('v_permlane32_swap_b32_e32 v%d, v%d' % (LT, T1))
    P.I('v_add_f32_e32 v%d, v%d, v%d' % (LT, LT, T1))
    for T in range(2):
        for half in range(2):
            for j in range(4): P.I('v_mov_b32_e32 v%d, 0' % (S1 + 16 * T + 8 * half + j))
    P.I('s_nop 15')
    P.I('s_branch L_slow_ret')

def gen_k1(name='attn_kernel'):
    P = Prog()
    P.I('s_cmp_ge_u32 s2, 256')
    P.I('s_cbranch_scc1 L_end')
    P.I('s_load_dwordx8 s[52:59], s[0:1], 0')
    P.I('s_load_dwordx8 s[60:67], s[0:1], 40')
    P.I('s_load_dwordx2 s[68:69], s[0:1], 96')
    P.I('s_load_dwordx2 s[82:83], s[0:1], 32')
    P.I('s_load_dwordx2 s[84:85], s[0:1], 72')
    if STAMP:
        P.I('s_memtime s[76:77]'); P.I('s_memrealtime s[78:79]'); P.I('s_mov_b32 s74, 4')
    P.I('v_lshrrev_b32_e32 v1, 6, v0')
    P.I('v_and_b32_e32 v0, 63, v0')
    P.I('s_and_b32 s3, s2, 7')
    P.I('v_readfirstlane_b32 s%d, v1' % sWAVE)
    P.I('s_lshr_b32 s4, s2, 3')
    P.I('s_lshr_b32 s5, s3, 2')
    P.I('s_and_b32 s6, s3, 3')
    P.I('s_lshl_b32 s6, s6, 1')
    P.I('s_and_b32 s7, s4, 1')
    P.I('s_add_u32 s6, s6, s7')
    P.I('s_lshr_b32 s4, s4, 1')
    P.I('s_waitcnt lgkmcnt(0)')
    if STAMP:
        P.I('s_memtime s[72:73]'); P.I('s_waitcnt lgkmcnt(0)'); P.I('v_writelane_b32 v%d, s72, 0' % T4)
    P.I('s_cmp_eq_u32 s5, 0')
    for i in range(8): P.I('s_cselect_b32 s%d, s%d, s%d' % (52 + i, 52 + i, 60 + i))
    P.I('s_cselect_b32 s82, s82, s84'); P.I('s_cselect_b32 s83, s83, s85')
    P.I('s_mul_i32 s7, s4, 143360')
    P.I('s_add_u32 s%d, s52, s7' % sX); P.I('s_addc_u32 s%d, s53, 0' % (sX + 1))
    P.I('s_mov_b32 s%d, 143360' % (sX + 2)); P.I('s_mov_b32 s%d, 0x20000' % (sX + 3))
    P.I('s_lshl_b32 s7, s4, 5'); P.I('s_lshl_b32 s70, s6, 2'); P.I('s_add_u32 s7, s7, s70')
    P.I('s_lshl_b32 s71, s7, 17')
    P.I('s_add_u32 s%d, s54, s71' % sK); P.I('s_addc_u32 s%d, s55, 0' % (sK + 1))
    P.I('s_mov_b32 s%d, 524288' % (sK + 2)); P.I('s_mov_b32 s%d, 0x20000' % (sK + 3))
    P.I('s_add_u32 s%d, s56, s71' % sV); P.I('s_addc_u32 s%d, s57, 0' % (sV + 1))
    P.I('s_mov_b32 s%d, 524288' % (sV + 2)); P.I('s_mov_b32 s%d, 0x20000' % (sV + 3))
    P.I('s_lshl_b32 s71, s70, 8')
    P.I('s_add_u32 s%d, s58, s71' % sW); P.I('s_addc_u32 s%d, s59, 0' % (sW + 1))
    P.I('s_sub_u32 s%d, 5242880, s71' % (sW + 2)); P.I('s_mov_b32 s%d, 0x20000' % (sW + 3))
    P.I('s_mul_i32 s71, s70, 163840')
    P.I('s_add_u32 s82, s82, s71'); P.I('s_addc_u32 s83, s83, 0')
    P.I('s_lshl_b32 s71, s5, 4'); P.I('s_add_u32 s71, s71, s4'); P.I('s_lshl_b32 s71, s71, 3'); P.I('s_add_u32 s71, s71, s6')
    P.I('s_mul_i32 s71, s71, %d' % PART)
    if WSOFF: P.I('s_add_u32 s71, s71, %d' % WSOFF)
    P.I('s_add_u32 s%d, s68, s71' % sO); P.I('s_addc_u32 s%d, s69, 0' % (sO + 1))
    P.I('s_mov_b32 s%d, %d' % (sO + 2, PART)); P.I('s_mov_b32 s%d, 0x20000' % (sO + 3))
    if EXP.get('dupst'):
        P.I('s_add_u32 s88, s%d, 0x4000000' % sO); P.I('s_addc_u32 s89, s%d, 0' % (sO + 1)); P.I('s_mov_b32 s90, %d' % PART); P.I('s_mov_b32 s91, 0x20000')
    P.I('s_lshl_b32 s%d, s%d, 12' % (sW4096, sWAVE))
    P.I('s_mul_i32 s%d, s%d, 5120' % (sW5120, sWAVE))
    P.I('s_add_u32 s%d, s%d, %d' % (sW5120, sW5120, WOFF))
    P.I('v_and_b32_e32 v3, 15, v0'); P.I('v_lshrrev_b32_e32 v4, 4, v0')
    E = Emitter(P)
    P.I('s_lshl_b32 s70, s%d, 13' % sWAVE)
    P.I('s_mul_i32 s71, s%d, %d' % (sWAVE, 32 * 1280))
    P.I('v_mul_u32_u24_e32 v11, 1280, v4')
    for jj in range(4):
        P.I('v_add_u32_e32 v5, %d, v4' % (4 * jj))
        P.I('v_xor_b32_e32 v5, v5, v3'); P.I('v_lshlrev_b32_e32 v5, 4, v5')
        P.I('v_add3_u32 v%d, v5, v11, s71' % (XV + jj))
    P.I('v_lshlrev_b32_e32 v5, 2, v4'); P.I('v_xor_b32_e32 v5, v5, v3'); P.I('v_lshlrev_b32_e32 v5, 4, v5')
    P.I('s_mul_i32 s7, s%d, %d' % (sWAVE, 20 * 8192))
    P.I('v_lshl_add_u32 v11, v4, 13, v5'); P.I('v_add_u32_e32 v%d, s7, v11' % WD)
    P.I('v_lshl_add_u32 v11, v4, 8, v5'); P.I('v_add_u32_e32 v%d, s%d, v11' % (VD, sW4096))
    P.I('s_mov_b32 s%d, 0' % sWo)
    for n in range(3):
        for o in dma_x(n): E.emit_op(o)
        for o in set_wr(n * SLOT): P.I(o)
        for o in dma_W('ld_P%d' % n): E.emit_op(o)
    if STAMP:
        P.I('s_memtime s[72:73]'); P.I('s_waitcnt lgkmcnt(0)'); P.I('v_writelane_b32 v%d, s72, 1' % T4)
    P.I('s_mov_b32 s%d, %d' % (sSlot, SLOT)); P.I('s_mov_b32 s%d, %d' % (sWrap, (-2 * SLOT) & 0xffffffff))
    P.I('s_mov_b32 s%d, 0x%x' % (sC, QSCALE))
    P.I('s_mov_b32 s%d, 0' % sOo); P.I('s_mov_b32 s%d, 0' % sHead)
    P.I('v_and_b32_e32 v1, 31, v0'); P.I('v_lshrrev_b32_e32 v2, 5, v0')
    for ks in range(8):
        P.I('v_add_u32_e32 v5, %d, v2' % (2 * ks))
        P.I('v_xor_b32_e32 v5, v5, v3')
        P.I('v_lshlrev_b32_e32 v5, 4, v5')
        P.I('v_lshl_add_u32 v%d, v1, 8, v5' % (KA + ks))
    for ks in range(8):
        P.I('v_add_u32_e32 v%d, s70, v%d' % (XR + ks, KA + ks))
        P.I('v_add_u32_e32 v%d, %d, v%d' % (XR2 + ks, 2 * SLOT, XR + ks))
    P.I('v_lshrrev_b32_e32 v6, 2, v3')
    P.I('v_and_b32_e32 v7, 3, v0')
    P.I('v_and_b32_e32 v8, 1, v4')
    P.I('v_lshl_add_u32 v9, v2, 2, v6'); P.I('v_lshlrev_b32_e32 v9, 8, v9')
    P.I('v_lshl_add_u32 v9, v8, 5, v9'); P.I('v_lshl_add_u32 v9, v7, 3, v9')
    P.I('v_lshl_add_u32 v10, v2, 3, v6'); P.I('v_lshlrev_b32_e32 v10, 8, v10')
    P.I('v_lshl_add_u32 v10, v8, 5, v10')
    P.I('v_and_b32_e32 v11, 1, v7'); P.I('v_lshl_add_u32 v10, v11, 4, v10')
    P.I('v_lshrrev_b32_e32 v11, 1, v7'); P.I('v_lshl_add_u32 v10, v11, 3, v10')
    for dt in range(4):
        P.I('v_xor_b32_e32 v11, %d, v6' % dt)
        P.I('v_lshl_add_u32 v%d, v11, 6, v9' % (VA + dt))
        P.I('v_lshl_add_u32 v%d, v11, 6, v10' % (WA + dt))
    for j in range(4):
        P.I('v_add_u32_e32 v5, %d, v4' % (4 * j))
        P.I('v_xor_b32_e32 v5, v5, v3'); P.I('v_lshlrev_b32_e32 v5, 4, v5')
        P.I('v_lshl_add_u32 v5, v4, 8, v5')
        P.I('v_add_u32_e32 v%d, s%d, v5' % (KD + j, sW4096))
    P.I('s_lshl_b32 s7, s%d, 1' % sWAVE)
    P.I('v_add_u32_e32 v5, s7, v8')
    P.I('v_lshlrev_b32_e32 v11, 10, v5'); P.I('v_lshl_add_u32 v11, v2, 8, v11'); P.I('v_lshl_add_u32 v11, v3, 4, v11')
    P.I('v_cmp_gt_u32_e32 vcc, 7, v5')
    P.I('v_mov_b32_e32 v12, 0x40000000')
    P.I('v_cndmask_b32_e32 v%d, v12, v11, vcc' % OST)
    P.I('v_mov_b32_e32 v%d, 0' % L0); P.I('v_mov_b32_e32 v%d, 0' % L1)
    P.I('s_mov_b32 s%d, %d' % (sKo, 3 * 16384)); P.I('s_mov_b32 s%d, %d' % (sVo, 2 * 16384))
    P.I('s_mov_b32 s%d, 0' % sRd)
    for o in read_x(0): E.emit_op(o)
    if STAMP:
        P.I('s_memtime s[72:73]'); P.I('s_waitcnt lgkmcnt(0)'); P.I('v_writelane_b32 v%d, s72, 1' % T5); P.I('v_writelane_b32 v%d, s76, 0' % T5)
    P.wait_vm('ld_P0')
    P.I('s_barrier')
    if STAMP:
        P.I('s_memtime s[72:73]'); P.I('s_waitcnt lgkmcnt(0)')
        P.I('v_writelane_b32 v%d, s72, 2' % T5)
    psteps = [make_step('P', g) for g in range(8)]
    gsteps = [make_step('G', g) for g in range(8)]
    for i in range(D_BAR): E.issue_reads(psteps[0].mf[i], set())
    g0 = make_step('G', 0)
    upd = E.run(psteps, g0, D_BAR, set(), valu_prologue(7 * 20))
    pro_end = len(P.ins)
    for i in range(D_BAR):
        gsteps[0].mf[i].frag = g0.mf[i].frag; gsteps[0].mf[i].tag = 'g0pre%d' % i
    for ins in P.ins:
        for i in range(D_BAR):
            if ins.tag == g0.mf[i].tag: ins.tag = 'g0pre%d' % i
    if STAMP:
        P.I('s_waitcnt lgkmcnt(0)'); P.I('s_memrealtime s[72:73]'); P.I('s_waitcnt lgkmcnt(0)'); P.I('v_writelane_b32 v%d, s72, 60' % T4)
    P.label('L_head')
    g0n = make_step('G', 0)
    upd_in = set(upd)
    upd2 = E.run(gsteps, g0n, D_BAR, set(upd), valu_head())
    assert upd2 == upd_in, (upd2, upd_in)
    for i in range(D_BAR):
        assert g0n.mf[i].frag == g0.mf[i].frag
        for ins in P.ins:
            if ins.tag == g0n.mf[i].tag: ins.tag = 'g0pre%d' % i
    P.I('s_add_u32 s%d, s%d, 1' % (sHead, sHead))
    P.I('s_cmp_lt_u32 s%d, 4' % sHead)
    P.I('s_cbranch_scc1 L_head')
    body_end = len(P.ins)
    if STAMP:
        P.I('s_waitcnt lgkmcnt(0)'); P.I('s_memtime s[72:73]'); P.I('s_waitcnt lgkmcnt(0)'); P.I('v_writelane_b32 v%d, s72, 61' % T5)
        P.I('s_memrealtime s[72:73]'); P.I('s_waitcnt lgkmcnt(0)'); P.I('v_writelane_b32 v%d, s72, 61' % T4)
    on0, on1 = oproj_phase(P, E)
    P.I('s_waitcnt vmcnt(0) lgkmcnt(0)')
    if STAMP:
        P.I('s_memtime s[72:73]'); P.I('s_memrealtime s[80:81]'); P.I('s_waitcnt lgkmcnt(0)')
        P.I('v_writelane_b32 v%d, s72, 62' % T5)
        P.I('v_writelane_b32 v%d, s78, 62' % T4); P.I('v_writelane_b32 v%d, s80, 63' % T4)
        P.I('s_lshl_b32 s72, s2, 2'); P.I('s_add_u32 s72, s72, s%d' % sWAVE); P.I('s_lshl_b32 s72, s72, 9')
        P.I('s_add_u32 s72, s72, 0x4000000')
        P.I('s_add_u32 s68, s68, s72'); P.I('s_addc_u32 s69, s69, 0')
        P.I('v_mbcnt_lo_u32_b32 v0, -1, 0'); P.I('v_mbcnt_hi_u32_b32 v0, -1, v0'); P.I('v_lshlrev_b32_e32 v0, 2, v0')
        P.I('global_store_dword v0, v%d, s[68:69]' % T4)
        P.I('global_store_dword v0, v%d, s[68:69] offset:256' % T5)
        P.I('s_waitcnt vmcnt(0)')
    P.I('s_branch L_end')
    slow_begin = len(P.ins)
    slow_path(P)
    P.label('L_end')
    P.I('s_endpgm')
    pro = P.ins[:pro_end]; body = P.ins[pro_end:body_end]
    mid = P.ins[body_end:on0]; obody = P.ins[on0:on1]
    resolve_waits(pro + body + body + body + mid + obody + obody + obody)
    drop_optional(P)
    P.pad()
    idx = [k for k, i in enumerate(P.ins) if i.label == 'L_head'][0]
    idx2 = [k for k, i in enumerate(P.ins) if i.op == 's_cbranch_scc1' and 'L_head' in i.text][0]
    body = P.ins[idx:idx2 + 1]
    bad = check_hazards(P.ins[:idx] + body + body, name)
    idx = [k for k, i in enumerate(P.ins) if i.label == 'L_ng'][0]
    idx2 = [k for k, i in enumerate(P.ins) if i.op == 's_cbranch_scc1' and 'L_ng' in i.text][0]
    body = P.ins[idx:idx2 + 1]
    bad += check_hazards(P.ins[idx - 60:idx] + body + body, name)
    assert bad == 0
    return P

if __name__ == '__main__':
    P = gen_k1()
    print(P.text())
```

```python
from asmlib import *
PART = 163840
LDS_BYTES = 0
GRID = 640
WSOFF = 0
STAMP = False
LPOL = ''
SPOL = ''

def gen_k3():
    P = Prog()
    P.I('s_cmp_ge_u32 s2, %d' % GRID)
    P.I('s_cbranch_scc1 L_end')
    P.I('s_load_dwordx2 s[4:5], s[0:1], 80')
    P.I('s_load_dwordx2 s[6:7], s[0:1], 96')
    if STAMP: P.I('s_memrealtime s[40:41]')
    P.I('v_lshrrev_b32_e32 v1, 6, v0')
    P.I('v_and_b32_e32 v0, 63, v0')
    P.I('s_mul_i32 s3, s2, 52429'); P.I('s_lshr_b32 s3, s3, 20')
    P.I('v_readfirstlane_b32 s16, v1')
    P.I('s_mul_i32 s17, s3, 20'); P.I('s_sub_u32 s17, s2, s17')
    P.I('s_lshr_b32 s18, s17, 2')
    P.I('s_and_b32 s19, s17, 3')
    P.I('s_waitcnt lgkmcnt(0)')
    P.I('s_mul_i32 s20, s3, %d' % (8 * PART))
    if WSOFF: P.I('s_add_u32 s20, s20, %d' % WSOFF)
    P.I('s_add_u32 s8, s6, s20'); P.I('s_addc_u32 s9, s7, 0')
    P.I('s_mov_b32 s10, %d' % (8 * PART)); P.I('s_mov_b32 s11, 0x20000')
    P.I('s_lshl_b32 s21, s18, 3'); P.I('s_lshl_b32 s22, s16, 1'); P.I('s_add_u32 s21, s21, s22'); P.I('s_lshl_b32 s21, s21, 12')
    P.I('s_lshl_b32 s22, s19, 10'); P.I('s_add_u32 s21, s21, s22')
    P.I('v_lshlrev_b32_e32 v2, 4, v0')
    for half in range(2):
        for hg in range(8):
            P.I('s_add_u32 s22, s21, %d' % (hg * PART + half * 4096))
            r = 16 + (half * 8 + hg) * 4
            P.I('buffer_load_dwordx4 v[%d:%d], v2, s[8:11], s22 offen %s' % (r, r + 3, LPOL), 'ld%d_%d' % (half, hg))
    P.I('s_mov_b32 s12, s4'); P.I('s_mov_b32 s13, s5'); P.I('s_mov_b32 s14, %d' % (16 * 112 * 2560)); P.I('s_mov_b32 s15, 0x20000')
    P.I('s_lshr_b32 s23, s3, 4')
    P.I('s_and_b32 s24, s3, 15')
    P.I('v_and_b32_e32 v3, 31, v0'); P.I('s_lshl_b32 s25, s19, 5'); P.I('v_add_u32_e32 v3, s25, v3')
    P.I('v_lshrrev_b32_e32 v4, 5, v0')
    P.I('s_mul_i32 s26, s24, %d' % (112 * 2560)); P.I('s_mul_i32 s27, s23, 1280'); P.I('s_add_u32 s26, s26, s27')
    P.I('s_lshl_b32 s27, s18, 8'); P.I('s_add_u32 s26, s26, s27')
    P.I('s_lshl_b32 s27, s16, 6'); P.I('s_add_u32 s26, s26, s27')
    P.I('v_mul_u32_u24_e32 v5, 2560, v3'); P.I('v_lshl_add_u32 v5, v4, 4, v5')
    P.I('v_cmp_gt_u32_e32 vcc, 112, v3')
    P.I('v_mov_b32_e32 v6, 0x40000000')
    P.I('v_cndmask_b32_e32 v5, v6, v5, vcc')
    for half in range(2):
        acc = 80 + half * 8
        for hg in range(8):
            P.wait_vm('ld%d_%d' % (half, hg))
            r = 16 + (half * 8 + hg) * 4
            for j in range(4):
                if hg == 0:
                    P.I('v_lshlrev_b32_e32 v%d, 16, v%d' % (acc + 2 * j, r + j))
                    P.I('v_and_b32_e32 v%d, 0xffff0000, v%d' % (acc + 2 * j + 1, r + j))
                else:
                    P.I('v_lshlrev_b32_e32 v7, 16, v%d' % (r + j))
                    P.I('v_and_b32_e32 v8, 0xffff0000, v%d' % (r + j))
                    P.I('v_add_f32_e32 v%d, v%d, v7' % (acc + 2 * j, acc + 2 * j))
                    P.I('v_add_f32_e32 v%d, v%d, v8' % (acc + 2 * j + 1, acc + 2 * j + 1))
        o = 96 + half * 4
        for j in range(4): P.I('v_cvt_pk_bf16_f32 v%d, v%d, v%d' % (o + j, acc + 2 * j, acc + 2 * j + 1))
        P.I('buffer_store_dwordx4 v[%d:%d], v5, s[12:15], s26 offen offset:%d %s' % (o, o + 3, half * 32, SPOL), 'st')
    P.I('s_waitcnt vmcnt(0)')
    if STAMP:
        P.I('s_memrealtime s[42:43]'); P.I('s_waitcnt lgkmcnt(0)')
        P.I('s_lshl_b32 s20, s2, 4'); P.I('s_add_u32 s20, s20, 0x5000000')
        P.I('s_add_u32 s6, s6, s20'); P.I('s_addc_u32 s7, s7, 0')
        P.I('v_mov_b32_e32 v8, s40'); P.I('v_mov_b32_e32 v9, s42'); P.I('v_mov_b32_e32 v10, 0')
        P.I('global_store_dwordx2 v10, v[8:9], s[6:7]'); P.I('s_waitcnt vmcnt(0)')
    P.label('L_end')
    P.I('s_endpgm')
    resolve_waits(P.ins)
    drop_optional(P)
    P.pad()
    assert check_hazards(P.ins, 'k3') == 0
    return P

if __name__ == '__main__':
    print(gen_k3().text())
```

```python
from asmlib import *
PART = 143360
GRID = 560
WSOFF = 0
STAMP = False
LPOL = ''
SPOL = ''

def gen_k3():
    P = Prog()
    P.I('s_cmp_ge_u32 s2, %d' % GRID)
    P.I('s_cbranch_scc1 L_end')
    P.I('s_load_dwordx2 s[4:5], s[0:1], 80')
    P.I('s_load_dwordx2 s[6:7], s[0:1], 96')
    if STAMP: P.I('s_memrealtime s[40:41]')
    P.I('v_lshrrev_b32_e32 v1, 6, v0')
    P.I('v_and_b32_e32 v0, 63, v0')
    P.I('s_lshl_b32 s3, s2, 2')
    P.I('v_readfirstlane_b32 s16, v1')
    P.I('s_add_u32 s3, s3, s16')
    P.I('s_mul_i32 s17, s3, 59919'); P.I('s_lshr_b32 s17, s17, 22')
    P.I('s_mul_i32 s18, s17, 70'); P.I('s_sub_u32 s18, s3, s18')
    P.I('s_mul_i32 s19, s18, 9363'); P.I('s_lshr_b32 s19, s19, 16')
    P.I('s_mul_i32 s20, s19, 7'); P.I('s_sub_u32 s20, s18, s20')
    P.I('s_waitcnt lgkmcnt(0)')
    P.I('s_mul_i32 s21, s17, %d' % (8 * PART))
    if WSOFF: P.I('s_add_u32 s21, s21, %d' % WSOFF)
    P.I('s_add_u32 s8, s6, s21'); P.I('s_addc_u32 s9, s7, 0')
    P.I('s_mov_b32 s10, %d' % (8 * PART)); P.I('s_mov_b32 s11, 0x20000')
    P.I('s_mul_i32 s21, s19, 14'); P.I('s_add_u32 s21, s21, s20'); P.I('s_lshl_b32 s21, s21, 10')
    P.I('v_lshlrev_b32_e32 v2, 4, v0')
    for half in range(2):
        for hg in range(8):
            P.I('s_add_u32 s22, s21, %d' % (hg * PART + half * 7168))
            r = 16 + (half * 8 + hg) * 4
            P.I('buffer_load_dwordx4 v[%d:%d], v2, s[8:11], s22 offen %s' % (r, r + 3, LPOL), 'ld%d_%d' % (half, hg))
    P.I('s_mov_b32 s12, s4'); P.I('s_mov_b32 s13, s5'); P.I('s_mov_b32 s14, %d' % (16 * 112 * 2560)); P.I('s_mov_b32 s15, 0x20000')
    P.I('s_lshr_b32 s23, s17, 4'); P.I('s_and_b32 s24, s17, 15')
    P.I('s_mul_i32 s26, s24, %d' % (112 * 2560)); P.I('s_mul_i32 s27, s23, 1280'); P.I('s_add_u32 s26, s26, s27')
    P.I('s_lshl_b32 s27, s19, 7'); P.I('s_add_u32 s26, s26, s27')
    P.I('s_mul_i32 s27, s20, %d' % (16 * 2560)); P.I('s_add_u32 s26, s26, s27')
    P.I('v_and_b32_e32 v3, 15, v0'); P.I('v_lshrrev_b32_e32 v4, 4, v0')
    P.I('v_mul_u32_u24_e32 v5, 2560, v3'); P.I('v_lshl_add_u32 v5, v4, 4, v5')
    for half in range(2):
        acc = 80 + half * 8
        for hg in range(8):
            P.wait_vm('ld%d_%d' % (half, hg))
            r = 16 + (half * 8 + hg) * 4
            for j in range(4):
                if hg == 0:
                    P.I('v_lshlrev_b32_e32 v%d, 16, v%d' % (acc + 2 * j, r + j))
                    P.I('v_and_b32_e32 v%d, 0xffff0000, v%d' % (acc + 2 * j + 1, r + j))
                else:
                    P.I('v_lshlrev_b32_e32 v7, 16, v%d' % (r + j))
                    P.I('v_and_b32_e32 v8, 0xffff0000, v%d' % (r + j))
                    P.I('v_add_f32_e32 v%d, v%d, v7' % (acc + 2 * j, acc + 2 * j))
                    P.I('v_add_f32_e32 v%d, v%d, v8' % (acc + 2 * j + 1, acc + 2 * j + 1))
        o = 96 + half * 4
        for j in range(4): P.I('v_cvt_pk_bf16_f32 v%d, v%d, v%d' % (o + j, acc + 2 * j, acc + 2 * j + 1))
        for op in ('v_permlane32_swap_b32_e32', 'v_permlane16_swap_b32_e32'):
            P.I('%s v%d, v%d' % (op, o, o + 2)); P.I('%s v%d, v%d' % (op, o + 1, o + 3))
        P.I('buffer_store_dwordx4 v[%d:%d], v5, s[12:15], s26 offen offset:%d %s' % (o, o + 3, half * 64, SPOL), 'st')
    P.I('s_waitcnt vmcnt(0)')
    if STAMP:
        P.I('s_memrealtime s[42:43]'); P.I('s_waitcnt lgkmcnt(0)')
        P.I('s_lshl_b32 s20, s2, 4'); P.I('s_add_u32 s20, s20, 0x5000000')
        P.I('s_add_u32 s6, s6, s20'); P.I('s_addc_u32 s7, s7, 0')
        P.I('v_mov_b32_e32 v8, s40'); P.I('v_mov_b32_e32 v9, s42'); P.I('v_mov_b32_e32 v10, 0')
        P.I('global_store_dwordx2 v10, v[8:9], s[6:7]'); P.I('s_waitcnt vmcnt(0)')
    P.label('L_end')
    P.I('s_endpgm')
    resolve_waits(P.ins)
    drop_optional(P)
    P.pad()
    assert check_hazards(P.ins, 'k3') == 0
    return P

if __name__ == '__main__':
    for item in range(2240):
        p = (item * 59919) >> 22; assert p == item // 70, item
    for r in range(70): assert (r * 9363) >> 16 == r // 7
    print(gen_k3().text())
```

```python
import sys, os
sys.path.insert(0, os.path.dirname(os.path.abspath(__file__)))
import k1

NAME = 'concat_heads__gqa_block_cached__mha_block_cached__near_ridge'
REF = 'cdna_kernels/%s.s.ref' % NAME

def header_comments():
    out = []
    for l in open(REF).read().splitlines():
        if not l.startswith(';'): break
        if '@launch' in l or l.startswith('; Override') or l.startswith('; grid='): continue
        out.append(l)
    return out

def kernel_text(name, body, nv=512, acc=256, nsgpr=102):
    t = ['.globl %s' % name, '.p2align 8', '.type %s,@function' % name, '%s:' % name, body]
    return '\n'.join(t)

def descriptor(name, nv, acc, nsgpr=102):
    return '''.amdhsa_kernel %s
  .amdhsa_next_free_vgpr %d
  .amdhsa_next_free_sgpr %d
  .amdhsa_accum_offset %d
  .amdhsa_group_segment_fixed_size 0
  .amdhsa_kernarg_size 104
  .amdhsa_user_sgpr_count 2
  .amdhsa_user_sgpr_kernarg_segment_ptr 1
  .amdhsa_system_sgpr_workgroup_id_x 1
.end_amdhsa_kernel''' % (name, nv, nsgpr, acc)

def build(kernels):
    out = header_comments()
    for (name, body, grid, block, lds, nv, acc) in kernels:
        out.append('; @launch kernel=%s grid=(%d,1,1) block=(%d,1,1) lds=%d' % (name, grid, block, lds))
    out.append('.amdgcn_target "amdgcn-amd-amdhsa--gfx950"')
    out.append('.text')
    for (name, body, grid, block, lds, nv, acc) in kernels:
        out.append(kernel_text(name, body))
    out.append('.section .rodata,"a"')
    for (name, body, grid, block, lds, nv, acc) in kernels:
        out.append('.p2align 6')
        out.append(descriptor(name, nv, acc))
    return '\n'.join(out) + '\n'

def relabel(text, prefix):
    import re
    return re.sub(r'\bL_', prefix + '_', text)

def apply_env(mods):
    for m in mods:
        if os.environ.get('STAMP') and hasattr(m, 'STAMP'): m.STAMP = True
    for kv in os.environ.get('EXP', '').split(','):
        if '=' in kv:
            k, v = kv.split('=')
            hit = False
            for m in mods:
                if hasattr(m, k):
                    setattr(m, k, type(getattr(m, k))(v.replace('+', ' '))); hit = True
            if not hit:
                for m in mods:
                    if hasattr(m, 'EXP'): m.EXP[k] = v

if __name__ == '__main__':
    which = sys.argv[1] if len(sys.argv) > 1 else 'a'
    dst = sys.argv[2] if len(sys.argv) > 2 else 'cdna_kernels/%s.s' % NAME
    ks = []
    if which == 'k1':
        apply_env([k1])
        P1 = k1.gen_k1()
        ks.append(('attn_kernel', relabel(P1.text(), 'A'), 256, 256, k1.LDS_BYTES, 512, 256))
    elif which == 'a':
        import k1a, k3
        apply_env([k1a, k3])
        P1 = k1a.gen_k1()
        ks.append(('attn_kernel', relabel(P1.text(), 'A'), 256, 256, k1a.LDS_BYTES, 512, 256))
        P3 = k3.gen_k3()
        ks.append(('red_kernel', relabel(P3.text(), 'R'), k3.GRID, 256, 0, 104, 104))
        for i in range(int(os.environ.get('NOPK', '0'))):
            ks.append(('nop%d_kernel' % i, '    s_endpgm', int(os.environ.get('NOPG', '1')), 64, 0, 8, 8))
    if which == 'b':
        import k16, k3b
        apply_env([k16, k3b])
        P1 = k16.gen_k16()
        ks.append(('attn_kernel', relabel(P1.text(), 'A'), 256, 256, k16.LDS_BYTES, 512, 256))
        if not (k16.FUSE or k16.PFUSE):
            P3 = k3b.gen_k3()
            ks.append(('red_kernel', relabel(P3.text(), 'R'), k3b.GRID, 256, 0, 104, 104))
    open(dst, 'w').write(build(ks))
    print('wrote', dst, os.path.getsize(dst), 'bytes; nops', P1.nops)
```

```python
import re

RE_REG = re.compile(r'\b([vas])\[(\d+):(\d+)\]|\b([vas])(\d+)\b')

def regs_of(tok):
    tok = tok.strip()
    out = set()
    if tok in ('vcc',):
        return {('s', 'vcc')}
    if tok == 'exec':
        return {('s', 'exec')}
    if tok == 'm0':
        return {('s', 'm0')}
    m = re.fullmatch(r'-?\|?([vas])\[(\d+):(\d+)\]\|?', tok)
    if m:
        return {(m.group(1), i) for i in range(int(m.group(2)), int(m.group(3)) + 1)}
    m = re.fullmatch(r'-?\|?([vas])(\d+)\|?', tok)
    if m:
        return {(m.group(1), int(m.group(2)))}
    return out

TRANS = ('v_exp_f32', 'v_log_f32', 'v_rcp_f32', 'v_rsq_f32', 'v_sqrt_f32', 'v_sin_f32', 'v_cos_f32')

class Ins:
    __slots__ = ('text', 'op', 'kind', 'rd', 'wr', 'tag', 'wait', 'passes', 'srcc', 'srcab', 'dst', 'states', 'label', 'wide_store_data', 'optional')
    def __init__(self, text, tag=None):
        self.text = text
        self.tag = tag
        self.wait = None
        self.rd = set(); self.wr = set()
        self.passes = 0; self.srcc = set(); self.srcab = set(); self.dst = set()
        self.states = 1
        self.label = None
        self.wide_store_data = set()
        self.optional = False
        t = text.split(';')[0].strip()
        if t.endswith(':'):
            self.kind = 'label'; self.op = ''; self.label = t[:-1]; self.states = 0
            return
        if not t or t.startswith('.'):
            self.kind = 'directive'; self.op = ''; self.states = 0
            return
        parts = t.split(None, 1)
        op = parts[0]; self.op = op
        ops = []
        if len(parts) > 1:
            ops = [x.strip() for x in parts[1].split(',')]
            last = ops[-1].split()
            ops[-1] = last[0]
            mods = last[1:]
        else:
            mods = []
        base = re.sub(r'_e(32|64)$', '', op)
        if op.startswith('v_mfma'):
            self.kind = 'mfma'
            self.passes = 8 if '32x32x16' in op else 4
            self.dst = regs_of(ops[0]); self.wr = set(self.dst)
            self.srcab = regs_of(ops[1]) | regs_of(ops[2])
            self.srcc = regs_of(ops[3])
            self.rd = self.srcab | self.srcc
        elif op.startswith('ds_read') or op.startswith('ds_bpermute') or op.startswith('ds_swizzle'):
            self.kind = 'lds'
            self.wr = regs_of(ops[0])
            for o in ops[1:]: self.rd |= regs_of(o)
        elif op.startswith('ds_write') or op.startswith('ds_add'):
            self.kind = 'lds'
            for o in ops: self.rd |= regs_of(o)
        elif op.startswith('buffer_load') or op.startswith('global_load'):
            self.kind = 'vmem'
            if 'lds' in mods or op.startswith('global_load_lds'):
                for o in ops: self.rd |= regs_of(o)
                self.rd.add(('s', 'm0'))
                self.kind = 'dma'
            else:
                self.wr = regs_of(ops[0])
                for o in ops[1:]: self.rd |= regs_of(o)
        elif op.startswith('buffer_store') or op.startswith('global_store'):
            self.kind = 'vmem'
            for o in ops: self.rd |= regs_of(o)
            if 'x4' in op or 'x3' in op:
                self.wide_store_data = regs_of(ops[0]) if op.startswith('buffer') else regs_of(ops[1])
        elif op.startswith('buffer_atomic') or op.startswith('global_atomic'):
            self.kind = 'vmem'
            for o in ops: self.rd |= regs_of(o)
            if 'sc0' in mods: self.wr = regs_of(ops[0])
        elif op.startswith('buffer_wbl2') or op.startswith('buffer_inv'):
            self.kind = 'vmem'
        elif op.startswith('v_'):
            self.kind = 'valu'
            if base.startswith('v_cmp'):
                self.wr = regs_of(ops[0])
                for o in ops[1:]: self.rd |= regs_of(o)
            elif base.startswith('v_permlane32_swap') or base.startswith('v_permlane16_swap'):
                self.wr = regs_of(ops[0]) | regs_of(ops[1]); self.rd = set(self.wr)
            elif base in ('v_add_co_u32', 'v_addc_co_u32', 'v_sub_co_u32'):
                self.wr = regs_of(ops[0]) | regs_of(ops[1])
                for o in ops[2:]: self.rd |= regs_of(o)
            else:
                self.wr = regs_of(ops[0])
                for o in ops[1:]: self.rd |= regs_of(o)
                if base in ('v_fmac_f32',): self.rd |= self.wr
                if base == 'v_cndmask_b32' and len(ops) == 3: self.rd.add(('s', 'vcc'))
        elif op == 's_nop':
            self.kind = 'nop'; self.states = int(ops[0], 0) + 1
        elif op == 's_waitcnt':
            self.kind = 'wait'
        elif op == 's_barrier':
            self.kind = 'barrier'
        elif op.startswith('s_cbranch') or op in ('s_branch', 's_setpc_b64', 's_swappc_b64', 's_endpgm'):
            self.kind = 'branch'
            for o in ops: self.rd |= regs_of(o)
            if op == 's_swappc_b64': self.wr = regs_of(ops[0])
        elif op.startswith('s_load') or op.startswith('s_mem'):
            self.kind = 'smem'
            self.wr = regs_of(ops[0])
            for o in ops[1:]: self.rd |= regs_of(o)
        elif op.startswith('s_'):
            self.kind = 'salu'
            if op.startswith('s_cmp') or op in ('s_setprio', 's_sleep', 's_bitcmp1_b32', 's_bitcmp0_b32'):
                for o in ops: self.rd |= regs_of(o)
            else:
                self.wr = regs_of(ops[0])
                for o in ops[1:]: self.rd |= regs_of(o)
                if 'saveexec' in op: self.wr.add(('s', 'exec'))
        else:
            raise ValueError('cannot parse: ' + text)

    def is_trans(self):
        return self.kind == 'valu' and re.sub(r'_e(32|64)$', '', self.op) in TRANS

def need_states(prev, cur):
    n = 0
    vg = lambda s: {r for r in s if r[0] in 'va'}
    sg = lambda s: {r for r in s if r[0] == 's'}
    if prev.kind == 'valu':
        w = vg(prev.wr)
        if cur.kind == 'mfma' and (w & cur.rd): n = max(n, 2)
        if cur.kind == 'valu':
            if cur.op.startswith('v_permlane') and (w & cur.rd): n = max(n, 2)
            if (cur.op.startswith('v_readfirstlane') or cur.op.startswith('v_readlane')) and (w & cur.rd): n = max(n, 1)
            if prev.is_trans() and not cur.is_trans() and (w & cur.rd): n = max(n, 1)
            if 'dpp' in cur.text and (w & cur.rd): n = max(n, 2)
        ws = sg(prev.wr)
        if ws:
            if cur.kind in ('vmem', 'dma') and (ws & cur.rd): n = max(n, 5)
            if cur.kind == 'valu' and (ws & cur.rd): n = max(n, 2)
            if cur.kind in ('salu', 'branch') and (ws & cur.rd): n = max(n, 1)
            if cur.kind == 'branch' and 'vcc' in cur.op and ('s', 'vcc') in ws: n = max(n, 5)
    if prev.kind == 'mfma':
        big = prev.passes == 8
        d = prev.dst
        if cur.kind == 'mfma':
            if d & cur.srcab: n = max(n, 12 if big else 8)
            if d & cur.srcc:
                if not (cur.srcc == d and cur.passes == prev.passes): n = max(n, 10 if big else 6)
            if (d & cur.dst) and not (cur.srcc == d and cur.dst == d) :
                if cur.dst != d or cur.passes != prev.passes: n = max(n, 10 if big else 6)
        elif cur.kind in ('valu', 'vmem', 'dma', 'lds'):
            if d & (cur.rd | cur.wr): n = max(n, 12 if big else 8)
            if cur.kind == 'valu' and (prev.srcc & cur.wr): n = max(n, 7 if big else 3)
    if prev.kind == 'salu' and ('s', 'm0') in prev.wr and cur.kind == 'dma': n = max(n, 1)
    if prev.kind == 'salu' and ('s', 'exec') in prev.wr and cur.kind == 'valu' and 'dpp' in cur.text: n = max(n, 0)
    if prev.kind == 'vmem' and prev.wide_store_data:
        if cur.kind == 'valu' and (prev.wide_store_data & cur.wr): n = max(n, 2)
        elif cur.kind in ('mfma', 'lds', 'vmem') and (prev.wide_store_data & cur.wr): n = max(n, 2)
    return n

MAXLOOK = 24

class Prog:
    def __init__(self):
        self.ins = []
        self.nops = 0
    def raw(self, text, tag=None):
        i = Ins(text, tag); self.ins.append(i); return i
    def I(self, text, tag=None):
        cur = Ins(text, tag)
        self.ins.append(cur)
        return cur
    def pad(self):
        old = self.ins; self.ins = []
        for cur in old:
            if cur.kind not in ('label', 'directive'):
                k = self.need(cur)
                if k > 0: self.nops += k
                while k > 0:
                    m = min(k, 16)
                    self.ins.append(Ins('s_nop %d' % (m - 1)))
                    k -= m
            self.ins.append(cur)
    def need(self, cur):
        dist = 0; need = 0
        for p in reversed(self.ins):
            if dist >= MAXLOOK: break
            if p.kind in ('label', 'directive'): continue
            r = need_states(p, cur) - dist
            if r > need: need = r
            dist += p.states
        return need
    def wait_lgkm(self, tag):
        i = Ins('s_waitcnt lgkmcnt(0)'); i.wait = ('lgkm', tag); self.ins.append(i); return i
    def wait_vm(self, tag):
        i = Ins('s_waitcnt vmcnt(0)'); i.wait = ('vm', tag); self.ins.append(i); return i
    def label(self, name):
        self.ins.append(Ins(name + ':'))
    def text(self):
        out = []
        for i in self.ins:
            if i.kind == 'label' or i.kind == 'directive': out.append(i.text)
            else: out.append('    ' + i.text)
        return '\n'.join(out)

def counts_for(ins):
    if ins.kind == 'lds': return 'lgkm'
    if ins.kind in ('vmem', 'dma'): return 'vm'
    return None

def resolve_waits(sequence):
    vals = {}
    hist = {'lgkm': [], 'vm': []}
    for ins in sequence:
        c = counts_for(ins)
        if c: hist[c].append(ins.tag)
        if ins.kind == 'smem': hist['lgkm'].append('__smem__')
        if ins.wait:
            cls, tag = ins.wait
            h = hist[cls]
            tags = tag if isinstance(tag, (list, tuple, set)) else [tag]
            n = None
            if tag == 'ALL': n = 0
            else:
                for t in tags:
                    k = None
                    for j in range(len(h) - 1, -1, -1):
                        if h[j] == t: k = len(h) - 1 - j; break
                    if k is None: continue
                    n = k if n is None else min(n, k)
            if n is None: continue
            vals[id(ins)] = min(vals.get(id(ins), 99), n)
    needed = set()
    out = {'lgkm': 0, 'vm': 0}
    smem_pending = False
    for ins in sequence:
        c = counts_for(ins)
        if c: out[c] += 1
        if ins.kind == 'smem': smem_pending = True; out['lgkm'] += 2
        if ins.wait:
            cls = ins.wait[0]
            n = vals.get(id(ins))
            if n is None:
                continue
            mx = 15 if cls == 'lgkm' else 63
            n = min(n, mx)
            if cls == 'lgkm' and smem_pending: n = 0
            ins.text = 's_waitcnt %s(%d)' % ('lgkmcnt' if cls == 'lgkm' else 'vmcnt', n)
            if out[cls] > n:
                needed.add(id(ins)); out[cls] = n
                if cls == 'lgkm' and n == 0: smem_pending = False
        elif ins.kind == 'wait':
            m = re.search(r'lgkmcnt\((\d+)\)', ins.text)
            if m:
                out['lgkm'] = min(out['lgkm'], int(m.group(1)))
                if int(m.group(1)) == 0: smem_pending = False
            m = re.search(r'vmcnt\((\d+)\)', ins.text)
            if m: out['vm'] = min(out['vm'], int(m.group(1)))
    for ins in sequence:
        if ins.wait and id(ins) not in needed: ins.optional = True

def drop_optional(prog):
    prog.ins = [i for i in prog.ins if not i.optional]

def check_hazards(sequence, name=''):
    seq = [i for i in sequence if i.kind not in ('label', 'directive')]
    bad = 0
    for k, cur in enumerate(seq):
        dist = 0
        for j in range(k - 1, max(-1, k - 40), -1):
            p = seq[j]
            r = need_states(p, cur)
            if r > dist:
                print('HAZARD %s: [%s] -> [%s] need %d have %d' % (name, p.text, cur.text, r, dist)); bad += 1
            dist += p.states
            if dist >= MAXLOOK: break
    return bad

def issue_cost(i):
    k = i.kind
    if k in ('label', 'directive'): return 0
    if k == 'valu': return 8 if i.is_trans() else 4
    if k in ('dma', 'vmem'): return 20
    if k == 'nop': return 4 * i.states
    return 4

def _window_ok(seq, lo, hi):
    lo = max(0, lo); hi = min(len(seq), hi)
    for k in range(lo, hi):
        cur = seq[k]
        if cur.kind in ('label', 'directive'): continue
        dist = 0
        for j in range(k - 1, max(-1, k - 16), -1):
            p = seq[j]
            if p.kind in ('label', 'directive'): continue
            if p.wait is not None and p.kind == 'wait':
                continue
            if need_states(p, cur) > dist: return False
            dist += p.states
            if dist >= 13: break
    return True

def _movable(x):
    if x.kind in ('label', 'directive', 'barrier', 'branch', 'wait', 'nop', 'smem', 'mfma'): return False
    return True

def _indep(x, m):
    return not (x.wr & (m.rd | m.wr)) and not (x.rd & m.wr)

def balance_gaps(seq, free=8, passes=6):
    seq = list(seq)
    moved = 0
    for _ in range(passes):
        changed = False
        k = 0
        while k < len(seq):
            m = seq[k]
            if m.kind != 'mfma': k += 1; continue
            h = k
            while h > 0 and seq[h - 1].kind == 'wait' and seq[h - 1].wait and seq[h - 1].wait[0] == 'lgkm' and seq[h - 1].wait[1] != 'ALL': h -= 1
            a = h - 1; before = (k - h) * 4; ok_before = True
            while a >= 0 and seq[a].kind != 'mfma':
                if seq[a].kind in ('label', 'barrier', 'branch'): ok_before = False; break
                before += issue_cost(seq[a]); a -= 1
            if a < 0: ok_before = False
            b = k + 1; after = 0
            while b < len(seq) and seq[b].kind != 'mfma':
                if seq[b].kind in ('label', 'barrier', 'branch'): after += 100; break
                after += issue_cost(seq[b]); b += 1
            if ok_before:
                if before < free and k + 1 < len(seq):
                    x = seq[k + 1]; c = issue_cost(x)
                    if _movable(x) and after - c >= free and _indep(x, m):
                        trial = seq[:h] + [x] + seq[h:k + 1] + seq[k + 2:]
                        if _window_ok(trial, h - 2, k + 16):
                            seq = trial; moved += 1; changed = True; k += 1; continue
                if after < free and h - 1 > a:
                    y = seq[h - 1]; c = issue_cost(y)
                    if _movable(y) and before - c >= free and _indep(y, m):
                        trial = seq[:h - 1] + seq[h:k + 1] + [y] + seq[k + 1:]
                        if _window_ok(trial, h - 2, k + 16):
                            seq = trial; moved += 1; changed = True; continue
            k += 1
        if not changed: break
    return seq, moved
```

```python
from asmlib import *
import struct, math

SLOT = 53248
KOFF, VOFF, WOFF = 0, 16384, 32768
XBASE = 3 * SLOT
NSLOT = 3
LDS_BYTES = 163840
PART = 143360

QACC = 0; OACC = 64; SB = (128, 160); Q = 192
KA = 224; VA = 228; KD = 236; VD = 240; ONES = 242; LS = 246
T2 = 254; T4 = 255
WD = 32
OST = KA; OD = KD
def lt(u): return LS + 4 * u
XR = 128; XR2 = 136; XV = 144
XA = 0; POOL = 160; NPOOL = 8
STASH = [192, 224, 0, 32]
sK = 8; sV = 12; sW = 16; sO = 20; sX = 24
sWAVE = 28; sKo = 29; sVo = 30; sWc = 31; sRd = 32; sDelta = 33; sWrK = 34; sHead = 35
sT = 36; sT2 = 37; sW4096 = 38; sXc = 39; sOo = 40; sC = 41; sSlot = 42; sWrap = 43
sRet = 87; sM = 44; sHb = 48; sI = 49; sWr = 50; sNg = 51; sWn = 46; sWo = 47
QSCALE = struct.unpack('<I', struct.pack('<f', math.log2(math.e) / math.sqrt(128.0)))[0]

STAMP = False
EXP = {}
D_AHEAD = 6
D_BAR = 3
WAITW = 4
SPLITR = 0; LEAD = 0
CAP1 = 8; CAP2 = 24; LATE = 16
BUDGET_A = 12
BUDGET_B = 26
KVPOL = 'nt'; WPOL = 'nt'; XPOL = 'nt'; OPOL = ''; PSTPOL = ''
ODMA_A = 6
WSOFF = 0

def vr(b, n): return 'v[%d:%d]' % (b, b + n - 1)
def ar(b, n): return 'a[%d:%d]' % (b, b + n - 1)
def qa(u, t): return QACC + (u * 8 + t) * 4
def oa(u, t): return OACC + (u * 8 + t) * 4
def sreg(buf, u, kt): return SB[buf] + (u * 2 + (kt >> 1)) * 8 + (kt & 1) * 4
def preg(buf, u, s): return SB[buf] + (u * 2 + s) * 8
def qf(u, ks): return Q + (u * 4 + ks) * 4
def xf(kk, u): return XA + (kk * 2 + u) * 4

class F:
    def __init__(self, reads, mfmas):
        self.reads = reads
        self.mfmas = mfmas

def tr(e, addr, imm): return ('ds_read_b64_tr_b16', 2 * e, 2, addr, imm)

def fr_S(buf, nq):
    out = []
    for kt in range(4):
        for ks in range(4):
            out.append(F([('ds_read_b128', 0, 4, KA + ks, KOFF + kt * 4096)],
                         [(vr(sreg(buf, u, kt), 4), vr(qf(u, ks), 4), ks == 0) for u in range(nq)]))
    return out

def q_ksteps(g):
    a = g >> 1
    if g % 2 == 0: return [(5 * a, 0, 1), (5 * a + 1, 2, 3)]
    return [(5 * a + 2, 'X', 0), (5 * a + 3, 1, 2), (5 * a + 4, 3, 4)]

def fr_Q(g, nq, tmajor=False):
    ks = q_ksteps(g)
    order = [(k, t) for t in range(8) for k in ks] if tmajor else [(k, t) for k in ks for t in range(8)]
    out = []
    for ((kk, b0, b1), t) in order:
        reads = []
        for e, b in enumerate((b0, b1)):
            if b == 'X': reads.append(tr(e, ('X', VA + t), 0))
            else: reads.append(tr(e, VA + t, WOFF + b * 4096))
        out.append(F(reads, [(vr(qa(u, t), 4), ar(xf(kk, u), 4), kk == 0) for u in range(nq)]))
    return out

def fr_PV(g, nq, tmajor=False):
    buf = g & 1
    order = [(s, t) for t in range(8) for s in range(2)] if tmajor else [(s, t) for s in range(2) for t in range(8)]
    return [F([tr(e, VA + t, VOFF + (2 * s + e) * 4096) for e in range(2)],
              [(vr(oa(u, t), 4), vr(preg(buf, u, s), 4), g == 0 and s == 0) for u in range(nq)]) for (s, t) in order]

def fr_O(hh, nq):
    order = [(s, t) for t in range(8) for s in range(4)] if hh in (0, 3) else [(s, t) for s in range(4) for t in range(8)]
    return [F([tr(e, VA + t, (2 * s + e) * 4096) for e in range(2)],
              [(vr(qa(u, t), 4), ar(STASH[hh] + (u * 4 + s) * 4, 4), hh == 0 and s == 0) for u in range(nq)]) for (s, t) in order]

def softmax_chunk(buf, u, s, first):
    b = preg(buf, u, s)
    e = ['v_exp_f32_e32 v%d, v%d' % (b + i, b + i) for i in range(8)]
    c = ['v_cvt_pk_bf16_f32 v%d, v%d, v%d' % (b + j, b + 2 * j, b + 2 * j + 1) for j in range(4)]
    m = 'v_mfma_f32_16x16x32_bf16 %s, %s, %s, %s' % (vr(lt(u), 4), vr(ONES, 4), vr(b, 4), '0' if first else vr(lt(u), 4))
    return e[:4] + [c[0]] + e[4:6] + [c[1]] + e[6:] + [c[2], c[3]], m

def swaps(pairs):
    return ['v_permlane32_swap_b32_e32 v%d, v%d' % p for p in pairs] + ['v_permlane16_swap_b32_e32 v%d, v%d' % p for p in pairs]

def qconv(ks, nq):
    ops = []
    for u in range(nq):
        for t in (2 * ks, 2 * ks + 1):
            for r in range(4): ops.append('v_mul_f32_e32 v%d, s%d, v%d' % (qa(u, t) + r, sC, qa(u, t) + r))
    for u in range(nq):
        for t in range(2):
            for j in range(2):
                r = qa(u, 2 * ks + t) + 2 * j
                ops.append('v_cvt_pk_bf16_f32 v%d, v%d, v%d' % (qf(u, ks) + 2 * t + j, r, r + 1))
    ops += swaps([(qf(u, ks) + j, qf(u, ks) + 2 + j) for u in range(nq) for j in range(2)])
    return ops

def ofin(s, nq):
    ops = []
    for u in range(nq):
        b = oa(u, 2 * s)
        for r in range(8): ops.append('v_mul_f32_e32 v%d, v%d, v%d' % (b + r, lt(u), b + r))
        for j in range(4): ops.append('v_cvt_pk_bf16_f32 v%d, v%d, v%d' % (b + j, b + 2 * j, b + 2 * j + 1))
    return ops

class Role:
    def __init__(self, name, nq):
        self.name = name; self.nq = nq
        self.budget = BUDGET_A if nq == 2 else BUDGET_B
    def lab(self, s): return 'L_%s_%s' % (self.name, s)

def mk_stash(R):
    def f(P):
        for h in range(2):
            P.I('s_cmp_eq_u32 s%d, %d' % (sHead, h)); P.I('s_cbranch_scc1 %s' % R.lab('st%d' % h))
        for h in (2, 0, 1):
            if h != 2: P.label(R.lab('st%d' % h))
            for u in range(R.nq):
                for s in range(4):
                    for j in range(4): P.I('v_accvgpr_write_b32 a%d, v%d' % (STASH[h] + (u * 4 + s) * 4 + j, oa(u, 2 * s) + j))
            if h != 1: P.I('s_branch %s' % R.lab('st_done'))
        P.label(R.lab('st_done'))
    return f

def lane_reduce(P, reg, tmp, op):
    P.I('v_mov_b32_e32 v%d, v%d' % (tmp, reg))
    P.I('v_permlane32_swap_b32_e32 v%d, v%d' % (reg, tmp))
    P.I('%s v%d, v%d, v%d' % (op, reg, reg, tmp))
    P.I('v_mov_b32_e32 v%d, v%d' % (tmp, reg))
    P.I('v_permlane16_swap_b32_e32 v%d, v%d' % (reg, tmp))
    P.I('%s v%d, v%d, v%d' % (op, reg, reg, tmp))

def mk_check(R, site=0):
    def f(P):
        P.I('s_mov_b64 s[%d:%d], -1' % (sM, sM + 1))
        for u in range(R.nq):
            P.I('v_cmp_le_f32_e32 vcc, 0x33800000, v%d' % lt(u))
            P.I('s_and_b64 s[%d:%d], s[%d:%d], vcc' % (sM, sM + 1, sM, sM + 1))
            P.I('v_cmp_ge_f32_e32 vcc, 0x4b800000, v%d' % lt(u))
            P.I('s_and_b64 s[%d:%d], s[%d:%d], vcc' % (sM, sM + 1, sM, sM + 1))
        P.I('s_cmp_eq_u64 s[%d:%d], -1' % (sM, sM + 1))
        if not (EXP.get('nohook') or EXP.get('dropm') or EXP.get('nosm') or EXP.get('nokv') or EXP.get('nord')):
            P.I('s_cbranch_scc1 %s' % R.lab('fast_ok%d' % site))
            P.I('s_mov_b32 s%d, %d' % (sRet, site))
            P.I('s_branch %s' % R.lab('slow'))
        P.label(R.lab('slow_ret%d' % site))
        P.label(R.lab('fast_ok%d' % site))
        for u in range(R.nq): P.I('v_rcp_f32_e32 v%d, v%d' % (lt(u), lt(u)))
    return f

def dma(v, srd, soff, imm, pol, tag):
    return ('buffer_load_dwordx4 v%d, s[%d:%d], s%d offen offset:%d %s lds' % (v, srd, srd + 3, soff, imm, pol), tag)

KVA = 1
def kv_groups(R):
    if KVA == 1: return [0]
    return [] if R.nq == 2 else [0, 1, 2, 3]

def dma_K(tag, R, wr=sWrK, soff=sKo, adv=True):
    ops = []
    for G in kv_groups(R):
        ops.append('s_add_u32 m0, s%d, %d' % (wr, G * 4096))
        if G: ops.append('s_add_u32 s%d, s%d, %d' % (sT2, soff, G * 4096))
        ops += [dma(KD + j, sK, sT2 if G else soff, j * 1024, KVPOL, tag) for j in range(4)]
    if adv and ops: ops.append('s_add_u32 s%d, s%d, 16384' % (sKo, sKo))
    return ops

def dma_V(tag, R, wr=sWrK, soff=sVo, adv=True):
    ops = []
    for G in kv_groups(R):
        ops.append('s_add_u32 m0, s%d, %d' % (wr, VOFF + G * 4096))
        if G: ops.append('s_add_u32 s%d, s%d, %d' % (sT2, soff, G * 4096))
        ops += [dma(VD + (j & 1), sV, sT2 if G else soff, j * 1024, KVPOL, tag) for j in range(4)]
    if adv and ops: ops.append('s_add_u32 s%d, s%d, 16384' % (sVo, sVo))
    return ops

def dma_Wrows(tag, row0, nrows, hreg, dest):
    ops = []
    for G in range(nrows // 16):
        if isinstance(dest, tuple) and len(dest) > 2:
            ops.append(atomic(['s_add_u32 s%d, s%d, %d' % (sT, dest[1], WOFF + G * 4096), 's_cmp_eq_u32 s%d, 3' % sHead, 's_cselect_b32 m0, %d, s%d' % (XBASE, sT)]))
        elif isinstance(dest, tuple): ops.append('s_add_u32 m0, s%d, %d' % (dest[1], WOFF + G * 4096))
        else: ops.append('s_mov_b32 m0, %d' % (dest + G * 4096))
        ops.append('s_add_u32 s%d, s%d, %d' % (sT2, hreg, (row0 + 16 * G) * 8192))
        for i in range(4): ops.append(dma(WD + i, sW, sT2, i * 1024, WPOL, tag))
    return ops

def dma_Warea(tag, g, hreg, dest):
    a = g >> 1
    if g % 2 == 0: return dma_Wrows(tag, 160 * a, 64, hreg, dest)
    return dma_Wrows(tag, 160 * a + 80, 80, hreg, dest)
def dma_WX(tag, g, hreg):
    return dma_Wrows(tag, 160 * (g >> 1) + 64, 16, hreg, XBASE)

X_SLOT = [0, 1, 2, 0, 2]
def dma_x(kt, nq):
    ops = []
    for j in range(4 * nq):
        ops.append('s_add_u32 m0, s70, %d' % (X_SLOT[kt] * SLOT + j * 1024))
        ops.append('s_mov_b32 s7, %d' % (j * 5120 + kt * 256))
        ops.append(('buffer_load_dwordx4 v%d, s[%d:%d], s7 offen %s lds' % (XV + (j & 3), sX, sX + 3, XPOL), 'x%d' % kt))
    return ops

def read_x(kt, nq):
    ops = [('WAITVM', 'x%d' % kt)]
    for kq in range(4):
        for u in range(nq):
            for e in range(2):
                if X_SLOT[kt] == 2: a, off = XR2 + 2 * kq + e, 0
                else: a, off = XR + 2 * kq + e, X_SLOT[kt] * SLOT
                d = xf(4 * kt + kq, u) + 2 * e
                ops.append(('ds_read_b64 %s, v%d offset:%d' % (ar(d, 2), a, off + u * 4096), 'xr%d' % kt))
    return ops

def fixed_kv(slot, kind, off, tag, R):
    fn = dma_K if kind == 'K' else dma_V
    ops = fn(tag, R, wr=sT, soff=sI, adv=False)
    if not ops: return []
    return ['s_add_u32 s%d, s%d, %d' % (sT, sW4096, slot * SLOT), 's_mov_b32 s%d, %d' % (sI, off)] + ops

def ring_advance(total=NSLOT * SLOT):
    return ['s_mov_b32 s%d, s%d' % (sWr, sRd),
            's_add_u32 s%d, s%d, s%d' % (sWrK, sRd, sW4096),
            's_add_u32 s%d, s%d, s%d' % (sRd, sRd, sSlot),
            's_cmp_eq_u32 s%d, %d' % (sRd, total),
            's_cselect_b32 s%d, s%d, s%d' % (sDelta, sWrap, sSlot),
            's_cselect_b32 s%d, 0, s%d' % (sRd, sRd)]

def atomic(ops):
    def f(P):
        for o in ops: P.I(o)
    f.cost = 4 * len(ops)
    return f

def cost_of(op):
    if callable(op): return getattr(op, 'cost', 60)
    t = op[0] if isinstance(op, tuple) else op
    if t.startswith('v_mfma'): return 8
    if t.startswith('buffer_'): return 20
    if t.startswith('v_exp') or t.startswith('v_rcp'): return 8
    return 4

class Step:
    def __init__(self, name, fr, paced=None, fixed=None, usesX=False):
        self.name = name; self.fr = fr; self.paced = paced or []; self.fixed = fixed or {}; self.usesX = usesX

def stamp(P, lane, real=False):
    P.I('%s s[72:73]' % ('s_memrealtime' if real else 's_memtime')); P.I('s_waitcnt lgkmcnt(0)')
    if isinstance(lane, int): P.I('v_writelane_b32 v%d, s72, %d' % (T4, lane))
    else: P.I('s_mov_b32 m0, s74'); P.I('v_writelane_b32 v%d, s72, m0' % T4)

class Emitter:
    def __init__(self, P, R):
        self.P = P; self.R = R
        self.fr = 0; self.uid = 0; self.ring_total = NSLOT * SLOT
        self.addr_regs = list(range(KA, KA + 4)) + list(range(VA, VA + 8))
    def emit_op(self, op):
        if isinstance(op, tuple):
            if op[0] == 'WAITVM': self.P.wait_vm(op[1])
            elif op[0] == 'WAITLGKM': self.P.wait_lgkm(op[1])
            else: self.P.I(op[0], op[1])
        elif callable(op): op(self.P)
        else: self.P.I(op)
    def issue_reads(self, f, upd, part=None):
        P = self.P; c = 0
        if part in (None, 0):
            f.frag = POOL + 4 * (self.fr % NPOOL); self.fr += 1
            self.uid += 1; f.tag = '%sf%d' % (self.R.name, self.uid)
        reads = f.reads if part is None else (f.reads[:1] if part == 0 else f.reads[1:])
        for (op, off, n, addr, imm) in reads:
            isx = isinstance(addr, tuple)
            a = addr[1] if isx else addr
            if a in upd:
                P.I('v_add_u32_e32 v%d, s%d, v%d' % (a, sDelta, a)); upd.discard(a); c += 4
            if isx:
                P.I('v_add_u32_e32 v%d, s%d, v%d' % (T2, sXc, a)); c += 4; a = T2
            if EXP.get('nord') and self.uid % int(EXP['nord']) != 0 and self.uid > 300: continue
            P.I('%s %s, v%d offset:%d' % (op, ar(f.frag + off, n), a, imm), f.tag); c += 4
        return c
    def boundary(self, nxt):
        P = self.P
        P.wait_lgkm('ALL')
        st = STAMP and not EXP.get('lite') and ((nxt.name[0] == 'O') == bool(EXP.get('ostamp')))
        arr = bool(EXP.get('arr'))
        if st and arr: stamp(P, 'dyn', bool(EXP.get('rt'))); P.I('s_add_u32 s74, s74, 1')
        P.wait_vm('ld_' + nxt.name)
        P.I('s_barrier')
        if st and not arr: stamp(P, 'dyn', bool(EXP.get('rt'))); P.I('s_add_u32 s74, s74, 1')
        if getattr(nxt, 'ring_total', None): self.ring_total = nxt.ring_total
        if getattr(nxt, 'va_only', False): self.addr_regs = list(range(VA, VA + 8))
        for o in ring_advance(self.ring_total): P.I(o)
        if nxt.usesX: P.I('s_sub_u32 s%d, %d, s%d' % (sXc, XBASE, sRd))
        return set(self.addr_regs)
    def run(self, steps, nxt_after, pre_issued, upd, valu, allow_left=False):
        P = self.P; R = self.R
        allf = []
        for si, s in enumerate(steps):
            for i, f in enumerate(s.fr): allf.append((si, i, f))
        n = len(allf)
        seq = allf + [(len(steps), i, f) for i, f in enumerate(nxt_after.fr)]
        first_of = {}
        for k, (si, i, f) in enumerate(seq):
            if i == 0: first_of[si] = k
        nread = pre_issued; entered = 0
        vq = list(valu); vp = 0; ppos = 0
        jobcost = {}; jobdone = {}
        for it in vq:
            if len(it) > 3: jobcost[it[3]] = jobcost.get(it[3], 0) + cost_of(it[0])
        for k in range(n):
            si, i, f = allf[k]
            s = steps[si]
            if i == 0: ppos = 0
            used = 0
            tgt = k
            if i % WAITW == 0:
                for d in range(1, WAITW):
                    if k + d < n and allf[k + d][0] == si and k + d < nread: tgt = k + d
                used += 4
            P.wait_lgkm(seq[tgt][2].tag)
            for mi, (d, b, c0) in enumerate(f.mfmas):
                if not (EXP.get('dropm') and s.name[0] == 'G' and (k * 2 + mi) % int(EXP['dropm']) == 0):
                    P.I('v_mfma_f32_16x16x32_bf16 %s, %s, %s, %s' % (d, ar(f.frag, 4), b, '0' if c0 else d))
                lastm = mi == len(f.mfmas) - 1
                if lastm:
                    nf = len(s.fr); last = getattr(s, 'paced_end', nf - 2 - D_BAR)
                    for o in s.fixed.get(i, []):
                        used += cost_of(o); self.emit_op(o)
                    p0 = getattr(s, 'paced_start', 0)
                    if p0 <= i <= last:
                        want = len(s.paced) if i == last else int(math.ceil(len(s.paced) * (i - p0 + 1) / float(last - p0 + 1)))
                        while ppos < want:
                            used += cost_of(s.paced[ppos]); self.emit_op(s.paced[ppos]); ppos += 1
                    if si + 1 in first_of and k == first_of[si + 1] - 1 - D_BAR and entered == si:
                        assert ppos == len(s.paced), (s.name, ppos, len(s.paced))
                        for a in sorted(upd): P.I('v_add_u32_e32 v%d, s%d, v%d' % (a, sDelta, a)); used += 4
                        nx = steps[si + 1] if si + 1 < len(steps) else nxt_after
                        upd = self.boundary(nx); entered = si + 1; used += 40
                if mi == 0:
                    ready = []
                    while nread < len(seq) and nread <= k + D_AHEAD and seq[nread][0] <= entered and (seq[nread][0] < len(steps) or nread - n < D_BAR):
                        ready.append(seq[nread][2]); nread += 1
                    at_bar = si + 1 in first_of and k == first_of[si + 1] - 1 - D_BAR
                    half = None
                    if SPLITR and len(f.mfmas) == 2 and len(ready) == 1 and len(ready[0].reads) == 2 and not at_bar:
                        half = ready[0]; used += self.issue_reads(half, upd, 0)
                    else:
                        for r in ready: used += self.issue_reads(r, upd)
                elif half is not None:
                    used += self.issue_reads(half, upd, 1); half = None
                while vp < len(vq):
                    it = vq[vp]; c = cost_of(it[0])
                    go = lastm and it[2] <= k
                    if not go and it[1] <= k:
                        if len(it) > 3:
                            js, je = it[3]
                            pos = k + (mi + 1) / float(len(f.mfmas))
                            due = jobcost[it[3]] * min(1.0, max(0.0, (pos - js) / float(je - js))) - jobdone.get(it[3], 0)
                            go = (due > 0 and used + c <= CAP1) or (due > LATE and used + c <= CAP2) or (used < 8 and due > -LEAD)
                        else: go = used + c <= R.budget
                    if not go: break
                    used += c; self.emit_op(it[0]); vp += 1
                    if len(it) > 3: jobdone[it[3]] = jobdone.get(it[3], 0) + c
                used = 0
            while nread < len(seq) and nread <= k + D_AHEAD and seq[nread][0] <= entered and (seq[nread][0] < len(steps) or nread - n < D_BAR):
                self.issue_reads(seq[nread][2], upd); nread += 1
        if allow_left: return upd, vp
        assert vp == len(vq), (vp, len(vq))
        return upd

def nm(k, g): return 'ld_%s%d' % (k, g)

def make_P(g, R):
    nq = R.nq; B = nq == 1
    fr = fr_Q(g, nq, tmajor=(g == 7))
    paced = []; fixed = {}
    wr = ('slot', sWr)
    if g == 0:
        if B: paced += dma_WX(nm('P', 1), 1, sWc) + dma_Warea(nm('P', 1), 1, sWc, SLOT_C(1))
        paced += dma_x(1, nq)
        if B: paced += dma_Warea(nm('P', 2), 2, sWc, SLOT_C(2))
        paced += dma_x(2, nq)
    if g == 1: fixed[0] = read_x(1, nq)
    if B and 1 <= g <= 5: paced += dma_Warea(nm('P', g + 2), g + 2, sWc, wr)
    if B and g in (2, 4, 6): paced = dma_WX(nm('P', g + 1), g + 1, sWc) + paced
    if g == 1: paced += dma_x(3, nq)
    if g == 2: fixed[0] = read_x(2, nq); paced += [('WAITLGKM', 'xr2')] + dma_x(4, nq)
    if g == 3: paced += fixed_kv(1, 'K', 0, nm('P', 7), R); fixed[8] = read_x(3, nq)
    if g == 4: paced += fixed_kv(0, 'K', 2 * 16384, nm('G', 1), R) + fixed_kv(0, 'V', 16384, nm('G', 1), R); fixed[4] = read_x(4, nq)
    if g == 5: paced += fixed_kv(2, 'K', 16384, nm('G', 0), R) + fixed_kv(2, 'V', 0, nm('G', 0), R)
    if B and g == 6: paced += dma_Warea(nm('G', 0), 0, sWn, wr)
    if B and g == 7: paced += dma_Warea(nm('G', 1), 1, sWn, wr) + ['s_mov_b32 s%d, s%d' % (sWc, sWn), 's_add_u32 s%d, s%d, 256' % (sWn, sWn)]
    if g == 7: fr = fr + fr_S(0, nq)
    return Step('P%d' % g, fr, paced, fixed, usesX=(g % 2 == 1))

def SLOT_C(n): return n * SLOT + WOFF

def make_G(g, R):
    nq = R.nq; B = nq == 1
    tgt = nm('G', (g + 2) % 8)
    paced = []
    if B and g % 2 == 0: paced += dma_WX(nm('G', g + 1), g + 1, sWc)
    if B and g == 6:
        paced += [atomic(['s_cmp_ge_u32 s%d, 2' % sHead, 's_cselect_b32 s%d, 0, s%d' % (sW + 2, sW + 2)])]
    if not EXP.get('nokv'): paced += dma_K(tgt, R) + dma_V(tgt, R)
    if B: paced += dma_Warea(tgt, (g + 2) % 8, sWc if g + 2 < 8 else sWn, ('slot', sWr, 'redirect') if g == 5 else ('slot', sWr))
    if B and g == 7: paced += ['s_mov_b32 s%d, s%d' % (sWc, sWn), 's_add_u32 s%d, s%d, 256' % (sWn, sWn)]
    if g < 7: fr = fr_S((g + 1) & 1, nq) + fr_Q(g, nq) + fr_PV(g, nq)
    else: fr = fr_Q(7, nq, True) + fr_PV(7, nq, True) + fr_S(0, nq)
    return Step('G%d' % g, fr, paced, usesX=(g % 2 == 1))

def o_setup(R):
    def f(P):
        lane_ids(P)
        if R.nq == 2:
            P.I('s_mul_i32 s%d, s%d, %d' % (sW4096, sWAVE, OGA * 4096)); P.I('s_mul_i32 s7, s%d, %d' % (sWAVE, OGA * 20480))
        else:
            P.I('s_mov_b32 s%d, 0' % sW4096); P.I('s_mov_b32 s7, 0')
        P.I('v_mul_u32_u24_e32 v11, 1280, v4')
        for i in range(4):
            swz8(P, 12, i & 1)
            P.I('v_add3_u32 v12, v12, v11, s7'); P.I('v_add_u32_e32 v%d, %d, v12' % (OD + i, i * (5120 - 1024)))
        P.I('s_mov_b32 s%d, s82' % sW); P.I('s_mov_b32 s%d, s83' % (sW + 1))
        P.I('s_mov_b32 s%d, 655360' % (sW + 2)); P.I('s_mov_b32 s%d, 0x20000' % (sW + 3))
        P.I('s_mov_b32 s%d, 0' % sWo)
    f.cost = 140
    return f

def o_setup2(R):
    def f(P):
        P.I('v_mbcnt_lo_u32_b32 v0, -1, 0'); P.I('v_mbcnt_hi_u32_b32 v0, -1, v0')
        P.I('s_lshl_b32 s7, s%d, 11' % sWAVE)
        P.I('v_lshlrev_b32_e32 v11, 4, v0'); P.I('v_add_u32_e32 v%d, s7, v11' % OST)
        P.I('s_mov_b32 s%d, %d' % (sOo, (-4 * 7 * 1024) & 0xffffffff)); P.I('s_mov_b32 s%d, 0' % sNg)
        P.I('s_mov_b32 s%d, %d' % (sSlot, OSLOT)); P.I('s_mov_b32 s%d, %d' % (sWrap, (-(ONSLOT - 1) * OSLOT) & 0xffffffff))
    f.cost = 40
    return f

def make_GL(g, R):
    nq = R.nq
    paced = []
    for n in ((0, 1) if g == 6 else (2, 3)):
        paced.append('s_add_u32 s%d, s%d, %d' % (sWrK, sW4096, (n + 1) * OSLOT))
        paced += odma('ld_O%d' % n, 163840 if n != 3 else 256 - 3 * 163840, R)
    if g == 6:
        return Step('G6', fr_S(1, nq) + fr_PV(6, nq), paced, {0: [o_setup(R)]})
    st = Step('G7', fr_PV(7, nq, True), paced, {0: [o_setup2(R)]})
    st.paced_end = 9; st.va_only = True
    return st

def valu_P(steps, R):
    base7 = sum(len(s.fr) for s in steps[:7])
    q = []
    for ks in range(4):
        for o in qconv(ks, R.nq): q.append((o, base7 + 6 * ks + 5 + 2, base7 + 23))
    return q

def valu_G(steps, R, last=False):
    nq = R.nq
    base = [0]
    for s in steps: base.append(base[-1] + len(s.fr))
    q = []; pend = []
    for g in range(8):
        nqf = 16 if g % 2 == 0 else 24
        if last and g >= 6: nqf = 0
        if g == 0: job = (0, JOB0)
        elif g == 1: job = (JOB0, base[1] + JOBS)
        elif last and g == 6: job = (base[5] + JOBS, base[6] + 14)
        elif last and g == 7: job = (base[6] + 14, base[7] - 2)
        elif g < 7: job = (base[g - 1] + JOBS, base[g] + JOBS)
        else: job = (base[6] + JOBS, base[7] + 5)
        for s in range(2):
            for u in range(nq):
                est = 0 if g == 0 else base[g - 1] + 8 * s + 7 + 3
                if g < 7: ddl = base[g] + 16 + nqf + 8 * s - 1
                elif last: ddl = base[7] - 1
                else: ddl = base[7] + 6
                if not EXP.get('nosm'):
                    ops, m = softmax_chunk(g & 1, u, s, g == 0 and s == 0)
                    for n, o in enumerate(ops):
                        q.append((o, est, ddl, job))
                        if n == 1 and pend: q.append((pend.pop(), est, ddl, job))
                    pend.append(m)
            if g == 7 and s == 1 and pend: q.append((pend.pop(), est, ddl, job))
    b = base[7]
    if last:
        q.append((mk_check(R, 1), b, b + 1))
        job = (b + 4, b + 14)
        for s in range(4):
            for o in ofin(s, nq): q.append((o, b + 4 * s + 3 + 2, b + 15, job))
        def st3(P):
            for u in range(nq):
                for s in range(4):
                    for j in range(4): P.I('v_accvgpr_write_b32 a%d, v%d' % (STASH[3] + (u * 4 + s) * 4 + j, oa(u, 2 * s) + j))
        q.append((st3, b + 15, b + 15))
        return q
    q.append((mk_check(R), b, b + 7))
    job = (b + 8, b + QJOB)
    for ks in range(4):
        for o in qconv(ks, nq): q.append((o, b + 6 * ks + 5 + 2, b + 39, job))
    job = (b + QJOB, b + 54)
    for s in range(4):
        for o in ofin(s, nq): q.append((o, b + 24 + 4 * s + 3 + 2, b + 55, job))
    q.append((mk_stash(R), b + 54, b + 55))
    return q

def shift_q(q, off):
    out = []
    for it in q:
        if len(it) > 3: out.append((it[0], it[1] - off, it[2] - off, (it[3][0] - off, it[3][1] - off)))
        else: out.append((it[0], it[1] - off, it[2] - off))
    return out
JOB0 = 22; JOBS = 20; QJOB = 34

OGA = 1
def odma(tag, adv, R):
    ops = []
    groups = list(range(OGA)) if R.nq == 2 else list(range(3 * OGA, 8))
    for G in groups:
        ops.append('s_add_u32 m0, s%d, %d' % (sWrK, G * 4096))
        ops.append('s_add_u32 s%d, s%d, %d' % (sT2, sWo, G * 20480))
        for i in range(4): ops.append(dma(OD + i, sW, sT2, i * 1024, OPOL, tag))
    ops.append('s_add_u32 s%d, s%d, %d' % (sWo, sWo, adv & 0xffffffff))
    return ops

PK = SB[0]
def ostore(R, n):
    jp, u = n // R.nq, n % R.nq
    return ['s_add_u32 s%d, s%d, %d' % (sT, sOo, (jp * 7 + u) * 1024),
            ('buffer_store_dwordx4 %s, v%d, s[%d:%d], s%d offen %s' % (vr(PK + (u * 4 + jp) * 4, 4), OST, sO, sO + 3, sT, PSTPOL), 'pst')]

OSLOT = 32768; ONSLOT = 5; OLA = 4
STPOS = 0
def make_O(hh, R):
    tgt = 'ld_O%d' % hh
    adv = 163840 if hh != 3 else 256 - 3 * 163840
    pre = []
    if hh == 0: pre = [atomic(['s_cmp_ge_u32 s%d, 4' % sNg, 's_cselect_b32 s%d, 0, s%d' % (sW + 2, sW + 2)])]
    loads = odma(tgt, adv, R)
    fixed = {}
    ns = 4 * R.nq
    if hh == 0: fixed[0] = [atomic(['s_cmp_eq_u32 s%d, 0' % sNg, 's_cselect_b32 s%d, 0, %d' % (sO + 2, PART)])]
    for n in range(ns):
        gpos = int((n + 0.5) * STSPAN / ns)
        if gpos // 32 == hh: fixed.setdefault(min(gpos % 32, 27), []).extend(ostore(R, n))
    if hh == 3: fixed.setdefault(12, []).append('s_add_u32 s%d, s%d, %d' % (sOo, sOo, 4 * 7 * 1024))
    return Step('O%d' % hh, fr_O(hh, R.nq), pre + loads, fixed)

STSPAN = 96
OFIRST = 9
def valu_O(R):
    q = []; b = 96
    for jp in range(4):
        est = b + 4 * (2 * jp + 1) + 3 + 2
        for u in range(R.nq):
            p = PK + (u * 4 + jp) * 4
            for t in range(2):
                for j in range(2):
                    r = qa(u, 2 * jp + t) + 2 * j
                    q.append(('v_cvt_pk_bf16_f32 v%d, v%d, v%d' % (p + 2 * t + j, r, r + 1), est, 127))
    return q

def final_stores(P, E, R):
    P.I('s_mov_b32 s%d, %d' % (sO + 2, PART))
    for n in range(4 * R.nq):
        for o in ostore(R, n): E.emit_op(o)

def lane_ids(P):
    P.I('v_mbcnt_lo_u32_b32 v0, -1, 0'); P.I('v_mbcnt_hi_u32_b32 v0, -1, v0')
    P.I('v_and_b32_e32 v3, 15, v0'); P.I('v_lshrrev_b32_e32 v4, 4, v0')

def swz8(P, dst, p):
    P.I('v_add_u32_e32 v5, %d, v4' % (4 * p)); P.I('v_lshlrev_b32_e32 v5, 1, v5')
    P.I('v_xor_b32_e32 v5, v5, v3'); P.I('v_lshlrev_b32_e32 v%d, 4, v5' % dst)

def retag(P, start, old, new):
    for ins in P.ins[start:]:
        if ins.tag == old: ins.tag = new
        if ins.wait and ins.wait[1] == old: ins.wait = (ins.wait[0], new)

def oproj_phase(P, E, R):
    nq = R.nq
    P.I('s_waitcnt vmcnt(0) lgkmcnt(0)')
    P.I('s_barrier')
    lane_ids(P)
    if nq == 2:
        P.I('s_mul_i32 s%d, s%d, %d' % (sW4096, sWAVE, OGA * 4096)); P.I('s_mul_i32 s7, s%d, %d' % (sWAVE, OGA * 20480))
    else:
        P.I('s_mov_b32 s%d, 0' % sW4096); P.I('s_mov_b32 s7, 0')
    P.I('v_mul_u32_u24_e32 v11, 1280, v4')
    for i in range(4):
        swz8(P, 12, i & 1)
        P.I('v_add3_u32 v12, v12, v11, s7'); P.I('v_add_u32_e32 v%d, %d, v12' % (OD + i, i * (5120 - 1024)))
    P.I('s_mov_b32 s%d, s82' % sW); P.I('s_mov_b32 s%d, s83' % (sW + 1))
    P.I('s_mov_b32 s%d, 655360' % (sW + 2)); P.I('s_mov_b32 s%d, 0x20000' % (sW + 3))
    P.I('s_mov_b32 s%d, 0' % sWo)
    for n in range(4):
        P.I('s_add_u32 s%d, s%d, %d' % (sWrK, sW4096, n * OSLOT))
        for o in odma('ld_O%d' % n, 163840 if n != 3 else 256 - 3 * 163840, R): E.emit_op(o)
        if n == OFIRST: P.wait_vm('ld_O0'); P.I('s_barrier')
    P.I('s_mov_b32 s%d, %d' % (sSlot, OSLOT)); P.I('s_mov_b32 s%d, %d' % (sWrap, (-(ONSLOT - 1) * OSLOT) & 0xffffffff))
    E.ring_total = ONSLOT * OSLOT
    va_regs(P, 0)
    P.I('s_lshl_b32 s7, s%d, 11' % sWAVE)
    P.I('v_lshlrev_b32_e32 v11, 4, v0'); P.I('v_add_u32_e32 v%d, s7, v11' % OST)
    P.I('s_mov_b32 s%d, %d' % (sOo, (-4 * 7 * 1024) & 0xffffffff)); P.I('s_mov_b32 s%d, 0' % sNg); P.I('s_mov_b32 s%d, 0' % sRd)
    P.I('s_add_u32 s%d, s%d, %d' % (sWrK, sW4096, 4 * OSLOT))
    P.wait_vm('ld_O0')
    P.I('s_barrier')
    E.addr_regs = list(range(VA, VA + 8))
    osteps = [make_O(hh, R) for hh in range(4)]
    o0 = make_O(0, R)
    n_pre = len(P.ins)
    for i in range(D_BAR): E.issue_reads(osteps[0].fr[i], set())
    first = [(osteps[0].fr[i].tag, osteps[0].fr[i].frag) for i in range(D_BAR)]
    for i in range(D_BAR):
        retag(P, n_pre, first[i][0], '%so0pre%d' % (R.name, i)); osteps[0].fr[i].tag = '%so0pre%d' % (R.name, i)
    n0 = len(P.ins)
    P.label(R.lab('ng'))
    upd = E.run(osteps, o0, D_BAR, set(), valu_O(R))
    for a in sorted(upd): P.I('v_add_u32_e32 v%d, s%d, v%d' % (a, sDelta, a))
    for i in range(D_BAR):
        assert o0.fr[i].frag == first[i][1], (o0.fr[i].frag, first[i][1])
        retag(P, n0, o0.fr[i].tag, '%so0pre%d' % (R.name, i))
    P.I('s_add_u32 s%d, s%d, 1' % (sNg, sNg))
    P.I('s_cmp_lt_u32 s%d, 5' % sNg)
    P.I('s_cbranch_scc1 %s' % R.lab('ng'))
    n1 = len(P.ins)
    final_stores(P, E, R)
    return n0, n1

def va_regs(P, base):
    P.I('v_lshrrev_b32_e32 v6, 2, v3'); P.I('v_and_b32_e32 v7, 3, v0')
    P.I('v_lshl_add_u32 v9, v4, 2, v6'); P.I('v_and_b32_e32 v8, 7, v9')
    P.I('v_lshlrev_b32_e32 v9, 8, v9'); P.I('v_lshl_add_u32 v9, v7, 3, v9')
    for t in range(8):
        P.I('v_xor_b32_e32 v11, %d, v8' % t)
        P.I('v_lshl_add_u32 v%d, v11, 5, v9' % (VA + t))

def slow_path(P, R):
    S0, S1 = SB
    P.label(R.lab('slow'))
    P.I('s_nop 15'); P.I('s_nop 15')
    T0, T1 = S1 + 22, S1 + 23
    P.I('v_mbcnt_lo_u32_b32 v%d, -1, 0' % T0); P.I('v_mbcnt_hi_u32_b32 v%d, -1, v%d' % (T0, T0))
    P.I('v_and_b32_e32 v%d, 15, v%d' % (T1, T0)); P.I('v_lshrrev_b32_e32 v%d, 4, v%d' % (T0, T0))
    KO, VO, VO2, MX, TM = S1 + 16, S1 + 17, S1 + 18, S1 + 19, S1 + 20
    P.I('v_lshlrev_b32_e32 v%d, 8, v%d' % (KO, T1)); P.I('v_lshl_add_u32 v%d, v%d, 4, v%d' % (KO, T0, KO))
    P.I('v_lshlrev_b32_e32 v%d, 10, v%d' % (VO, T0)); P.I('v_lshl_add_u32 v%d, v%d, 1, v%d' % (VO, T1, VO))
    P.I('v_add_u32_e32 v%d, 0x1000, v%d' % (VO2, VO))
    P.I('s_lshl_b32 s%d, s%d, 17' % (sHb, sHead))
    def s_tile(u, dst):
        for ks in range(4):
            P.I('buffer_load_dwordx4 %s, v%d, s[%d:%d], s%d offen offset:%d' % (vr(S0 + 4 * ks, 4), KO, sK, sK + 3, sT2, ks * 64))
        P.I('s_waitcnt vmcnt(0)')
        for ks in range(4):
            P.I('v_mfma_f32_16x16x32_bf16 %s, %s, %s, %s' % (vr(dst, 4), vr(S0 + 4 * ks, 4), vr(qf(u, ks), 4), '0' if ks == 0 else vr(dst, 4)))
        P.I('s_nop 15')
    for u in range(R.nq):
        P.I('v_mov_b32_e32 v%d, 0xff800000' % MX)
        P.I('s_mov_b32 s%d, 0' % sI)
        P.label(R.lab('slow_max%d' % u))
        P.I('s_lshl_b32 s%d, s%d, 12' % (sT2, sI)); P.I('s_add_u32 s%d, s%d, s%d' % (sT2, sT2, sHb))
        s_tile(u, S0 + 16)
        P.I('v_max3_f32 v%d, v%d, v%d, v%d' % (MX, MX, S0 + 16, S0 + 17)); P.I('v_max3_f32 v%d, v%d, v%d, v%d' % (MX, MX, S0 + 18, S0 + 19))
        P.I('s_add_u32 s%d, s%d, 1' % (sI, sI)); P.I('s_cmp_lt_u32 s%d, 32' % sI); P.I('s_cbranch_scc1 %s' % R.lab('slow_max%d' % u))
        lane_reduce(P, MX, TM, 'v_max_f32_e32')
        P.I('v_mov_b32_e32 v%d, 0' % lt(u))
        for r in range(32): P.I('v_mov_b32_e32 v%d, 0' % (oa(u, 0) + r))
        P.I('s_mov_b32 s%d, 0' % sI)
        P.label(R.lab('slow_pv%d' % u))
        P.I('s_lshl_b32 s%d, s%d, 13' % (sT2, sI)); P.I('s_add_u32 s%d, s%d, s%d' % (sT2, sT2, sHb))
        s_tile(u, S0 + 16)
        P.I('s_add_u32 s%d, s%d, 4096' % (sT2, sT2))
        s_tile(u, S0 + 20)
        P.I('s_sub_u32 s%d, s%d, 4096' % (sT2, sT2))
        for r in range(8): P.I('v_sub_f32_e32 v%d, v%d, v%d' % (S0 + 16 + r, S0 + 16 + r, MX))
        for r in range(8): P.I('v_exp_f32_e32 v%d, v%d' % (S0 + 16 + r, S0 + 16 + r))
        P.I('s_nop 0')
        for r in range(8): P.I('v_add_f32_e32 v%d, v%d, v%d' % (lt(u), lt(u), S0 + 16 + r))
        for j in range(4): P.I('v_cvt_pk_bf16_f32 v%d, v%d, v%d' % (S0 + 24 + j, S0 + 16 + 2 * j, S0 + 17 + 2 * j))
        for t in range(8):
            for i in range(8):
                P.I('buffer_load_ushort v%d, v%d, s[%d:%d], s%d offen offset:%d' % (S1 + i, VO if i < 4 else VO2, sV, sV + 3, sT2, (i & 3) * 256 + t * 32))
            P.I('s_waitcnt vmcnt(0)')
            for j in range(4): P.I('v_lshl_or_b32 v%d, v%d, 16, v%d' % (S1 + 8 + j, S1 + 2 * j + 1, S1 + 2 * j))
            P.I('s_nop 1')
            P.I('v_mfma_f32_16x16x32_bf16 %s, %s, %s, %s' % (vr(oa(u, t), 4), vr(S1 + 8, 4), vr(S0 + 24, 4), vr(oa(u, t), 4)))
            P.I('s_nop 7')
        P.I('s_add_u32 s%d, s%d, 1' % (sI, sI)); P.I('s_cmp_lt_u32 s%d, 16' % sI); P.I('s_cbranch_scc1 %s' % R.lab('slow_pv%d' % u))
        lane_reduce(P, lt(u), TM, 'v_add_f32_e32')
    for u in range(R.nq):
        for s in range(2):
            for j in range(4): P.I('v_mov_b32_e32 v%d, 0' % (preg(1, u, s) + j))
    P.I('s_nop 15')
    P.I('s_cmp_eq_u32 s%d, 0' % sRet)
    P.I('s_cbranch_scc1 %s' % R.lab('slow_ret0'))
    P.I('s_branch %s' % R.lab('slow_ret1'))

def role_code(P, R):
    nq = R.nq
    start = len(P.ins)
    P.label(R.lab('start'))
    E = Emitter(P, R)
    for o in dma_x(0, nq): E.emit_op(o)
    if nq == 1:
        for i in range(4):
            swz8(P, 12, i & 1)
            P.I('v_lshl_add_u32 v12, v4, 13, v12'); P.I('v_add_u32_e32 v%d, %d, v12' % (WD + i, i * (32768 - 1024)))
        for o in dma_Warea(nm('P', 0), 0, sWc, SLOT_C(0)): E.emit_op(o)
    for ks in range(4):
        P.I('v_add_u32_e32 v5, %d, v4' % (4 * ks)); P.I('v_xor_b32_e32 v5, v5, v3'); P.I('v_lshlrev_b32_e32 v5, 4, v5')
        P.I('v_lshl_add_u32 v%d, v3, 8, v5' % (KA + ks))
    va_regs(P, 0)
    for kq in range(4):
        for e in range(2):
            P.I('v_lshrrev_b32_e32 v5, 1, v4'); P.I('v_add_u32_e32 v5, %d, v5' % (4 * kq + 2 * e))
            P.I('v_xor_b32_e32 v5, v5, v3'); P.I('v_lshlrev_b32_e32 v5, 4, v5')
            P.I('v_lshl_add_u32 v5, v3, 8, v5'); P.I('v_and_b32_e32 v11, 1, v4'); P.I('v_lshl_add_u32 v5, v11, 3, v5')
            P.I('v_add_u32_e32 v%d, s70, v5' % (XR + 2 * kq + e))
            P.I('v_add_u32_e32 v%d, %d, v%d' % (XR2 + 2 * kq + e, 2 * SLOT, XR + 2 * kq + e))
    for j in range(4):
        P.I('v_add_u32_e32 v5, %d, v4' % (4 * j)); P.I('v_xor_b32_e32 v5, v5, v3'); P.I('v_lshlrev_b32_e32 v5, 4, v5')
        P.I('v_lshl_add_u32 v5, v4, 8, v5'); P.I('v_add_u32_e32 v%d, s%d, v5' % (KD + j, sW4096))
    for p in range(2):
        swz8(P, 12, p)
        P.I('v_lshl_add_u32 v12, v4, 8, v12'); P.I('v_add_u32_e32 v%d, s%d, v12' % (VD + p, sW4096))
    for j in range(4): P.I('v_mov_b32_e32 v%d, 0x3f803f80' % (ONES + j))
    for o in read_x(0, nq): E.emit_op(o)
    P.wait_vm(nm('P', 0))
    P.I('s_barrier')
    if STAMP: P.I('s_waitcnt lgkmcnt(0)'); stamp(P, 2)
    psteps = [make_P(g, R) for g in range(8)]
    gsteps = [make_G(g, R) for g in range(8)]
    for i in range(D_BAR): E.issue_reads(psteps[0].fr[i], set())
    g0 = make_G(0, R)
    n_pre = len(P.ins)
    upd = E.run(psteps, g0, D_BAR, set(), valu_P(psteps, R))
    for i in range(D_BAR):
        gsteps[0].fr[i].frag = g0.fr[i].frag; gsteps[0].fr[i].tag = '%sg0pre%d' % (R.name, i)
        retag(P, n_pre, g0.fr[i].tag, '%sg0pre%d' % (R.name, i))
    if STAMP: P.I('s_waitcnt lgkmcnt(0)'); stamp(P, 56, True); stamp(P, 57)
    pro_end = len(P.ins)
    P.label(R.lab('head'))
    vq = valu_G(gsteps, R)
    g6 = make_G(6, R)
    upd6, vp = E.run(gsteps[:6], g6, D_BAR, set(upd), vq, allow_left=True)
    off6 = sum(len(s_.fr) for s_ in gsteps[:6])
    lsteps = [make_GL(6, R), make_GL(7, R)]
    for i in range(D_BAR):
        retag(P, pro_end, g6.fr[i].tag, '%sg6pre%d' % (R.name, i))
        for st_ in (gsteps[6], lsteps[0]):
            st_.fr[i].frag = g6.fr[i].frag; st_.fr[i].tag = '%sg6pre%d' % (R.name, i)
    fr6 = E.fr
    P.I('s_cmp_eq_u32 s%d, 3' % sHead)
    P.I('s_cbranch_scc1 %s' % R.lab('last'))
    p1_end = len(P.ins)
    g0n = make_G(0, R)
    upd2 = E.run(gsteps[6:], g0n, D_BAR, set(upd6), shift_q(vq[vp:], off6))
    assert upd2 == upd, (upd2, upd)
    for i in range(D_BAR):
        assert g0n.fr[i].frag == g0.fr[i].frag, (g0n.fr[i].frag, g0.fr[i].frag)
        retag(P, p1_end, g0n.fr[i].tag, '%sg0pre%d' % (R.name, i))
    P.I('s_add_u32 s%d, s%d, 1' % (sHead, sHead))
    P.I('s_branch %s' % R.lab('head'))
    p2_end = len(P.ins)
    P.label(R.lab('last'))
    E.fr = fr6
    vql = valu_G(gsteps[:6] + lsteps, R, last=True)
    for a_, b_ in zip(vq[:vp], vql[:vp]): assert a_[0] == b_[0] or callable(a_[0]), (a_[0], b_[0])
    osteps = [make_O(hh, R) for hh in range(4)]
    o0 = make_O(0, R); o0.ring_total = ONSLOT * OSLOT
    updo = E.run(lsteps, o0, D_BAR, set(upd6), shift_q(vql[vp:], off6))
    for a in sorted(updo): P.I('v_add_u32_e32 v%d, s%d, v%d' % (a, sDelta, a))
    for i in range(D_BAR):
        retag(P, p2_end, o0.fr[i].tag, '%so0pre%d' % (R.name, i))
        osteps[0].fr[i].frag = o0.fr[i].frag; osteps[0].fr[i].tag = '%so0pre%d' % (R.name, i)
    if STAMP: P.I('s_waitcnt lgkmcnt(0)'); stamp(P, 58, True); stamp(P, 59)
    body_end = len(P.ins)
    on0 = len(P.ins)
    P.label(R.lab('ng'))
    o0n = make_O(0, R)
    updn = E.run(osteps, o0n, D_BAR, set(), valu_O(R))
    for a in sorted(updn): P.I('v_add_u32_e32 v%d, s%d, v%d' % (a, sDelta, a))
    for i in range(D_BAR):
        assert o0n.fr[i].frag == o0.fr[i].frag, (o0n.fr[i].frag, o0.fr[i].frag)
        retag(P, on0, o0n.fr[i].tag, '%so0pre%d' % (R.name, i))
    P.I('s_add_u32 s%d, s%d, 1' % (sNg, sNg))
    P.I('s_cmp_lt_u32 s%d, 5' % sNg)
    P.I('s_cbranch_scc1 %s' % R.lab('ng'))
    on1 = len(P.ins)
    final_stores(P, E, R)
    P.I('s_waitcnt vmcnt(0) lgkmcnt(0)')
    if STAMP:
        stamp(P, 60, True); stamp(P, 61)
        P.I('v_writelane_b32 v%d, s78, 1' % T4); P.I('v_writelane_b32 v%d, s76, 0' % T4)
        P.I('s_lshl_b32 s72, s2, 2'); P.I('s_add_u32 s72, s72, s%d' % sWAVE); P.I('s_lshl_b32 s72, s72, 8')
        P.I('s_add_u32 s72, s72, 0x4000000')
        P.I('s_add_u32 s68, s68, s72'); P.I('s_addc_u32 s69, s69, 0')
        P.I('v_mbcnt_lo_u32_b32 v0, -1, 0'); P.I('v_mbcnt_hi_u32_b32 v0, -1, v0'); P.I('v_lshlrev_b32_e32 v0, 2, v0')
        P.I('global_store_dword v0, v%d, s[68:69]' % T4)
        P.I('s_waitcnt vmcnt(0)')
    P.I('s_endpgm')
    slow_path(P, R)
    end = len(P.ins)
    I = P.ins
    marks = [I[start], I[pro_end], I[p1_end], I[p2_end], I[on0], I[on1]]
    return dict(marks=marks)

def dyn_seq(parts):
    pro, p1, p2, lastp, ng = parts
    return pro + (p1 + p2) * 2 + p1 + lastp + ng * 3

BALANCE = 1
def split_parts(P, info):
    pos = [next(k for k, i in enumerate(P.ins) if i is m) for m in info['marks']]
    return pos, [P.ins[pos[n]:pos[n + 1]] for n in range(5)]

def rebalance(P, info):
    pos, parts = split_parts(P, info)
    firsts = [P.ins[p] for p in pos]
    out = []
    for seg in parts:
        seg2, moved = balance_gaps(seg)
        out.append(seg2)
    P.ins[pos[0]:pos[5]] = sum(out, [])
    n = pos[0]; marks = []
    for seg in out:
        marks.append(P.ins[n]); n += len(seg)
    marks.append(P.ins[n])
    info['marks'] = marks

def gen_k16(name='attn_kernel'):
    P = Prog()
    P.I('s_cmp_ge_u32 s2, 256')
    P.I('s_cbranch_scc1 L_end')
    P.I('s_load_dwordx8 s[52:59], s[0:1], 0')
    P.I('s_load_dwordx8 s[60:67], s[0:1], 40')
    P.I('s_load_dwordx2 s[68:69], s[0:1], 96')
    P.I('s_load_dwordx2 s[82:83], s[0:1], 32')
    P.I('s_load_dwordx2 s[84:85], s[0:1], 72')
    if STAMP:
        P.I('s_memtime s[76:77]'); P.I('s_memrealtime s[78:79]'); P.I('s_mov_b32 s74, 4')
    P.I('v_lshrrev_b32_e32 v1, 6, v0')
    P.I('v_and_b32_e32 v0, 63, v0')
    P.I('s_and_b32 s3, s2, 7')
    P.I('v_readfirstlane_b32 s%d, v1' % sWAVE)
    P.I('s_lshr_b32 s4, s2, 3'); P.I('s_lshr_b32 s5, s3, 2')
    P.I('s_and_b32 s6, s3, 3'); P.I('s_lshl_b32 s6, s6, 1'); P.I('s_and_b32 s7, s4, 1'); P.I('s_add_u32 s6, s6, s7')
    P.I('s_lshr_b32 s4, s4, 1')
    P.I('v_and_b32_e32 v3, 15, v0'); P.I('v_lshrrev_b32_e32 v4, 4, v0')
    P.I('s_lshl_b32 s70, s%d, 13' % sWAVE)
    P.I('s_mul_i32 s71, s%d, %d' % (sWAVE, 32 * 1280))
    P.I('v_mul_u32_u24_e32 v11, 1280, v4')
    for jj in range(4):
        P.I('v_add_u32_e32 v5, %d, v4' % (4 * jj)); P.I('v_xor_b32_e32 v5, v5, v3'); P.I('v_lshlrev_b32_e32 v5, 4, v5')
        P.I('v_add3_u32 v%d, v5, v11, s71' % (XV + jj))
    P.I('s_waitcnt lgkmcnt(0)')
    P.I('s_cmp_eq_u32 s5, 0')
    for i in range(8): P.I('s_cselect_b32 s%d, s%d, s%d' % (52 + i, 52 + i, 60 + i))
    P.I('s_cselect_b32 s82, s82, s84'); P.I('s_cselect_b32 s83, s83, s85')
    P.I('s_mul_i32 s7, s4, 143360')
    P.I('s_add_u32 s%d, s52, s7' % sX); P.I('s_addc_u32 s%d, s53, 0' % (sX + 1))
    P.I('s_mov_b32 s%d, 143360' % (sX + 2)); P.I('s_mov_b32 s%d, 0x20000' % (sX + 3))
    P.I('s_lshl_b32 s86, s6, 2')
    P.I('s_lshl_b32 s71, s86, 8')
    P.I('s_add_u32 s%d, s58, s71' % sW); P.I('s_addc_u32 s%d, s59, 0' % (sW + 1))
    P.I('s_sub_u32 s%d, 5242880, s71' % (sW + 2)); P.I('s_mov_b32 s%d, 0x20000' % (sW + 3))
    P.I('s_mov_b32 s%d, 0' % sWc); P.I('s_mov_b32 s%d, 256' % sWn)
    P.I('s_lshl_b32 s7, s4, 5'); P.I('s_add_u32 s7, s7, s86'); P.I('s_lshl_b32 s71, s7, 17')
    P.I('s_add_u32 s%d, s54, s71' % sK); P.I('s_addc_u32 s%d, s55, 0' % (sK + 1))
    P.I('s_mov_b32 s%d, 524288' % (sK + 2)); P.I('s_mov_b32 s%d, 0x20000' % (sK + 3))
    P.I('s_add_u32 s%d, s56, s71' % sV); P.I('s_addc_u32 s%d, s57, 0' % (sV + 1))
    P.I('s_mov_b32 s%d, 524288' % (sV + 2)); P.I('s_mov_b32 s%d, 0x20000' % (sV + 3))
    P.I('s_mul_i32 s71, s86, 163840')
    P.I('s_add_u32 s82, s82, s71'); P.I('s_addc_u32 s83, s83, 0')
    P.I('s_lshl_b32 s71, s5, 4'); P.I('s_add_u32 s71, s71, s4'); P.I('s_lshl_b32 s71, s71, 3'); P.I('s_add_u32 s71, s71, s6')
    P.I('s_mul_i32 s71, s71, %d' % PART)
    if WSOFF: P.I('s_add_u32 s71, s71, %d' % WSOFF)
    P.I('s_add_u32 s%d, s68, s71' % sO); P.I('s_addc_u32 s%d, s69, 0' % (sO + 1))
    P.I('s_mov_b32 s%d, %d' % (sO + 2, PART)); P.I('s_mov_b32 s%d, 0x20000' % (sO + 3))
    if KVA == 1: P.I('s_lshl_b32 s%d, s%d, 12' % (sW4096, sWAVE))
    else: P.I('s_mov_b32 s%d, 0' % sW4096)
    P.I('s_mov_b32 s%d, %d' % (sSlot, SLOT)); P.I('s_mov_b32 s%d, %d' % (sWrap, (-2 * SLOT) & 0xffffffff))
    P.I('s_mov_b32 s%d, 0x%x' % (sC, QSCALE))
    P.I('s_mov_b32 s%d, 0' % sHead); P.I('s_mov_b32 s%d, 0' % sRd)
    P.I('s_mov_b32 s%d, %d' % (sKo, 3 * 16384)); P.I('s_mov_b32 s%d, %d' % (sVo, 2 * 16384))
    P.I('s_cmp_eq_u32 s%d, 3' % sWAVE)
    P.I('s_cbranch_scc0 L_A_start')
    P.I('s_branch L_B_start')
    head = list(P.ins)
    RA, RB = Role('A', 2), Role('B', 1)
    a = role_code(P, RA)
    b = role_code(P, RB)
    if BALANCE:
        for info in (a, b): rebalance(P, info)
    P.label('L_end')
    P.I('s_endpgm')
    for info in (a, b):
        pos, parts = split_parts(P, info)
        info['tail'] = P.ins[pos[5]:pos[5] + 40]
        resolve_waits(head + dyn_seq(parts))
    drop_optional(P)
    P.pad()
    bad = 0
    def at(lab): return [k for k, i in enumerate(P.ins) if i.label == lab][0]
    for R in (RA, RB):
        h, l, n_ = at(R.lab('head')), at(R.lab('last')), at(R.lab('ng'))
        br_last = [k for k, i in enumerate(P.ins) if i.op == 's_cbranch_scc1' and i.text.endswith(R.lab('last'))][0]
        br_ng = [k for k, i in enumerate(P.ins) if i.op == 's_cbranch_scc1' and i.text.endswith(R.lab('ng'))][0]
        I = P.ins
        bad += check_hazards(I[h - 60:l], name)
        bad += check_hazards(I[l - 60:l] + I[h:h + 80], name)
        bad += check_hazards(I[br_last - 60:br_last + 1] + I[l:br_ng + 1], name)
        bad += check_hazards(I[br_ng - 60:br_ng + 1] + I[n_:n_ + 80], name)
    assert bad == 0
    return P

if __name__ == '__main__':
    print(gen_k16().text())
```

```python
from asmlib import *
import struct, math

SLOT = 53248
KOFF, VOFF, WOFF = 0, 16384, 32768
XBASE = 3 * SLOT
NSLOT = 3
LDS_BYTES = 163840
PART = 143360

QACC = 0; OACC = 64; SB = (128, 160); Q = 192
KA = 224; VA = 228; KD = 236; VD = 240; ONES = 242; LS = 246
T2 = 254; T4 = 255
WD = 32
OST = KA; OD = KD
def lt(u): return LS + 4 * u
XR = 128; XR2 = 136; XV = 144
XA = 0; POOL = 160; NPOOL = 8
STASH = [192, 224, 0, 32]
sK = 8; sV = 12; sW = 16; sO = 20; sX = 24
sWAVE = 28; sKo = 29; sVo = 30; sWc = 31; sRd = 32; sDelta = 33; sWrK = 34; sHead = 35
sT = 36; sT2 = 37; sW4096 = 38; sXc = 39; sOo = 40; sC = 41; sSlot = 42; sWrap = 43
sRet = 87; sM = 44; sHb = 48; sI = 49; sWr = 50; sNg = 51; sWn = 46; sWo = 47
QSCALE = struct.unpack('<I', struct.pack('<f', math.log2(math.e) / math.sqrt(128.0)))[0]

STAMP = False
EXP = {}
D_AHEAD = 6
D_BAR = 3
WAITW = 4
SPLITR = 0; LEAD = 0
CAP1 = 8; CAP2 = 24; LATE = 16
BUDGET_A = 12
BUDGET_B = 26
KVPOL = 'nt'; WPOL = 'nt'; XPOL = 'nt'; OPOL = ''; PSTPOL = ''
ODMA_A = 6
WSOFF = 0

def vr(b, n): return 'v[%d:%d]' % (b, b + n - 1)
def ar(b, n): return 'a[%d:%d]' % (b, b + n - 1)
def qa(u, t): return QACC + (u * 8 + t) * 4
def oa(u, t): return OACC + (u * 8 + t) * 4
def sreg(buf, u, kt): return SB[buf] + (u * 2 + (kt >> 1)) * 8 + (kt & 1) * 4
def preg(buf, u, s): return SB[buf] + (u * 2 + s) * 8
def qf(u, ks): return Q + (u * 4 + ks) * 4
def xf(kk, u): return XA + (kk * 2 + u) * 4

class F:
    def __init__(self, reads, mfmas):
        self.reads = reads
        self.mfmas = mfmas

def tr(e, addr, imm): return ('ds_read_b64_tr_b16', 2 * e, 2, addr, imm)

def fr_S(buf, nq):
    out = []
    for kt in range(4):
        for ks in range(4):
            out.append(F([('ds_read_b128', 0, 4, KA + ks, KOFF + kt * 4096)],
                         [(vr(sreg(buf, u, kt), 4), vr(qf(u, ks), 4), ks == 0) for u in range(nq)]))
    return out

def q_ksteps(g):
    a = g >> 1
    if g % 2 == 0: return [(5 * a, 0, 1), (5 * a + 1, 2, 3)]
    return [(5 * a + 2, 'X', 0), (5 * a + 3, 1, 2), (5 * a + 4, 3, 4)]

def fr_Q(g, nq, tmajor=False):
    ks = q_ksteps(g)
    order = [(k, t) for t in range(8) for k in ks] if tmajor else [(k, t) for k in ks for t in range(8)]
    out = []
    for ((kk, b0, b1), t) in order:
        reads = []
        for e, b in enumerate((b0, b1)):
            if b == 'X': reads.append(tr(e, ('X', VA + t), 0))
            else: reads.append(tr(e, VA + t, WOFF + b * 4096))
        out.append(F(reads, [(vr(qa(u, t), 4), ar(xf(kk, u), 4), kk == 0) for u in range(nq)]))
    return out

def fr_PV(g, nq, tmajor=False):
    buf = g & 1
    order = [(s, t) for t in range(8) for s in range(2)] if tmajor else [(s, t) for s in range(2) for t in range(8)]
    return [F([tr(e, VA + t, VOFF + (2 * s + e) * 4096) for e in range(2)],
              [(vr(oa(u, t), 4), vr(preg(buf, u, s), 4), g == 0 and s == 0) for u in range(nq)]) for (s, t) in order]

def fr_O(hh, nq):
    order = [(s, t) for t in range(8) for s in range(4)] if hh in (0, 3) else [(s, t) for s in range(4) for t in range(8)]
    return [F([tr(e, VA + t, (2 * s + e) * 4096) for e in range(2)],
              [(vr(qa(u, t), 4), ar(STASH[hh] + (u * 4 + s) * 4, 4), hh == 0 and s == 0) for u in range(nq)]) for (s, t) in order]

def softmax_chunk(buf, u, s, first):
    b = preg(buf, u, s)
    e = ['v_exp_f32_e32 v%d, v%d' % (b + i, b + i) for i in range(8)]
    c = ['v_cvt_pk_bf16_f32 v%d, v%d, v%d' % (b + j, b + 2 * j, b + 2 * j + 1) for j in range(4)]
    m = 'v_mfma_f32_16x16x32_bf16 %s, %s, %s, %s' % (vr(lt(u), 4), vr(ONES, 4), vr(b, 4), '0' if first else vr(lt(u), 4))
    return e[:4] + [c[0]] + e[4:6] + [c[1]] + e[6:] + [c[2], c[3]], m

def swaps(pairs):
    return ['v_permlane32_swap_b32_e32 v%d, v%d' % p for p in pairs] + ['v_permlane16_swap_b32_e32 v%d, v%d' % p for p in pairs]

def qconv(ks, nq):
    ops = []
    for u in range(nq):
        for t in (2 * ks, 2 * ks + 1):
            for r in range(4): ops.append('v_mul_f32_e32 v%d, s%d, v%d' % (qa(u, t) + r, sC, qa(u, t) + r))
    for u in range(nq):
        for t in range(2):
            for j in range(2):
                r = qa(u, 2 * ks + t) + 2 * j
                ops.append('v_cvt_pk_bf16_f32 v%d, v%d, v%d' % (qf(u, ks) + 2 * t + j, r, r + 1))
    ops += swaps([(qf(u, ks) + j, qf(u, ks) + 2 + j) for u in range(nq) for j in range(2)])
    return ops

def ofin(s, nq):
    ops = []
    for u in range(nq):
        b = oa(u, 2 * s)
        for r in range(8): ops.append('v_mul_f32_e32 v%d, v%d, v%d' % (b + r, lt(u), b + r))
        for j in range(4): ops.append('v_cvt_pk_bf16_f32 v%d, v%d, v%d' % (b + j, b + 2 * j, b + 2 * j + 1))
    return ops

class Role:
    def __init__(self, name, nq):
        self.name = name; self.nq = nq
        self.budget = BUDGET_A if nq == 2 else BUDGET_B
    def lab(self, s): return 'L_%s_%s' % (self.name, s)

def mk_stash(R):
    def f(P):
        for h in range(2):
            P.I('s_cmp_eq_u32 s%d, %d' % (sHead, h)); P.I('s_cbranch_scc1 %s' % R.lab('st%d' % h))
        for h in (2, 0, 1):
            if h != 2: P.label(R.lab('st%d' % h))
            for u in range(R.nq):
                for s in range(4):
                    for j in range(4): P.I('v_accvgpr_write_b32 a%d, v%d' % (STASH[h] + (u * 4 + s) * 4 + j, oa(u, 2 * s) + j))
            if h != 1: P.I('s_branch %s' % R.lab('st_done'))
        P.label(R.lab('st_done'))
    return f

def lane_reduce(P, reg, tmp, op):
    P.I('v_mov_b32_e32 v%d, v%d' % (tmp, reg))
    P.I('v_permlane32_swap_b32_e32 v%d, v%d' % (reg, tmp))
    P.I('%s v%d, v%d, v%d' % (op, reg, reg, tmp))
    P.I('v_mov_b32_e32 v%d, v%d' % (tmp, reg))
    P.I('v_permlane16_swap_b32_e32 v%d, v%d' % (reg, tmp))
    P.I('%s v%d, v%d, v%d' % (op, reg, reg, tmp))

def mk_check(R, site=0):
    def f(P):
        P.I('s_mov_b64 s[%d:%d], -1' % (sM, sM + 1))
        for u in range(R.nq):
            P.I('v_cmp_le_f32_e32 vcc, 0x33800000, v%d' % lt(u))
            P.I('s_and_b64 s[%d:%d], s[%d:%d], vcc' % (sM, sM + 1, sM, sM + 1))
            P.I('v_cmp_ge_f32_e32 vcc, 0x4b800000, v%d' % lt(u))
            P.I('s_and_b64 s[%d:%d], s[%d:%d], vcc' % (sM, sM + 1, sM, sM + 1))
        P.I('s_cmp_eq_u64 s[%d:%d], -1' % (sM, sM + 1))
        if not (EXP.get('nohook') or EXP.get('dropm') or EXP.get('nosm') or EXP.get('nokv') or EXP.get('nord')):
            P.I('s_cbranch_scc1 %s' % R.lab('fast_ok%d' % site))
            P.I('s_mov_b32 s%d, %d' % (sRet, site))
            P.I('s_branch %s' % R.lab('slow'))
        P.label(R.lab('slow_ret%d' % site))
        P.label(R.lab('fast_ok%d' % site))
        for u in range(R.nq): P.I('v_rcp_f32_e32 v%d, v%d' % (lt(u), lt(u)))
    return f

def dma(v, srd, soff, imm, pol, tag):
    return ('buffer_load_dwordx4 v%d, s[%d:%d], s%d offen offset:%d %s lds' % (v, srd, srd + 3, soff, imm, pol), tag)

KVA = 1
def kv_groups(R):
    if KVA == 1: return [0]
    return [] if R.nq == 2 else [0, 1, 2, 3]

def dma_K(tag, R, wr=sWrK, soff=sKo, adv=True):
    ops = []
    for G in kv_groups(R):
        ops.append('s_add_u32 m0, s%d, %d' % (wr, G * 4096))
        if G: ops.append('s_add_u32 s%d, s%d, %d' % (sT2, soff, G * 4096))
        ops += [dma(KD + j, sK, sT2 if G else soff, j * 1024, KVPOL, tag) for j in range(4)]
    if adv and ops: ops.append('s_add_u32 s%d, s%d, 16384' % (sKo, sKo))
    return ops

def dma_V(tag, R, wr=sWrK, soff=sVo, adv=True):
    ops = []
    for G in kv_groups(R):
        ops.append('s_add_u32 m0, s%d, %d' % (wr, VOFF + G * 4096))
        if G: ops.append('s_add_u32 s%d, s%d, %d' % (sT2, soff, G * 4096))
        ops += [dma(VD + (j & 1), sV, sT2 if G else soff, j * 1024, KVPOL, tag) for j in range(4)]
    if adv and ops: ops.append('s_add_u32 s%d, s%d, 16384' % (sVo, sVo))
    return ops

def dma_Wrows(tag, row0, nrows, hreg, dest):
    ops = []
    for G in range(nrows // 16):
        if isinstance(dest, tuple) and len(dest) > 2:
            ops.append(atomic(['s_add_u32 s%d, s%d, %d' % (sT, dest[1], WOFF + G * 4096), 's_cmp_eq_u32 s%d, 3' % sHead, 's_cselect_b32 m0, %d, s%d' % (XBASE, sT)]))
        elif isinstance(dest, tuple): ops.append('s_add_u32 m0, s%d, %d' % (dest[1], WOFF + G * 4096))
        else: ops.append('s_mov_b32 m0, %d' % (dest + G * 4096))
        ops.append('s_add_u32 s%d, s%d, %d' % (sT2, hreg, (row0 + 16 * G) * 8192))
        for i in range(4): ops.append(dma(WD + i, sW, sT2, i * 1024, WPOL, tag))
    return ops

def dma_Warea(tag, g, hreg, dest):
    a = g >> 1
    if g % 2 == 0: return dma_Wrows(tag, 160 * a, 64, hreg, dest)
    return dma_Wrows(tag, 160 * a + 80, 80, hreg, dest)
def dma_WX(tag, g, hreg):
    return dma_Wrows(tag, 160 * (g >> 1) + 64, 16, hreg, XBASE)

X_SLOT = [0, 1, 2, 0, 2]
def dma_x(kt, nq):
    ops = []
    for j in range(4 * nq):
        ops.append('s_add_u32 m0, s70, %d' % (X_SLOT[kt] * SLOT + j * 1024))
        ops.append('s_mov_b32 s7, %d' % (j * 5120 + kt * 256))
        ops.append(('buffer_load_dwordx4 v%d, s[%d:%d], s7 offen %s lds' % (XV + (j & 3), sX, sX + 3, XPOL), 'x%d' % kt))
    return ops

def read_x(kt, nq):
    ops = [('WAITVM', 'x%d' % kt)]
    for kq in range(4):
        for u in range(nq):
            for e in range(2):
                if X_SLOT[kt] == 2: a, off = XR2 + 2 * kq + e, 0
                else: a, off = XR + 2 * kq + e, X_SLOT[kt] * SLOT
                d = xf(4 * kt + kq, u) + 2 * e
                ops.append(('ds_read_b64 %s, v%d offset:%d' % (ar(d, 2), a, off + u * 4096), 'xr%d' % kt))
    return ops

def fixed_kv(slot, kind, off, tag, R):
    fn = dma_K if kind == 'K' else dma_V
    ops = fn(tag, R, wr=sT, soff=sI, adv=False)
    if not ops: return []
    return ['s_add_u32 s%d, s%d, %d' % (sT, sW4096, slot * SLOT), 's_mov_b32 s%d, %d' % (sI, off)] + ops

def ring_advance(total=NSLOT * SLOT):
    return ['s_mov_b32 s%d, s%d' % (sWr, sRd),
            's_add_u32 s%d, s%d, s%d' % (sWrK, sRd, sW4096),
            's_add_u32 s%d, s%d, s%d' % (sRd, sRd, sSlot),
            's_cmp_eq_u32 s%d, %d' % (sRd, total),
            's_cselect_b32 s%d, s%d, s%d' % (sDelta, sWrap, sSlot),
            's_cselect_b32 s%d, 0, s%d' % (sRd, sRd)]

def atomic(ops):
    def f(P):
        for o in ops: P.I(o)
    f.cost = 4 * len(ops)
    return f

def cost_of(op):
    if callable(op): return getattr(op, 'cost', 60)
    t = op[0] if isinstance(op, tuple) else op
    if t.startswith('v_mfma'): return 8
    if t.startswith('buffer_'): return 20
    if t.startswith('v_exp') or t.startswith('v_rcp'): return 8
    return 4

class Step:
    def __init__(self, name, fr, paced=None, fixed=None, usesX=False):
        self.name = name; self.fr = fr; self.paced = paced or []; self.fixed = fixed or {}; self.usesX = usesX

def stamp(P, lane, real=False):
    P.I('%s s[72:73]' % ('s_memrealtime' if real else 's_memtime')); P.I('s_waitcnt lgkmcnt(0)')
    if isinstance(lane, int): P.I('v_writelane_b32 v%d, s72, %d' % (T4, lane))
    else: P.I('s_mov_b32 m0, s74'); P.I('v_writelane_b32 v%d, s72, m0' % T4)

class Emitter:
    def __init__(self, P, R):
        self.P = P; self.R = R
        self.fr = 0; self.uid = 0; self.ring_total = NSLOT * SLOT
        self.addr_regs = list(range(KA, KA + 4)) + list(range(VA, VA + 8))
    def emit_op(self, op):
        if isinstance(op, tuple):
            if op[0] == 'WAITVM': self.P.wait_vm(op[1])
            elif op[0] == 'WAITLGKM': self.P.wait_lgkm(op[1])
            else: self.P.I(op[0], op[1])
        elif callable(op): op(self.P)
        else: self.P.I(op)
    def issue_reads(self, f, upd, part=None):
        P = self.P; c = 0
        if part in (None, 0):
            f.frag = POOL + 4 * (self.fr % NPOOL); self.fr += 1
            self.uid += 1; f.tag = '%sf%d' % (self.R.name, self.uid)
        reads = f.reads if part is None else (f.reads[:1] if part == 0 else f.reads[1:])
        for (op, off, n, addr, imm) in reads:
            isx = isinstance(addr, tuple)
            a = addr[1] if isx else addr
            if a in upd:
                P.I('v_add_u32_e32 v%d, s%d, v%d' % (a, sDelta, a)); upd.discard(a); c += 4
            if isx:
                P.I('v_add_u32_e32 v%d, s%d, v%d' % (T2, sXc, a)); c += 4; a = T2
            if EXP.get('nord') and self.uid % int(EXP['nord']) != 0 and self.uid > 300: continue
            P.I('%s %s, v%d offset:%d' % (op, ar(f.frag + off, n), a, imm), f.tag); c += 4
        return c
    def boundary(self, nxt):
        P = self.P
        P.wait_lgkm('ALL')
        st = STAMP and not EXP.get('lite') and ((nxt.name[0] == 'O') == bool(EXP.get('ostamp')))
        arr = bool(EXP.get('arr'))
        if st and arr: stamp(P, 'dyn', bool(EXP.get('rt'))); P.I('s_add_u32 s74, s74, 1')
        P.wait_vm('ld_' + nxt.name)
        P.I('s_barrier')
        if st and not arr: stamp(P, 'dyn', bool(EXP.get('rt'))); P.I('s_add_u32 s74, s74, 1')
        if getattr(nxt, 'ring_total', None): self.ring_total = nxt.ring_total
        if getattr(nxt, 'va_only', False): self.addr_regs = list(range(VA, VA + 8))
        for o in ring_advance(self.ring_total): P.I(o)
        if nxt.usesX: P.I('s_sub_u32 s%d, %d, s%d' % (sXc, XBASE, sRd))
        return set(self.addr_regs)
    def run(self, steps, nxt_after, pre_issued, upd, valu, allow_left=False):
        P = self.P; R = self.R
        allf = []
        for si, s in enumerate(steps):
            for i, f in enumerate(s.fr): allf.append((si, i, f))
        n = len(allf)
        seq = allf + [(len(steps), i, f) for i, f in enumerate(nxt_after.fr)]
        first_of = {}
        for k, (si, i, f) in enumerate(seq):
            if i == 0: first_of[si] = k
        nread = pre_issued; entered = 0
        vq = list(valu); vp = 0; ppos = 0
        jobcost = {}; jobdone = {}
        for it in vq:
            if len(it) > 3: jobcost[it[3]] = jobcost.get(it[3], 0) + cost_of(it[0])
        for k in range(n):
            si, i, f = allf[k]
            s = steps[si]
            if i == 0: ppos = 0
            used = 0
            tgt = k
            if i % WAITW == 0:
                for d in range(1, WAITW):
                    if k + d < n and allf[k + d][0] == si and k + d < nread: tgt = k + d
                used += 4
            P.wait_lgkm(seq[tgt][2].tag)
            for mi, (d, b, c0) in enumerate(f.mfmas):
                if not (EXP.get('dropm') and s.name[0] == 'G' and (k * 2 + mi) % int(EXP['dropm']) == 0):
                    P.I('v_mfma_f32_16x16x32_bf16 %s, %s, %s, %s' % (d, ar(f.frag, 4), b, '0' if c0 else d))
                lastm = mi == len(f.mfmas) - 1
                if lastm:
                    nf = len(s.fr); last = getattr(s, 'paced_end', nf - 2 - D_BAR)
                    for o in s.fixed.get(i, []):
                        used += cost_of(o); self.emit_op(o)
                    p0 = getattr(s, 'paced_start', 0)
                    if p0 <= i <= last:
                        want = len(s.paced) if i == last else int(math.ceil(len(s.paced) * (i - p0 + 1) / float(last - p0 + 1)))
                        while ppos < want:
                            used += cost_of(s.paced[ppos]); self.emit_op(s.paced[ppos]); ppos += 1
                    if si + 1 in first_of and k == first_of[si + 1] - 1 - D_BAR and entered == si:
                        assert ppos == len(s.paced), (s.name, ppos, len(s.paced))
                        for a in sorted(upd): P.I('v_add_u32_e32 v%d, s%d, v%d' % (a, sDelta, a)); used += 4
                        nx = steps[si + 1] if si + 1 < len(steps) else nxt_after
                        upd = self.boundary(nx); entered = si + 1; used += 40
                if mi == 0:
                    ready = []
                    while nread < len(seq) and nread <= k + D_AHEAD and seq[nread][0] <= entered and (seq[nread][0] < len(steps) or nread - n < D_BAR):
                        ready.append(seq[nread][2]); nread += 1
                    at_bar = si + 1 in first_of and k == first_of[si + 1] - 1 - D_BAR
                    half = None
                    if SPLITR and len(f.mfmas) == 2 and len(ready) == 1 and len(ready[0].reads) == 2 and not at_bar:
                        half = ready[0]; used += self.issue_reads(half, upd, 0)
                    else:
                        for r in ready: used += self.issue_reads(r, upd)
                elif half is not None:
                    used += self.issue_reads(half, upd, 1); half = None
                while vp < len(vq):
                    it = vq[vp]; c = cost_of(it[0])
                    go = lastm and it[2] <= k
                    if not go and it[1] <= k:
                        if len(it) > 3:
                            js, je = it[3]
                            pos = k + (mi + 1) / float(len(f.mfmas))
                            due = jobcost[it[3]] * min(1.0, max(0.0, (pos - js) / float(je - js))) - jobdone.get(it[3], 0)
                            go = (due > 0 and used + c <= CAP1) or (due > LATE and used + c <= CAP2) or (used < 8 and due > -LEAD)
                        else: go = used + c <= R.budget
                    if not go: break
                    used += c; self.emit_op(it[0]); vp += 1
                    if len(it) > 3: jobdone[it[3]] = jobdone.get(it[3], 0) + c
                used = 0
            while nread < len(seq) and nread <= k + D_AHEAD and seq[nread][0] <= entered and (seq[nread][0] < len(steps) or nread - n < D_BAR):
                self.issue_reads(seq[nread][2], upd); nread += 1
        if allow_left: return upd, vp
        assert vp == len(vq), (vp, len(vq))
        return upd

def nm(k, g): return 'ld_%s%d' % (k, g)

def make_P(g, R):
    nq = R.nq; B = nq == 1
    fr = fr_Q(g, nq, tmajor=(g == 7))
    paced = []; fixed = {}
    wr = ('slot', sWr)
    if g == 0:
        if B: paced += dma_WX(nm('P', 1), 1, sWc) + dma_Warea(nm('P', 1), 1, sWc, SLOT_C(1))
        paced += dma_x(1, nq)
        if B: paced += dma_Warea(nm('P', 2), 2, sWc, SLOT_C(2))
        paced += dma_x(2, nq)
    if g == 1: fixed[0] = read_x(1, nq)
    if B and 1 <= g <= 5: paced += dma_Warea(nm('P', g + 2), g + 2, sWc, wr)
    if B and g in (2, 4, 6): paced = dma_WX(nm('P', g + 1), g + 1, sWc) + paced
    if g == 1: paced += dma_x(3, nq)
    if g == 2: fixed[0] = read_x(2, nq); paced += [('WAITLGKM', 'xr2')] + dma_x(4, nq)
    if g == 3: paced += fixed_kv(1, 'K', 0, nm('P', 7), R); fixed[8] = read_x(3, nq)
    if g == 4: paced += fixed_kv(0, 'K', 2 * 16384, nm('G', 1), R) + fixed_kv(0, 'V', 16384, nm('G', 1), R); fixed[4] = read_x(4, nq)
    if g == 5: paced += fixed_kv(2, 'K', 16384, nm('G', 0), R) + fixed_kv(2, 'V', 0, nm('G', 0), R)
    if B and g == 6: paced += dma_Warea(nm('G', 0), 0, sWn, wr)
    if B and g == 7: paced += dma_Warea(nm('G', 1), 1, sWn, wr) + ['s_mov_b32 s%d, s%d' % (sWc, sWn), 's_add_u32 s%d, s%d, 256' % (sWn, sWn)]
    if g == 7: fr = fr + fr_S(0, nq)
    return Step('P%d' % g, fr, paced, fixed, usesX=(g % 2 == 1))

def SLOT_C(n): return n * SLOT + WOFF

def make_G(g, R):
    nq = R.nq; B = nq == 1
    tgt = nm('G', (g + 2) % 8)
    paced = []
    if B and g % 2 == 0: paced += dma_WX(nm('G', g + 1), g + 1, sWc)
    if B and g == 6:
        paced += [atomic(['s_cmp_ge_u32 s%d, 2' % sHead, 's_cselect_b32 s%d, 0, s%d' % (sW + 2, sW + 2)])]
    if not EXP.get('nokv'): paced += dma_K(tgt, R) + dma_V(tgt, R)
    if B: paced += dma_Warea(tgt, (g + 2) % 8, sWc if g + 2 < 8 else sWn, ('slot', sWr, 'redirect') if g == 5 else ('slot', sWr))
    if B and g == 7: paced += ['s_mov_b32 s%d, s%d' % (sWc, sWn), 's_add_u32 s%d, s%d, 256' % (sWn, sWn)]
    if g < 7: fr = fr_S((g + 1) & 1, nq) + fr_Q(g, nq) + fr_PV(g, nq)
    else: fr = fr_Q(7, nq, True) + fr_PV(7, nq, True) + fr_S(0, nq)
    return Step('G%d' % g, fr, paced, usesX=(g % 2 == 1))

def o_setup(R):
    def f(P):
        lane_ids(P)
        if R.nq == 2:
            P.I('s_mul_i32 s%d, s%d, %d' % (sW4096, sWAVE, OGA * 4096)); P.I('s_mul_i32 s7, s%d, %d' % (sWAVE, OGA * 20480))
        else:
            P.I('s_mov_b32 s%d, 0' % sW4096); P.I('s_mov_b32 s7, 0')
        P.I('v_mul_u32_u24_e32 v11, 1280, v4')
        for i in range(4):
            swz8(P, 12, i & 1)
            P.I('v_add3_u32 v12, v12, v11, s7'); P.I('v_add_u32_e32 v%d, %d, v12' % (OD + i, i * (5120 - 1024)))
        P.I('s_mov_b32 s%d, s82' % sW); P.I('s_mov_b32 s%d, s83' % (sW + 1))
        P.I('s_mov_b32 s%d, 655360' % (sW + 2)); P.I('s_mov_b32 s%d, 0x20000' % (sW + 3))
        P.I('s_mov_b32 s%d, 0' % sWo)
    f.cost = 140
    return f

def o_setup2(R):
    def f(P):
        P.I('v_mbcnt_lo_u32_b32 v0, -1, 0'); P.I('v_mbcnt_hi_u32_b32 v0, -1, v0')
        P.I('s_lshl_b32 s7, s%d, 11' % sWAVE)
        P.I('v_lshlrev_b32_e32 v11, 4, v0'); P.I('v_add_u32_e32 v%d, s7, v11' % OST)
        P.I('s_mov_b32 s%d, %d' % (sOo, (-4 * 7 * 1024) & 0xffffffff)); P.I('s_mov_b32 s%d, 0' % sNg)
        P.I('s_mov_b32 s%d, %d' % (sSlot, OSLOT)); P.I('s_mov_b32 s%d, %d' % (sWrap, (-(ONSLOT - 1) * OSLOT) & 0xffffffff))
    f.cost = 40
    return f

def make_GL(g, R):
    nq = R.nq
    paced = []
    for n in ((0, 1) if g == 6 else (2, 3)):
        paced.append('s_add_u32 s%d, s%d, %d' % (sWrK, sW4096, (n + 1) * OSLOT))
        paced += odma('ld_O%d' % n, 163840 if n != 3 else 256 - 3 * 163840, R)
    if g == 6:
        return Step('G6', fr_S(1, nq) + fr_PV(6, nq), paced, {0: [o_setup(R)]})
    st = Step('G7', fr_PV(7, nq, True), paced, {0: [o_setup2(R)]})
    st.paced_end = 9; st.va_only = True
    return st

def valu_P(steps, R):
    base7 = sum(len(s.fr) for s in steps[:7])
    q = []
    for ks in range(4):
        for o in qconv(ks, R.nq): q.append((o, base7 + 6 * ks + 5 + 2, base7 + 23))
    return q

def valu_G(steps, R, last=False):
    nq = R.nq
    base = [0]
    for s in steps: base.append(base[-1] + len(s.fr))
    q = []; pend = []
    for g in range(8):
        nqf = 16 if g % 2 == 0 else 24
        if last and g >= 6: nqf = 0
        if g == 0: job = (0, JOB0)
        elif g == 1: job = (JOB0, base[1] + JOBS)
        elif last and g == 6: job = (base[5] + JOBS, base[6] + 14)
        elif last and g == 7: job = (base[6] + 14, base[7] - 2)
        elif g < 7: job = (base[g - 1] + JOBS, base[g] + JOBS)
        else: job = (base[6] + JOBS, base[7] + 5)
        for s in range(2):
            for u in range(nq):
                est = 0 if g == 0 else base[g - 1] + 8 * s + 7 + 3
                if g < 7: ddl = base[g] + 16 + nqf + 8 * s - 1
                elif last: ddl = base[7] - 1
                else: ddl = base[7] + 6
                if not EXP.get('nosm'):
                    ops, m = softmax_chunk(g & 1, u, s, g == 0 and s == 0)
                    for n, o in enumerate(ops):
                        q.append((o, est, ddl, job))
                        if n == 1 and pend: q.append((pend.pop(), est, ddl, job))
                    pend.append(m)
            if g == 7 and s == 1 and pend: q.append((pend.pop(), est, ddl, job))
    b = base[7]
    if last:
        q.append((mk_check(R, 1), b, b + 1))
        job = (b + 4, b + 14)
        for s in range(4):
            for o in ofin(s, nq): q.append((o, b + 4 * s + 3 + 2, b + 15, job))
        def st3(P):
            for u in range(nq):
                for s in range(4):
                    for j in range(4): P.I('v_accvgpr_write_b32 a%d, v%d' % (STASH[3] + (u * 4 + s) * 4 + j, oa(u, 2 * s) + j))
        q.append((st3, b + 15, b + 15))
        return q
    q.append((mk_check(R), b, b + 7))
    job = (b + 8, b + QJOB)
    for ks in range(4):
        for o in qconv(ks, nq): q.append((o, b + 6 * ks + 5 + 2, b + 39, job))
    job = (b + QJOB, b + 54)
    for s in range(4):
        for o in ofin(s, nq): q.append((o, b + 24 + 4 * s + 3 + 2, b + 55, job))
    q.append((mk_stash(R), b + 54, b + 55))
    return q

def shift_q(q, off):
    out = []
    for it in q:
        if len(it) > 3: out.append((it[0], it[1] - off, it[2] - off, (it[3][0] - off, it[3][1] - off)))
        else: out.append((it[0], it[1] - off, it[2] - off))
    return out
JOB0 = 22; JOBS = 20; QJOB = 34

OGA = 1
def odma(tag, adv, R):
    ops = []
    groups = list(range(OGA)) if R.nq == 2 else list(range(3 * OGA, 8))
    for G in groups:
        ops.append('s_add_u32 m0, s%d, %d' % (sWrK, G * 4096))
        ops.append('s_add_u32 s%d, s%d, %d' % (sT2, sWo, G * 20480))
        for i in range(4): ops.append(dma(OD + i, sW, sT2, i * 1024, OPOL, tag))
    ops.append('s_add_u32 s%d, s%d, %d' % (sWo, sWo, adv & 0xffffffff))
    return ops

PK = SB[0]
def ostore(R, n):
    jp, u = n // R.nq, n % R.nq
    return ['s_add_u32 s%d, s%d, %d' % (sT, sOo, (jp * 7 + u) * 1024),
            ('buffer_store_dwordx4 %s, v%d, s[%d:%d], s%d offen %s' % (vr(PK + (u * 4 + jp) * 4, 4), OST, sO, sO + 3, sT, PSTPOL), 'pst')]

OSLOT = 32768; ONSLOT = 5; OLA = 4
STPOS = 0
def make_O(hh, R):
    tgt = 'ld_O%d' % hh
    adv = 163840 if hh != 3 else 256 - 3 * 163840
    pre = []
    if hh == 0: pre = [atomic(['s_cmp_ge_u32 s%d, 4' % sNg, 's_cselect_b32 s%d, 0, s%d' % (sW + 2, sW + 2)])]
    loads = odma(tgt, adv, R)
    fixed = {}
    ns = 4 * R.nq
    if hh == 0: fixed[0] = [atomic(['s_cmp_eq_u32 s%d, 0' % sNg, 's_cselect_b32 s%d, 0, %d' % (sO + 2, PART)])]
    for n in range(ns):
        gpos = int((n + 0.5) * STSPAN / ns)
        if gpos // 32 == hh: fixed.setdefault(min(gpos % 32, 27), []).extend(ostore(R, n))
    if hh == 3: fixed.setdefault(12, []).append('s_add_u32 s%d, s%d, %d' % (sOo, sOo, 4 * 7 * 1024))
    return Step('O%d' % hh, fr_O(hh, R.nq), pre + loads, fixed)

STSPAN = 96
OFIRST = 9
def valu_O(R):
    q = []; b = 96
    for jp in range(4):
        est = b + 4 * (2 * jp + 1) + 3 + 2
        for u in range(R.nq):
            p = PK + (u * 4 + jp) * 4
            for t in range(2):
                for j in range(2):
                    r = qa(u, 2 * jp + t) + 2 * j
                    q.append(('v_cvt_pk_bf16_f32 v%d, v%d, v%d' % (p + 2 * t + j, r, r + 1), est, 127))
    return q

def final_stores(P, E, R):
    P.I('s_mov_b32 s%d, %d' % (sO + 2, PART))
    for n in range(4 * R.nq):
        for o in ostore(R, n): E.emit_op(o)

def lane_ids(P):
    P.I('v_mbcnt_lo_u32_b32 v0, -1, 0'); P.I('v_mbcnt_hi_u32_b32 v0, -1, v0')
    P.I('v_and_b32_e32 v3, 15, v0'); P.I('v_lshrrev_b32_e32 v4, 4, v0')

def swz8(P, dst, p):
    P.I('v_add_u32_e32 v5, %d, v4' % (4 * p)); P.I('v_lshlrev_b32_e32 v5, 1, v5')
    P.I('v_xor_b32_e32 v5, v5, v3'); P.I('v_lshlrev_b32_e32 v%d, 4, v5' % dst)

def retag(P, start, old, new):
    for ins in P.ins[start:]:
        if ins.tag == old: ins.tag = new
        if ins.wait and ins.wait[1] == old: ins.wait = (ins.wait[0], new)

def oproj_phase(P, E, R):
    nq = R.nq
    P.I('s_waitcnt vmcnt(0) lgkmcnt(0)')
    P.I('s_barrier')
    lane_ids(P)
    if nq == 2:
        P.I('s_mul_i32 s%d, s%d, %d' % (sW4096, sWAVE, OGA * 4096)); P.I('s_mul_i32 s7, s%d, %d' % (sWAVE, OGA * 20480))
    else:
        P.I('s_mov_b32 s%d, 0' % sW4096); P.I('s_mov_b32 s7, 0')
    P.I('v_mul_u32_u24_e32 v11, 1280, v4')
    for i in range(4):
        swz8(P, 12, i & 1)
        P.I('v_add3_u32 v12, v12, v11, s7'); P.I('v_add_u32_e32 v%d, %d, v12' % (OD + i, i * (5120 - 1024)))
    P.I('s_mov_b32 s%d, s82' % sW); P.I('s_mov_b32 s%d, s83' % (sW + 1))
    P.I('s_mov_b32 s%d, 655360' % (sW + 2)); P.I('s_mov_b32 s%d, 0x20000' % (sW + 3))
    P.I('s_mov_b32 s%d, 0' % sWo)
    for n in range(4):
        P.I('s_add_u32 s%d, s%d, %d' % (sWrK, sW4096, n * OSLOT))
        for o in odma('ld_O%d' % n, 163840 if n != 3 else 256 - 3 * 163840, R): E.emit_op(o)
        if n == OFIRST: P.wait_vm('ld_O0'); P.I('s_barrier')
    P.I('s_mov_b32 s%d, %d' % (sSlot, OSLOT)); P.I('s_mov_b32 s%d, %d' % (sWrap, (-(ONSLOT - 1) * OSLOT) & 0xffffffff))
    E.ring_total = ONSLOT * OSLOT
    va_regs(P, 0)
    P.I('s_lshl_b32 s7, s%d, 11' % sWAVE)
    P.I('v_lshlrev_b32_e32 v11, 4, v0'); P.I('v_add_u32_e32 v%d, s7, v11' % OST)
    P.I('s_mov_b32 s%d, %d' % (sOo, (-4 * 7 * 1024) & 0xffffffff)); P.I('s_mov_b32 s%d, 0' % sNg); P.I('s_mov_b32 s%d, 0' % sRd)
    P.I('s_add_u32 s%d, s%d, %d' % (sWrK, sW4096, 4 * OSLOT))
    P.wait_vm('ld_O0')
    P.I('s_barrier')
    E.addr_regs = list(range(VA, VA + 8))
    osteps = [make_O(hh, R) for hh in range(4)]
    o0 = make_O(0, R)
    n_pre = len(P.ins)
    for i in range(D_BAR): E.issue_reads(osteps[0].fr[i], set())
    first = [(osteps[0].fr[i].tag, osteps[0].fr[i].frag) for i in range(D_BAR)]
    for i in range(D_BAR):
        retag(P, n_pre, first[i][0], '%so0pre%d' % (R.name, i)); osteps[0].fr[i].tag = '%so0pre%d' % (R.name, i)
    n0 = len(P.ins)
    P.label(R.lab('ng'))
    upd = E.run(osteps, o0, D_BAR, set(), valu_O(R))
    for a in sorted(upd): P.I('v_add_u32_e32 v%d, s%d, v%d' % (a, sDelta, a))
    for i in range(D_BAR):
        assert o0.fr[i].frag == first[i][1], (o0.fr[i].frag, first[i][1])
        retag(P, n0, o0.fr[i].tag, '%so0pre%d' % (R.name, i))
    P.I('s_add_u32 s%d, s%d, 1' % (sNg, sNg))
    P.I('s_cmp_lt_u32 s%d, 5' % sNg)
    P.I('s_cbranch_scc1 %s' % R.lab('ng'))
    n1 = len(P.ins)
    final_stores(P, E, R)
    return n0, n1

def va_regs(P, base):
    P.I('v_lshrrev_b32_e32 v6, 2, v3'); P.I('v_and_b32_e32 v7, 3, v0')
    P.I('v_lshl_add_u32 v9, v4, 2, v6'); P.I('v_and_b32_e32 v8, 7, v9')
    P.I('v_lshlrev_b32_e32 v9, 8, v9'); P.I('v_lshl_add_u32 v9, v7, 3, v9')
    for t in range(8):
        P.I('v_xor_b32_e32 v11, %d, v8' % t)
        P.I('v_lshl_add_u32 v%d, v11, 5, v9' % (VA + t))

sS2 = 88; sSI = 89
def slow_path(P, R):
    S0, S1 = SB
    P.label(R.lab('slow'))
    P.I('s_nop 15'); P.I('s_nop 15')
    T0, T1 = S1 + 22, S1 + 23
    P.I('v_mbcnt_lo_u32_b32 v%d, -1, 0' % T0); P.I('v_mbcnt_hi_u32_b32 v%d, -1, v%d' % (T0, T0))
    P.I('v_and_b32_e32 v%d, 15, v%d' % (T1, T0)); P.I('v_lshrrev_b32_e32 v%d, 4, v%d' % (T0, T0))
    KO, VO, VO2, MX, TM = S1 + 16, S1 + 17, S1 + 18, S1 + 19, S1 + 20
    P.I('v_lshlrev_b32_e32 v%d, 8, v%d' % (KO, T1)); P.I('v_lshl_add_u32 v%d, v%d, 4, v%d' % (KO, T0, KO))
    P.I('v_lshlrev_b32_e32 v%d, 10, v%d' % (VO, T0)); P.I('v_lshl_add_u32 v%d, v%d, 1, v%d' % (VO, T1, VO))
    P.I('v_add_u32_e32 v%d, 0x1000, v%d' % (VO2, VO))
    P.I('s_lshl_b32 s%d, s%d, 17' % (sHb, sHead))
    def s_tile(u, dst):
        for ks in range(4):
            P.I('buffer_load_dwordx4 %s, v%d, s[%d:%d], s%d offen offset:%d' % (vr(S0 + 4 * ks, 4), KO, sK, sK + 3, sS2, ks * 64))
        P.I('s_waitcnt vmcnt(0)')
        for ks in range(4):
            P.I('v_mfma_f32_16x16x32_bf16 %s, %s, %s, %s' % (vr(dst, 4), vr(S0 + 4 * ks, 4), vr(qf(u, ks), 4), '0' if ks == 0 else vr(dst, 4)))
        P.I('s_nop 15')
    for u in range(R.nq):
        P.I('v_mov_b32_e32 v%d, 0xff800000' % MX)
        P.I('s_mov_b32 s%d, 0' % sSI)
        P.label(R.lab('slow_max%d' % u))
        P.I('s_lshl_b32 s%d, s%d, 12' % (sS2, sSI)); P.I('s_add_u32 s%d, s%d, s%d' % (sS2, sS2, sHb))
        s_tile(u, S0 + 16)
        P.I('v_max3_f32 v%d, v%d, v%d, v%d' % (MX, MX, S0 + 16, S0 + 17)); P.I('v_max3_f32 v%d, v%d, v%d, v%d' % (MX, MX, S0 + 18, S0 + 19))
        P.I('s_add_u32 s%d, s%d, 1' % (sSI, sSI)); P.I('s_cmp_lt_u32 s%d, 32' % sSI); P.I('s_cbranch_scc1 %s' % R.lab('slow_max%d' % u))
        lane_reduce(P, MX, TM, 'v_max_f32_e32')
        P.I('v_mov_b32_e32 v%d, 0' % lt(u))
        for r in range(32): P.I('v_mov_b32_e32 v%d, 0' % (oa(u, 0) + r))
        P.I('s_mov_b32 s%d, 0' % sSI)
        P.label(R.lab('slow_pv%d' % u))
        P.I('s_lshl_b32 s%d, s%d, 13' % (sS2, sSI)); P.I('s_add_u32 s%d, s%d, s%d' % (sS2, sS2, sHb))
        s_tile(u, S0 + 16)
        P.I('s_add_u32 s%d, s%d, 4096' % (sS2, sS2))
        s_tile(u, S0 + 20)
        P.I('s_sub_u32 s%d, s%d, 4096' % (sS2, sS2))
        for r in range(8): P.I('v_sub_f32_e32 v%d, v%d, v%d' % (S0 + 16 + r, S0 + 16 + r, MX))
        for r in range(8): P.I('v_exp_f32_e32 v%d, v%d' % (S0 + 16 + r, S0 + 16 + r))
        P.I('s_nop 0')
        for r in range(8): P.I('v_add_f32_e32 v%d, v%d, v%d' % (lt(u), lt(u), S0 + 16 + r))
        for j in range(4): P.I('v_cvt_pk_bf16_f32 v%d, v%d, v%d' % (S0 + 24 + j, S0 + 16 + 2 * j, S0 + 17 + 2 * j))
        for t in range(8):
            for i in range(8):
                P.I('buffer_load_ushort v%d, v%d, s[%d:%d], s%d offen offset:%d' % (S1 + i, VO if i < 4 else VO2, sV, sV + 3, sS2, (i & 3) * 256 + t * 32))
            P.I('s_waitcnt vmcnt(0)')
            for j in range(4): P.I('v_lshl_or_b32 v%d, v%d, 16, v%d' % (S1 + 8 + j, S1 + 2 * j + 1, S1 + 2 * j))
            P.I('s_nop 1')
            P.I('v_mfma_f32_16x16x32_bf16 %s, %s, %s, %s' % (vr(oa(u, t), 4), vr(S1 + 8, 4), vr(S0 + 24, 4), vr(oa(u, t), 4)))
            P.I('s_nop 7')
        P.I('s_add_u32 s%d, s%d, 1' % (sSI, sSI)); P.I('s_cmp_lt_u32 s%d, 16' % sSI); P.I('s_cbranch_scc1 %s' % R.lab('slow_pv%d' % u))
        lane_reduce(P, lt(u), TM, 'v_add_f32_e32')
    for u in range(R.nq):
        for s in range(2):
            for j in range(4): P.I('v_mov_b32_e32 v%d, 0' % (preg(1, u, s) + j))
    P.I('s_nop 15')
    P.I('s_cmp_eq_u32 s%d, 0' % sRet)
    P.I('s_cbranch_scc1 %s' % R.lab('slow_ret0'))
    P.I('s_branch %s' % R.lab('slow_ret1'))

def role_code(P, R):
    nq = R.nq
    start = len(P.ins)
    P.label(R.lab('start'))
    E = Emitter(P, R)
    for o in dma_x(0, nq): E.emit_op(o)
    if nq == 1:
        for i in range(4):
            swz8(P, 12, i & 1)
            P.I('v_lshl_add_u32 v12, v4, 13, v12'); P.I('v_add_u32_e32 v%d, %d, v12' % (WD + i, i * (32768 - 1024)))
        for o in dma_Warea(nm('P', 0), 0, sWc, SLOT_C(0)): E.emit_op(o)
    for ks in range(4):
        P.I('v_add_u32_e32 v5, %d, v4' % (4 * ks)); P.I('v_xor_b32_e32 v5, v5, v3'); P.I('v_lshlrev_b32_e32 v5, 4, v5')
        P.I('v_lshl_add_u32 v%d, v3, 8, v5' % (KA + ks))
    va_regs(P, 0)
    for kq in range(4):
        for e in range(2):
            P.I('v_lshrrev_b32_e32 v5, 1, v4'); P.I('v_add_u32_e32 v5, %d, v5' % (4 * kq + 2 * e))
            P.I('v_xor_b32_e32 v5, v5, v3'); P.I('v_lshlrev_b32_e32 v5, 4, v5')
            P.I('v_lshl_add_u32 v5, v3, 8, v5'); P.I('v_and_b32_e32 v11, 1, v4'); P.I('v_lshl_add_u32 v5, v11, 3, v5')
            P.I('v_add_u32_e32 v%d, s70, v5' % (XR + 2 * kq + e))
            P.I('v_add_u32_e32 v%d, %d, v%d' % (XR2 + 2 * kq + e, 2 * SLOT, XR + 2 * kq + e))
    for j in range(4):
        P.I('v_add_u32_e32 v5, %d, v4' % (4 * j)); P.I('v_xor_b32_e32 v5, v5, v3'); P.I('v_lshlrev_b32_e32 v5, 4, v5')
        P.I('v_lshl_add_u32 v5, v4, 8, v5'); P.I('v_add_u32_e32 v%d, s%d, v5' % (KD + j, sW4096))
    for p in range(2):
        swz8(P, 12, p)
        P.I('v_lshl_add_u32 v12, v4, 8, v12'); P.I('v_add_u32_e32 v%d, s%d, v12' % (VD + p, sW4096))
    for j in range(4): P.I('v_mov_b32_e32 v%d, 0x3f803f80' % (ONES + j))
    for o in read_x(0, nq): E.emit_op(o)
    P.wait_vm(nm('P', 0))
    P.I('s_barrier')
    if STAMP: P.I('s_waitcnt lgkmcnt(0)'); stamp(P, 2)
    psteps = [make_P(g, R) for g in range(8)]
    gsteps = [make_G(g, R) for g in range(8)]
    for i in range(D_BAR): E.issue_reads(psteps[0].fr[i], set())
    g0 = make_G(0, R)
    n_pre = len(P.ins)
    upd = E.run(psteps, g0, D_BAR, set(), valu_P(psteps, R))
    for i in range(D_BAR):
        gsteps[0].fr[i].frag = g0.fr[i].frag; gsteps[0].fr[i].tag = '%sg0pre%d' % (R.name, i)
        retag(P, n_pre, g0.fr[i].tag, '%sg0pre%d' % (R.name, i))
    if STAMP: P.I('s_waitcnt lgkmcnt(0)'); stamp(P, 56, True); stamp(P, 57)
    pro_end = len(P.ins)
    P.label(R.lab('head'))
    vq = valu_G(gsteps, R)
    g6 = make_G(6, R)
    upd6, vp = E.run(gsteps[:6], g6, D_BAR, set(upd), vq, allow_left=True)
    off6 = sum(len(s_.fr) for s_ in gsteps[:6])
    lsteps = [make_GL(6, R), make_GL(7, R)]
    for i in range(D_BAR):
        retag(P, pro_end, g6.fr[i].tag, '%sg6pre%d' % (R.name, i))
        for st_ in (gsteps[6], lsteps[0]):
            st_.fr[i].frag = g6.fr[i].frag; st_.fr[i].tag = '%sg6pre%d' % (R.name, i)
    fr6 = E.fr
    P.I('s_cmp_eq_u32 s%d, 3' % sHead)
    P.I('s_cbranch_scc1 %s' % R.lab('last'))
    p1_end = len(P.ins)
    g0n = make_G(0, R)
    upd2 = E.run(gsteps[6:], g0n, D_BAR, set(upd6), shift_q(vq[vp:], off6))
    assert upd2 == upd, (upd2, upd)
    for i in range(D_BAR):
        assert g0n.fr[i].frag == g0.fr[i].frag, (g0n.fr[i].frag, g0.fr[i].frag)
        retag(P, p1_end, g0n.fr[i].tag, '%sg0pre%d' % (R.name, i))
    P.I('s_add_u32 s%d, s%d, 1' % (sHead, sHead))
    P.I('s_branch %s' % R.lab('head'))
    p2_end = len(P.ins)
    P.label(R.lab('last'))
    E.fr = fr6
    vql = valu_G(gsteps[:6] + lsteps, R, last=True)
    for a_, b_ in zip(vq[:vp], vql[:vp]): assert a_[0] == b_[0] or callable(a_[0]), (a_[0], b_[0])
    osteps = [make_O(hh, R) for hh in range(4)]
    o0 = make_O(0, R); o0.ring_total = ONSLOT * OSLOT
    updo = E.run(lsteps, o0, D_BAR, set(upd6), shift_q(vql[vp:], off6))
    for a in sorted(updo): P.I('v_add_u32_e32 v%d, s%d, v%d' % (a, sDelta, a))
    for i in range(D_BAR):
        retag(P, p2_end, o0.fr[i].tag, '%so0pre%d' % (R.name, i))
        osteps[0].fr[i].frag = o0.fr[i].frag; osteps[0].fr[i].tag = '%so0pre%d' % (R.name, i)
    if STAMP: P.I('s_waitcnt lgkmcnt(0)'); stamp(P, 58, True); stamp(P, 59)
    body_end = len(P.ins)
    on0 = len(P.ins)
    P.label(R.lab('ng'))
    o0n = make_O(0, R)
    updn = E.run(osteps, o0n, D_BAR, set(), valu_O(R))
    for a in sorted(updn): P.I('v_add_u32_e32 v%d, s%d, v%d' % (a, sDelta, a))
    for i in range(D_BAR):
        assert o0n.fr[i].frag == o0.fr[i].frag, (o0n.fr[i].frag, o0.fr[i].frag)
        retag(P, on0, o0n.fr[i].tag, '%so0pre%d' % (R.name, i))
    P.I('s_add_u32 s%d, s%d, 1' % (sNg, sNg))
    P.I('s_cmp_lt_u32 s%d, 5' % sNg)
    P.I('s_cbranch_scc1 %s' % R.lab('ng'))
    on1 = len(P.ins)
    final_stores(P, E, R)
    P.I('s_waitcnt vmcnt(0) lgkmcnt(0)')
    if STAMP:
        stamp(P, 60, True); stamp(P, 61)
        P.I('v_writelane_b32 v%d, s78, 1' % T4); P.I('v_writelane_b32 v%d, s76, 0' % T4)
        P.I('s_lshl_b32 s72, s2, 2'); P.I('s_add_u32 s72, s72, s%d' % sWAVE); P.I('s_lshl_b32 s72, s72, 8')
        P.I('s_add_u32 s72, s72, 0x4000000')
        P.I('s_add_u32 s68, s68, s72'); P.I('s_addc_u32 s69, s69, 0')
        P.I('v_mbcnt_lo_u32_b32 v0, -1, 0'); P.I('v_mbcnt_hi_u32_b32 v0, -1, v0'); P.I('v_lshlrev_b32_e32 v0, 2, v0')
        P.I('global_store_dword v0, v%d, s[68:69]' % T4)
        P.I('s_waitcnt vmcnt(0)')
    P.I('s_endpgm')
    slow_path(P, R)
    end = len(P.ins)
    I = P.ins
    marks = [I[start], I[pro_end], I[p1_end], I[p2_end], I[on0], I[on1]]
    return dict(marks=marks)

def dyn_seq(parts):
    pro, p1, p2, lastp, ng = parts
    return pro + (p1 + p2) * 2 + p1 + lastp + ng * 3

BALANCE = 1
def split_parts(P, info):
    pos = [next(k for k, i in enumerate(P.ins) if i is m) for m in info['marks']]
    return pos, [P.ins[pos[n]:pos[n + 1]] for n in range(5)]

def rebalance(P, info):
    pos, parts = split_parts(P, info)
    firsts = [P.ins[p] for p in pos]
    out = []
    for seg in parts:
        seg2, moved = balance_gaps(seg)
        out.append(seg2)
    P.ins[pos[0]:pos[5]] = sum(out, [])
    n = pos[0]; marks = []
    for seg in out:
        marks.append(P.ins[n]); n += len(seg)
    marks.append(P.ins[n])
    info['marks'] = marks

def gen_k16(name='attn_kernel'):
    P = Prog()
    P.I('s_cmp_ge_u32 s2, 256')
    P.I('s_cbranch_scc1 L_end')
    P.I('s_load_dwordx8 s[52:59], s[0:1], 0')
    P.I('s_load_dwordx8 s[60:67], s[0:1], 40')
    P.I('s_load_dwordx2 s[68:69], s[0:1], 96')
    P.I('s_load_dwordx2 s[82:83], s[0:1], 32')
    P.I('s_load_dwordx2 s[84:85], s[0:1], 72')
    if STAMP:
        P.I('s_memtime s[76:77]'); P.I('s_memrealtime s[78:79]'); P.I('s_mov_b32 s74, 4')
    P.I('v_lshrrev_b32_e32 v1, 6, v0')
    P.I('v_and_b32_e32 v0, 63, v0')
    P.I('s_and_b32 s3, s2, 7')
    P.I('v_readfirstlane_b32 s%d, v1' % sWAVE)
    P.I('s_lshr_b32 s4, s2, 3'); P.I('s_lshr_b32 s5, s3, 2')
    P.I('s_and_b32 s6, s3, 3'); P.I('s_lshl_b32 s6, s6, 1'); P.I('s_and_b32 s7, s4, 1'); P.I('s_add_u32 s6, s6, s7')
    P.I('s_lshr_b32 s4, s4, 1')
    P.I('v_and_b32_e32 v3, 15, v0'); P.I('v_lshrrev_b32_e32 v4, 4, v0')
    P.I('s_lshl_b32 s70, s%d, 13' % sWAVE)
    P.I('s_mul_i32 s71, s%d, %d' % (sWAVE, 32 * 1280))
    P.I('v_mul_u32_u24_e32 v11, 1280, v4')
    for jj in range(4):
        P.I('v_add_u32_e32 v5, %d, v4' % (4 * jj)); P.I('v_xor_b32_e32 v5, v5, v3'); P.I('v_lshlrev_b32_e32 v5, 4, v5')
        P.I('v_add3_u32 v%d, v5, v11, s71' % (XV + jj))
    P.I('s_waitcnt lgkmcnt(0)')
    P.I('s_cmp_eq_u32 s5, 0')
    for i in range(8): P.I('s_cselect_b32 s%d, s%d, s%d' % (52 + i, 52 + i, 60 + i))
    P.I('s_cselect_b32 s82, s82, s84'); P.I('s_cselect_b32 s83, s83, s85')
    P.I('s_mul_i32 s7, s4, 143360')
    P.I('s_add_u32 s%d, s52, s7' % sX); P.I('s_addc_u32 s%d, s53, 0' % (sX + 1))
    P.I('s_mov_b32 s%d, 143360' % (sX + 2)); P.I('s_mov_b32 s%d, 0x20000' % (sX + 3))
    P.I('s_lshl_b32 s86, s6, 2')
    P.I('s_lshl_b32 s71, s86, 8')
    P.I('s_add_u32 s%d, s58, s71' % sW); P.I('s_addc_u32 s%d, s59, 0' % (sW + 1))
    P.I('s_sub_u32 s%d, 5242880, s71' % (sW + 2)); P.I('s_mov_b32 s%d, 0x20000' % (sW + 3))
    P.I('s_mov_b32 s%d, 0' % sWc); P.I('s_mov_b32 s%d, 256' % sWn)
    P.I('s_lshl_b32 s7, s4, 5'); P.I('s_add_u32 s7, s7, s86'); P.I('s_lshl_b32 s71, s7, 17')
    P.I('s_add_u32 s%d, s54, s71' % sK); P.I('s_addc_u32 s%d, s55, 0' % (sK + 1))
    P.I('s_mov_b32 s%d, 524288' % (sK + 2)); P.I('s_mov_b32 s%d, 0x20000' % (sK + 3))
    P.I('s_add_u32 s%d, s56, s71' % sV); P.I('s_addc_u32 s%d, s57, 0' % (sV + 1))
    P.I('s_mov_b32 s%d, 524288' % (sV + 2)); P.I('s_mov_b32 s%d, 0x20000' % (sV + 3))
    P.I('s_mul_i32 s71, s86, 163840')
    P.I('s_add_u32 s82, s82, s71'); P.I('s_addc_u32 s83, s83, 0')
    P.I('s_lshl_b32 s71, s5, 4'); P.I('s_add_u32 s71, s71, s4'); P.I('s_lshl_b32 s71, s71, 3'); P.I('s_add_u32 s71, s71, s6')
    P.I('s_mul_i32 s71, s71, %d' % PART)
    if WSOFF: P.I('s_add_u32 s71, s71, %d' % WSOFF)
    P.I('s_add_u32 s%d, s68, s71' % sO); P.I('s_addc_u32 s%d, s69, 0' % (sO + 1))
    P.I('s_mov_b32 s%d, %d' % (sO + 2, PART)); P.I('s_mov_b32 s%d, 0x20000' % (sO + 3))
    if KVA == 1: P.I('s_lshl_b32 s%d, s%d, 12' % (sW4096, sWAVE))
    else: P.I('s_mov_b32 s%d, 0' % sW4096)
    P.I('s_mov_b32 s%d, %d' % (sSlot, SLOT)); P.I('s_mov_b32 s%d, %d' % (sWrap, (-2 * SLOT) & 0xffffffff))
    P.I('s_mov_b32 s%d, 0x%x' % (sC, QSCALE))
    P.I('s_mov_b32 s%d, 0' % sHead); P.I('s_mov_b32 s%d, 0' % sRd)
    P.I('s_mov_b32 s%d, %d' % (sKo, 3 * 16384)); P.I('s_mov_b32 s%d, %d' % (sVo, 2 * 16384))
    P.I('s_cmp_eq_u32 s%d, 3' % sWAVE)
    P.I('s_cbranch_scc0 L_A_start')
    P.I('s_branch L_B_start')
    head = list(P.ins)
    RA, RB = Role('A', 2), Role('B', 1)
    a = role_code(P, RA)
    b = role_code(P, RB)
    if BALANCE:
        for info in (a, b): rebalance(P, info)
    P.label('L_end')
    P.I('s_endpgm')
    for info in (a, b):
        pos, parts = split_parts(P, info)
        info['tail'] = P.ins[pos[5]:pos[5] + 40]
        resolve_waits(head + dyn_seq(parts))
    drop_optional(P)
    P.pad()
    bad = 0
    def at(lab): return [k for k, i in enumerate(P.ins) if i.label == lab][0]
    for R in (RA, RB):
        h, l, n_ = at(R.lab('head')), at(R.lab('last')), at(R.lab('ng'))
        br_last = [k for k, i in enumerate(P.ins) if i.op == 's_cbranch_scc1' and i.text.endswith(R.lab('last'))][0]
        br_ng = [k for k, i in enumerate(P.ins) if i.op == 's_cbranch_scc1' and i.text.endswith(R.lab('ng'))][0]
        I = P.ins
        bad += check_hazards(I[h - 60:l], name)
        bad += check_hazards(I[l - 60:l] + I[h:h + 80], name)
        bad += check_hazards(I[br_last - 60:br_last + 1] + I[l:br_ng + 1], name)
        bad += check_hazards(I[br_ng - 60:br_ng + 1] + I[n_:n_ + 80], name)
    assert bad == 0
    return P

if __name__ == '__main__':
    print(gen_k16().text())
```

```python
from asmlib import *
import struct, math

SLOT = 53248
KOFF, VOFF, WOFF = 0, 16384, 32768
XBASE = 3 * SLOT
NSLOT = 3
LDS_BYTES = 163840
PART = 143360

QACC = 0; OACC = 64; SB = (128, 160); Q = 192
KA = 224; VA = 228; KD = 236; VD = 240; ONES = 242; LS = 246
T2 = 254; T4 = 255
WD = 32
OST = KA; OD = KD
def lt(u): return LS + 4 * u
XR = 128; XR2 = 136; XV = 144
XA = 0; POOL = 160; NPOOL = 8
STASH = [192, 224, 0, 32]
sK = 8; sV = 12; sW = 16; sO = 20; sX = 24
sWAVE = 28; sKo = 29; sVo = 30; sWc = 31; sRd = 32; sDelta = 33; sWrK = 34; sHead = 35
sT = 36; sT2 = 37; sW4096 = 38; sXc = 39; sOo = 40; sC = 41; sSlot = 42; sWrap = 43
sRet = 87; sM = 44; sHb = 48; sI = 49; sWr = 50; sNg = 51; sWn = 46; sWo = 47
QSCALE = struct.unpack('<I', struct.pack('<f', math.log2(math.e) / math.sqrt(128.0)))[0]

STAMP = False
EXP = {}
D_AHEAD = 6
D_BAR = 3
WAITW = 4
SPLITR = 0; LEAD = 0
CAP1 = 8; CAP2 = 24; LATE = 16
BUDGET_A = 12
BUDGET_B = 26
KVPOL = 'nt'; WPOL = ''; XPOL = 'nt'; OPOL = ''; PSTPOL = 'sc0 sc1'
ODMA_A = 6
WSOFF = 0

def vr(b, n): return 'v[%d:%d]' % (b, b + n - 1)
def ar(b, n): return 'a[%d:%d]' % (b, b + n - 1)
def qa(u, t): return QACC + (u * 8 + t) * 4
def oa(u, t): return OACC + (u * 8 + t) * 4
def sreg(buf, u, kt): return SB[buf] + (u * 2 + (kt >> 1)) * 8 + (kt & 1) * 4
def preg(buf, u, s): return SB[buf] + (u * 2 + s) * 8
def qf(u, ks): return Q + (u * 4 + ks) * 4
def xf(kk, u): return XA + (kk * 2 + u) * 4

class F:
    def __init__(self, reads, mfmas):
        self.reads = reads
        self.mfmas = mfmas

def tr(e, addr, imm): return ('ds_read_b64_tr_b16', 2 * e, 2, addr, imm)

def fr_S(buf, nq):
    out = []
    for kt in range(4):
        for ks in range(4):
            out.append(F([('ds_read_b128', 0, 4, KA + ks, KOFF + kt * 4096)],
                         [(vr(sreg(buf, u, kt), 4), vr(qf(u, ks), 4), ks == 0) for u in range(nq)]))
    return out

def q_ksteps(g):
    a = g >> 1
    if g % 2 == 0: return [(5 * a, 0, 1), (5 * a + 1, 2, 3)]
    return [(5 * a + 2, 'X', 0), (5 * a + 3, 1, 2), (5 * a + 4, 3, 4)]

def fr_Q(g, nq, tmajor=False):
    ks = q_ksteps(g)
    order = [(k, t) for t in range(8) for k in ks] if tmajor else [(k, t) for k in ks for t in range(8)]
    out = []
    for ((kk, b0, b1), t) in order:
        reads = []
        for e, b in enumerate((b0, b1)):
            if b == 'X': reads.append(tr(e, ('X', VA + t), 0))
            else: reads.append(tr(e, VA + t, WOFF + b * 4096))
        out.append(F(reads, [(vr(qa(u, t), 4), ar(xf(kk, u), 4), kk == 0) for u in range(nq)]))
    return out

def fr_PV(g, nq, tmajor=False):
    buf = g & 1
    order = [(s, t) for t in range(8) for s in range(2)] if tmajor else [(s, t) for s in range(2) for t in range(8)]
    return [F([tr(e, VA + t, VOFF + (2 * s + e) * 4096) for e in range(2)],
              [(vr(oa(u, t), 4), vr(preg(buf, u, s), 4), g == 0 and s == 0) for u in range(nq)]) for (s, t) in order]

def fr_O(hh, nq):
    order = [(s, t) for t in range(8) for s in range(4)] if hh in (0, 3) else [(s, t) for s in range(4) for t in range(8)]
    return [F([tr(e, VA + t, (2 * s + e) * 4096) for e in range(2)],
              [(vr(qa(u, t), 4), ar(STASH[hh] + (u * 4 + s) * 4, 4), hh == 0 and s == 0) for u in range(nq)]) for (s, t) in order]

def softmax_chunk(buf, u, s, first):
    b = preg(buf, u, s)
    e = ['v_exp_f32_e32 v%d, v%d' % (b + i, b + i) for i in range(8)]
    c = ['v_cvt_pk_bf16_f32 v%d, v%d, v%d' % (b + j, b + 2 * j, b + 2 * j + 1) for j in range(4)]
    m = 'v_mfma_f32_16x16x32_bf16 %s, %s, %s, %s' % (vr(lt(u), 4), vr(ONES, 4), vr(b, 4), '0' if first else vr(lt(u), 4))
    return e[:4] + [c[0]] + e[4:6] + [c[1]] + e[6:] + [c[2], c[3]], m

def swaps(pairs):
    return ['v_permlane32_swap_b32_e32 v%d, v%d' % p for p in pairs] + ['v_permlane16_swap_b32_e32 v%d, v%d' % p for p in pairs]

def qconv(ks, nq):
    ops = []
    for u in range(nq):
        for t in (2 * ks, 2 * ks + 1):
            for r in range(4): ops.append('v_mul_f32_e32 v%d, s%d, v%d' % (qa(u, t) + r, sC, qa(u, t) + r))
    for u in range(nq):
        for t in range(2):
            for j in range(2):
                r = qa(u, 2 * ks + t) + 2 * j
                ops.append('v_cvt_pk_bf16_f32 v%d, v%d, v%d' % (qf(u, ks) + 2 * t + j, r, r + 1))
    ops += swaps([(qf(u, ks) + j, qf(u, ks) + 2 + j) for u in range(nq) for j in range(2)])
    return ops

def ofin(s, nq):
    ops = []
    for u in range(nq):
        b = oa(u, 2 * s)
        for r in range(8): ops.append('v_mul_f32_e32 v%d, v%d, v%d' % (b + r, lt(u), b + r))
        for j in range(4): ops.append('v_cvt_pk_bf16_f32 v%d, v%d, v%d' % (b + j, b + 2 * j, b + 2 * j + 1))
    return ops

class Role:
    def __init__(self, name, nq):
        self.name = name; self.nq = nq
        self.budget = BUDGET_A if nq == 2 else BUDGET_B
    def lab(self, s): return 'L_%s_%s' % (self.name, s)

def mk_stash(R):
    def f(P):
        for h in range(2):
            P.I('s_cmp_eq_u32 s%d, %d' % (sHead, h)); P.I('s_cbranch_scc1 %s' % R.lab('st%d' % h))
        for h in (2, 0, 1):
            if h != 2: P.label(R.lab('st%d' % h))
            for u in range(R.nq):
                for s in range(4):
                    for j in range(4): P.I('v_accvgpr_write_b32 a%d, v%d' % (STASH[h] + (u * 4 + s) * 4 + j, oa(u, 2 * s) + j))
            if h != 1: P.I('s_branch %s' % R.lab('st_done'))
        P.label(R.lab('st_done'))
    return f

def lane_reduce(P, reg, tmp, op):
    P.I('v_mov_b32_e32 v%d, v%d' % (tmp, reg))
    P.I('v_permlane32_swap_b32_e32 v%d, v%d' % (reg, tmp))
    P.I('%s v%d, v%d, v%d' % (op, reg, reg, tmp))
    P.I('v_mov_b32_e32 v%d, v%d' % (tmp, reg))
    P.I('v_permlane16_swap_b32_e32 v%d, v%d' % (reg, tmp))
    P.I('%s v%d, v%d, v%d' % (op, reg, reg, tmp))

def mk_check(R, site=0):
    def f(P):
        P.I('s_mov_b64 s[%d:%d], -1' % (sM, sM + 1))
        for u in range(R.nq):
            P.I('v_cmp_le_f32_e32 vcc, 0x33800000, v%d' % lt(u))
            P.I('s_and_b64 s[%d:%d], s[%d:%d], vcc' % (sM, sM + 1, sM, sM + 1))
            P.I('v_cmp_ge_f32_e32 vcc, 0x4b800000, v%d' % lt(u))
            P.I('s_and_b64 s[%d:%d], s[%d:%d], vcc' % (sM, sM + 1, sM, sM + 1))
        P.I('s_cmp_eq_u64 s[%d:%d], -1' % (sM, sM + 1))
        if not (EXP.get('nohook') or EXP.get('dropm') or EXP.get('nosm') or EXP.get('nokv') or EXP.get('nord')):
            P.I('s_cbranch_scc1 %s' % R.lab('fast_ok%d' % site))
            P.I('s_mov_b32 s%d, %d' % (sRet, site))
            P.I('s_branch %s' % R.lab('slow'))
        P.label(R.lab('slow_ret%d' % site))
        P.label(R.lab('fast_ok%d' % site))
        for u in range(R.nq): P.I('v_rcp_f32_e32 v%d, v%d' % (lt(u), lt(u)))
    return f

def dma(v, srd, soff, imm, pol, tag):
    return ('buffer_load_dwordx4 v%d, s[%d:%d], s%d offen offset:%d %s lds' % (v, srd, srd + 3, soff, imm, pol), tag)

OTOUCH = 1; OTPOL = ''
TOUCH = 0
KVA = 1
def kv_groups(R):
    if KVA == 1: return [0]
    return [] if R.nq == 2 else [0, 1, 2, 3]

def dma_K(tag, R, wr=sWrK, soff=sKo, adv=True):
    ops = []
    for G in kv_groups(R):
        ops.append('s_add_u32 m0, s%d, %d' % (wr, G * 4096))
        if G: ops.append('s_add_u32 s%d, s%d, %d' % (sT2, soff, G * 4096))
        ops += [dma(KD + j, sK, sT2 if G else soff, j * 1024, KVPOL, tag) for j in range(4)]
    if adv and ops: ops.append('s_add_u32 s%d, s%d, 16384' % (sKo, sKo))
    return ops

def dma_V(tag, R, wr=sWrK, soff=sVo, adv=True):
    ops = []
    for G in kv_groups(R):
        ops.append('s_add_u32 m0, s%d, %d' % (wr, VOFF + G * 4096))
        if G: ops.append('s_add_u32 s%d, s%d, %d' % (sT2, soff, G * 4096))
        ops += [dma(VD + (j & 1), sV, sT2 if G else soff, j * 1024, KVPOL, tag) for j in range(4)]
    if adv and ops: ops.append('s_add_u32 s%d, s%d, 16384' % (sVo, sVo))
    return ops

def dma_Wrows(tag, row0, nrows, hreg, dest):
    ops = []
    for G in range(nrows // 16):
        if isinstance(dest, tuple) and len(dest) > 2:
            ops.append(atomic(['s_add_u32 s%d, s%d, %d' % (sT, dest[1], WOFF + G * 4096), 's_cmp_eq_u32 s%d, 3' % sHead, 's_cselect_b32 m0, %d, s%d' % (XBASE, sT)]))
        elif isinstance(dest, tuple): ops.append('s_add_u32 m0, s%d, %d' % (dest[1], WOFF + G * 4096))
        else: ops.append('s_mov_b32 m0, %d' % (dest + G * 4096))
        ops.append('s_add_u32 s%d, s%d, %d' % (sT2, hreg, (row0 + 16 * G) * 8192))
        for i in range(4): ops.append(dma(WD + i, sW, sT2, i * 1024, WPOL, tag))
    return ops

def dma_Warea(tag, g, hreg, dest):
    a = g >> 1
    if g % 2 == 0: return dma_Wrows(tag, 160 * a, 64, hreg, dest)
    return dma_Wrows(tag, 160 * a + 80, 80, hreg, dest)
def dma_WX(tag, g, hreg):
    return dma_Wrows(tag, 160 * (g >> 1) + 64, 16, hreg, XBASE)

X_SLOT = [0, 1, 2, 0, 2]
def dma_x(kt, nq):
    ops = []
    for j in range(4 * nq):
        ops.append('s_add_u32 m0, s70, %d' % (X_SLOT[kt] * SLOT + j * 1024))
        ops.append('s_mov_b32 s7, %d' % (j * 5120 + kt * 256))
        ops.append(('buffer_load_dwordx4 v%d, s[%d:%d], s7 offen %s lds' % (XV + (j & 3), sX, sX + 3, XPOL), 'x%d' % kt))
    return ops

def read_x(kt, nq):
    ops = [('WAITVM', 'x%d' % kt)]
    for kq in range(4):
        for u in range(nq):
            for e in range(2):
                if X_SLOT[kt] == 2: a, off = XR2 + 2 * kq + e, 0
                else: a, off = XR + 2 * kq + e, X_SLOT[kt] * SLOT
                d = xf(4 * kt + kq, u) + 2 * e
                ops.append(('ds_read_b64 %s, v%d offset:%d' % (ar(d, 2), a, off + u * 4096), 'xr%d' % kt))
    return ops

def fixed_kv(slot, kind, off, tag, R):
    fn = dma_K if kind == 'K' else dma_V
    ops = fn(tag, R, wr=sT, soff=sI, adv=False)
    if not ops: return []
    return ['s_add_u32 s%d, s%d, %d' % (sT, sW4096, slot * SLOT), 's_mov_b32 s%d, %d' % (sI, off)] + ops

def ring_advance(total=NSLOT * SLOT):
    return ['s_mov_b32 s%d, s%d' % (sWr, sRd),
            's_add_u32 s%d, s%d, s%d' % (sWrK, sRd, sW4096),
            's_add_u32 s%d, s%d, s%d' % (sRd, sRd, sSlot),
            's_cmp_eq_u32 s%d, %d' % (sRd, total),
            's_cselect_b32 s%d, s%d, s%d' % (sDelta, sWrap, sSlot),
            's_cselect_b32 s%d, 0, s%d' % (sRd, sRd)]

def atomic(ops):
    def f(P):
        for o in ops: P.I(o)
    f.cost = 4 * len(ops)
    return f

def cost_of(op):
    if callable(op): return getattr(op, 'cost', 60)
    t = op[0] if isinstance(op, tuple) else op
    if t.startswith('v_mfma'): return 8
    if t.startswith('buffer_'): return 20
    if t.startswith('v_exp') or t.startswith('v_rcp'): return 8
    return 4

class Step:
    def __init__(self, name, fr, paced=None, fixed=None, usesX=False):
        self.name = name; self.fr = fr; self.paced = paced or []; self.fixed = fixed or {}; self.usesX = usesX

def stamp(P, lane, real=False):
    P.I('%s s[72:73]' % ('s_memrealtime' if real else 's_memtime')); P.I('s_waitcnt lgkmcnt(0)')
    if isinstance(lane, int): P.I('v_writelane_b32 v%d, s72, %d' % (T4, lane))
    else: P.I('s_mov_b32 m0, s74'); P.I('v_writelane_b32 v%d, s72, m0' % T4)

class Emitter:
    def __init__(self, P, R):
        self.P = P; self.R = R
        self.fr = 0; self.uid = 0; self.ring_total = NSLOT * SLOT
        self.addr_regs = list(range(KA, KA + 4)) + list(range(VA, VA + 8))
    def emit_op(self, op):
        if isinstance(op, tuple):
            if op[0] == 'WAITVM': self.P.wait_vm(op[1])
            elif op[0] == 'WAITLGKM': self.P.wait_lgkm(op[1])
            else: self.P.I(op[0], op[1])
        elif callable(op): op(self.P)
        else: self.P.I(op)
    def issue_reads(self, f, upd, part=None):
        P = self.P; c = 0
        if part in (None, 0):
            f.frag = POOL + 4 * (self.fr % NPOOL); self.fr += 1
            self.uid += 1; f.tag = '%sf%d' % (self.R.name, self.uid)
        reads = f.reads if part is None else (f.reads[:1] if part == 0 else f.reads[1:])
        for (op, off, n, addr, imm) in reads:
            isx = isinstance(addr, tuple)
            a = addr[1] if isx else addr
            if a in upd:
                P.I('v_add_u32_e32 v%d, s%d, v%d' % (a, sDelta, a)); upd.discard(a); c += 4
            if isx:
                P.I('v_add_u32_e32 v%d, s%d, v%d' % (T2, sXc, a)); c += 4; a = T2
            if EXP.get('nord') and self.uid % int(EXP['nord']) != 0 and self.uid > 300: continue
            P.I('%s %s, v%d offset:%d' % (op, ar(f.frag + off, n), a, imm), f.tag); c += 4
        return c
    def boundary(self, nxt):
        P = self.P
        P.wait_lgkm('ALL')
        st = STAMP and not EXP.get('lite') and ((nxt.name[0] == 'O') == bool(EXP.get('ostamp')))
        arr = bool(EXP.get('arr'))
        if st and arr: stamp(P, 'dyn', bool(EXP.get('rt'))); P.I('s_add_u32 s74, s74, 1')
        P.wait_vm('ld_' + nxt.name)
        P.I('s_barrier')
        if st and not arr: stamp(P, 'dyn', bool(EXP.get('rt'))); P.I('s_add_u32 s74, s74, 1')
        if getattr(nxt, 'ring_total', None): self.ring_total = nxt.ring_total
        if getattr(nxt, 'va_only', False): self.addr_regs = list(range(VA, VA + 8))
        for o in ring_advance(self.ring_total): P.I(o)
        if nxt.usesX: P.I('s_sub_u32 s%d, %d, s%d' % (sXc, XBASE, sRd))
        return set(self.addr_regs)
    def run(self, steps, nxt_after, pre_issued, upd, valu, allow_left=False):
        P = self.P; R = self.R
        allf = []
        for si, s in enumerate(steps):
            for i, f in enumerate(s.fr): allf.append((si, i, f))
        n = len(allf)
        seq = allf + [(len(steps), i, f) for i, f in enumerate(nxt_after.fr)]
        first_of = {}
        for k, (si, i, f) in enumerate(seq):
            if i == 0: first_of[si] = k
        nread = pre_issued; entered = 0
        vq = list(valu); vp = 0; ppos = 0
        jobcost = {}; jobdone = {}
        for it in vq:
            if len(it) > 3: jobcost[it[3]] = jobcost.get(it[3], 0) + cost_of(it[0])
        for k in range(n):
            si, i, f = allf[k]
            s = steps[si]
            if i == 0: ppos = 0
            used = 0
            tgt = k
            if i % WAITW == 0:
                for d in range(1, WAITW):
                    if k + d < n and allf[k + d][0] == si and k + d < nread: tgt = k + d
                used += 4
            P.wait_lgkm(seq[tgt][2].tag)
            for mi, (d, b, c0) in enumerate(f.mfmas):
                if not (EXP.get('dropm') and s.name[0] == 'G' and (k * 2 + mi) % int(EXP['dropm']) == 0):
                    P.I('v_mfma_f32_16x16x32_bf16 %s, %s, %s, %s' % (d, ar(f.frag, 4), b, '0' if c0 else d))
                lastm = mi == len(f.mfmas) - 1
                if lastm:
                    nf = len(s.fr); last = getattr(s, 'paced_end', nf - 2 - D_BAR)
                    for o in s.fixed.get(i, []):
                        used += cost_of(o); self.emit_op(o)
                    p0 = getattr(s, 'paced_start', 0)
                    if p0 <= i <= last:
                        want = len(s.paced) if i == last else int(math.ceil(len(s.paced) * (i - p0 + 1) / float(last - p0 + 1)))
                        while ppos < want:
                            used += cost_of(s.paced[ppos]); self.emit_op(s.paced[ppos]); ppos += 1
                    if si + 1 in first_of and k == first_of[si + 1] - 1 - D_BAR and entered == si:
                        assert ppos == len(s.paced), (s.name, ppos, len(s.paced))
                        for a in sorted(upd): P.I('v_add_u32_e32 v%d, s%d, v%d' % (a, sDelta, a)); used += 4
                        nx = steps[si + 1] if si + 1 < len(steps) else nxt_after
                        upd = self.boundary(nx); entered = si + 1; used += 40
                if mi == 0:
                    ready = []
                    while nread < len(seq) and nread <= k + D_AHEAD and seq[nread][0] <= entered and (seq[nread][0] < len(steps) or nread - n < D_BAR):
                        ready.append(seq[nread][2]); nread += 1
                    at_bar = si + 1 in first_of and k == first_of[si + 1] - 1 - D_BAR
                    half = None
                    if SPLITR and len(f.mfmas) == 2 and len(ready) == 1 and len(ready[0].reads) == 2 and not at_bar:
                        half = ready[0]; used += self.issue_reads(half, upd, 0)
                    else:
                        for r in ready: used += self.issue_reads(r, upd)
                elif half is not None:
                    used += self.issue_reads(half, upd, 1); half = None
                while vp < len(vq):
                    it = vq[vp]; c = cost_of(it[0])
                    go = lastm and it[2] <= k
                    if not go and it[1] <= k:
                        if len(it) > 3:
                            js, je = it[3]
                            pos = k + (mi + 1) / float(len(f.mfmas))
                            due = jobcost[it[3]] * min(1.0, max(0.0, (pos - js) / float(je - js))) - jobdone.get(it[3], 0)
                            go = (due > 0 and used + c <= CAP1) or (due > LATE and used + c <= CAP2) or (used < 8 and due > -LEAD)
                        else: go = used + c <= R.budget
                    if not go: break
                    used += c; self.emit_op(it[0]); vp += 1
                    if len(it) > 3: jobdone[it[3]] = jobdone.get(it[3], 0) + c
                used = 0
            while nread < len(seq) and nread <= k + D_AHEAD and seq[nread][0] <= entered and (seq[nread][0] < len(steps) or nread - n < D_BAR):
                self.issue_reads(seq[nread][2], upd); nread += 1
        if allow_left: return upd, vp
        assert vp == len(vq), (vp, len(vq))
        return upd

def nm(k, g): return 'ld_%s%d' % (k, g)

def make_P(g, R):
    nq = R.nq; B = nq == 1
    fr = fr_Q(g, nq, tmajor=(g == 7))
    paced = []; fixed = {}
    wr = ('slot', sWr)
    if g == 0:
        if B: paced += dma_WX(nm('P', 1), 1, sWc) + dma_Warea(nm('P', 1), 1, sWc, SLOT_C(1))
        paced += dma_x(1, nq)
        if B: paced += dma_Warea(nm('P', 2), 2, sWc, SLOT_C(2))
        paced += dma_x(2, nq)
    if g == 1: fixed[0] = read_x(1, nq)
    if B and 1 <= g <= 5: paced += dma_Warea(nm('P', g + 2), g + 2, sWc, wr)
    if B and g in (2, 4, 6): paced = dma_WX(nm('P', g + 1), g + 1, sWc) + paced
    if g == 1: paced += dma_x(3, nq)
    if g == 2: fixed[0] = read_x(2, nq); paced += [('WAITLGKM', 'xr2')] + dma_x(4, nq)
    if g == 3: paced += fixed_kv(1, 'K', 0, nm('P', 7), R); fixed[8] = read_x(3, nq)
    if g == 4: paced += fixed_kv(0, 'K', 2 * 16384, nm('G', 1), R) + fixed_kv(0, 'V', 16384, nm('G', 1), R); fixed[4] = read_x(4, nq)
    if g == 5: paced += fixed_kv(2, 'K', 16384, nm('G', 0), R) + fixed_kv(2, 'V', 0, nm('G', 0), R)
    if B and g == 6: paced += dma_Warea(nm('G', 0), 0, sWn, wr)
    if B and g == 7: paced += dma_Warea(nm('G', 1), 1, sWn, wr) + ['s_mov_b32 s%d, s%d' % (sWc, sWn), 's_add_u32 s%d, s%d, 256' % (sWn, sWn)]
    if g == 7: fr = fr + fr_S(0, nq)
    return Step('P%d' % g, fr, paced, fixed, usesX=(g % 2 == 1))

def SLOT_C(n): return n * SLOT + WOFF

def make_G(g, R):
    nq = R.nq; B = nq == 1
    tgt = nm('G', (g + 2) % 8)
    paced = []
    if B and g % 2 == 0: paced += dma_WX(nm('G', g + 1), g + 1, sWc)
    if B and g == 6:
        paced += [atomic(['s_cmp_ge_u32 s%d, 2' % sHead, 's_cselect_b32 s%d, 0, s%d' % (sW + 2, sW + 2)])]
    if not EXP.get('nokv'): paced += dma_K(tgt, R) + dma_V(tgt, R)
    if B and OTOUCH and g < 5:
        if g == 0: paced.append(atomic(['s_cmp_eq_u32 s%d, 3' % sHead, 's_cselect_b32 s94, 655360, 0']))
        paced.append('s_mov_b32 s%d, %d' % (sT, g * 8192))
        paced.append(('buffer_load_dword v41, v40, s[92:95], s%d offen %s' % (sT, OTPOL), 'touch'))
    if B: paced += dma_Warea(tgt, (g + 2) % 8, sWc if g + 2 < 8 else sWn, ('slot', sWr, 'redirect') if g == 5 else ('slot', sWr))
    if B and g == 7: paced += ['s_mov_b32 s%d, s%d' % (sWc, sWn), 's_add_u32 s%d, s%d, 256' % (sWn, sWn)]
    if g < 7: fr = fr_S((g + 1) & 1, nq) + fr_Q(g, nq) + fr_PV(g, nq)
    else: fr = fr_Q(7, nq, True) + fr_PV(7, nq, True) + fr_S(0, nq)
    return Step('G%d' % g, fr, paced, usesX=(g % 2 == 1))

def o_setup(R):
    def f(P):
        lane_ids(P)
        if R.nq == 2:
            P.I('s_mul_i32 s%d, s%d, %d' % (sW4096, sWAVE, OGA * 4096)); P.I('s_mul_i32 s7, s%d, %d' % (sWAVE, OGA * 20480))
        else:
            P.I('s_mov_b32 s%d, 0' % sW4096); P.I('s_mov_b32 s7, 0')
        P.I('v_mul_u32_u24_e32 v11, 1280, v4')
        for i in range(4):
            swz8(P, 12, i & 1)
            P.I('v_add3_u32 v12, v12, v11, s7'); P.I('v_add_u32_e32 v%d, %d, v12' % (OD + i, i * (5120 - 1024)))
        P.I('s_mov_b32 s%d, s82' % sW); P.I('s_mov_b32 s%d, s83' % (sW + 1))
        P.I('s_mov_b32 s%d, 655360' % (sW + 2)); P.I('s_mov_b32 s%d, 0x20000' % (sW + 3))
        P.I('s_mov_b32 s%d, 0' % sWo)
    f.cost = 140
    return f

def o_setup2(R):
    def f(P):
        P.I('v_mbcnt_lo_u32_b32 v0, -1, 0'); P.I('v_mbcnt_hi_u32_b32 v0, -1, v0')
        P.I('s_lshl_b32 s7, s%d, 11' % sWAVE)
        P.I('v_lshlrev_b32_e32 v11, 4, v0'); P.I('v_add_u32_e32 v%d, s7, v11' % OST)
        P.I('s_mov_b32 s%d, %d' % (sOo, (-4 * 7 * 1024) & 0xffffffff)); P.I('s_mov_b32 s%d, 0' % sNg)
        P.I('s_mov_b32 s%d, %d' % (sSlot, OSLOT)); P.I('s_mov_b32 s%d, %d' % (sWrap, (-(ONSLOT - 1) * OSLOT) & 0xffffffff))
    f.cost = 40
    return f

def make_GL(g, R):
    nq = R.nq
    paced = []
    for n in ((0, 1) if g == 6 else (2, 3)):
        paced.append('s_add_u32 s%d, s%d, %d' % (sWrK, sW4096, (n + 1) * OSLOT))
        paced += odma('ld_O%d' % n, 163840 if n != 3 else 256 - 3 * 163840, R)
    if g == 6:
        return Step('G6', fr_S(1, nq) + fr_PV(6, nq), paced, {0: [o_setup(R)]})
    st = Step('G7', fr_PV(7, nq, True), paced, {0: [o_setup2(R)]})
    st.paced_end = 9; st.va_only = True
    return st

def valu_P(steps, R):
    base7 = sum(len(s.fr) for s in steps[:7])
    q = []
    for ks in range(4):
        for o in qconv(ks, R.nq): q.append((o, base7 + 6 * ks + 5 + 2, base7 + 23))
    return q

def valu_G(steps, R, last=False):
    nq = R.nq
    base = [0]
    for s in steps: base.append(base[-1] + len(s.fr))
    q = []; pend = []
    for g in range(8):
        nqf = 16 if g % 2 == 0 else 24
        if last and g >= 6: nqf = 0
        if g == 0: job = (0, JOB0)
        elif g == 1: job = (JOB0, base[1] + JOBS)
        elif last and g == 6: job = (base[5] + JOBS, base[6] + 14)
        elif last and g == 7: job = (base[6] + 14, base[7] - 2)
        elif g < 7: job = (base[g - 1] + JOBS, base[g] + JOBS)
        else: job = (base[6] + JOBS, base[7] + 5)
        for s in range(2):
            for u in range(nq):
                est = 0 if g == 0 else base[g - 1] + 8 * s + 7 + 3
                if g < 7: ddl = base[g] + 16 + nqf + 8 * s - 1
                elif last: ddl = base[7] - 1
                else: ddl = base[7] + 6
                if not EXP.get('nosm'):
                    ops, m = softmax_chunk(g & 1, u, s, g == 0 and s == 0)
                    for n, o in enumerate(ops):
                        q.append((o, est, ddl, job))
                        if n == 1 and pend: q.append((pend.pop(), est, ddl, job))
                    pend.append(m)
            if g == 7 and s == 1 and pend: q.append((pend.pop(), est, ddl, job))
    b = base[7]
    if last:
        q.append((mk_check(R, 1), b, b + 1))
        job = (b + 4, b + 14)
        for s in range(4):
            for o in ofin(s, nq): q.append((o, b + 4 * s + 3 + 2, b + 15, job))
        def st3(P):
            for u in range(nq):
                for s in range(4):
                    for j in range(4): P.I('v_accvgpr_write_b32 a%d, v%d' % (STASH[3] + (u * 4 + s) * 4 + j, oa(u, 2 * s) + j))
        q.append((st3, b + 15, b + 15))
        return q
    q.append((mk_check(R), b, b + 7))
    job = (b + 8, b + QJOB)
    for ks in range(4):
        for o in qconv(ks, nq): q.append((o, b + 6 * ks + 5 + 2, b + 39, job))
    job = (b + QJOB, b + 54)
    for s in range(4):
        for o in ofin(s, nq): q.append((o, b + 24 + 4 * s + 3 + 2, b + 55, job))
    q.append((mk_stash(R), b + 54, b + 55))
    return q

def shift_q(q, off):
    out = []
    for it in q:
        if len(it) > 3: out.append((it[0], it[1] - off, it[2] - off, (it[3][0] - off, it[3][1] - off)))
        else: out.append((it[0], it[1] - off, it[2] - off))
    return out
JOB0 = 22; JOBS = 20; QJOB = 34

OGA = 1
def odma(tag, adv, R):
    ops = []
    groups = list(range(OGA)) if R.nq == 2 else list(range(3 * OGA, 8))
    for G in groups:
        ops.append('s_add_u32 m0, s%d, %d' % (sWrK, G * 4096))
        ops.append('s_add_u32 s%d, s%d, %d' % (sT2, sWo, G * 20480))
        for i in range(4): ops.append(dma(OD + i, sW, sT2, i * 1024, OPOL, tag))
    ops.append('s_add_u32 s%d, s%d, %d' % (sWo, sWo, adv & 0xffffffff))
    return ops

PK = SB[0]
def ostore(R, n):
    jp, u = n // R.nq, n % R.nq
    return ['s_add_u32 s%d, s%d, %d' % (sT, sOo, (jp * 7 + u) * 1024),
            ('buffer_store_dwordx4 %s, v%d, s[%d:%d], s%d offen %s' % (vr(PK + (u * 4 + jp) * 4, 4), OST, sO, sO + 3, sT, PSTPOL), 'pst')]

OSLOT = 32768; ONSLOT = 5; OLA = 4
STPOS = 0
def make_O(hh, R):
    tgt = 'ld_O%d' % hh
    adv = 163840 if hh != 3 else 256 - 3 * 163840
    pre = []
    if hh == 0: pre = [atomic(['s_cmp_ge_u32 s%d, 4' % sNg, 's_cselect_b32 s%d, 0, s%d' % (sW + 2, sW + 2)])]
    loads = odma(tgt, adv, R)
    fixed = {}
    ns = 4 * R.nq
    if hh == 0: fixed[0] = [atomic(['s_cmp_eq_u32 s%d, 0' % sNg, 's_cselect_b32 s%d, 0, %d' % (sO + 2, PART)])]
    for n in range(ns):
        gpos = int((n + 0.5) * STSPAN / ns)
        if gpos // 32 == hh: fixed.setdefault(min(gpos % 32, 27), []).extend(ostore(R, n))
    if hh == 3: fixed.setdefault(12, []).append('s_add_u32 s%d, s%d, %d' % (sOo, sOo, 4 * 7 * 1024))
    return Step('O%d' % hh, fr_O(hh, R.nq), pre + loads, fixed)

STSPAN = 96
OFIRST = 9
def valu_O(R):
    q = []; b = 96
    for jp in range(4):
        est = b + 4 * (2 * jp + 1) + 3 + 2
        for u in range(R.nq):
            p = PK + (u * 4 + jp) * 4
            for t in range(2):
                for j in range(2):
                    r = qa(u, 2 * jp + t) + 2 * j
                    q.append(('v_cvt_pk_bf16_f32 v%d, v%d, v%d' % (p + 2 * t + j, r, r + 1), est, 127))
    return q

def final_stores(P, E, R):
    P.I('s_mov_b32 s%d, %d' % (sO + 2, PART))
    for n in range(4 * R.nq):
        for o in ostore(R, n): E.emit_op(o)

def lane_ids(P):
    P.I('v_mbcnt_lo_u32_b32 v0, -1, 0'); P.I('v_mbcnt_hi_u32_b32 v0, -1, v0')
    P.I('v_and_b32_e32 v3, 15, v0'); P.I('v_lshrrev_b32_e32 v4, 4, v0')

def swz8(P, dst, p):
    P.I('v_add_u32_e32 v5, %d, v4' % (4 * p)); P.I('v_lshlrev_b32_e32 v5, 1, v5')
    P.I('v_xor_b32_e32 v5, v5, v3'); P.I('v_lshlrev_b32_e32 v%d, 4, v5' % dst)

def retag(P, start, old, new):
    for ins in P.ins[start:]:
        if ins.tag == old: ins.tag = new
        if ins.wait and ins.wait[1] == old: ins.wait = (ins.wait[0], new)

def oproj_phase(P, E, R):
    nq = R.nq
    P.I('s_waitcnt vmcnt(0) lgkmcnt(0)')
    P.I('s_barrier')
    lane_ids(P)
    if nq == 2:
        P.I('s_mul_i32 s%d, s%d, %d' % (sW4096, sWAVE, OGA * 4096)); P.I('s_mul_i32 s7, s%d, %d' % (sWAVE, OGA * 20480))
    else:
        P.I('s_mov_b32 s%d, 0' % sW4096); P.I('s_mov_b32 s7, 0')
    P.I('v_mul_u32_u24_e32 v11, 1280, v4')
    for i in range(4):
        swz8(P, 12, i & 1)
        P.I('v_add3_u32 v12, v12, v11, s7'); P.I('v_add_u32_e32 v%d, %d, v12' % (OD + i, i * (5120 - 1024)))
    P.I('s_mov_b32 s%d, s82' % sW); P.I('s_mov_b32 s%d, s83' % (sW + 1))
    P.I('s_mov_b32 s%d, 655360' % (sW + 2)); P.I('s_mov_b32 s%d, 0x20000' % (sW + 3))
    P.I('s_mov_b32 s%d, 0' % sWo)
    for n in range(4):
        P.I('s_add_u32 s%d, s%d, %d' % (sWrK, sW4096, n * OSLOT))
        for o in odma('ld_O%d' % n, 163840 if n != 3 else 256 - 3 * 163840, R): E.emit_op(o)
        if n == OFIRST: P.wait_vm('ld_O0'); P.I('s_barrier')
    P.I('s_mov_b32 s%d, %d' % (sSlot, OSLOT)); P.I('s_mov_b32 s%d, %d' % (sWrap, (-(ONSLOT - 1) * OSLOT) & 0xffffffff))
    E.ring_total = ONSLOT * OSLOT
    va_regs(P, 0)
    P.I('s_lshl_b32 s7, s%d, 11' % sWAVE)
    P.I('v_lshlrev_b32_e32 v11, 4, v0'); P.I('v_add_u32_e32 v%d, s7, v11' % OST)
    P.I('s_mov_b32 s%d, %d' % (sOo, (-4 * 7 * 1024) & 0xffffffff)); P.I('s_mov_b32 s%d, 0' % sNg); P.I('s_mov_b32 s%d, 0' % sRd)
    P.I('s_add_u32 s%d, s%d, %d' % (sWrK, sW4096, 4 * OSLOT))
    P.wait_vm('ld_O0')
    P.I('s_barrier')
    E.addr_regs = list(range(VA, VA + 8))
    osteps = [make_O(hh, R) for hh in range(4)]
    o0 = make_O(0, R)
    n_pre = len(P.ins)
    for i in range(D_BAR): E.issue_reads(osteps[0].fr[i], set())
    first = [(osteps[0].fr[i].tag, osteps[0].fr[i].frag) for i in range(D_BAR)]
    for i in range(D_BAR):
        retag(P, n_pre, first[i][0], '%so0pre%d' % (R.name, i)); osteps[0].fr[i].tag = '%so0pre%d' % (R.name, i)
    n0 = len(P.ins)
    P.label(R.lab('ng'))
    upd = E.run(osteps, o0, D_BAR, set(), valu_O(R))
    for a in sorted(upd): P.I('v_add_u32_e32 v%d, s%d, v%d' % (a, sDelta, a))
    for i in range(D_BAR):
        assert o0.fr[i].frag == first[i][1], (o0.fr[i].frag, first[i][1])
        retag(P, n0, o0.fr[i].tag, '%so0pre%d' % (R.name, i))
    P.I('s_add_u32 s%d, s%d, 1' % (sNg, sNg))
    P.I('s_cmp_lt_u32 s%d, 5' % sNg)
    P.I('s_cbranch_scc1 %s' % R.lab('ng'))
    n1 = len(P.ins)
    final_stores(P, E, R)
    return n0, n1

def va_regs(P, base):
    P.I('v_lshrrev_b32_e32 v6, 2, v3'); P.I('v_and_b32_e32 v7, 3, v0')
    P.I('v_lshl_add_u32 v9, v4, 2, v6'); P.I('v_and_b32_e32 v8, 7, v9')
    P.I('v_lshlrev_b32_e32 v9, 8, v9'); P.I('v_lshl_add_u32 v9, v7, 3, v9')
    for t in range(8):
        P.I('v_xor_b32_e32 v11, %d, v8' % t)
        P.I('v_lshl_add_u32 v%d, v11, 5, v9' % (VA + t))

sS2 = 88; sSI = 89
def slow_path(P, R):
    S0, S1 = SB
    P.label(R.lab('slow'))
    P.I('s_nop 15'); P.I('s_nop 15')
    T0, T1 = S1 + 22, S1 + 23
    P.I('v_mbcnt_lo_u32_b32 v%d, -1, 0' % T0); P.I('v_mbcnt_hi_u32_b32 v%d, -1, v%d' % (T0, T0))
    P.I('v_and_b32_e32 v%d, 15, v%d' % (T1, T0)); P.I('v_lshrrev_b32_e32 v%d, 4, v%d' % (T0, T0))
    KO, VO, VO2, MX, TM = S1 + 16, S1 + 17, S1 + 18, S1 + 19, S1 + 20
    P.I('v_lshlrev_b32_e32 v%d, 8, v%d' % (KO, T1)); P.I('v_lshl_add_u32 v%d, v%d, 4, v%d' % (KO, T0, KO))
    P.I('v_lshlrev_b32_e32 v%d, 10, v%d' % (VO, T0)); P.I('v_lshl_add_u32 v%d, v%d, 1, v%d' % (VO, T1, VO))
    P.I('v_add_u32_e32 v%d, 0x1000, v%d' % (VO2, VO))
    P.I('s_lshl_b32 s%d, s%d, 17' % (sHb, sHead))
    def s_tile(u, dst):
        for ks in range(4):
            P.I('buffer_load_dwordx4 %s, v%d, s[%d:%d], s%d offen offset:%d' % (vr(S0 + 4 * ks, 4), KO, sK, sK + 3, sS2, ks * 64))
        P.I('s_waitcnt vmcnt(0)')
        for ks in range(4):
            P.I('v_mfma_f32_16x16x32_bf16 %s, %s, %s, %s' % (vr(dst, 4), vr(S0 + 4 * ks, 4), vr(qf(u, ks), 4), '0' if ks == 0 else vr(dst, 4)))
        P.I('s_nop 15')
    for u in range(R.nq):
        P.I('v_mov_b32_e32 v%d, 0xff800000' % MX)
        P.I('s_mov_b32 s%d, 0' % sSI)
        P.label(R.lab('slow_max%d' % u))
        P.I('s_lshl_b32 s%d, s%d, 12' % (sS2, sSI)); P.I('s_add_u32 s%d, s%d, s%d' % (sS2, sS2, sHb))
        s_tile(u, S0 + 16)
        P.I('v_max3_f32 v%d, v%d, v%d, v%d' % (MX, MX, S0 + 16, S0 + 17)); P.I('v_max3_f32 v%d, v%d, v%d, v%d' % (MX, MX, S0 + 18, S0 + 19))
        P.I('s_add_u32 s%d, s%d, 1' % (sSI, sSI)); P.I('s_cmp_lt_u32 s%d, 32' % sSI); P.I('s_cbranch_scc1 %s' % R.lab('slow_max%d' % u))
        lane_reduce(P, MX, TM, 'v_max_f32_e32')
        P.I('v_mov_b32_e32 v%d, 0' % lt(u))
        for r in range(32): P.I('v_mov_b32_e32 v%d, 0' % (oa(u, 0) + r))
        P.I('s_mov_b32 s%d, 0' % sSI)
        P.label(R.lab('slow_pv%d' % u))
        P.I('s_lshl_b32 s%d, s%d, 13' % (sS2, sSI)); P.I('s_add_u32 s%d, s%d, s%d' % (sS2, sS2, sHb))
        s_tile(u, S0 + 16)
        P.I('s_add_u32 s%d, s%d, 4096' % (sS2, sS2))
        s_tile(u, S0 + 20)
        P.I('s_sub_u32 s%d, s%d, 4096' % (sS2, sS2))
        for r in range(8): P.I('v_sub_f32_e32 v%d, v%d, v%d' % (S0 + 16 + r, S0 + 16 + r, MX))
        for r in range(8): P.I('v_exp_f32_e32 v%d, v%d' % (S0 + 16 + r, S0 + 16 + r))
        P.I('s_nop 0')
        for r in range(8): P.I('v_add_f32_e32 v%d, v%d, v%d' % (lt(u), lt(u), S0 + 16 + r))
        for j in range(4): P.I('v_cvt_pk_bf16_f32 v%d, v%d, v%d' % (S0 + 24 + j, S0 + 16 + 2 * j, S0 + 17 + 2 * j))
        for t in range(8):
            for i in range(8):
                P.I('buffer_load_ushort v%d, v%d, s[%d:%d], s%d offen offset:%d' % (S1 + i, VO if i < 4 else VO2, sV, sV + 3, sS2, (i & 3) * 256 + t * 32))
            P.I('s_waitcnt vmcnt(0)')
            for j in range(4): P.I('v_lshl_or_b32 v%d, v%d, 16, v%d' % (S1 + 8 + j, S1 + 2 * j + 1, S1 + 2 * j))
            P.I('s_nop 1')
            P.I('v_mfma_f32_16x16x32_bf16 %s, %s, %s, %s' % (vr(oa(u, t), 4), vr(S1 + 8, 4), vr(S0 + 24, 4), vr(oa(u, t), 4)))
            P.I('s_nop 7')
        P.I('s_add_u32 s%d, s%d, 1' % (sSI, sSI)); P.I('s_cmp_lt_u32 s%d, 16' % sSI); P.I('s_cbranch_scc1 %s' % R.lab('slow_pv%d' % u))
        lane_reduce(P, lt(u), TM, 'v_add_f32_e32')
    for u in range(R.nq):
        for s in range(2):
            for j in range(4): P.I('v_mov_b32_e32 v%d, 0' % (preg(1, u, s) + j))
    P.I('s_nop 15')
    P.I('s_cmp_eq_u32 s%d, 0' % sRet)
    P.I('s_cbranch_scc1 %s' % R.lab('slow_ret0'))
    P.I('s_branch %s' % R.lab('slow_ret1'))

def final_stamps(P):
    stamp(P, 60, True); stamp(P, 61)
    P.I('v_writelane_b32 v%d, s78, 1' % T4); P.I('v_writelane_b32 v%d, s76, 0' % T4)
    P.I('s_lshl_b32 s72, s2, 2'); P.I('s_add_u32 s72, s72, s%d' % sWAVE); P.I('s_lshl_b32 s72, s72, 8')
    P.I('s_add_u32 s72, s72, 0x4000000')
    P.I('s_add_u32 s68, s68, s72'); P.I('s_addc_u32 s69, s69, 0')
    P.I('v_mbcnt_lo_u32_b32 v0, -1, 0'); P.I('v_mbcnt_hi_u32_b32 v0, -1, v0'); P.I('v_lshlrev_b32_e32 v0, 2, v0')
    P.I('global_store_dword v0, v%d, s[68:69]' % T4)
    P.I('s_waitcnt vmcnt(0)')

def role_code(P, R):
    nq = R.nq
    start = len(P.ins)
    P.label(R.lab('start'))
    E = Emitter(P, R)
    if nq == 1 and TOUCH:
        P.I('v_lshrrev_b32_e32 v5, 1, v0'); P.I('s_mul_i32 s7, s4, 40'); P.I('v_add_u32_e32 v5, s7, v5')
        P.I('v_lshlrev_b32_e32 v5, 13, v5'); P.I('v_and_b32_e32 v11, 1, v0'); P.I('v_lshl_add_u32 v5, v11, 7, v5')
        P.I('v_add_u32_e32 v11, %d, v5' % (32 * 8192))
        P.I('v_cmp_gt_u32_e32 vcc, 16, v0'); P.I('v_mov_b32_e32 v12, 0x40000000'); P.I('v_cndmask_b32_e32 v11, v12, v11, vcc')
        P.I('buffer_load_dword v40, v5, s[%d:%d], 0 offen' % (sW, sW + 3), 'touch')
        P.I('buffer_load_dword v41, v11, s[%d:%d], 0 offen' % (sW, sW + 3), 'touch')
    for o in dma_x(0, nq): E.emit_op(o)
    if nq == 1:
        for i in range(4):
            swz8(P, 12, i & 1)
            P.I('v_lshl_add_u32 v12, v4, 13, v12'); P.I('v_add_u32_e32 v%d, %d, v12' % (WD + i, i * (32768 - 1024)))
        for o in dma_Warea(nm('P', 0), 0, sWc, SLOT_C(0)): E.emit_op(o)
    if STAMP: stamp(P, 3)
    late_setup(P)
    for ks in range(4):
        P.I('v_add_u32_e32 v5, %d, v4' % (4 * ks)); P.I('v_xor_b32_e32 v5, v5, v3'); P.I('v_lshlrev_b32_e32 v5, 4, v5')
        P.I('v_lshl_add_u32 v%d, v3, 8, v5' % (KA + ks))
    va_regs(P, 0)
    for kq in range(4):
        for e in range(2):
            P.I('v_lshrrev_b32_e32 v5, 1, v4'); P.I('v_add_u32_e32 v5, %d, v5' % (4 * kq + 2 * e))
            P.I('v_xor_b32_e32 v5, v5, v3'); P.I('v_lshlrev_b32_e32 v5, 4, v5')
            P.I('v_lshl_add_u32 v5, v3, 8, v5'); P.I('v_and_b32_e32 v11, 1, v4'); P.I('v_lshl_add_u32 v5, v11, 3, v5')
            P.I('v_add_u32_e32 v%d, s70, v5' % (XR + 2 * kq + e))
            P.I('v_add_u32_e32 v%d, %d, v%d' % (XR2 + 2 * kq + e, 2 * SLOT, XR + 2 * kq + e))
    for j in range(4):
        P.I('v_add_u32_e32 v5, %d, v4' % (4 * j)); P.I('v_xor_b32_e32 v5, v5, v3'); P.I('v_lshlrev_b32_e32 v5, 4, v5')
        P.I('v_lshl_add_u32 v5, v4, 8, v5'); P.I('v_add_u32_e32 v%d, s%d, v5' % (KD + j, sW4096))
    for p in range(2):
        swz8(P, 12, p)
        P.I('v_lshl_add_u32 v12, v4, 8, v12'); P.I('v_add_u32_e32 v%d, s%d, v12' % (VD + p, sW4096))
    for j in range(4): P.I('v_mov_b32_e32 v%d, 0x3f803f80' % (ONES + j))
    if nq == 1 and OTOUCH:
        P.I('s_mul_i32 s7, s4, %d' % (320 * 128)); P.I('v_lshlrev_b32_e32 v40, 7, v0'); P.I('v_add_u32_e32 v40, s7, v40')
        P.I('s_mov_b32 s92, s82'); P.I('s_mov_b32 s93, s83'); P.I('s_mov_b32 s94, 0'); P.I('s_mov_b32 s95, 0x20000')
    for o in read_x(0, nq): E.emit_op(o)
    if STAMP: P.I('s_waitcnt lgkmcnt(0)'); stamp(P, 44)
    P.wait_vm(nm('P', 0))
    P.I('s_barrier')
    if STAMP: P.I('s_waitcnt lgkmcnt(0)'); stamp(P, 2)
    psteps = [make_P(g, R) for g in range(8)]
    gsteps = [make_G(g, R) for g in range(8)]
    for i in range(D_BAR): E.issue_reads(psteps[0].fr[i], set())
    g0 = make_G(0, R)
    n_pre = len(P.ins)
    upd = E.run(psteps, g0, D_BAR, set(), valu_P(psteps, R))
    for i in range(D_BAR):
        gsteps[0].fr[i].frag = g0.fr[i].frag; gsteps[0].fr[i].tag = '%sg0pre%d' % (R.name, i)
        retag(P, n_pre, g0.fr[i].tag, '%sg0pre%d' % (R.name, i))
    if STAMP: P.I('s_waitcnt lgkmcnt(0)'); stamp(P, 56, True); stamp(P, 57)
    pro_end = len(P.ins)
    P.label(R.lab('head'))
    vq = valu_G(gsteps, R)
    g6 = make_G(6, R)
    upd6, vp = E.run(gsteps[:6], g6, D_BAR, set(upd), vq, allow_left=True)
    off6 = sum(len(s_.fr) for s_ in gsteps[:6])
    lsteps = [make_GL(6, R), make_GL(7, R)]
    for i in range(D_BAR):
        retag(P, pro_end, g6.fr[i].tag, '%sg6pre%d' % (R.name, i))
        for st_ in (gsteps[6], lsteps[0]):
            st_.fr[i].frag = g6.fr[i].frag; st_.fr[i].tag = '%sg6pre%d' % (R.name, i)
    fr6 = E.fr
    P.I('s_cmp_eq_u32 s%d, 3' % sHead)
    P.I('s_cbranch_scc1 %s' % R.lab('last'))
    p1_end = len(P.ins)
    g0n = make_G(0, R)
    upd2 = E.run(gsteps[6:], g0n, D_BAR, set(upd6), shift_q(vq[vp:], off6))
    assert upd2 == upd, (upd2, upd)
    for i in range(D_BAR):
        assert g0n.fr[i].frag == g0.fr[i].frag, (g0n.fr[i].frag, g0.fr[i].frag)
        retag(P, p1_end, g0n.fr[i].tag, '%sg0pre%d' % (R.name, i))
    P.I('s_add_u32 s%d, s%d, 1' % (sHead, sHead))
    P.I('s_branch %s' % R.lab('head'))
    p2_end = len(P.ins)
    P.label(R.lab('last'))
    E.fr = fr6
    vql = valu_G(gsteps[:6] + lsteps, R, last=True)
    for a_, b_ in zip(vq[:vp], vql[:vp]): assert a_[0] == b_[0] or callable(a_[0]), (a_[0], b_[0])
    osteps = [make_O(hh, R) for hh in range(4)]
    o0 = make_O(0, R); o0.ring_total = ONSLOT * OSLOT
    updo = E.run(lsteps, o0, D_BAR, set(upd6), shift_q(vql[vp:], off6))
    for a in sorted(updo): P.I('v_add_u32_e32 v%d, s%d, v%d' % (a, sDelta, a))
    for i in range(D_BAR):
        retag(P, p2_end, o0.fr[i].tag, '%so0pre%d' % (R.name, i))
        osteps[0].fr[i].frag = o0.fr[i].frag; osteps[0].fr[i].tag = '%so0pre%d' % (R.name, i)
    if STAMP: P.I('s_waitcnt lgkmcnt(0)'); stamp(P, 58, True); stamp(P, 59)
    body_end = len(P.ins)
    on0 = len(P.ins)
    P.label(R.lab('ng'))
    o0n = make_O(0, R)
    updn = E.run(osteps, o0n, D_BAR, set(), valu_O(R))
    for a in sorted(updn): P.I('v_add_u32_e32 v%d, s%d, v%d' % (a, sDelta, a))
    for i in range(D_BAR):
        assert o0n.fr[i].frag == o0.fr[i].frag, (o0n.fr[i].frag, o0.fr[i].frag)
        retag(P, on0, o0n.fr[i].tag, '%so0pre%d' % (R.name, i))
    P.I('s_add_u32 s%d, s%d, 1' % (sNg, sNg))
    P.I('s_cmp_lt_u32 s%d, 5' % sNg)
    P.I('s_cbranch_scc1 %s' % R.lab('ng'))
    on1 = len(P.ins)
    final_stores(P, E, R)
    P.I('s_waitcnt vmcnt(0) lgkmcnt(0)')
    if FUSE:
        if STAMP: stamp(P, 62, True)
        P.I('s_branch L_red')
    else:
        if STAMP: final_stamps(P)
        P.I('s_endpgm')
    slow_path(P, R)
    end = len(P.ins)
    I = P.ins
    marks = [I[start], I[pro_end], I[p1_end], I[p2_end], I[on0], I[on1]]
    return dict(marks=marks)

def dyn_seq(parts):
    pro, p1, p2, lastp, ng = parts
    return pro + (p1 + p2) * 2 + p1 + lastp + ng * 3

BALANCE = 1
def split_parts(P, info):
    pos = [next(k for k, i in enumerate(P.ins) if i is m) for m in info['marks']]
    return pos, [P.ins[pos[n]:pos[n + 1]] for n in range(5)]

def rebalance(P, info):
    pos, parts = split_parts(P, info)
    firsts = [P.ins[p] for p in pos]
    out = []
    for seg in parts:
        seg2, moved = balance_gaps(seg)
        out.append(seg2)
    P.ins[pos[0]:pos[5]] = sum(out, [])
    n = pos[0]; marks = []
    for seg in out:
        marks.append(P.ins[n]); n += len(seg)
    marks.append(P.ins[n])
    info['marks'] = marks


FUSE = 0
SPIN = 400000
RLPOL = 'sc1'; RSPOL = ''
def fused_tail(P):
    P.label('L_red')
    P.I('s_load_dwordx2 s[96:97], s[0:1], 80')
    P.I('s_load_dwordx2 s[90:91], s[0:1], 88')
    P.I('s_lshl_b32 s52, s5, 4'); P.I('s_add_u32 s52, s52, s4')
    P.I('s_lshl_b32 s53, s52, 2')
    P.I('v_mbcnt_lo_u32_b32 v0, -1, 0'); P.I('v_mbcnt_hi_u32_b32 v0, -1, v0')
    P.I('v_mov_b32_e32 v1, s53'); P.I('v_mov_b32_e32 v2, 1')
    P.I('s_barrier')
    P.I('s_waitcnt lgkmcnt(0)')
    P.I('s_cmp_eq_u32 s%d, 0' % sWAVE)
    P.I('s_cbranch_scc0 L_red_wait')
    P.I('s_mov_b64 s[54:55], exec')
    P.I('s_mov_b64 exec, 1')
    P.I('global_atomic_add v1, v2, s[90:91] sc1')
    P.I('s_mov_b32 s56, 0')
    P.label('L_red_poll')
    P.I('global_load_dword v3, v1, s[90:91] sc1')
    P.I('s_waitcnt vmcnt(0)')
    P.I('v_readfirstlane_b32 s57, v3')
    P.I('s_add_u32 s56, s56, 1')
    P.I('s_cmp_ge_u32 s57, 8')
    P.I('s_cbranch_scc1 L_red_go')
    P.I('s_cmp_lt_u32 s56, %d' % SPIN)
    P.I('s_cbranch_scc0 L_red_go')
    P.I('s_sleep 2')
    P.I('s_branch L_red_poll')
    P.label('L_red_go')
    P.I('s_mov_b64 exec, s[54:55]')
    P.label('L_red_wait')
    P.I('s_barrier')
    P.I('s_mul_i32 s58, s52, %d' % (8 * PART))
    if WSOFF: P.I('s_add_u32 s58, s58, %d' % WSOFF)
    P.I('s_add_u32 s8, s68, s58'); P.I('s_addc_u32 s9, s69, 0')
    P.I('s_mov_b32 s10, %d' % (8 * PART)); P.I('s_mov_b32 s11, 0x20000')
    P.I('s_mov_b32 s12, s96'); P.I('s_mov_b32 s13, s97'); P.I('s_mov_b32 s14, %d' % (16 * 112 * 2560)); P.I('s_mov_b32 s15, 0x20000')
    P.I('v_lshlrev_b32_e32 v2, 4, v0')
    P.I('v_and_b32_e32 v3, 15, v0'); P.I('v_lshrrev_b32_e32 v4, 4, v0')
    P.I('v_mul_u32_u24_e32 v5, 2560, v3'); P.I('v_lshl_add_u32 v5, v4, 4, v5')
    P.I('s_lshl_b32 s59, s6, 2'); P.I('s_add_u32 s59, s59, s%d' % sWAVE)
    P.I('s_mul_i32 s60, s4, %d' % (112 * 2560)); P.I('s_mul_i32 s61, s5, 1280'); P.I('s_add_u32 s60, s60, s61')
    for k in range(3):
        P.I('s_add_u32 s61, s59, %d' % (32 * k))
        P.I('s_mul_i32 s62, s61, 37'); P.I('s_lshr_b32 s62, s62, 8')
        P.I('s_mul_i32 s63, s62, 7'); P.I('s_sub_u32 s63, s61, s63')
        P.I('s_mul_i32 s64, s62, 14'); P.I('s_add_u32 s64, s64, s63'); P.I('s_lshl_b32 s64, s64, 10')
        P.I('s_lshl_b32 s65, s62, 7'); P.I('s_mul_i32 s66, s63, %d' % (16 * 2560)); P.I('s_add_u32 s65, s65, s66'); P.I('s_add_u32 s65, s65, s60')
        P.I('s_cmp_lt_u32 s61, 70')
        P.I('s_cselect_b32 s64, s64, 0x40000000'); P.I('s_cselect_b32 s%d, s65, 0x40000000' % (98 + k))
        for half in range(2):
            for hg in range(8):
                r = 16 + ((k * 2 + half) * 8 + hg) * 4
                P.I('s_add_u32 s66, s64, %d' % (hg * PART + half * 7168))
                P.I('buffer_load_dwordx4 v[%d:%d], v2, s[8:11], s66 offen %s' % (r, r + 3, RLPOL), 'rl%d_%d_%d' % (k, half, hg))
    for k in range(3):
        for half in range(2):
            acc = 208 + half * 8
            for hg in range(8):
                P.wait_vm('rl%d_%d_%d' % (k, half, hg))
                r = 16 + ((k * 2 + half) * 8 + hg) * 4
                for j in range(4):
                    if hg == 0:
                        P.I('v_lshlrev_b32_e32 v%d, 16, v%d' % (acc + 2 * j, r + j))
                        P.I('v_and_b32_e32 v%d, 0xffff0000, v%d' % (acc + 2 * j + 1, r + j))
                    else:
                        P.I('v_lshlrev_b32_e32 v7, 16, v%d' % (r + j))
                        P.I('v_and_b32_e32 v8, 0xffff0000, v%d' % (r + j))
                        P.I('v_add_f32_e32 v%d, v%d, v7' % (acc + 2 * j, acc + 2 * j))
                        P.I('v_add_f32_e32 v%d, v%d, v8' % (acc + 2 * j + 1, acc + 2 * j + 1))
            o = 224 + ((k * 2 + half) & 1) * 4
            for j in range(4): P.I('v_cvt_pk_bf16_f32 v%d, v%d, v%d' % (o + j, acc + 2 * j, acc + 2 * j + 1))
            for op in ('v_permlane32_swap_b32_e32', 'v_permlane16_swap_b32_e32'):
                P.I('%s v%d, v%d' % (op, o, o + 2)); P.I('%s v%d, v%d' % (op, o + 1, o + 3))
            P.I('buffer_store_dwordx4 v[%d:%d], v5, s[12:15], s%d offen offset:%d %s' % (o, o + 3, 98 + k, half * 64, RSPOL), 'rst')
    P.I('s_waitcnt vmcnt(0)')

def late_setup(P):
    P.I('s_lshl_b32 s7, s4, 5'); P.I('s_add_u32 s7, s7, s86'); P.I('s_lshl_b32 s71, s7, 17')
    P.I('s_add_u32 s%d, s54, s71' % sK); P.I('s_addc_u32 s%d, s55, 0' % (sK + 1))
    P.I('s_mov_b32 s%d, 524288' % (sK + 2)); P.I('s_mov_b32 s%d, 0x20000' % (sK + 3))
    P.I('s_add_u32 s%d, s56, s71' % sV); P.I('s_addc_u32 s%d, s57, 0' % (sV + 1))
    P.I('s_mov_b32 s%d, 524288' % (sV + 2)); P.I('s_mov_b32 s%d, 0x20000' % (sV + 3))
    P.I('s_mul_i32 s71, s86, 163840')
    P.I('s_add_u32 s82, s82, s71'); P.I('s_addc_u32 s83, s83, 0')
    P.I('s_lshl_b32 s71, s5, 4'); P.I('s_add_u32 s71, s71, s4'); P.I('s_lshl_b32 s71, s71, 3'); P.I('s_add_u32 s71, s71, s6')
    P.I('s_mul_i32 s71, s71, %d' % PART)
    if WSOFF: P.I('s_add_u32 s71, s71, %d' % WSOFF)
    P.I('s_add_u32 s%d, s68, s71' % sO); P.I('s_addc_u32 s%d, s69, 0' % (sO + 1))
    P.I('s_mov_b32 s%d, %d' % (sO + 2, PART)); P.I('s_mov_b32 s%d, 0x20000' % (sO + 3))
    if KVA == 1: P.I('s_lshl_b32 s%d, s%d, 12' % (sW4096, sWAVE))
    else: P.I('s_mov_b32 s%d, 0' % sW4096)
    P.I('s_mov_b32 s%d, %d' % (sSlot, SLOT)); P.I('s_mov_b32 s%d, %d' % (sWrap, (-2 * SLOT) & 0xffffffff))
    P.I('s_mov_b32 s%d, 0x%x' % (sC, QSCALE))
    P.I('s_mov_b32 s%d, 0' % sHead); P.I('s_mov_b32 s%d, 0' % sRd)
    P.I('s_mov_b32 s%d, %d' % (sKo, 3 * 16384)); P.I('s_mov_b32 s%d, %d' % (sVo, 2 * 16384))

def gen_k16(name='attn_kernel'):
    P = Prog()
    P.I('s_cmp_ge_u32 s2, 256')
    P.I('s_cbranch_scc1 L_end')
    P.I('s_load_dwordx8 s[52:59], s[0:1], 0')
    P.I('s_load_dwordx8 s[60:67], s[0:1], 40')
    P.I('s_load_dwordx2 s[68:69], s[0:1], 96')
    P.I('s_load_dwordx2 s[82:83], s[0:1], 32')
    P.I('s_load_dwordx2 s[84:85], s[0:1], 72')
    if STAMP:
        P.I('s_memtime s[76:77]'); P.I('s_memrealtime s[78:79]'); P.I('s_mov_b32 s74, 4')
    P.I('v_lshrrev_b32_e32 v1, 6, v0')
    P.I('v_and_b32_e32 v0, 63, v0')
    P.I('s_and_b32 s3, s2, 7')
    P.I('v_readfirstlane_b32 s%d, v1' % sWAVE)
    P.I('s_lshr_b32 s4, s2, 3'); P.I('s_lshr_b32 s5, s3, 2')
    P.I('s_and_b32 s6, s3, 3'); P.I('s_lshl_b32 s6, s6, 1'); P.I('s_and_b32 s7, s4, 1'); P.I('s_add_u32 s6, s6, s7')
    P.I('s_lshr_b32 s4, s4, 1')
    P.I('v_and_b32_e32 v3, 15, v0'); P.I('v_lshrrev_b32_e32 v4, 4, v0')
    P.I('s_lshl_b32 s70, s%d, 13' % sWAVE)
    P.I('s_mul_i32 s71, s%d, %d' % (sWAVE, 32 * 1280))
    P.I('v_mul_u32_u24_e32 v11, 1280, v4')
    for jj in range(4):
        P.I('v_add_u32_e32 v5, %d, v4' % (4 * jj)); P.I('v_xor_b32_e32 v5, v5, v3'); P.I('v_lshlrev_b32_e32 v5, 4, v5')
        P.I('v_add3_u32 v%d, v5, v11, s71' % (XV + jj))
    P.I('s_waitcnt lgkmcnt(0)')
    P.I('s_cmp_eq_u32 s5, 0')
    for i in range(8): P.I('s_cselect_b32 s%d, s%d, s%d' % (52 + i, 52 + i, 60 + i))
    P.I('s_cselect_b32 s82, s82, s84'); P.I('s_cselect_b32 s83, s83, s85')
    P.I('s_mul_i32 s7, s4, 143360')
    P.I('s_add_u32 s%d, s52, s7' % sX); P.I('s_addc_u32 s%d, s53, 0' % (sX + 1))
    P.I('s_mov_b32 s%d, 143360' % (sX + 2)); P.I('s_mov_b32 s%d, 0x20000' % (sX + 3))
    P.I('s_lshl_b32 s86, s6, 2')
    P.I('s_lshl_b32 s71, s86, 8')
    P.I('s_add_u32 s%d, s58, s71' % sW); P.I('s_addc_u32 s%d, s59, 0' % (sW + 1))
    P.I('s_sub_u32 s%d, 5242880, s71' % (sW + 2)); P.I('s_mov_b32 s%d, 0x20000' % (sW + 3))
    P.I('s_mov_b32 s%d, 0' % sWc); P.I('s_mov_b32 s%d, 256' % sWn)
    P.I('s_cmp_eq_u32 s%d, 3' % sWAVE)
    P.I('s_cbranch_scc0 L_A_start')
    P.I('s_branch L_B_start')
    head = list(P.ins)
    RA, RB = Role('A', 2), Role('B', 1)
    a = role_code(P, RA)
    b = role_code(P, RB)
    if BALANCE:
        for info in (a, b): rebalance(P, info)
    red0 = len(P.ins)
    if FUSE:
        fused_tail(P)
        if STAMP: final_stamps(P)
        P.I('s_endpgm')
    red_ins = P.ins[red0:]
    P.label('L_end')
    P.I('s_endpgm')
    for info in (a, b):
        pos, parts = split_parts(P, info)
        info['tail'] = P.ins[pos[5]:pos[5] + 40]
        resolve_waits(head + dyn_seq(parts))
    if FUSE: resolve_waits(red_ins)
    drop_optional(P)
    P.pad()
    bad = 0
    def at(lab): return [k for k, i in enumerate(P.ins) if i.label == lab][0]
    for R in (RA, RB):
        h, l, n_ = at(R.lab('head')), at(R.lab('last')), at(R.lab('ng'))
        br_last = [k for k, i in enumerate(P.ins) if i.op == 's_cbranch_scc1' and i.text.endswith(R.lab('last'))][0]
        br_ng = [k for k, i in enumerate(P.ins) if i.op == 's_cbranch_scc1' and i.text.endswith(R.lab('ng'))][0]
        I = P.ins
        bad += check_hazards(I[h - 60:l], name)
        bad += check_hazards(I[l - 60:l] + I[h:h + 80], name)
        bad += check_hazards(I[br_last - 60:br_last + 1] + I[l:br_ng + 1], name)
        bad += check_hazards(I[br_ng - 60:br_ng + 1] + I[n_:n_ + 80], name)
    if FUSE: bad += check_hazards(P.ins[at('L_red'):], name)
    assert bad == 0
    return P

if __name__ == '__main__':
    print(gen_k16().text())
```

```python
from asmlib import *
import struct, math

SLOT = 53248
KOFF, VOFF, WOFF = 0, 16384, 32768
XBASE = 3 * SLOT
NSLOT = 3
LDS_BYTES = 163840
PART = 143360

QACC = 0; OACC = 64; SB = (128, 160); Q = 192
KA = 224; VA = 228; KD = 236; VD = 240; ONES = 242; LS = 246
T2 = 254; T4 = 255
WD = 32
OST = KA; OD = KD
def lt(u): return LS + 4 * u
XR = 128; XR2 = 136; XV = 144
XA = 0; POOL = 160; NPOOL = 8
STASH = [192, 224, 0, 32]
sK = 8; sV = 12; sW = 16; sO = 20; sX = 24
sWAVE = 28; sKo = 29; sVo = 30; sWc = 31; sRd = 32; sDelta = 33; sWrK = 34; sHead = 35
sT = 36; sT2 = 37; sW4096 = 38; sXc = 39; sOo = 40; sC = 41; sSlot = 42; sWrap = 43
sRet = 87; sM = 44; sHb = 48; sI = 49; sWr = 50; sNg = 51; sWn = 46; sWo = 47
QSCALE = struct.unpack('<I', struct.pack('<f', math.log2(math.e) / math.sqrt(128.0)))[0]

STAMP = False
EXP = {}
D_AHEAD = 6
D_BAR = 3
WAITW = 4
SPLITR = 0; LEAD = 0
CAP1 = 8; CAP2 = 24; LATE = 16
BUDGET_A = 12
BUDGET_B = 26
KVPOL = 'nt'; WPOL = ''; XPOL = 'nt'; OPOL = ''; PSTPOL = 'sc0 sc1'
ODMA_A = 6
WSOFF = 0

def vr(b, n): return 'v[%d:%d]' % (b, b + n - 1)
def ar(b, n): return 'a[%d:%d]' % (b, b + n - 1)
def qa(u, t): return QACC + (u * 8 + t) * 4
def oa(u, t): return OACC + (u * 8 + t) * 4
def sreg(buf, u, kt): return SB[buf] + (u * 2 + (kt >> 1)) * 8 + (kt & 1) * 4
def preg(buf, u, s): return SB[buf] + (u * 2 + s) * 8
def qf(u, ks): return Q + (u * 4 + ks) * 4
def xf(kk, u): return XA + (kk * 2 + u) * 4

class F:
    def __init__(self, reads, mfmas):
        self.reads = reads
        self.mfmas = mfmas

def tr(e, addr, imm): return ('ds_read_b64_tr_b16', 2 * e, 2, addr, imm)

def fr_S(buf, nq):
    out = []
    for kt in range(4):
        for ks in range(4):
            out.append(F([('ds_read_b128', 0, 4, KA + ks, KOFF + kt * 4096)],
                         [(vr(sreg(buf, u, kt), 4), vr(qf(u, ks), 4), ks == 0) for u in range(nq)]))
    return out

def q_ksteps(g):
    a = g >> 1
    if g % 2 == 0: return [(5 * a, 0, 1), (5 * a + 1, 2, 3)]
    return [(5 * a + 2, 'X', 0), (5 * a + 3, 1, 2), (5 * a + 4, 3, 4)]

def fr_Q(g, nq, tmajor=False):
    ks = q_ksteps(g)
    order = [(k, t) for t in range(8) for k in ks] if tmajor else [(k, t) for k in ks for t in range(8)]
    out = []
    for ((kk, b0, b1), t) in order:
        reads = []
        for e, b in enumerate((b0, b1)):
            if b == 'X': reads.append(tr(e, ('X', VA + t), 0))
            else: reads.append(tr(e, VA + t, WOFF + b * 4096))
        out.append(F(reads, [(vr(qa(u, t), 4), ar(xf(kk, u), 4), kk == 0) for u in range(nq)]))
    return out

def fr_PV(g, nq, tmajor=False):
    buf = g & 1
    order = [(s, t) for t in range(8) for s in range(2)] if tmajor else [(s, t) for s in range(2) for t in range(8)]
    return [F([tr(e, VA + t, VOFF + (2 * s + e) * 4096) for e in range(2)],
              [(vr(oa(u, t), 4), vr(preg(buf, u, s), 4), g == 0 and s == 0) for u in range(nq)]) for (s, t) in order]

VA2 = [225, 226, 227, 240, 241, 242, 243, 244]
OSTATIC = 1
def fr_O(hh, nq):
    order = [(s, t) for t in range(8) for s in range(4)] if hh in (0, 3) else [(s, t) for s in range(4) for t in range(8)]
    slot = (hh + 1) & 3
    hi = OSTATIC and slot >= 2
    off = (slot & 1) * 32768 if OSTATIC else 0
    return [F([tr(e, VA2[t] if hi else VA + t, off + (2 * s + e) * 4096) for e in range(2)],
              [(vr(qa(u, t), 4), ar(STASH[hh] + (u * 4 + s) * 4, 4), hh == 0 and s == 0) for u in range(nq)]) for (s, t) in order]

SUMV = 0
def softmax_chunk(buf, u, s, first):
    b = preg(buf, u, s); first_u = first
    e = ['v_exp_f32_e32 v%d, v%d' % (b + i, b + i) for i in range(8)]
    c = ['v_cvt_pk_bf16_f32 v%d, v%d, v%d' % (b + j, b + 2 * j, b + 2 * j + 1) for j in range(4)]
    if SUMV:
        a = ['v_add_f32_e32 v%d, v%d, v%d' % (lt(u) + (i & 1), b + i, lt(u) + (i & 1)) for i in range(8)]
        if first_u: a[0] = 'v_mov_b32_e32 v%d, v%d' % (lt(u), b); a[1] = 'v_mov_b32_e32 v%d, v%d' % (lt(u) + 1, b + 1)
        seq = [e[0], e[1]]
        for i in range(2, 8): seq += [e[i], a[i - 2]]
        return seq + [a[6], a[7]] + c, None
    m = 'v_mfma_f32_16x16x32_bf16 %s, %s, %s, %s' % (vr(lt(u), 4), vr(ONES, 4), vr(b, 4), '0' if first else vr(lt(u), 4))
    return e[:4] + [c[0]] + e[4:6] + [c[1]] + e[6:] + [c[2], c[3]], m

def swaps(pairs):
    return ['v_permlane32_swap_b32_e32 v%d, v%d' % p for p in pairs] + ['v_permlane16_swap_b32_e32 v%d, v%d' % p for p in pairs]

def qconv(ks, nq):
    ops = []
    for u in range(nq):
        for t in (2 * ks, 2 * ks + 1):
            for r in range(4): ops.append('v_mul_f32_e32 v%d, s%d, v%d' % (qa(u, t) + r, sC, qa(u, t) + r))
    for u in range(nq):
        for t in range(2):
            for j in range(2):
                r = qa(u, 2 * ks + t) + 2 * j
                ops.append('v_cvt_pk_bf16_f32 v%d, v%d, v%d' % (qf(u, ks) + 2 * t + j, r, r + 1))
    ops += swaps([(qf(u, ks) + j, qf(u, ks) + 2 + j) for u in range(nq) for j in range(2)])
    return ops

def ofin(s, nq):
    ops = []
    for u in range(nq):
        b = oa(u, 2 * s)
        for r in range(8): ops.append('v_mul_f32_e32 v%d, v%d, v%d' % (b + r, lt(u), b + r))
        for j in range(4): ops.append('v_cvt_pk_bf16_f32 v%d, v%d, v%d' % (b + j, b + 2 * j, b + 2 * j + 1))
    return ops

class Role:
    def __init__(self, name, nq):
        self.name = name; self.nq = nq
        self.budget = BUDGET_A if nq == 2 else BUDGET_B
    def lab(self, s): return 'L_%s_%s' % (self.name, s)

def mk_stash(R):
    def f(P):
        for h in range(2):
            P.I('s_cmp_eq_u32 s%d, %d' % (sHead, h)); P.I('s_cbranch_scc1 %s' % R.lab('st%d' % h))
        for h in (2, 0, 1):
            if h != 2: P.label(R.lab('st%d' % h))
            for u in range(R.nq):
                for s in range(4):
                    for j in range(4): P.I('v_accvgpr_write_b32 a%d, v%d' % (STASH[h] + (u * 4 + s) * 4 + j, oa(u, 2 * s) + j))
            if h != 1: P.I('s_branch %s' % R.lab('st_done'))
        P.label(R.lab('st_done'))
    return f

def lane_reduce(P, reg, tmp, op):
    P.I('v_mov_b32_e32 v%d, v%d' % (tmp, reg))
    P.I('v_permlane32_swap_b32_e32 v%d, v%d' % (reg, tmp))
    P.I('%s v%d, v%d, v%d' % (op, reg, reg, tmp))
    P.I('v_mov_b32_e32 v%d, v%d' % (tmp, reg))
    P.I('v_permlane16_swap_b32_e32 v%d, v%d' % (reg, tmp))
    P.I('%s v%d, v%d, v%d' % (op, reg, reg, tmp))

def mk_check(R, site=0):
    def f(P):
        if SUMV:
            for u in range(R.nq): P.I('v_add_f32_e32 v%d, v%d, v%d' % (lt(u), lt(u), lt(u) + 1))
            for u in range(R.nq): lane_reduce(P, lt(u), lt(u) + 2, 'v_add_f32_e32')
        P.I('s_mov_b64 s[%d:%d], -1' % (sM, sM + 1))
        for u in range(R.nq):
            P.I('v_cmp_le_f32_e32 vcc, 0x33800000, v%d' % lt(u))
            P.I('s_and_b64 s[%d:%d], s[%d:%d], vcc' % (sM, sM + 1, sM, sM + 1))
            P.I('v_cmp_ge_f32_e32 vcc, 0x4b800000, v%d' % lt(u))
            P.I('s_and_b64 s[%d:%d], s[%d:%d], vcc' % (sM, sM + 1, sM, sM + 1))
        P.I('s_cmp_eq_u64 s[%d:%d], -1' % (sM, sM + 1))
        if not (EXP.get('nohook') or EXP.get('dropm') or EXP.get('nosm') or EXP.get('nokv') or EXP.get('nord')):
            P.I('s_cbranch_scc1 %s' % R.lab('fast_ok%d' % site))
            P.I('s_mov_b32 s%d, %d' % (sRet, site))
            P.I('s_branch %s' % R.lab('slow'))
        P.label(R.lab('slow_ret%d' % site))
        P.label(R.lab('fast_ok%d' % site))
        for u in range(R.nq): P.I('v_rcp_f32_e32 v%d, v%d' % (lt(u), lt(u)))
    return f

def dma(v, srd, soff, imm, pol, tag):
    return ('buffer_load_dwordx4 v%d, s[%d:%d], s%d offen offset:%d %s lds' % (v, srd, srd + 3, soff, imm, pol), tag)

OTOUCH = 1; OTPOL = ''
CTOUCH = 1; CT_LINES = 24
TOUCH = 0
KVA = 1
def kv_groups(R):
    if KVA == 1: return [0]
    return [] if R.nq == 2 else [0, 1, 2, 3]

def dma_K(tag, R, wr=sWrK, soff=sKo, adv=True):
    ops = []
    for G in kv_groups(R):
        ops.append('s_add_u32 m0, s%d, %d' % (wr, G * 4096))
        if G: ops.append('s_add_u32 s%d, s%d, %d' % (sT2, soff, G * 4096))
        ops += [dma(KD + j, sK, sT2 if G else soff, j * 1024, KVPOL, tag) for j in range(4)]
    if adv and ops: ops.append('s_add_u32 s%d, s%d, 16384' % (sKo, sKo))
    return ops

def dma_V(tag, R, wr=sWrK, soff=sVo, adv=True):
    ops = []
    for G in kv_groups(R):
        ops.append('s_add_u32 m0, s%d, %d' % (wr, VOFF + G * 4096))
        if G: ops.append('s_add_u32 s%d, s%d, %d' % (sT2, soff, G * 4096))
        ops += [dma(VD + (j & 1), sV, sT2 if G else soff, j * 1024, KVPOL, tag) for j in range(4)]
    if adv and ops: ops.append('s_add_u32 s%d, s%d, 16384' % (sVo, sVo))
    return ops

def dma_Wrows(tag, row0, nrows, hreg, dest):
    ops = []
    for G in range(nrows // 16):
        if isinstance(dest, tuple) and len(dest) > 2:
            ops.append(atomic(['s_add_u32 s%d, s%d, %d' % (sT, dest[1], WOFF + G * 4096), 's_cmp_eq_u32 s%d, 3' % sHead, 's_cselect_b32 m0, %d, s%d' % (XBASE, sT)]))
        elif isinstance(dest, tuple): ops.append('s_add_u32 m0, s%d, %d' % (dest[1], WOFF + G * 4096))
        else: ops.append('s_mov_b32 m0, %d' % (dest + G * 4096))
        ops.append('s_add_u32 s%d, s%d, %d' % (sT2, hreg, (row0 + 16 * G) * 8192))
        for i in range(4): ops.append(dma(WD + i, sW, sT2, i * 1024, WPOL, tag))
    return ops

def dma_Warea(tag, g, hreg, dest):
    a = g >> 1
    if g % 2 == 0: return dma_Wrows(tag, 160 * a, 64, hreg, dest)
    return dma_Wrows(tag, 160 * a + 80, 80, hreg, dest)
def dma_WX(tag, g, hreg):
    return dma_Wrows(tag, 160 * (g >> 1) + 64, 16, hreg, XBASE)

X_SLOT = [0, 1, 2, 0, 2]
def dma_x(kt, nq):
    ops = []
    for j in range(4 * nq):
        ops.append('s_add_u32 m0, s70, %d' % (X_SLOT[kt] * SLOT + j * 1024))
        ops.append('s_mov_b32 s7, %d' % (j * 5120 + kt * 256))
        ops.append(('buffer_load_dwordx4 v%d, s[%d:%d], s7 offen %s lds' % (XV + (j & 3), sX, sX + 3, XPOL), 'x%d' % kt))
    return ops

def read_x(kt, nq):
    ops = [('WAITVM', 'x%d' % kt)]
    for kq in range(4):
        for u in range(nq):
            for e in range(2):
                if X_SLOT[kt] == 2: a, off = XR2 + 2 * kq + e, 0
                else: a, off = XR + 2 * kq + e, X_SLOT[kt] * SLOT
                d = xf(4 * kt + kq, u) + 2 * e
                ops.append(('ds_read_b64 %s, v%d offset:%d' % (ar(d, 2), a, off + u * 4096), 'xr%d' % kt))
    return ops

def fixed_kv(slot, kind, off, tag, R):
    fn = dma_K if kind == 'K' else dma_V
    ops = fn(tag, R, wr=sT, soff=sI, adv=False)
    if not ops: return []
    return ['s_add_u32 s%d, s%d, %d' % (sT, sW4096, slot * SLOT), 's_mov_b32 s%d, %d' % (sI, off)] + ops

def ring_advance(total=NSLOT * SLOT):
    return ['s_mov_b32 s%d, s%d' % (sWr, sRd),
            's_add_u32 s%d, s%d, s%d' % (sWrK, sRd, sW4096),
            's_add_u32 s%d, s%d, s%d' % (sRd, sRd, sSlot),
            's_cmp_eq_u32 s%d, %d' % (sRd, total),
            's_cselect_b32 s%d, s%d, s%d' % (sDelta, sWrap, sSlot),
            's_cselect_b32 s%d, 0, s%d' % (sRd, sRd)]

def atomic(ops):
    def f(P):
        for o in ops: P.I(o)
    f.cost = 4 * len(ops)
    return f

def cost_of(op):
    if callable(op): return getattr(op, 'cost', 60)
    t = op[0] if isinstance(op, tuple) else op
    if t.startswith('v_mfma'): return 8
    if t.startswith('buffer_'): return 20
    if t.startswith('v_exp') or t.startswith('v_rcp'): return 8
    return 4

class Step:
    def __init__(self, name, fr, paced=None, fixed=None, usesX=False):
        self.name = name; self.fr = fr; self.paced = paced or []; self.fixed = fixed or {}; self.usesX = usesX

def stamp(P, lane, real=False):
    P.I('%s s[72:73]' % ('s_memrealtime' if real else 's_memtime')); P.I('s_waitcnt lgkmcnt(0)')
    if isinstance(lane, int): P.I('v_writelane_b32 v%d, s72, %d' % (T4, lane))
    else: P.I('s_mov_b32 m0, s74'); P.I('v_writelane_b32 v%d, s72, m0' % T4)

class Emitter:
    def __init__(self, P, R):
        self.P = P; self.R = R
        self.fr = 0; self.uid = 0; self.ring_total = NSLOT * SLOT
        self.addr_regs = list(range(KA, KA + 4)) + list(range(VA, VA + 8))
    def emit_op(self, op):
        if isinstance(op, tuple):
            if op[0] == 'WAITVM': self.P.wait_vm(op[1])
            elif op[0] == 'WAITLGKM': self.P.wait_lgkm(op[1])
            else: self.P.I(op[0], op[1])
        elif callable(op): op(self.P)
        else: self.P.I(op)
    def issue_reads(self, f, upd, part=None):
        P = self.P; c = 0
        if part in (None, 0):
            f.frag = POOL + 4 * (self.fr % NPOOL); self.fr += 1
            self.uid += 1; f.tag = '%sf%d' % (self.R.name, self.uid)
        reads = f.reads if part is None else (f.reads[:1] if part == 0 else f.reads[1:])
        for (op, off, n, addr, imm) in reads:
            isx = isinstance(addr, tuple)
            a = addr[1] if isx else addr
            if a in upd:
                P.I('v_add_u32_e32 v%d, s%d, v%d' % (a, sDelta, a)); upd.discard(a); c += 4
            if isx:
                P.I('v_add_u32_e32 v%d, s%d, v%d' % (T2, sXc, a)); c += 4; a = T2
            if EXP.get('nord') and self.uid % int(EXP['nord']) != 0 and self.uid > 300: continue
            P.I('%s %s, v%d offset:%d' % (op, ar(f.frag + off, n), a, imm), f.tag); c += 4
        return c
    def boundary(self, nxt):
        P = self.P
        P.wait_lgkm('ALL')
        st = STAMP and not EXP.get('lite') and ((nxt.name[0] == 'O') == bool(EXP.get('ostamp')))
        arr = bool(EXP.get('arr'))
        if st and arr: stamp(P, 'dyn', bool(EXP.get('rt'))); P.I('s_add_u32 s74, s74, 1')
        P.wait_vm('ld_' + nxt.name)
        P.I('s_barrier')
        if st and not arr: stamp(P, 'dyn', bool(EXP.get('rt'))); P.I('s_add_u32 s74, s74, 1')
        if getattr(nxt, 'static', False): return set()
        if getattr(nxt, 'ring_total', None): self.ring_total = nxt.ring_total
        if getattr(nxt, 'va_only', False): self.addr_regs = list(range(VA, VA + 8))
        for o in ring_advance(self.ring_total): P.I(o)
        if nxt.usesX: P.I('s_sub_u32 s%d, %d, s%d' % (sXc, XBASE, sRd))
        return set(self.addr_regs)
    def run(self, steps, nxt_after, pre_issued, upd, valu, allow_left=False):
        P = self.P; R = self.R
        allf = []
        for si, s in enumerate(steps):
            for i, f in enumerate(s.fr): allf.append((si, i, f))
        n = len(allf)
        seq = allf + [(len(steps), i, f) for i, f in enumerate(nxt_after.fr)]
        first_of = {}
        for k, (si, i, f) in enumerate(seq):
            if i == 0: first_of[si] = k
        nread = pre_issued; entered = 0
        vq = list(valu); vp = 0; ppos = 0
        jobcost = {}; jobdone = {}
        for it in vq:
            if len(it) > 3: jobcost[it[3]] = jobcost.get(it[3], 0) + cost_of(it[0])
        for k in range(n):
            si, i, f = allf[k]
            s = steps[si]
            if i == 0: ppos = 0
            used = 0
            tgt = k
            if i % WAITW == 0:
                for d in range(1, WAITW):
                    if k + d < n and allf[k + d][0] == si and k + d < nread: tgt = k + d
                used += 4
            P.wait_lgkm(seq[tgt][2].tag)
            for mi, (d, b, c0) in enumerate(f.mfmas):
                if not (EXP.get('dropm') and s.name[0] == 'G' and (k * 2 + mi) % int(EXP['dropm']) == 0):
                    P.I('v_mfma_f32_16x16x32_bf16 %s, %s, %s, %s' % (d, ar(f.frag, 4), b, '0' if c0 else d))
                lastm = mi == len(f.mfmas) - 1
                if lastm:
                    nf = len(s.fr); last = getattr(s, 'paced_end', nf - 2 - D_BAR)
                    for o in s.fixed.get(i, []):
                        used += cost_of(o); self.emit_op(o)
                    p0 = getattr(s, 'paced_start', 0)
                    if p0 <= i <= last:
                        want = len(s.paced) if i == last else int(math.ceil(len(s.paced) * (i - p0 + 1) / float(last - p0 + 1)))
                        while ppos < want:
                            used += cost_of(s.paced[ppos]); self.emit_op(s.paced[ppos]); ppos += 1
                    if si + 1 in first_of and k == first_of[si + 1] - 1 - D_BAR and entered == si:
                        assert ppos == len(s.paced), (s.name, ppos, len(s.paced))
                        for a in sorted(upd): P.I('v_add_u32_e32 v%d, s%d, v%d' % (a, sDelta, a)); used += 4
                        nx = steps[si + 1] if si + 1 < len(steps) else nxt_after
                        upd = self.boundary(nx); entered = si + 1; used += 40
                if mi == 0:
                    ready = []
                    while nread < len(seq) and nread <= k + D_AHEAD and seq[nread][0] <= entered and (seq[nread][0] < len(steps) or nread - n < D_BAR):
                        ready.append(seq[nread][2]); nread += 1
                    at_bar = si + 1 in first_of and k == first_of[si + 1] - 1 - D_BAR
                    half = None
                    if SPLITR and len(f.mfmas) == 2 and len(ready) == 1 and len(ready[0].reads) == 2 and not at_bar:
                        half = ready[0]; used += self.issue_reads(half, upd, 0)
                    else:
                        for r in ready: used += self.issue_reads(r, upd)
                elif half is not None:
                    used += self.issue_reads(half, upd, 1); half = None
                while vp < len(vq):
                    it = vq[vp]; c = cost_of(it[0])
                    go = lastm and it[2] <= k
                    if not go and it[1] <= k:
                        if len(it) > 3:
                            js, je = it[3]
                            pos = k + (mi + 1) / float(len(f.mfmas))
                            due = jobcost[it[3]] * min(1.0, max(0.0, (pos - js) / float(je - js))) - jobdone.get(it[3], 0)
                            go = (due > 0 and used + c <= CAP1) or (due > LATE and used + c <= CAP2) or (used < 8 and due > -LEAD)
                        else: go = used + c <= R.budget
                    if not go: break
                    used += c; self.emit_op(it[0]); vp += 1
                    if len(it) > 3: jobdone[it[3]] = jobdone.get(it[3], 0) + c
                used = 0
            while nread < len(seq) and nread <= k + D_AHEAD and seq[nread][0] <= entered and (seq[nread][0] < len(steps) or nread - n < D_BAR):
                self.issue_reads(seq[nread][2], upd); nread += 1
        if allow_left: return upd, vp
        assert vp == len(vq), (vp, len(vq))
        return upd

def nm(k, g): return 'ld_%s%d' % (k, g)

def make_P(g, R):
    nq = R.nq; B = nq == 1
    fr = fr_Q(g, nq, tmajor=(g == 7))
    paced = []; fixed = {}
    wr = ('slot', sWr)
    if g == 0:
        if B: paced += dma_WX(nm('P', 1), 1, sWc) + dma_Warea(nm('P', 1), 1, sWc, SLOT_C(1))
        paced += dma_x(1, nq)
        if B: paced += dma_Warea(nm('P', 2), 2, sWc, SLOT_C(2))
        paced += dma_x(2, nq)
    if g == 1: fixed[0] = read_x(1, nq)
    if B and 1 <= g <= 5: paced += dma_Warea(nm('P', g + 2), g + 2, sWc, wr)
    if B and g in (2, 4, 6): paced = dma_WX(nm('P', g + 1), g + 1, sWc) + paced
    if g == 1: paced += dma_x(3, nq)
    if g == 2: fixed[0] = read_x(2, nq); paced += [('WAITLGKM', 'xr2')] + dma_x(4, nq)
    if g == 3: paced += fixed_kv(1, 'K', 0, nm('P', 7), R); fixed[8] = read_x(3, nq)
    if g == 4: paced += fixed_kv(0, 'K', 2 * 16384, nm('G', 1), R) + fixed_kv(0, 'V', 16384, nm('G', 1), R); fixed[4] = read_x(4, nq)
    if g == 5: paced += fixed_kv(2, 'K', 16384, nm('G', 0), R) + fixed_kv(2, 'V', 0, nm('G', 0), R)
    if B and g == 6: paced += dma_Warea(nm('G', 0), 0, sWn, wr)
    if B and g == 7: paced += dma_Warea(nm('G', 1), 1, sWn, wr) + ['s_mov_b32 s%d, s%d' % (sWc, sWn), 's_add_u32 s%d, s%d, 256' % (sWn, sWn)]
    if g == 7: fr = fr + fr_S(0, nq)
    return Step('P%d' % g, fr, paced, fixed, usesX=(g % 2 == 1))

def SLOT_C(n): return n * SLOT + WOFF

def make_G(g, R):
    nq = R.nq; B = nq == 1
    tgt = nm('G', (g + 2) % 8)
    paced = []
    if B and g % 2 == 0: paced += dma_WX(nm('G', g + 1), g + 1, sWc)
    if B and g == 6:
        paced += [atomic(['s_cmp_ge_u32 s%d, 2' % sHead, 's_cselect_b32 s%d, 0, s%d' % (sW + 2, sW + 2)])]
    if not EXP.get('nokv'): paced += dma_K(tgt, R) + dma_V(tgt, R)
    if B and OTOUCH and g < 5:
        if g == 0: paced.append(atomic(['s_cmp_eq_u32 s%d, 3' % sHead, 's_cselect_b32 s94, 655360, 0']))
        paced.append('s_mov_b32 s%d, %d' % (sT, g * 8192))
        paced.append(('buffer_load_dword v41, v40, s[92:95], s%d offen %s' % (sT, OTPOL), 'touch'))
    if B: paced += dma_Warea(tgt, (g + 2) % 8, sWc if g + 2 < 8 else sWn, ('slot', sWr, 'redirect') if g == 5 else ('slot', sWr))
    if B and g == 7: paced += ['s_mov_b32 s%d, s%d' % (sWc, sWn), 's_add_u32 s%d, s%d, 256' % (sWn, sWn)]
    if g < 7: fr = fr_S((g + 1) & 1, nq) + fr_Q(g, nq) + fr_PV(g, nq)
    else: fr = fr_Q(7, nq, True) + fr_PV(7, nq, True) + fr_S(0, nq)
    return Step('G%d' % g, fr, paced, usesX=(g % 2 == 1))

def o_setup(R):
    def f(P):
        lane_ids(P)
        if R.nq == 2:
            P.I('s_mul_i32 s%d, s%d, %d' % (sW4096, sWAVE, OGA * 4096)); P.I('s_mul_i32 s7, s%d, %d' % (sWAVE, OGA * 20480))
        else:
            P.I('s_mov_b32 s%d, 0' % sW4096); P.I('s_mov_b32 s7, 0')
        P.I('v_mul_u32_u24_e32 v11, 1280, v4')
        for i in range(4):
            swz8(P, 12, i & 1)
            P.I('v_add3_u32 v12, v12, v11, s7'); P.I('v_add_u32_e32 v%d, %d, v12' % (OD + i, i * (5120 - 1024)))
        P.I('s_mov_b32 s%d, s82' % sW); P.I('s_mov_b32 s%d, s83' % (sW + 1))
        P.I('s_mov_b32 s%d, 655360' % (sW + 2)); P.I('s_mov_b32 s%d, 0x20000' % (sW + 3))
        P.I('s_mov_b32 s%d, 0' % sWo)
    f.cost = 140
    return f

def o_setup2(R):
    def f(P):
        lane_ids(P)
        P.I('s_lshl_b32 s7, s%d, 11' % sWAVE)
        P.I('v_lshlrev_b32_e32 v11, 4, v0'); P.I('v_add_u32_e32 v%d, s7, v11' % OST)
        P.I('s_mov_b32 s%d, %d' % (sOo, (-4 * 7 * 1024) & 0xffffffff)); P.I('s_mov_b32 s%d, 0' % sNg)
        if OSTATIC:
            va_regs(P, 0, VA2)
            for t in range(8): P.I('v_add_u32_e32 v%d, 0x10000, v%d' % (VA2[t], VA2[t]))
        P.I('s_mov_b32 s%d, %d' % (sSlot, OSLOT)); P.I('s_mov_b32 s%d, %d' % (sWrap, (-(ONSLOT - 1) * OSLOT) & 0xffffffff))
    f.cost = 40
    return f

def make_GL(g, R):
    nq = R.nq
    paced = []
    for n in ((0, 1) if g == 6 else ((2,) if OSTATIC else (2, 3))):
        paced.append('s_add_u32 s%d, s%d, %d' % (sWrK, sW4096, (n + 1) * OSLOT))
        paced += odma('ld_O%d' % n, 163840 if n != 3 else 256 - 3 * 163840, R)
    if g == 6:
        return Step('G6', fr_S(1, nq) + fr_PV(6, nq), paced, {0: [o_setup(R)]})
    st = Step('G7', fr_PV(7, nq, True), paced, {0: [o_setup2(R)]})
    st.paced_end = 9; st.va_only = True
    return st

def valu_P(steps, R):
    base7 = sum(len(s.fr) for s in steps[:7])
    q = []
    for ks in range(4):
        for o in qconv(ks, R.nq): q.append((o, base7 + 6 * ks + 5 + 2, base7 + 23))
    return q

def valu_G(steps, R, last=False):
    nq = R.nq
    base = [0]
    for s in steps: base.append(base[-1] + len(s.fr))
    q = []; pend = []
    for g in range(8):
        nqf = 16 if g % 2 == 0 else 24
        if last and g >= 6: nqf = 0
        if g == 0: job = (0, JOB0)
        elif g == 1: job = (JOB0, base[1] + JOBS)
        elif last and g == 6: job = (base[5] + JOBS, base[6] + 14)
        elif last and g == 7: job = (base[6] + 14, base[7] - 2)
        elif g < 7: job = (base[g - 1] + JOBS, base[g] + JOBS)
        else: job = (base[6] + JOBS, base[7] + 5)
        for s in range(2):
            for u in range(nq):
                est = 0 if g == 0 else base[g - 1] + 8 * s + 7 + 3
                if g < 7: ddl = base[g] + 16 + nqf + 8 * s - 1
                elif last: ddl = base[7] - 1
                else: ddl = base[7] + 6
                if not EXP.get('nosm'):
                    ops, m = softmax_chunk(g & 1, u, s, g == 0 and s == 0)
                    for n, o in enumerate(ops):
                        q.append((o, est, ddl, job))
                        if n == 1 and pend: q.append((pend.pop(), est, ddl, job))
                    if m: pend.append(m)
            if g == 7 and s == 1 and pend: q.append((pend.pop(), est, ddl, job))
    b = base[7]
    if last:
        q.append((mk_check(R, 1), b, b + 1))
        job = (b + 4, b + 14)
        for s in range(4):
            for o in ofin(s, nq): q.append((o, b + 4 * s + 3 + 2, b + 15, job))
        def st3(P):
            for u in range(nq):
                for s in range(4):
                    for j in range(4): P.I('v_accvgpr_write_b32 a%d, v%d' % (STASH[3] + (u * 4 + s) * 4 + j, oa(u, 2 * s) + j))
        q.append((st3, b + 15, b + 15))
        return q
    q.append((mk_check(R), b, b + 7))
    job = (b + 8, b + QJOB)
    for ks in range(4):
        for o in qconv(ks, nq): q.append((o, b + 6 * ks + 5 + 2, b + 39, job))
    job = (b + QJOB, b + 54)
    for s in range(4):
        for o in ofin(s, nq): q.append((o, b + 24 + 4 * s + 3 + 2, b + 55, job))
    q.append((mk_stash(R), b + 54, b + 55))
    return q

def shift_q(q, off):
    out = []
    for it in q:
        if len(it) > 3: out.append((it[0], it[1] - off, it[2] - off, (it[3][0] - off, it[3][1] - off)))
        else: out.append((it[0], it[1] - off, it[2] - off))
    return out
JOB0 = 22; JOBS = 20; QJOB = 34

OGA = 1
def odma(tag, adv, R, dest=None):
    ops = []
    groups = list(range(OGA)) if R.nq == 2 else list(range(3 * OGA, 8))
    for G in groups:
        if dest is None: ops.append('s_add_u32 m0, s%d, %d' % (sWrK, G * 4096))
        else: ops.append('s_add_u32 m0, s%d, %d' % (sW4096, dest + G * 4096))
        ops.append('s_add_u32 s%d, s%d, %d' % (sT2, sWo, G * 20480))
        for i in range(4): ops.append(dma(OD + i, sW, sT2, i * 1024, OPOL, tag))
    ops.append('s_add_u32 s%d, s%d, %d' % (sWo, sWo, adv & 0xffffffff))
    return ops

PK = SB[0]
def ostore(R, n):
    jp, u = n // R.nq, n % R.nq
    return ['s_add_u32 s%d, s%d, %d' % (sT, sOo, (jp * 7 + u) * 1024),
            ('buffer_store_dwordx4 %s, v%d, s[%d:%d], s%d offen %s' % (vr(PK + (u * 4 + jp) * 4, 4), OST, sO, sO + 3, sT, PSTPOL), 'pst')]

OSLOT = 32768; ONSLOT = 5; OLA = 4
STPOS = 0
def make_O(hh, R):
    th = (hh + 3) & 3 if OSTATIC else hh
    tgt = 'ld_O%d' % th
    adv = 163840 if th != 3 else 256 - 3 * 163840
    pre = []
    if th == 0: pre = [atomic(['s_cmp_ge_u32 s%d, 4' % sNg, 's_cselect_b32 s%d, 0, s%d' % (sW + 2, sW + 2)])]
    loads = odma(tgt, adv, R, hh * OSLOT if OSTATIC else None)
    fixed = {}
    ns = 4 * R.nq
    if hh == 0: fixed[0] = [atomic(['s_cmp_eq_u32 s%d, 0' % sNg, 's_cselect_b32 s%d, 0, %d' % (sO + 2, PART)])]
    for n in range(ns):
        gpos = int((n + 0.5) * STSPAN / ns)
        if gpos // 32 == hh: fixed.setdefault(min(gpos % 32, 27), []).extend(ostore(R, n))
    if hh == 3: fixed.setdefault(12, []).append('s_add_u32 s%d, s%d, %d' % (sOo, sOo, 4 * 7 * 1024))
    st = Step('O%d' % hh, fr_O(hh, R.nq), pre + loads, fixed)
    st.static = bool(OSTATIC)
    return st

STSPAN = 96
OFIRST = 9
def valu_O(R):
    q = []; b = 96
    for jp in range(4):
        est = b + 4 * (2 * jp + 1) + 3 + 2
        for u in range(R.nq):
            p = PK + (u * 4 + jp) * 4
            for t in range(2):
                for j in range(2):
                    r = qa(u, 2 * jp + t) + 2 * j
                    q.append(('v_cvt_pk_bf16_f32 v%d, v%d, v%d' % (p + 2 * t + j, r, r + 1), est, 127))
    return q

def final_stores(P, E, R):
    P.I('s_mov_b32 s%d, %d' % (sO + 2, PART))
    for n in range(4 * R.nq):
        for o in ostore(R, n): E.emit_op(o)

def lane_ids(P):
    P.I('v_mbcnt_lo_u32_b32 v0, -1, 0'); P.I('v_mbcnt_hi_u32_b32 v0, -1, v0')
    P.I('v_and_b32_e32 v3, 15, v0'); P.I('v_lshrrev_b32_e32 v4, 4, v0')

def swz8(P, dst, p):
    P.I('v_add_u32_e32 v5, %d, v4' % (4 * p)); P.I('v_lshlrev_b32_e32 v5, 1, v5')
    P.I('v_xor_b32_e32 v5, v5, v3'); P.I('v_lshlrev_b32_e32 v%d, 4, v5' % dst)

def retag(P, start, old, new):
    for ins in P.ins[start:]:
        if ins.tag == old: ins.tag = new
        if ins.wait and ins.wait[1] == old: ins.wait = (ins.wait[0], new)

def oproj_phase(P, E, R):
    nq = R.nq
    P.I('s_waitcnt vmcnt(0) lgkmcnt(0)')
    P.I('s_barrier')
    lane_ids(P)
    if nq == 2:
        P.I('s_mul_i32 s%d, s%d, %d' % (sW4096, sWAVE, OGA * 4096)); P.I('s_mul_i32 s7, s%d, %d' % (sWAVE, OGA * 20480))
    else:
        P.I('s_mov_b32 s%d, 0' % sW4096); P.I('s_mov_b32 s7, 0')
    P.I('v_mul_u32_u24_e32 v11, 1280, v4')
    for i in range(4):
        swz8(P, 12, i & 1)
        P.I('v_add3_u32 v12, v12, v11, s7'); P.I('v_add_u32_e32 v%d, %d, v12' % (OD + i, i * (5120 - 1024)))
    P.I('s_mov_b32 s%d, s82' % sW); P.I('s_mov_b32 s%d, s83' % (sW + 1))
    P.I('s_mov_b32 s%d, 655360' % (sW + 2)); P.I('s_mov_b32 s%d, 0x20000' % (sW + 3))
    P.I('s_mov_b32 s%d, 0' % sWo)
    for n in range(4):
        P.I('s_add_u32 s%d, s%d, %d' % (sWrK, sW4096, n * OSLOT))
        for o in odma('ld_O%d' % n, 163840 if n != 3 else 256 - 3 * 163840, R): E.emit_op(o)
        if n == OFIRST: P.wait_vm('ld_O0'); P.I('s_barrier')
    P.I('s_mov_b32 s%d, %d' % (sSlot, OSLOT)); P.I('s_mov_b32 s%d, %d' % (sWrap, (-(ONSLOT - 1) * OSLOT) & 0xffffffff))
    E.ring_total = ONSLOT * OSLOT
    va_regs(P, 0)
    P.I('s_lshl_b32 s7, s%d, 11' % sWAVE)
    P.I('v_lshlrev_b32_e32 v11, 4, v0'); P.I('v_add_u32_e32 v%d, s7, v11' % OST)
    P.I('s_mov_b32 s%d, %d' % (sOo, (-4 * 7 * 1024) & 0xffffffff)); P.I('s_mov_b32 s%d, 0' % sNg); P.I('s_mov_b32 s%d, 0' % sRd)
    P.I('s_add_u32 s%d, s%d, %d' % (sWrK, sW4096, 4 * OSLOT))
    P.wait_vm('ld_O0')
    P.I('s_barrier')
    E.addr_regs = list(range(VA, VA + 8))
    osteps = [make_O(hh, R) for hh in range(4)]
    o0 = make_O(0, R)
    n_pre = len(P.ins)
    for i in range(D_BAR): E.issue_reads(osteps[0].fr[i], set())
    first = [(osteps[0].fr[i].tag, osteps[0].fr[i].frag) for i in range(D_BAR)]
    for i in range(D_BAR):
        retag(P, n_pre, first[i][0], '%so0pre%d' % (R.name, i)); osteps[0].fr[i].tag = '%so0pre%d' % (R.name, i)
    n0 = len(P.ins)
    P.label(R.lab('ng'))
    upd = E.run(osteps, o0, D_BAR, set(), valu_O(R))
    for a in sorted(upd): P.I('v_add_u32_e32 v%d, s%d, v%d' % (a, sDelta, a))
    for i in range(D_BAR):
        assert o0.fr[i].frag == first[i][1], (o0.fr[i].frag, first[i][1])
        retag(P, n0, o0.fr[i].tag, '%so0pre%d' % (R.name, i))
    P.I('s_add_u32 s%d, s%d, 1' % (sNg, sNg))
    P.I('s_cmp_lt_u32 s%d, 5' % sNg)
    P.I('s_cbranch_scc1 %s' % R.lab('ng'))
    n1 = len(P.ins)
    final_stores(P, E, R)
    return n0, n1

def va_regs(P, base, dst=None):
    P.I('v_lshrrev_b32_e32 v6, 2, v3'); P.I('v_and_b32_e32 v7, 3, v0')
    P.I('v_lshl_add_u32 v9, v4, 2, v6'); P.I('v_and_b32_e32 v8, 7, v9')
    P.I('v_lshlrev_b32_e32 v9, 8, v9'); P.I('v_lshl_add_u32 v9, v7, 3, v9')
    for t in range(8):
        P.I('v_xor_b32_e32 v11, %d, v8' % t)
        P.I('v_lshl_add_u32 v%d, v11, 5, v9' % (VA + t if dst is None else dst[t]))

sS2 = 88; sSI = 89
def slow_path(P, R):
    S0, S1 = SB
    P.label(R.lab('slow'))
    P.I('s_nop 15'); P.I('s_nop 15')
    T0, T1 = S1 + 22, S1 + 23
    P.I('v_mbcnt_lo_u32_b32 v%d, -1, 0' % T0); P.I('v_mbcnt_hi_u32_b32 v%d, -1, v%d' % (T0, T0))
    P.I('v_and_b32_e32 v%d, 15, v%d' % (T1, T0)); P.I('v_lshrrev_b32_e32 v%d, 4, v%d' % (T0, T0))
    KO, VO, VO2, MX, TM = S1 + 16, S1 + 17, S1 + 18, S1 + 19, S1 + 20
    P.I('v_lshlrev_b32_e32 v%d, 8, v%d' % (KO, T1)); P.I('v_lshl_add_u32 v%d, v%d, 4, v%d' % (KO, T0, KO))
    P.I('v_lshlrev_b32_e32 v%d, 10, v%d' % (VO, T0)); P.I('v_lshl_add_u32 v%d, v%d, 1, v%d' % (VO, T1, VO))
    P.I('v_add_u32_e32 v%d, 0x1000, v%d' % (VO2, VO))
    P.I('s_lshl_b32 s%d, s%d, 17' % (sHb, sHead))
    def s_tile(u, dst):
        for ks in range(4):
            P.I('buffer_load_dwordx4 %s, v%d, s[%d:%d], s%d offen offset:%d' % (vr(S0 + 4 * ks, 4), KO, sK, sK + 3, sS2, ks * 64))
        P.I('s_waitcnt vmcnt(0)')
        for ks in range(4):
            P.I('v_mfma_f32_16x16x32_bf16 %s, %s, %s, %s' % (vr(dst, 4), vr(S0 + 4 * ks, 4), vr(qf(u, ks), 4), '0' if ks == 0 else vr(dst, 4)))
        P.I('s_nop 15')
    for u in range(R.nq):
        P.I('v_mov_b32_e32 v%d, 0xff800000' % MX)
        P.I('s_mov_b32 s%d, 0' % sSI)
        P.label(R.lab('slow_max%d' % u))
        P.I('s_lshl_b32 s%d, s%d, 12' % (sS2, sSI)); P.I('s_add_u32 s%d, s%d, s%d' % (sS2, sS2, sHb))
        s_tile(u, S0 + 16)
        P.I('v_max3_f32 v%d, v%d, v%d, v%d' % (MX, MX, S0 + 16, S0 + 17)); P.I('v_max3_f32 v%d, v%d, v%d, v%d' % (MX, MX, S0 + 18, S0 + 19))
        P.I('s_add_u32 s%d, s%d, 1' % (sSI, sSI)); P.I('s_cmp_lt_u32 s%d, 32' % sSI); P.I('s_cbranch_scc1 %s' % R.lab('slow_max%d' % u))
        lane_reduce(P, MX, TM, 'v_max_f32_e32')
        P.I('v_mov_b32_e32 v%d, 0' % lt(u))
        for r in range(32): P.I('v_mov_b32_e32 v%d, 0' % (oa(u, 0) + r))
        P.I('s_mov_b32 s%d, 0' % sSI)
        P.label(R.lab('slow_pv%d' % u))
        P.I('s_lshl_b32 s%d, s%d, 13' % (sS2, sSI)); P.I('s_add_u32 s%d, s%d, s%d' % (sS2, sS2, sHb))
        s_tile(u, S0 + 16)
        P.I('s_add_u32 s%d, s%d, 4096' % (sS2, sS2))
        s_tile(u, S0 + 20)
        P.I('s_sub_u32 s%d, s%d, 4096' % (sS2, sS2))
        for r in range(8): P.I('v_sub_f32_e32 v%d, v%d, v%d' % (S0 + 16 + r, S0 + 16 + r, MX))
        for r in range(8): P.I('v_exp_f32_e32 v%d, v%d' % (S0 + 16 + r, S0 + 16 + r))
        P.I('s_nop 0')
        for r in range(8): P.I('v_add_f32_e32 v%d, v%d, v%d' % (lt(u), lt(u), S0 + 16 + r))
        for j in range(4): P.I('v_cvt_pk_bf16_f32 v%d, v%d, v%d' % (S0 + 24 + j, S0 + 16 + 2 * j, S0 + 17 + 2 * j))
        for t in range(8):
            for i in range(8):
                P.I('buffer_load_ushort v%d, v%d, s[%d:%d], s%d offen offset:%d' % (S1 + i, VO if i < 4 else VO2, sV, sV + 3, sS2, (i & 3) * 256 + t * 32))
            P.I('s_waitcnt vmcnt(0)')
            for j in range(4): P.I('v_lshl_or_b32 v%d, v%d, 16, v%d' % (S1 + 8 + j, S1 + 2 * j + 1, S1 + 2 * j))
            P.I('s_nop 1')
            P.I('v_mfma_f32_16x16x32_bf16 %s, %s, %s, %s' % (vr(oa(u, t), 4), vr(S1 + 8, 4), vr(S0 + 24, 4), vr(oa(u, t), 4)))
            P.I('s_nop 7')
        P.I('s_add_u32 s%d, s%d, 1' % (sSI, sSI)); P.I('s_cmp_lt_u32 s%d, 16' % sSI); P.I('s_cbranch_scc1 %s' % R.lab('slow_pv%d' % u))
        lane_reduce(P, lt(u), TM, 'v_add_f32_e32')
    for u in range(R.nq):
        for s in range(2):
            for j in range(4): P.I('v_mov_b32_e32 v%d, 0' % (preg(1, u, s) + j))
    P.I('s_nop 15')
    P.I('s_cmp_eq_u32 s%d, 0' % sRet)
    P.I('s_cbranch_scc1 %s' % R.lab('slow_ret0'))
    P.I('s_branch %s' % R.lab('slow_ret1'))

def final_stamps(P):
    stamp(P, 60, True); stamp(P, 61)
    P.I('v_writelane_b32 v%d, s78, 1' % T4); P.I('v_writelane_b32 v%d, s76, 0' % T4)
    P.I('s_lshl_b32 s72, s2, 2'); P.I('s_add_u32 s72, s72, s%d' % sWAVE); P.I('s_lshl_b32 s72, s72, 8')
    P.I('s_add_u32 s72, s72, 0x4000000')
    P.I('s_add_u32 s68, s68, s72'); P.I('s_addc_u32 s69, s69, 0')
    P.I('v_mbcnt_lo_u32_b32 v0, -1, 0'); P.I('v_mbcnt_hi_u32_b32 v0, -1, v0'); P.I('v_lshlrev_b32_e32 v0, 2, v0')
    P.I('global_store_dword v0, v%d, s[68:69]' % T4)
    P.I('s_waitcnt vmcnt(0)')

def role_code(P, R):
    nq = R.nq
    start = len(P.ins)
    P.label(R.lab('start'))
    E = Emitter(P, R)
    if nq == 1 and TOUCH:
        P.I('v_lshrrev_b32_e32 v5, 1, v0'); P.I('s_mul_i32 s7, s4, 40'); P.I('v_add_u32_e32 v5, s7, v5')
        P.I('v_lshlrev_b32_e32 v5, 13, v5'); P.I('v_and_b32_e32 v11, 1, v0'); P.I('v_lshl_add_u32 v5, v11, 7, v5')
        P.I('v_add_u32_e32 v11, %d, v5' % (32 * 8192))
        P.I('v_cmp_gt_u32_e32 vcc, 16, v0'); P.I('v_mov_b32_e32 v12, 0x40000000'); P.I('v_cndmask_b32_e32 v11, v12, v11, vcc')
        P.I('buffer_load_dword v40, v5, s[%d:%d], 0 offen' % (sW, sW + 3), 'touch')
        P.I('buffer_load_dword v41, v11, s[%d:%d], 0 offen' % (sW, sW + 3), 'touch')
    for o in dma_x(0, nq): E.emit_op(o)
    if nq == 1:
        for i in range(4):
            swz8(P, 12, i & 1)
            P.I('v_lshl_add_u32 v12, v4, 13, v12'); P.I('v_add_u32_e32 v%d, %d, v12' % (WD + i, i * (32768 - 1024)))
        for o in dma_Warea(nm('P', 0), 0, sWc, SLOT_C(0)): E.emit_op(o)
    if STAMP: stamp(P, 3)
    if nq == 1 and CTOUCH:
        P.I('s_getpc_b64 s[96:97]')
        P.label('L_pc_here')
        P.I('s_sub_u32 s96, s96, L_pc_here-L_code_start'); P.I('s_subb_u32 s97, s97, 0')
        P.I('s_lshr_b32 s7, s2, 3'); P.I('s_mul_i32 s7, s7, %d' % (CT_LINES * 128))
        P.I('v_lshlrev_b32_e32 v5, 7, v0'); P.I('v_add_u32_e32 v5, s7, v5')
        P.I('v_min_u32_e32 v5, L_end-L_code_start-4, v5'); P.I('v_and_b32_e32 v5, 0xfffffffc, v5')
        P.I('global_load_dword v42, v5, s[96:97]', 'touch')
    late_setup(P)
    for ks in range(4):
        P.I('v_add_u32_e32 v5, %d, v4' % (4 * ks)); P.I('v_xor_b32_e32 v5, v5, v3'); P.I('v_lshlrev_b32_e32 v5, 4, v5')
        P.I('v_lshl_add_u32 v%d, v3, 8, v5' % (KA + ks))
    va_regs(P, 0)
    for kq in range(4):
        for e in range(2):
            P.I('v_lshrrev_b32_e32 v5, 1, v4'); P.I('v_add_u32_e32 v5, %d, v5' % (4 * kq + 2 * e))
            P.I('v_xor_b32_e32 v5, v5, v3'); P.I('v_lshlrev_b32_e32 v5, 4, v5')
            P.I('v_lshl_add_u32 v5, v3, 8, v5'); P.I('v_and_b32_e32 v11, 1, v4'); P.I('v_lshl_add_u32 v5, v11, 3, v5')
            P.I('v_add_u32_e32 v%d, s70, v5' % (XR + 2 * kq + e))
            P.I('v_add_u32_e32 v%d, %d, v%d' % (XR2 + 2 * kq + e, 2 * SLOT, XR + 2 * kq + e))
    for j in range(4):
        P.I('v_add_u32_e32 v5, %d, v4' % (4 * j)); P.I('v_xor_b32_e32 v5, v5, v3'); P.I('v_lshlrev_b32_e32 v5, 4, v5')
        P.I('v_lshl_add_u32 v5, v4, 8, v5'); P.I('v_add_u32_e32 v%d, s%d, v5' % (KD + j, sW4096))
    for p in range(2):
        swz8(P, 12, p)
        P.I('v_lshl_add_u32 v12, v4, 8, v12'); P.I('v_add_u32_e32 v%d, s%d, v12' % (VD + p, sW4096))
    for j in range(4): P.I('v_mov_b32_e32 v%d, 0x3f803f80' % (ONES + j))
    if nq == 1 and OTOUCH:
        P.I('s_mul_i32 s7, s4, %d' % (320 * 128)); P.I('v_lshlrev_b32_e32 v40, 7, v0'); P.I('v_add_u32_e32 v40, s7, v40')
        P.I('s_mov_b32 s92, s82'); P.I('s_mov_b32 s93, s83'); P.I('s_mov_b32 s94, 0'); P.I('s_mov_b32 s95, 0x20000')
    for o in read_x(0, nq): E.emit_op(o)
    if STAMP: P.I('s_waitcnt lgkmcnt(0)'); stamp(P, 44)
    P.wait_vm(nm('P', 0))
    P.I('s_barrier')
    if STAMP: P.I('s_waitcnt lgkmcnt(0)'); stamp(P, 2)
    psteps = [make_P(g, R) for g in range(8)]
    gsteps = [make_G(g, R) for g in range(8)]
    for i in range(D_BAR): E.issue_reads(psteps[0].fr[i], set())
    g0 = make_G(0, R)
    n_pre = len(P.ins)
    upd = E.run(psteps, g0, D_BAR, set(), valu_P(psteps, R))
    for i in range(D_BAR):
        gsteps[0].fr[i].frag = g0.fr[i].frag; gsteps[0].fr[i].tag = '%sg0pre%d' % (R.name, i)
        retag(P, n_pre, g0.fr[i].tag, '%sg0pre%d' % (R.name, i))
    if STAMP: P.I('s_waitcnt lgkmcnt(0)'); stamp(P, 56, True); stamp(P, 57)
    pro_end = len(P.ins)
    P.label(R.lab('head'))
    vq = valu_G(gsteps, R)
    g6 = make_G(6, R)
    upd6, vp = E.run(gsteps[:6], g6, D_BAR, set(upd), vq, allow_left=True)
    off6 = sum(len(s_.fr) for s_ in gsteps[:6])
    lsteps = [make_GL(6, R), make_GL(7, R)]
    for i in range(D_BAR):
        retag(P, pro_end, g6.fr[i].tag, '%sg6pre%d' % (R.name, i))
        for st_ in (gsteps[6], lsteps[0]):
            st_.fr[i].frag = g6.fr[i].frag; st_.fr[i].tag = '%sg6pre%d' % (R.name, i)
    fr6 = E.fr
    P.I('s_cmp_eq_u32 s%d, 3' % sHead)
    P.I('s_cbranch_scc1 %s' % R.lab('last'))
    p1_end = len(P.ins)
    g0n = make_G(0, R)
    upd2 = E.run(gsteps[6:], g0n, D_BAR, set(upd6), shift_q(vq[vp:], off6))
    assert upd2 == upd, (upd2, upd)
    for i in range(D_BAR):
        assert g0n.fr[i].frag == g0.fr[i].frag, (g0n.fr[i].frag, g0.fr[i].frag)
        retag(P, p1_end, g0n.fr[i].tag, '%sg0pre%d' % (R.name, i))
    P.I('s_add_u32 s%d, s%d, 1' % (sHead, sHead))
    P.I('s_branch %s' % R.lab('head'))
    p2_end = len(P.ins)
    P.label(R.lab('last'))
    E.fr = fr6
    vql = valu_G(gsteps[:6] + lsteps, R, last=True)
    for a_, b_ in zip(vq[:vp], vql[:vp]): assert a_[0] == b_[0] or callable(a_[0]), (a_[0], b_[0])
    osteps = [make_O(hh, R) for hh in range(4)]
    o0 = make_O(0, R); o0.ring_total = ONSLOT * OSLOT
    updo = E.run(lsteps, o0, D_BAR, set(upd6), shift_q(vql[vp:], off6))
    for a in sorted(updo): P.I('v_add_u32_e32 v%d, s%d, v%d' % (a, sDelta, a))
    for i in range(D_BAR):
        retag(P, p2_end, o0.fr[i].tag, '%so0pre%d' % (R.name, i))
        osteps[0].fr[i].frag = o0.fr[i].frag; osteps[0].fr[i].tag = '%so0pre%d' % (R.name, i)
    if STAMP: P.I('s_waitcnt lgkmcnt(0)'); stamp(P, 58, True); stamp(P, 59)
    body_end = len(P.ins)
    on0 = len(P.ins)
    P.label(R.lab('ng'))
    o0n = make_O(0, R)
    updn = E.run(osteps, o0n, D_BAR, set(), valu_O(R))
    for a in sorted(updn): P.I('v_add_u32_e32 v%d, s%d, v%d' % (a, sDelta, a))
    for i in range(D_BAR):
        assert o0n.fr[i].frag == o0.fr[i].frag, (o0n.fr[i].frag, o0.fr[i].frag)
        retag(P, on0, o0n.fr[i].tag, '%so0pre%d' % (R.name, i))
    P.I('s_add_u32 s%d, s%d, 1' % (sNg, sNg))
    P.I('s_cmp_lt_u32 s%d, 5' % sNg)
    P.I('s_cbranch_scc1 %s' % R.lab('ng'))
    on1 = len(P.ins)
    final_stores(P, E, R)
    P.I('s_waitcnt vmcnt(0) lgkmcnt(0)')
    if FUSE:
        if STAMP: stamp(P, 62, True)
        P.I('s_branch L_red')
    else:
        if STAMP: final_stamps(P)
        P.I('s_endpgm')
    slow_path(P, R)
    end = len(P.ins)
    I = P.ins
    marks = [I[start], I[pro_end], I[p1_end], I[p2_end], I[on0], I[on1]]
    return dict(marks=marks)

def dyn_seq(parts):
    pro, p1, p2, lastp, ng = parts
    return pro + (p1 + p2) * 2 + p1 + lastp + ng * 3

BALANCE = 1
def split_parts(P, info):
    pos = [next(k for k, i in enumerate(P.ins) if i is m) for m in info['marks']]
    return pos, [P.ins[pos[n]:pos[n + 1]] for n in range(5)]

def rebalance(P, info):
    pos, parts = split_parts(P, info)
    firsts = [P.ins[p] for p in pos]
    out = []
    for seg in parts:
        seg2, moved = balance_gaps(seg)
        out.append(seg2)
    P.ins[pos[0]:pos[5]] = sum(out, [])
    n = pos[0]; marks = []
    for seg in out:
        marks.append(P.ins[n]); n += len(seg)
    marks.append(P.ins[n])
    info['marks'] = marks


FUSE = 0
SPIN = 400000
RLPOL = 'sc1'; RSPOL = ''
def fused_tail(P):
    P.label('L_red')
    P.I('s_load_dwordx2 s[96:97], s[0:1], 80')
    P.I('s_load_dwordx2 s[90:91], s[0:1], 88')
    P.I('s_lshl_b32 s52, s5, 4'); P.I('s_add_u32 s52, s52, s4')
    P.I('s_lshl_b32 s53, s52, 2')
    P.I('v_mbcnt_lo_u32_b32 v0, -1, 0'); P.I('v_mbcnt_hi_u32_b32 v0, -1, v0')
    P.I('v_mov_b32_e32 v1, s53'); P.I('v_mov_b32_e32 v2, 1')
    P.I('s_barrier')
    P.I('s_waitcnt lgkmcnt(0)')
    P.I('s_cmp_eq_u32 s%d, 0' % sWAVE)
    P.I('s_cbranch_scc0 L_red_wait')
    P.I('s_mov_b64 s[54:55], exec')
    P.I('s_mov_b64 exec, 1')
    P.I('global_atomic_add v1, v2, s[90:91] sc1')
    P.I('s_mov_b32 s56, 0')
    P.label('L_red_poll')
    P.I('global_load_dword v3, v1, s[90:91] sc1')
    P.I('s_waitcnt vmcnt(0)')
    P.I('v_readfirstlane_b32 s57, v3')
    P.I('s_add_u32 s56, s56, 1')
    P.I('s_cmp_ge_u32 s57, 8')
    P.I('s_cbranch_scc1 L_red_go')
    P.I('s_cmp_lt_u32 s56, %d' % SPIN)
    P.I('s_cbranch_scc0 L_red_go')
    P.I('s_sleep 2')
    P.I('s_branch L_red_poll')
    P.label('L_red_go')
    P.I('s_mov_b64 exec, s[54:55]')
    P.label('L_red_wait')
    P.I('s_barrier')
    P.I('s_mul_i32 s58, s52, %d' % (8 * PART))
    if WSOFF: P.I('s_add_u32 s58, s58, %d' % WSOFF)
    P.I('s_add_u32 s8, s68, s58'); P.I('s_addc_u32 s9, s69, 0')
    P.I('s_mov_b32 s10, %d' % (8 * PART)); P.I('s_mov_b32 s11, 0x20000')
    P.I('s_mov_b32 s12, s96'); P.I('s_mov_b32 s13, s97'); P.I('s_mov_b32 s14, %d' % (16 * 112 * 2560)); P.I('s_mov_b32 s15, 0x20000')
    P.I('v_lshlrev_b32_e32 v2, 4, v0')
    P.I('v_and_b32_e32 v3, 15, v0'); P.I('v_lshrrev_b32_e32 v4, 4, v0')
    P.I('v_mul_u32_u24_e32 v5, 2560, v3'); P.I('v_lshl_add_u32 v5, v4, 4, v5')
    P.I('s_lshl_b32 s59, s6, 2'); P.I('s_add_u32 s59, s59, s%d' % sWAVE)
    P.I('s_mul_i32 s60, s4, %d' % (112 * 2560)); P.I('s_mul_i32 s61, s5, 1280'); P.I('s_add_u32 s60, s60, s61')
    for k in range(3):
        P.I('s_add_u32 s61, s59, %d' % (32 * k))
        P.I('s_mul_i32 s62, s61, 37'); P.I('s_lshr_b32 s62, s62, 8')
        P.I('s_mul_i32 s63, s62, 7'); P.I('s_sub_u32 s63, s61, s63')
        P.I('s_mul_i32 s64, s62, 14'); P.I('s_add_u32 s64, s64, s63'); P.I('s_lshl_b32 s64, s64, 10')
        P.I('s_lshl_b32 s65, s62, 7'); P.I('s_mul_i32 s66, s63, %d' % (16 * 2560)); P.I('s_add_u32 s65, s65, s66'); P.I('s_add_u32 s65, s65, s60')
        P.I('s_cmp_lt_u32 s61, 70')
        P.I('s_cselect_b32 s64, s64, 0x40000000'); P.I('s_cselect_b32 s%d, s65, 0x40000000' % (98 + k))
        for half in range(2):
            for hg in range(8):
                r = 16 + ((k * 2 + half) * 8 + hg) * 4
                P.I('s_add_u32 s66, s64, %d' % (hg * PART + half * 7168))
                P.I('buffer_load_dwordx4 v[%d:%d], v2, s[8:11], s66 offen %s' % (r, r + 3, RLPOL), 'rl%d_%d_%d' % (k, half, hg))
    for k in range(3):
        for half in range(2):
            acc = 208 + half * 8
            for hg in range(8):
                P.wait_vm('rl%d_%d_%d' % (k, half, hg))
                r = 16 + ((k * 2 + half) * 8 + hg) * 4
                for j in range(4):
                    if hg == 0:
                        P.I('v_lshlrev_b32_e32 v%d, 16, v%d' % (acc + 2 * j, r + j))
                        P.I('v_and_b32_e32 v%d, 0xffff0000, v%d' % (acc + 2 * j + 1, r + j))
                    else:
                        P.I('v_lshlrev_b32_e32 v7, 16, v%d' % (r + j))
                        P.I('v_and_b32_e32 v8, 0xffff0000, v%d' % (r + j))
                        P.I('v_add_f32_e32 v%d, v%d, v7' % (acc + 2 * j, acc + 2 * j))
                        P.I('v_add_f32_e32 v%d, v%d, v8' % (acc + 2 * j + 1, acc + 2 * j + 1))
            o = 224 + ((k * 2 + half) & 1) * 4
            for j in range(4): P.I('v_cvt_pk_bf16_f32 v%d, v%d, v%d' % (o + j, acc + 2 * j, acc + 2 * j + 1))
            for op in ('v_permlane32_swap_b32_e32', 'v_permlane16_swap_b32_e32'):
                P.I('%s v%d, v%d' % (op, o, o + 2)); P.I('%s v%d, v%d' % (op, o + 1, o + 3))
            P.I('buffer_store_dwordx4 v[%d:%d], v5, s[12:15], s%d offen offset:%d %s' % (o, o + 3, 98 + k, half * 64, RSPOL), 'rst')
    P.I('s_waitcnt vmcnt(0)')

def late_setup(P):
    P.I('s_lshl_b32 s7, s4, 5'); P.I('s_add_u32 s7, s7, s86'); P.I('s_lshl_b32 s71, s7, 17')
    P.I('s_add_u32 s%d, s54, s71' % sK); P.I('s_addc_u32 s%d, s55, 0' % (sK + 1))
    P.I('s_mov_b32 s%d, 524288' % (sK + 2)); P.I('s_mov_b32 s%d, 0x20000' % (sK + 3))
    P.I('s_add_u32 s%d, s56, s71' % sV); P.I('s_addc_u32 s%d, s57, 0' % (sV + 1))
    P.I('s_mov_b32 s%d, 524288' % (sV + 2)); P.I('s_mov_b32 s%d, 0x20000' % (sV + 3))
    P.I('s_mul_i32 s71, s86, 163840')
    P.I('s_add_u32 s82, s82, s71'); P.I('s_addc_u32 s83, s83, 0')
    P.I('s_lshl_b32 s71, s5, 4'); P.I('s_add_u32 s71, s71, s4'); P.I('s_lshl_b32 s71, s71, 3'); P.I('s_add_u32 s71, s71, s6')
    P.I('s_mul_i32 s71, s71, %d' % PART)
    if WSOFF: P.I('s_add_u32 s71, s71, %d' % WSOFF)
    P.I('s_add_u32 s%d, s68, s71' % sO); P.I('s_addc_u32 s%d, s69, 0' % (sO + 1))
    P.I('s_mov_b32 s%d, %d' % (sO + 2, PART)); P.I('s_mov_b32 s%d, 0x20000' % (sO + 3))
    if KVA == 1: P.I('s_lshl_b32 s%d, s%d, 12' % (sW4096, sWAVE))
    else: P.I('s_mov_b32 s%d, 0' % sW4096)
    P.I('s_mov_b32 s%d, %d' % (sSlot, SLOT)); P.I('s_mov_b32 s%d, %d' % (sWrap, (-2 * SLOT) & 0xffffffff))
    P.I('s_mov_b32 s%d, 0x%x' % (sC, QSCALE))
    P.I('s_mov_b32 s%d, 0' % sHead); P.I('s_mov_b32 s%d, 0' % sRd)
    P.I('s_mov_b32 s%d, %d' % (sKo, 3 * 16384)); P.I('s_mov_b32 s%d, %d' % (sVo, 2 * 16384))

def gen_k16(name='attn_kernel'):
    P = Prog()
    P.label('L_code_start')
    P.I('s_cmp_ge_u32 s2, 256')
    P.I('s_cbranch_scc1 L_end')
    P.I('s_load_dwordx8 s[52:59], s[0:1], 0')
    P.I('s_load_dwordx8 s[60:67], s[0:1], 40')
    P.I('s_load_dwordx2 s[68:69], s[0:1], 96')
    P.I('s_load_dwordx2 s[82:83], s[0:1], 32')
    P.I('s_load_dwordx2 s[84:85], s[0:1], 72')
    if STAMP:
        P.I('s_memtime s[76:77]'); P.I('s_memrealtime s[78:79]'); P.I('s_mov_b32 s74, 4')
    P.I('v_lshrrev_b32_e32 v1, 6, v0')
    P.I('v_and_b32_e32 v0, 63, v0')
    P.I('s_and_b32 s3, s2, 7')
    P.I('v_readfirstlane_b32 s%d, v1' % sWAVE)
    P.I('s_lshr_b32 s4, s2, 3'); P.I('s_lshr_b32 s5, s3, 2')
    P.I('s_and_b32 s6, s3, 3'); P.I('s_lshl_b32 s6, s6, 1'); P.I('s_and_b32 s7, s4, 1'); P.I('s_add_u32 s6, s6, s7')
    P.I('s_lshr_b32 s4, s4, 1')
    P.I('v_and_b32_e32 v3, 15, v0'); P.I('v_lshrrev_b32_e32 v4, 4, v0')
    P.I('s_lshl_b32 s70, s%d, 13' % sWAVE)
    P.I('s_mul_i32 s71, s%d, %d' % (sWAVE, 32 * 1280))
    P.I('v_mul_u32_u24_e32 v11, 1280, v4')
    for jj in range(4):
        P.I('v_add_u32_e32 v5, %d, v4' % (4 * jj)); P.I('v_xor_b32_e32 v5, v5, v3'); P.I('v_lshlrev_b32_e32 v5, 4, v5')
        P.I('v_add3_u32 v%d, v5, v11, s71' % (XV + jj))
    P.I('s_waitcnt lgkmcnt(0)')
    P.I('s_cmp_eq_u32 s5, 0')
    for i in range(8): P.I('s_cselect_b32 s%d, s%d, s%d' % (52 + i, 52 + i, 60 + i))
    P.I('s_cselect_b32 s82, s82, s84'); P.I('s_cselect_b32 s83, s83, s85')
    P.I('s_mul_i32 s7, s4, 143360')
    P.I('s_add_u32 s%d, s52, s7' % sX); P.I('s_addc_u32 s%d, s53, 0' % (sX + 1))
    P.I('s_mov_b32 s%d, 143360' % (sX + 2)); P.I('s_mov_b32 s%d, 0x20000' % (sX + 3))
    P.I('s_lshl_b32 s86, s6, 2')
    P.I('s_lshl_b32 s71, s86, 8')
    P.I('s_add_u32 s%d, s58, s71' % sW); P.I('s_addc_u32 s%d, s59, 0' % (sW + 1))
    P.I('s_sub_u32 s%d, 5242880, s71' % (sW + 2)); P.I('s_mov_b32 s%d, 0x20000' % (sW + 3))
    P.I('s_mov_b32 s%d, 0' % sWc); P.I('s_mov_b32 s%d, 256' % sWn)
    P.I('s_cmp_eq_u32 s%d, 3' % sWAVE)
    P.I('s_cbranch_scc0 L_A_start')
    P.I('s_branch L_B_start')
    head = list(P.ins)
    RA, RB = Role('A', 2), Role('B', 1)
    a = role_code(P, RA)
    b = role_code(P, RB)
    if BALANCE:
        for info in (a, b): rebalance(P, info)
    red0 = len(P.ins)
    if FUSE:
        fused_tail(P)
        if STAMP: final_stamps(P)
        P.I('s_endpgm')
    red_ins = P.ins[red0:]
    P.label('L_end')
    P.I('s_endpgm')
    for info in (a, b):
        pos, parts = split_parts(P, info)
        info['tail'] = P.ins[pos[5]:pos[5] + 40]
        resolve_waits(head + dyn_seq(parts))
    if FUSE: resolve_waits(red_ins)
    drop_optional(P)
    P.pad()
    bad = 0
    def at(lab): return [k for k, i in enumerate(P.ins) if i.label == lab][0]
    for R in (RA, RB):
        h, l, n_ = at(R.lab('head')), at(R.lab('last')), at(R.lab('ng'))
        br_last = [k for k, i in enumerate(P.ins) if i.op == 's_cbranch_scc1' and i.text.endswith(R.lab('last'))][0]
        br_ng = [k for k, i in enumerate(P.ins) if i.op == 's_cbranch_scc1' and i.text.endswith(R.lab('ng'))][0]
        I = P.ins
        bad += check_hazards(I[h - 60:l], name)
        bad += check_hazards(I[l - 60:l] + I[h:h + 80], name)
        bad += check_hazards(I[br_last - 60:br_last + 1] + I[l:br_ng + 1], name)
        bad += check_hazards(I[br_ng - 60:br_ng + 1] + I[n_:n_ + 80], name)
    if FUSE: bad += check_hazards(P.ins[at('L_red'):], name)
    assert bad == 0
    return P

if __name__ == '__main__':
    print(gen_k16().text())
```

```python
import re

RE_REG = re.compile(r'\b([vas])\[(\d+):(\d+)\]|\b([vas])(\d+)\b')

def regs_of(tok):
    tok = tok.strip()
    out = set()
    if tok in ('vcc',):
        return {('s', 'vcc')}
    if tok == 'exec':
        return {('s', 'exec')}
    if tok == 'm0':
        return {('s', 'm0')}
    m = re.fullmatch(r'-?\|?([vas])\[(\d+):(\d+)\]\|?', tok)
    if m:
        return {(m.group(1), i) for i in range(int(m.group(2)), int(m.group(3)) + 1)}
    m = re.fullmatch(r'-?\|?([vas])(\d+)\|?', tok)
    if m:
        return {(m.group(1), int(m.group(2)))}
    return out

TRANS = ('v_exp_f32', 'v_log_f32', 'v_rcp_f32', 'v_rsq_f32', 'v_sqrt_f32', 'v_sin_f32', 'v_cos_f32')

class Ins:
    __slots__ = ('text', 'op', 'kind', 'rd', 'wr', 'tag', 'wait', 'passes', 'srcc', 'srcab', 'dst', 'states', 'label', 'wide_store_data', 'optional', 'ignore', 'cond')
    def __init__(self, text, tag=None):
        self.text = text
        self.tag = tag
        self.wait = None
        self.rd = set(); self.wr = set()
        self.passes = 0; self.srcc = set(); self.srcab = set(); self.dst = set()
        self.states = 1
        self.label = None
        self.wide_store_data = set()
        self.optional = False
        self.ignore = False
        self.cond = False
        t = text.split(';')[0].strip()
        if t.endswith(':'):
            self.kind = 'label'; self.op = ''; self.label = t[:-1]; self.states = 0
            return
        if not t or t.startswith('.'):
            self.kind = 'directive'; self.op = ''; self.states = 0
            return
        parts = t.split(None, 1)
        op = parts[0]; self.op = op
        ops = []
        if len(parts) > 1:
            ops = [x.strip() for x in parts[1].split(',')]
            last = ops[-1].split()
            ops[-1] = last[0]
            mods = last[1:]
        else:
            mods = []
        base = re.sub(r'_e(32|64)$', '', op)
        if op.startswith('v_mfma'):
            self.kind = 'mfma'
            self.passes = 8 if '32x32x16' in op else 4
            self.dst = regs_of(ops[0]); self.wr = set(self.dst)
            self.srcab = regs_of(ops[1]) | regs_of(ops[2])
            self.srcc = regs_of(ops[3])
            self.rd = self.srcab | self.srcc
        elif op.startswith('ds_read') or op.startswith('ds_bpermute') or op.startswith('ds_swizzle'):
            self.kind = 'lds'
            self.wr = regs_of(ops[0])
            for o in ops[1:]: self.rd |= regs_of(o)
        elif op.startswith('ds_write') or op.startswith('ds_add'):
            self.kind = 'lds'
            for o in ops: self.rd |= regs_of(o)
        elif op.startswith('buffer_load') or op.startswith('global_load'):
            self.kind = 'vmem'
            if 'lds' in mods or op.startswith('global_load_lds'):
                for o in ops: self.rd |= regs_of(o)
                self.rd.add(('s', 'm0'))
                self.kind = 'dma'
            else:
                self.wr = regs_of(ops[0])
                for o in ops[1:]: self.rd |= regs_of(o)
        elif op.startswith('buffer_store') or op.startswith('global_store'):
            self.kind = 'vmem'
            for o in ops: self.rd |= regs_of(o)
            if 'x4' in op or 'x3' in op:
                self.wide_store_data = regs_of(ops[0]) if op.startswith('buffer') else regs_of(ops[1])
        elif op.startswith('buffer_atomic') or op.startswith('global_atomic'):
            self.kind = 'vmem'
            for o in ops: self.rd |= regs_of(o)
            if 'sc0' in mods: self.wr = regs_of(ops[0])
        elif op.startswith('buffer_wbl2') or op.startswith('buffer_inv'):
            self.kind = 'vmem'
        elif op.startswith('v_'):
            self.kind = 'valu'
            if base.startswith('v_cmp'):
                self.wr = regs_of(ops[0])
                for o in ops[1:]: self.rd |= regs_of(o)
            elif base.startswith('v_permlane32_swap') or base.startswith('v_permlane16_swap'):
                self.wr = regs_of(ops[0]) | regs_of(ops[1]); self.rd = set(self.wr)
            elif base in ('v_add_co_u32', 'v_addc_co_u32', 'v_sub_co_u32'):
                self.wr = regs_of(ops[0]) | regs_of(ops[1])
                for o in ops[2:]: self.rd |= regs_of(o)
            else:
                self.wr = regs_of(ops[0])
                for o in ops[1:]: self.rd |= regs_of(o)
                if base in ('v_fmac_f32',): self.rd |= self.wr
                if base == 'v_cndmask_b32' and len(ops) == 3: self.rd.add(('s', 'vcc'))
        elif op == 's_nop':
            self.kind = 'nop'; self.states = int(ops[0], 0) + 1
        elif op == 's_waitcnt':
            self.kind = 'wait'
        elif op == 's_barrier':
            self.kind = 'barrier'
        elif op.startswith('s_cbranch') or op in ('s_branch', 's_setpc_b64', 's_swappc_b64', 's_endpgm'):
            self.kind = 'branch'
            for o in ops: self.rd |= regs_of(o)
            if op == 's_swappc_b64': self.wr = regs_of(ops[0])
        elif op.startswith('s_load') or op.startswith('s_mem'):
            self.kind = 'smem'
            self.wr = regs_of(ops[0])
            for o in ops[1:]: self.rd |= regs_of(o)
        elif op.startswith('s_'):
            self.kind = 'salu'
            if op.startswith('s_cmp') or op in ('s_setprio', 's_sleep', 's_bitcmp1_b32', 's_bitcmp0_b32'):
                for o in ops: self.rd |= regs_of(o)
            else:
                self.wr = regs_of(ops[0])
                for o in ops[1:]: self.rd |= regs_of(o)
                if 'saveexec' in op: self.wr.add(('s', 'exec'))
        else:
            raise ValueError('cannot parse: ' + text)

    def is_trans(self):
        return self.kind == 'valu' and re.sub(r'_e(32|64)$', '', self.op) in TRANS

def need_states(prev, cur):
    n = 0
    vg = lambda s: {r for r in s if r[0] in 'va'}
    sg = lambda s: {r for r in s if r[0] == 's'}
    if prev.kind == 'valu':
        w = vg(prev.wr)
        if cur.kind == 'mfma' and (w & cur.rd): n = max(n, 2)
        if cur.kind == 'valu':
            if cur.op.startswith('v_permlane') and (w & cur.rd): n = max(n, 2)
            if (cur.op.startswith('v_readfirstlane') or cur.op.startswith('v_readlane')) and (w & cur.rd): n = max(n, 1)
            if prev.is_trans() and not cur.is_trans() and (w & cur.rd): n = max(n, 1)
            if 'dpp' in cur.text and (w & cur.rd): n = max(n, 2)
        ws = sg(prev.wr)
        if ws:
            if cur.kind in ('vmem', 'dma') and (ws & cur.rd): n = max(n, 5)
            if cur.kind == 'valu' and (ws & cur.rd): n = max(n, 2)
            if cur.kind in ('salu', 'branch') and (ws & cur.rd): n = max(n, 1)
            if cur.kind == 'branch' and 'vcc' in cur.op and ('s', 'vcc') in ws: n = max(n, 5)
    if prev.kind == 'mfma':
        big = prev.passes == 8
        d = prev.dst
        if cur.kind == 'mfma':
            if d & cur.srcab: n = max(n, 12 if big else 8)
            if d & cur.srcc:
                if not (cur.srcc == d and cur.passes == prev.passes): n = max(n, 10 if big else 6)
            if (d & cur.dst) and not (cur.srcc == d and cur.dst == d) :
                if cur.dst != d or cur.passes != prev.passes: n = max(n, 10 if big else 6)
        elif cur.kind in ('valu', 'vmem', 'dma', 'lds'):
            if d & (cur.rd | cur.wr): n = max(n, 12 if big else 8)
            if cur.kind == 'valu' and (prev.srcc & cur.wr): n = max(n, 7 if big else 3)
    if prev.kind == 'salu' and ('s', 'm0') in prev.wr and cur.kind == 'dma': n = max(n, 1)
    if prev.kind == 'salu' and ('s', 'exec') in prev.wr and cur.kind == 'valu' and 'dpp' in cur.text: n = max(n, 0)
    if prev.kind == 'vmem' and prev.wide_store_data:
        if cur.kind == 'valu' and (prev.wide_store_data & cur.wr): n = max(n, 2)
        elif cur.kind in ('mfma', 'lds', 'vmem') and (prev.wide_store_data & cur.wr): n = max(n, 2)
    return n

MAXLOOK = 24

class Prog:
    def __init__(self):
        self.ins = []
        self.nops = 0
    def raw(self, text, tag=None):
        i = Ins(text, tag); self.ins.append(i); return i
    def I(self, text, tag=None):
        cur = Ins(text, tag)
        self.ins.append(cur)
        return cur
    def pad(self):
        old = self.ins; self.ins = []
        for cur in old:
            if cur.kind not in ('label', 'directive'):
                k = self.need(cur)
                if k > 0: self.nops += k
                while k > 0:
                    m = min(k, 16)
                    self.ins.append(Ins('s_nop %d' % (m - 1)))
                    k -= m
            self.ins.append(cur)
    def need(self, cur):
        dist = 0; need = 0
        for p in reversed(self.ins):
            if dist >= MAXLOOK: break
            if p.kind in ('label', 'directive'): continue
            r = need_states(p, cur) - dist
            if r > need: need = r
            dist += p.states
        return need
    def wait_lgkm(self, tag):
        i = Ins('s_waitcnt lgkmcnt(0)'); i.wait = ('lgkm', tag); self.ins.append(i); return i
    def wait_vm(self, tag):
        i = Ins('s_waitcnt vmcnt(0)'); i.wait = ('vm', tag); self.ins.append(i); return i
    def label(self, name):
        self.ins.append(Ins(name + ':'))
    def text(self):
        out = []
        for i in self.ins:
            if i.kind == 'label' or i.kind == 'directive': out.append(i.text)
            else: out.append('    ' + i.text)
        return '\n'.join(out)

def counts_for(ins):
    if ins.kind == 'lds': return 'lgkm'
    if ins.kind in ('vmem', 'dma'): return 'vm'
    return None

def resolve_waits(sequence):
    vals = {}
    hist = {'lgkm': [], 'vm': []}
    sequence = [i for i in sequence if not i.ignore]
    for ins in sequence:
        c = counts_for(ins)
        if c: hist[c].append(ins.tag)
        if ins.kind == 'smem': hist['lgkm'].append('__smem__')
        if ins.wait:
            cls, tag = ins.wait
            h = hist[cls]
            tags = tag if isinstance(tag, (list, tuple, set)) else [tag]
            n = None
            if tag == 'ALL': n = 0
            else:
                for t in tags:
                    k = None
                    for j in range(len(h) - 1, -1, -1):
                        if h[j] == t: k = len(h) - 1 - j; break
                    if k is None: continue
                    n = k if n is None else min(n, k)
            if n is None: continue
            vals[id(ins)] = min(vals.get(id(ins), 99), n)
    needed = set()
    out = {'lgkm': 0, 'vm': 0}
    smem_pending = False
    for ins in sequence:
        c = counts_for(ins)
        if c: out[c] += 1
        if ins.kind == 'smem': smem_pending = True; out['lgkm'] += 2
        if ins.wait:
            cls = ins.wait[0]
            n = vals.get(id(ins))
            if n is None:
                continue
            mx = 15 if cls == 'lgkm' else 63
            n = min(n, mx)
            if cls == 'lgkm' and smem_pending: n = 0
            ins.text = 's_waitcnt %s(%d)' % ('lgkmcnt' if cls == 'lgkm' else 'vmcnt', n)
            if ins.cond:
                needed.add(id(ins))
            elif out[cls] > n:
                needed.add(id(ins)); out[cls] = n
                if cls == 'lgkm' and n == 0: smem_pending = False
        elif ins.kind == 'wait':
            m = re.search(r'lgkmcnt\((\d+)\)', ins.text)
            if m:
                out['lgkm'] = min(out['lgkm'], int(m.group(1)))
                if int(m.group(1)) == 0: smem_pending = False
            m = re.search(r'vmcnt\((\d+)\)', ins.text)
            if m: out['vm'] = min(out['vm'], int(m.group(1)))
    for ins in sequence:
        if ins.wait and id(ins) not in needed: ins.optional = True

def drop_optional(prog):
    prog.ins = [i for i in prog.ins if not i.optional]

def check_hazards(sequence, name=''):
    seq = [i for i in sequence if i.kind not in ('label', 'directive')]
    bad = 0
    for k, cur in enumerate(seq):
        dist = 0
        for j in range(k - 1, max(-1, k - 40), -1):
            p = seq[j]
            r = need_states(p, cur)
            if r > dist:
                print('HAZARD %s: [%s] -> [%s] need %d have %d' % (name, p.text, cur.text, r, dist)); bad += 1
            dist += p.states
            if dist >= MAXLOOK: break
    return bad

def issue_cost(i):
    k = i.kind
    if k in ('label', 'directive'): return 0
    if k == 'valu': return 8 if i.is_trans() else 4
    if k in ('dma', 'vmem'): return 20
    if k == 'nop': return 4 * i.states
    return 4

def _window_ok(seq, lo, hi):
    lo = max(0, lo); hi = min(len(seq), hi)
    for k in range(lo, hi):
        cur = seq[k]
        if cur.kind in ('label', 'directive'): continue
        dist = 0
        for j in range(k - 1, max(-1, k - 16), -1):
            p = seq[j]
            if p.kind in ('label', 'directive'): continue
            if p.wait is not None and p.kind == 'wait':
                continue
            if need_states(p, cur) > dist: return False
            dist += p.states
            if dist >= 13: break
    return True

def _movable(x):
    if x.kind in ('label', 'directive', 'barrier', 'branch', 'wait', 'nop', 'smem', 'mfma'): return False
    return True

def _indep(x, m):
    return not (x.wr & (m.rd | m.wr)) and not (x.rd & m.wr)

def balance_gaps(seq, free=8, passes=6):
    seq = list(seq)
    moved = 0
    for _ in range(passes):
        changed = False
        k = 0
        while k < len(seq):
            m = seq[k]
            if m.kind != 'mfma': k += 1; continue
            h = k
            while h > 0 and seq[h - 1].kind == 'wait' and seq[h - 1].wait and seq[h - 1].wait[0] == 'lgkm' and seq[h - 1].wait[1] != 'ALL': h -= 1
            a = h - 1; before = (k - h) * 4; ok_before = True
            while a >= 0 and seq[a].kind != 'mfma':
                if seq[a].kind in ('label', 'barrier', 'branch'): ok_before = False; break
                before += issue_cost(seq[a]); a -= 1
            if a < 0: ok_before = False
            b = k + 1; after = 0
            while b < len(seq) and seq[b].kind != 'mfma':
                if seq[b].kind in ('label', 'barrier', 'branch'): after += 100; break
                after += issue_cost(seq[b]); b += 1
            if ok_before:
                if before < free and k + 1 < len(seq):
                    x = seq[k + 1]; c = issue_cost(x)
                    if _movable(x) and after - c >= free and _indep(x, m):
                        trial = seq[:h] + [x] + seq[h:k + 1] + seq[k + 2:]
                        if _window_ok(trial, h - 2, k + 16):
                            seq = trial; moved += 1; changed = True; k += 1; continue
                if after < free and h - 1 > a:
                    y = seq[h - 1]; c = issue_cost(y)
                    if _movable(y) and before - c >= free and _indep(y, m):
                        trial = seq[:h - 1] + seq[h:k + 1] + [y] + seq[k + 1:]
                        if _window_ok(trial, h - 2, k + 16):
                            seq = trial; moved += 1; changed = True; continue
            k += 1
        if not changed: break
    return seq, moved
```

```python
from asmlib import *
import struct, math

SLOT = 53248
KOFF, VOFF, WOFF = 0, 16384, 32768
XBASE = 3 * SLOT
NSLOT = 3
LDS_BYTES = 163840
PART = 143360

QACC = 0; OACC = 64; SB = (128, 160); Q = 192
KA = 224; VA = 228; KD = 236; VD = 240; ONES = 242; LS = 246
T2 = 254; T4 = 255
WD = 32
OST = KA; OD = KD
def lt(u): return LS + 4 * u
XR = 128; XR2 = 136; XV = 144
XA = 0; POOL = 160; NPOOL = 8
STASH = [192, 224, 0, 32]
sK = 8; sV = 12; sW = 16; sO = 20; sX = 24
sWAVE = 28; sKo = 29; sVo = 30; sWc = 31; sRd = 32; sDelta = 33; sWrK = 34; sHead = 35
sT = 36; sT2 = 37; sW4096 = 38; sXc = 39; sOo = 40; sC = 41; sSlot = 42; sWrap = 43
sRet = 87; sM = 44; sHb = 48; sI = 49; sWr = 50; sNg = 51; sWn = 46; sWo = 47
QSCALE = struct.unpack('<I', struct.pack('<f', math.log2(math.e) / math.sqrt(128.0)))[0]

STAMP = False
EXP = {}
D_AHEAD = 6
D_BAR = 3
WAITW = 4
SPLITR = 0; LEAD = 0
CAP1 = 8; CAP2 = 24; LATE = 16
BUDGET_A = 12
BUDGET_B = 26
KVPOL = 'nt'; WPOL = ''; XPOL = 'nt'; OPOL = ''; PSTPOL = 'sc0 sc1'
ODMA_A = 6
WSOFF = 0

def vr(b, n): return 'v[%d:%d]' % (b, b + n - 1)
def ar(b, n): return 'a[%d:%d]' % (b, b + n - 1)
def qa(u, t): return QACC + (u * 8 + t) * 4
def oa(u, t): return OACC + (u * 8 + t) * 4
def sreg(buf, u, kt): return SB[buf] + (u * 2 + (kt >> 1)) * 8 + (kt & 1) * 4
def preg(buf, u, s): return SB[buf] + (u * 2 + s) * 8
def qf(u, ks): return Q + (u * 4 + ks) * 4
def xf(kk, u): return XA + (kk * 2 + u) * 4

class F:
    def __init__(self, reads, mfmas):
        self.reads = reads
        self.mfmas = mfmas

def tr(e, addr, imm): return ('ds_read_b64_tr_b16', 2 * e, 2, addr, imm)

def fr_S(buf, nq):
    out = []
    for kt in range(4):
        for ks in range(4):
            out.append(F([('ds_read_b128', 0, 4, KA + ks, KOFF + kt * 4096)],
                         [(vr(sreg(buf, u, kt), 4), vr(qf(u, ks), 4), ks == 0) for u in range(nq)]))
    return out

def q_ksteps(g):
    a = g >> 1
    if g % 2 == 0: return [(5 * a, 0, 1), (5 * a + 1, 2, 3)]
    return [(5 * a + 2, 'X', 0), (5 * a + 3, 1, 2), (5 * a + 4, 3, 4)]

def fr_Q(g, nq, tmajor=False):
    ks = q_ksteps(g)
    order = [(k, t) for t in range(8) for k in ks] if tmajor else [(k, t) for k in ks for t in range(8)]
    out = []
    for ((kk, b0, b1), t) in order:
        reads = []
        for e, b in enumerate((b0, b1)):
            if b == 'X': reads.append(tr(e, ('X', VA + t), 0))
            else: reads.append(tr(e, VA + t, WOFF + b * 4096))
        out.append(F(reads, [(vr(qa(u, t), 4), ar(xf(kk, u), 4), kk == 0) for u in range(nq)]))
    return out

def fr_PV(g, nq, tmajor=False):
    buf = g & 1
    order = [(s, t) for t in range(8) for s in range(2)] if tmajor else [(s, t) for s in range(2) for t in range(8)]
    return [F([tr(e, VA + t, VOFF + (2 * s + e) * 4096) for e in range(2)],
              [(vr(oa(u, t), 4), vr(preg(buf, u, s), 4), g == 0 and s == 0) for u in range(nq)]) for (s, t) in order]

VA2 = [225, 226, 227, 240, 241, 242, 243, 244]
OSTATIC = 1
def fr_O(hh, nq):
    order = [(s, t) for t in range(8) for s in range(4)] if hh in (0, 3) else [(s, t) for s in range(4) for t in range(8)]
    slot = (hh + 1) & 3
    hi = OSTATIC and slot >= 2
    off = (slot & 1) * 32768 if OSTATIC else 0
    return [F([tr(e, VA2[t] if hi else VA + t, off + (2 * s + e) * 4096) for e in range(2)],
              [(vr(qa(u, t), 4), ar(STASH[hh] + (u * 4 + s) * 4, 4), hh == 0 and s == 0) for u in range(nq)]) for (s, t) in order]

SUMV = 0
def softmax_chunk(buf, u, s, first):
    b = preg(buf, u, s); first_u = first
    e = ['v_exp_f32_e32 v%d, v%d' % (b + i, b + i) for i in range(8)]
    c = ['v_cvt_pk_bf16_f32 v%d, v%d, v%d' % (b + j, b + 2 * j, b + 2 * j + 1) for j in range(4)]
    if SUMV:
        a = ['v_add_f32_e32 v%d, v%d, v%d' % (lt(u) + (i & 1), b + i, lt(u) + (i & 1)) for i in range(8)]
        if first_u: a[0] = 'v_mov_b32_e32 v%d, v%d' % (lt(u), b); a[1] = 'v_mov_b32_e32 v%d, v%d' % (lt(u) + 1, b + 1)
        seq = [e[0], e[1]]
        for i in range(2, 8): seq += [e[i], a[i - 2]]
        return seq + [a[6], a[7]] + c, None
    m = 'v_mfma_f32_16x16x32_bf16 %s, %s, %s, %s' % (vr(lt(u), 4), vr(ONES, 4), vr(b, 4), '0' if first else vr(lt(u), 4))
    return e[:4] + [c[0]] + e[4:6] + [c[1]] + e[6:] + [c[2], c[3]], m

def swaps(pairs):
    return ['v_permlane32_swap_b32_e32 v%d, v%d' % p for p in pairs] + ['v_permlane16_swap_b32_e32 v%d, v%d' % p for p in pairs]

def qconv(ks, nq):
    ops = []
    for u in range(nq):
        for t in (2 * ks, 2 * ks + 1):
            for r in range(4): ops.append('v_mul_f32_e32 v%d, s%d, v%d' % (qa(u, t) + r, sC, qa(u, t) + r))
    for u in range(nq):
        for t in range(2):
            for j in range(2):
                r = qa(u, 2 * ks + t) + 2 * j
                ops.append('v_cvt_pk_bf16_f32 v%d, v%d, v%d' % (qf(u, ks) + 2 * t + j, r, r + 1))
    ops += swaps([(qf(u, ks) + j, qf(u, ks) + 2 + j) for u in range(nq) for j in range(2)])
    return ops

def ofin(s, nq):
    ops = []
    for u in range(nq):
        b = oa(u, 2 * s)
        for r in range(8): ops.append('v_mul_f32_e32 v%d, v%d, v%d' % (b + r, lt(u), b + r))
        for j in range(4): ops.append('v_cvt_pk_bf16_f32 v%d, v%d, v%d' % (b + j, b + 2 * j, b + 2 * j + 1))
    return ops

class Role:
    def __init__(self, name, nq):
        self.name = name; self.nq = nq
        self.budget = BUDGET_A if nq == 2 else BUDGET_B
    def lab(self, s): return 'L_%s_%s' % (self.name, s)

def mk_stash(R):
    def f(P):
        for h in range(2):
            P.I('s_cmp_eq_u32 s%d, %d' % (sHead, h)); P.I('s_cbranch_scc1 %s' % R.lab('st%d' % h))
        for h in (2, 0, 1):
            if h != 2: P.label(R.lab('st%d' % h))
            for u in range(R.nq):
                for s in range(4):
                    for j in range(4): P.I('v_accvgpr_write_b32 a%d, v%d' % (STASH[h] + (u * 4 + s) * 4 + j, oa(u, 2 * s) + j))
            if h != 1: P.I('s_branch %s' % R.lab('st_done'))
        P.label(R.lab('st_done'))
    return f

def lane_reduce(P, reg, tmp, op):
    P.I('v_mov_b32_e32 v%d, v%d' % (tmp, reg))
    P.I('v_permlane32_swap_b32_e32 v%d, v%d' % (reg, tmp))
    P.I('%s v%d, v%d, v%d' % (op, reg, reg, tmp))
    P.I('v_mov_b32_e32 v%d, v%d' % (tmp, reg))
    P.I('v_permlane16_swap_b32_e32 v%d, v%d' % (reg, tmp))
    P.I('%s v%d, v%d, v%d' % (op, reg, reg, tmp))

def mk_check(R, site=0):
    def f(P):
        if SUMV:
            for u in range(R.nq): P.I('v_add_f32_e32 v%d, v%d, v%d' % (lt(u), lt(u), lt(u) + 1))
            for u in range(R.nq): lane_reduce(P, lt(u), lt(u) + 2, 'v_add_f32_e32')
        P.I('s_mov_b64 s[%d:%d], -1' % (sM, sM + 1))
        for u in range(R.nq):
            P.I('v_cmp_le_f32_e32 vcc, 0x33800000, v%d' % lt(u))
            P.I('s_and_b64 s[%d:%d], s[%d:%d], vcc' % (sM, sM + 1, sM, sM + 1))
            P.I('v_cmp_ge_f32_e32 vcc, 0x4b800000, v%d' % lt(u))
            P.I('s_and_b64 s[%d:%d], s[%d:%d], vcc' % (sM, sM + 1, sM, sM + 1))
        P.I('s_cmp_eq_u64 s[%d:%d], -1' % (sM, sM + 1))
        if not (EXP.get('nohook') or EXP.get('dropm') or EXP.get('nosm') or EXP.get('nokv') or EXP.get('nord')):
            P.I('s_cbranch_scc1 %s' % R.lab('fast_ok%d' % site))
            P.I('s_mov_b32 s%d, %d' % (sRet, site))
            P.I('s_branch %s' % R.lab('slow'))
        P.label(R.lab('slow_ret%d' % site))
        P.label(R.lab('fast_ok%d' % site))
        for u in range(R.nq): P.I('v_rcp_f32_e32 v%d, v%d' % (lt(u), lt(u)))
    return f

def dma(v, srd, soff, imm, pol, tag):
    return ('buffer_load_dwordx4 v%d, s[%d:%d], s%d offen offset:%d %s lds' % (v, srd, srd + 3, soff, imm, pol), tag)

OTOUCH = 1; OTPOL = ''
CTOUCH = 1; CT_LINES = 24
TOUCH = 0
KVA = 1
def kv_groups(R):
    if KVA == 1: return [0]
    return [] if R.nq == 2 else [0, 1, 2, 3]

def dma_K(tag, R, wr=sWrK, soff=sKo, adv=True):
    ops = []
    for G in kv_groups(R):
        ops.append('s_add_u32 m0, s%d, %d' % (wr, G * 4096))
        if G: ops.append('s_add_u32 s%d, s%d, %d' % (sT2, soff, G * 4096))
        ops += [dma(KD + j, sK, sT2 if G else soff, j * 1024, KVPOL, tag) for j in range(4)]
    if adv and ops: ops.append('s_add_u32 s%d, s%d, 16384' % (sKo, sKo))
    return ops

def dma_V(tag, R, wr=sWrK, soff=sVo, adv=True):
    ops = []
    for G in kv_groups(R):
        ops.append('s_add_u32 m0, s%d, %d' % (wr, VOFF + G * 4096))
        if G: ops.append('s_add_u32 s%d, s%d, %d' % (sT2, soff, G * 4096))
        ops += [dma(VD + (j & 1), sV, sT2 if G else soff, j * 1024, KVPOL, tag) for j in range(4)]
    if adv and ops: ops.append('s_add_u32 s%d, s%d, 16384' % (sVo, sVo))
    return ops

def dma_Wrows(tag, row0, nrows, hreg, dest):
    ops = []
    for G in range(nrows // 16):
        if isinstance(dest, tuple) and len(dest) > 2:
            ops.append(atomic(['s_add_u32 s%d, s%d, %d' % (sT, dest[1], WOFF + G * 4096), 's_cmp_eq_u32 s%d, 3' % sHead, 's_cselect_b32 m0, %d, s%d' % (XBASE, sT)]))
        elif isinstance(dest, tuple): ops.append('s_add_u32 m0, s%d, %d' % (dest[1], WOFF + G * 4096))
        else: ops.append('s_mov_b32 m0, %d' % (dest + G * 4096))
        ops.append('s_add_u32 s%d, s%d, %d' % (sT2, hreg, (row0 + 16 * G) * 8192))
        for i in range(4): ops.append(dma(WD + i, sW, sT2, i * 1024, WPOL, tag))
    return ops

def dma_Warea(tag, g, hreg, dest):
    a = g >> 1
    if g % 2 == 0: return dma_Wrows(tag, 160 * a, 64, hreg, dest)
    return dma_Wrows(tag, 160 * a + 80, 80, hreg, dest)
def dma_WX(tag, g, hreg):
    return dma_Wrows(tag, 160 * (g >> 1) + 64, 16, hreg, XBASE)

X_SLOT = [0, 1, 2, 0, 2]
def dma_x(kt, nq):
    ops = []
    for j in range(4 * nq):
        ops.append('s_add_u32 m0, s70, %d' % (X_SLOT[kt] * SLOT + j * 1024))
        ops.append('s_mov_b32 s7, %d' % (j * 5120 + kt * 256))
        ops.append(('buffer_load_dwordx4 v%d, s[%d:%d], s7 offen %s lds' % (XV + (j & 3), sX, sX + 3, XPOL), 'x%d' % kt))
    return ops

def read_x(kt, nq):
    ops = [('WAITVM', 'x%d' % kt)]
    for kq in range(4):
        for u in range(nq):
            for e in range(2):
                if X_SLOT[kt] == 2: a, off = XR2 + 2 * kq + e, 0
                else: a, off = XR + 2 * kq + e, X_SLOT[kt] * SLOT
                d = xf(4 * kt + kq, u) + 2 * e
                ops.append(('ds_read_b64 %s, v%d offset:%d' % (ar(d, 2), a, off + u * 4096), 'xr%d' % kt))
    return ops

def fixed_kv(slot, kind, off, tag, R):
    fn = dma_K if kind == 'K' else dma_V
    ops = fn(tag, R, wr=sT, soff=sI, adv=False)
    if not ops: return []
    return ['s_add_u32 s%d, s%d, %d' % (sT, sW4096, slot * SLOT), 's_mov_b32 s%d, %d' % (sI, off)] + ops

def ring_advance(total=NSLOT * SLOT):
    return ['s_mov_b32 s%d, s%d' % (sWr, sRd),
            's_add_u32 s%d, s%d, s%d' % (sWrK, sRd, sW4096),
            's_add_u32 s%d, s%d, s%d' % (sRd, sRd, sSlot),
            's_cmp_eq_u32 s%d, %d' % (sRd, total),
            's_cselect_b32 s%d, s%d, s%d' % (sDelta, sWrap, sSlot),
            's_cselect_b32 s%d, 0, s%d' % (sRd, sRd)]

def atomic(ops):
    def f(P):
        for o in ops: P.I(o)
    f.cost = 4 * len(ops)
    return f

def cost_of(op):
    if callable(op): return getattr(op, 'cost', 60)
    t = op[0] if isinstance(op, tuple) else op
    if t.startswith('v_mfma'): return 8
    if t.startswith('buffer_'): return 20
    if t.startswith('v_exp') or t.startswith('v_rcp'): return 8
    return 4

class Step:
    def __init__(self, name, fr, paced=None, fixed=None, usesX=False):
        self.name = name; self.fr = fr; self.paced = paced or []; self.fixed = fixed or {}; self.usesX = usesX

def stamp(P, lane, real=False):
    P.I('%s s[72:73]' % ('s_memrealtime' if real else 's_memtime')); P.I('s_waitcnt lgkmcnt(0)')
    if isinstance(lane, int): P.I('v_writelane_b32 v%d, s72, %d' % (T4, lane))
    else: P.I('s_mov_b32 m0, s74'); P.I('v_writelane_b32 v%d, s72, m0' % T4)

class Emitter:
    def __init__(self, P, R):
        self.P = P; self.R = R
        self.fr = 0; self.uid = 0; self.ring_total = NSLOT * SLOT
        self.addr_regs = list(range(KA, KA + 4)) + list(range(VA, VA + 8))
    def emit_op(self, op):
        if isinstance(op, tuple):
            if op[0] == 'WAITVM': self.P.wait_vm(op[1])
            elif op[0] == 'WAITLGKM': self.P.wait_lgkm(op[1])
            else: self.P.I(op[0], op[1])
        elif callable(op): op(self.P)
        else: self.P.I(op)
    def issue_reads(self, f, upd, part=None):
        P = self.P; c = 0
        if part in (None, 0):
            f.frag = POOL + 4 * (self.fr % NPOOL); self.fr += 1
            self.uid += 1; f.tag = '%sf%d' % (self.R.name, self.uid)
        reads = f.reads if part is None else (f.reads[:1] if part == 0 else f.reads[1:])
        for (op, off, n, addr, imm) in reads:
            isx = isinstance(addr, tuple)
            a = addr[1] if isx else addr
            if a in upd:
                P.I('v_add_u32_e32 v%d, s%d, v%d' % (a, sDelta, a)); upd.discard(a); c += 4
            if isx:
                P.I('v_add_u32_e32 v%d, s%d, v%d' % (T2, sXc, a)); c += 4; a = T2
            if EXP.get('nord') and self.uid % int(EXP['nord']) != 0 and self.uid > 300: continue
            P.I('%s %s, v%d offset:%d' % (op, ar(f.frag + off, n), a, imm), f.tag); c += 4
        return c
    def boundary(self, nxt):
        P = self.P
        P.wait_lgkm('ALL')
        st = STAMP and not EXP.get('lite') and ((nxt.name[0] == 'O') == bool(EXP.get('ostamp')))
        arr = bool(EXP.get('arr'))
        if st and arr: stamp(P, 'dyn', bool(EXP.get('rt'))); P.I('s_add_u32 s74, s74, 1')
        P.wait_vm('ld_' + nxt.name)
        if getattr(nxt, 'wait_stores', False): P.wait_vm('pst')
        P.I('s_barrier')
        if st and not arr: stamp(P, 'dyn', bool(EXP.get('rt'))); P.I('s_add_u32 s74, s74, 1')
        if getattr(nxt, 'static', False): return set()
        if getattr(nxt, 'ring_total', None): self.ring_total = nxt.ring_total
        if getattr(nxt, 'va_only', False): self.addr_regs = list(range(VA, VA + 8))
        for o in ring_advance(self.ring_total): P.I(o)
        if nxt.usesX: P.I('s_sub_u32 s%d, %d, s%d' % (sXc, XBASE, sRd))
        return set(self.addr_regs)
    def run(self, steps, nxt_after, pre_issued, upd, valu, allow_left=False):
        P = self.P; R = self.R
        allf = []
        for si, s in enumerate(steps):
            for i, f in enumerate(s.fr): allf.append((si, i, f))
        n = len(allf)
        seq = allf + [(len(steps), i, f) for i, f in enumerate(nxt_after.fr)]
        first_of = {}
        for k, (si, i, f) in enumerate(seq):
            if i == 0: first_of[si] = k
        nread = pre_issued; entered = 0
        vq = list(valu); vp = 0; ppos = 0
        jobcost = {}; jobdone = {}
        for it in vq:
            if len(it) > 3: jobcost[it[3]] = jobcost.get(it[3], 0) + cost_of(it[0])
        for k in range(n):
            si, i, f = allf[k]
            s = steps[si]
            if i == 0: ppos = 0
            used = 0
            tgt = k
            if i % WAITW == 0:
                for d in range(1, WAITW):
                    if k + d < n and allf[k + d][0] == si and k + d < nread: tgt = k + d
                used += 4
            P.wait_lgkm(seq[tgt][2].tag)
            for mi, (d, b, c0) in enumerate(f.mfmas):
                if not (EXP.get('dropm') and s.name[0] == 'G' and (k * 2 + mi) % int(EXP['dropm']) == 0):
                    P.I('v_mfma_f32_16x16x32_bf16 %s, %s, %s, %s' % (d, ar(f.frag, 4), b, '0' if c0 else d))
                lastm = mi == len(f.mfmas) - 1
                if lastm:
                    nf = len(s.fr); last = getattr(s, 'paced_end', nf - 2 - D_BAR)
                    for o in s.fixed.get(i, []):
                        used += cost_of(o); self.emit_op(o)
                    p0 = getattr(s, 'paced_start', 0)
                    if p0 <= i <= last:
                        want = len(s.paced) if i == last else int(math.ceil(len(s.paced) * (i - p0 + 1) / float(last - p0 + 1)))
                        while ppos < want:
                            used += cost_of(s.paced[ppos]); self.emit_op(s.paced[ppos]); ppos += 1
                    if si + 1 in first_of and k == first_of[si + 1] - 1 - D_BAR and entered == si:
                        assert ppos == len(s.paced), (s.name, ppos, len(s.paced))
                        for a in sorted(upd): P.I('v_add_u32_e32 v%d, s%d, v%d' % (a, sDelta, a)); used += 4
                        nx = steps[si + 1] if si + 1 < len(steps) else nxt_after
                        upd = self.boundary(nx); entered = si + 1; used += 40
                if mi == 0:
                    ready = []
                    while nread < len(seq) and nread <= k + D_AHEAD and seq[nread][0] <= entered and (seq[nread][0] < len(steps) or nread - n < D_BAR):
                        ready.append(seq[nread][2]); nread += 1
                    at_bar = si + 1 in first_of and k == first_of[si + 1] - 1 - D_BAR
                    half = None
                    if SPLITR and len(f.mfmas) == 2 and len(ready) == 1 and len(ready[0].reads) == 2 and not at_bar:
                        half = ready[0]; used += self.issue_reads(half, upd, 0)
                    else:
                        for r in ready: used += self.issue_reads(r, upd)
                elif half is not None:
                    used += self.issue_reads(half, upd, 1); half = None
                while vp < len(vq):
                    it = vq[vp]; c = cost_of(it[0])
                    go = lastm and it[2] <= k
                    if not go and it[1] <= k:
                        if len(it) > 3:
                            js, je = it[3]
                            pos = k + (mi + 1) / float(len(f.mfmas))
                            due = jobcost[it[3]] * min(1.0, max(0.0, (pos - js) / float(je - js))) - jobdone.get(it[3], 0)
                            go = (due > 0 and used + c <= CAP1) or (due > LATE and used + c <= CAP2) or (used < 8 and due > -LEAD)
                        else: go = used + c <= R.budget
                    if not go: break
                    used += c; self.emit_op(it[0]); vp += 1
                    if len(it) > 3: jobdone[it[3]] = jobdone.get(it[3], 0) + c
                used = 0
            while nread < len(seq) and nread <= k + D_AHEAD and seq[nread][0] <= entered and (seq[nread][0] < len(steps) or nread - n < D_BAR):
                self.issue_reads(seq[nread][2], upd); nread += 1
        if allow_left: return upd, vp
        assert vp == len(vq), (vp, len(vq))
        return upd

def nm(k, g): return 'ld_%s%d' % (k, g)

def make_P(g, R):
    nq = R.nq; B = nq == 1
    fr = fr_Q(g, nq, tmajor=(g == 7))
    paced = []; fixed = {}
    wr = ('slot', sWr)
    if g == 0:
        if B: paced += dma_WX(nm('P', 1), 1, sWc) + dma_Warea(nm('P', 1), 1, sWc, SLOT_C(1))
        paced += dma_x(1, nq)
        if B: paced += dma_Warea(nm('P', 2), 2, sWc, SLOT_C(2))
        paced += dma_x(2, nq)
    if g == 1: fixed[0] = read_x(1, nq)
    if B and 1 <= g <= 5: paced += dma_Warea(nm('P', g + 2), g + 2, sWc, wr)
    if B and g in (2, 4, 6): paced = dma_WX(nm('P', g + 1), g + 1, sWc) + paced
    if g == 1: paced += dma_x(3, nq)
    if g == 2: fixed[0] = read_x(2, nq); paced += [('WAITLGKM', 'xr2')] + dma_x(4, nq)
    if g == 3: paced += fixed_kv(1, 'K', 0, nm('P', 7), R); fixed[8] = read_x(3, nq)
    if g == 4: paced += fixed_kv(0, 'K', 2 * 16384, nm('G', 1), R) + fixed_kv(0, 'V', 16384, nm('G', 1), R); fixed[4] = read_x(4, nq)
    if g == 5: paced += fixed_kv(2, 'K', 16384, nm('G', 0), R) + fixed_kv(2, 'V', 0, nm('G', 0), R)
    if B and g == 6: paced += dma_Warea(nm('G', 0), 0, sWn, wr)
    if B and g == 7: paced += dma_Warea(nm('G', 1), 1, sWn, wr) + ['s_mov_b32 s%d, s%d' % (sWc, sWn), 's_add_u32 s%d, s%d, 256' % (sWn, sWn)]
    if g == 7: fr = fr + fr_S(0, nq)
    return Step('P%d' % g, fr, paced, fixed, usesX=(g % 2 == 1))

def SLOT_C(n): return n * SLOT + WOFF

def make_G(g, R):
    nq = R.nq; B = nq == 1
    tgt = nm('G', (g + 2) % 8)
    paced = []
    if B and g % 2 == 0: paced += dma_WX(nm('G', g + 1), g + 1, sWc)
    if B and g == 6:
        paced += [atomic(['s_cmp_ge_u32 s%d, 2' % sHead, 's_cselect_b32 s%d, 0, s%d' % (sW + 2, sW + 2)])]
    if not EXP.get('nokv'): paced += dma_K(tgt, R) + dma_V(tgt, R)
    if B and OTOUCH and g < 5:
        if g == 0: paced.append(atomic(['s_cmp_eq_u32 s%d, 3' % sHead, 's_cselect_b32 s94, 655360, 0']))
        paced.append('s_mov_b32 s%d, %d' % (sT, g * 8192))
        paced.append(('buffer_load_dword v41, v40, s[92:95], s%d offen %s' % (sT, OTPOL), 'touch'))
    if B: paced += dma_Warea(tgt, (g + 2) % 8, sWc if g + 2 < 8 else sWn, ('slot', sWr, 'redirect') if g == 5 else ('slot', sWr))
    if B and g == 7: paced += ['s_mov_b32 s%d, s%d' % (sWc, sWn), 's_add_u32 s%d, s%d, 256' % (sWn, sWn)]
    if g < 7: fr = fr_S((g + 1) & 1, nq) + fr_Q(g, nq) + fr_PV(g, nq)
    else: fr = fr_Q(7, nq, True) + fr_PV(7, nq, True) + fr_S(0, nq)
    return Step('G%d' % g, fr, paced, usesX=(g % 2 == 1))

def o_setup(R):
    def f(P):
        lane_ids(P)
        if R.nq == 2:
            P.I('s_mul_i32 s%d, s%d, %d' % (sW4096, sWAVE, OGA * 4096)); P.I('s_mul_i32 s7, s%d, %d' % (sWAVE, OGA * 20480))
        else:
            P.I('s_mov_b32 s%d, 0' % sW4096); P.I('s_mov_b32 s7, 0')
        P.I('v_mul_u32_u24_e32 v11, 1280, v4')
        for i in range(4):
            swz8(P, 12, i & 1)
            P.I('v_add3_u32 v12, v12, v11, s7'); P.I('v_add_u32_e32 v%d, %d, v12' % (OD + i, i * (5120 - 1024)))
        P.I('s_mov_b32 s%d, s82' % sW); P.I('s_mov_b32 s%d, s83' % (sW + 1))
        P.I('s_mov_b32 s%d, 655360' % (sW + 2)); P.I('s_mov_b32 s%d, 0x20000' % (sW + 3))
        P.I('s_mov_b32 s%d, 0' % sWo)
    f.cost = 140
    return f

def o_setup2(R):
    def f(P):
        lane_ids(P)
        P.I('s_lshl_b32 s7, s%d, 11' % sWAVE)
        P.I('v_lshlrev_b32_e32 v11, 4, v0'); P.I('v_add_u32_e32 v%d, s7, v11' % OST)
        P.I('s_mov_b32 s%d, %d' % (sOo, (-4 * 7 * 1024) & 0xffffffff)); P.I('s_mov_b32 s%d, 0' % sNg)
        if OSTATIC:
            va_regs(P, 0, VA2)
            for t in range(8): P.I('v_add_u32_e32 v%d, 0x10000, v%d' % (VA2[t], VA2[t]))
        P.I('s_mov_b32 s%d, %d' % (sSlot, OSLOT)); P.I('s_mov_b32 s%d, %d' % (sWrap, (-(ONSLOT - 1) * OSLOT) & 0xffffffff))
    f.cost = 40
    return f

def make_GL(g, R):
    nq = R.nq
    paced = []
    for n in ((0, 1) if g == 6 else ((2,) if OSTATIC else (2, 3))):
        paced.append('s_add_u32 s%d, s%d, %d' % (sWrK, sW4096, (n + 1) * OSLOT))
        paced += odma('ld_O%d' % n, 163840 if n != 3 else 256 - 3 * 163840, R)
    if g == 6:
        return Step('G6', fr_S(1, nq) + fr_PV(6, nq), paced, {0: [o_setup(R)]})
    st = Step('G7', fr_PV(7, nq, True), paced, {0: [o_setup2(R)]})
    st.paced_end = 9; st.va_only = True
    return st

def valu_P(steps, R):
    base7 = sum(len(s.fr) for s in steps[:7])
    q = []
    for ks in range(4):
        for o in qconv(ks, R.nq): q.append((o, base7 + 6 * ks + 5 + 2, base7 + 23))
    return q

def valu_G(steps, R, last=False):
    nq = R.nq
    base = [0]
    for s in steps: base.append(base[-1] + len(s.fr))
    q = []; pend = []
    for g in range(8):
        nqf = 16 if g % 2 == 0 else 24
        if last and g >= 6: nqf = 0
        if g == 0: job = (0, JOB0)
        elif g == 1: job = (JOB0, base[1] + JOBS)
        elif last and g == 6: job = (base[5] + JOBS, base[6] + 14)
        elif last and g == 7: job = (base[6] + 14, base[7] - 2)
        elif g < 7: job = (base[g - 1] + JOBS, base[g] + JOBS)
        else: job = (base[6] + JOBS, base[7] + 5)
        for s in range(2):
            for u in range(nq):
                est = 0 if g == 0 else base[g - 1] + 8 * s + 7 + 3
                if g < 7: ddl = base[g] + 16 + nqf + 8 * s - 1
                elif last: ddl = base[7] - 1
                else: ddl = base[7] + 6
                if not EXP.get('nosm'):
                    ops, m = softmax_chunk(g & 1, u, s, g == 0 and s == 0)
                    for n, o in enumerate(ops):
                        q.append((o, est, ddl, job))
                        if n == 1 and pend: q.append((pend.pop(), est, ddl, job))
                    if m: pend.append(m)
            if g == 7 and s == 1 and pend: q.append((pend.pop(), est, ddl, job))
    b = base[7]
    if last:
        q.append((mk_check(R, 1), b, b + 1))
        job = (b + 4, b + 14)
        for s in range(4):
            for o in ofin(s, nq): q.append((o, b + 4 * s + 3 + 2, b + 15, job))
        def st3(P):
            for u in range(nq):
                for s in range(4):
                    for j in range(4): P.I('v_accvgpr_write_b32 a%d, v%d' % (STASH[3] + (u * 4 + s) * 4 + j, oa(u, 2 * s) + j))
        q.append((st3, b + 15, b + 15))
        return q
    q.append((mk_check(R), b, b + 7))
    job = (b + 8, b + QJOB)
    for ks in range(4):
        for o in qconv(ks, nq): q.append((o, b + 6 * ks + 5 + 2, b + 39, job))
    job = (b + QJOB, b + 54)
    for s in range(4):
        for o in ofin(s, nq): q.append((o, b + 24 + 4 * s + 3 + 2, b + 55, job))
    q.append((mk_stash(R), b + 54, b + 55))
    return q

def shift_q(q, off):
    out = []
    for it in q:
        if len(it) > 3: out.append((it[0], it[1] - off, it[2] - off, (it[3][0] - off, it[3][1] - off)))
        else: out.append((it[0], it[1] - off, it[2] - off))
    return out
JOB0 = 22; JOBS = 20; QJOB = 34

OGA = 1
def odma(tag, adv, R, dest=None):
    ops = []
    groups = list(range(OGA)) if R.nq == 2 else list(range(3 * OGA, 8))
    for G in groups:
        if dest is None: ops.append('s_add_u32 m0, s%d, %d' % (sWrK, G * 4096))
        else: ops.append('s_add_u32 m0, s%d, %d' % (sW4096, dest + G * 4096))
        ops.append('s_add_u32 s%d, s%d, %d' % (sT2, sWo, G * 20480))
        for i in range(4): ops.append(dma(OD + i, sW, sT2, i * 1024, OPOL, tag))
    ops.append('s_add_u32 s%d, s%d, %d' % (sWo, sWo, adv & 0xffffffff))
    return ops

PFUSE = 0
RV = 64; RA = 96; RP = 104; RT = 108; RL = 110; RO = 111; RF = 112; RZ = 113; RZ2 = 114; RG = 115
sRS = 52; sRO = 53; sE1 = 54; sE2 = 55; sU = 56; sU2 = 57; sSP = 58; sDB = 96
BIG = 0x40000000
RLPOL = 'sc1'; RSPOL = ''

FLGOFF = 256 * PART
def red_setup(P, R):
    lane_ids(P)
    P.I('s_lshl_b32 s60, s5, 4'); P.I('s_add_u32 s60, s60, s4')
    P.I('s_mul_i32 s61, s60, %d' % (8 * PART))
    if WSOFF: P.I('s_add_u32 s61, s61, %d' % WSOFF)
    P.I('s_add_u32 s8, s68, s61'); P.I('s_addc_u32 s9, s69, 0')
    P.I('s_mov_b32 s10, %d' % (8 * PART)); P.I('s_mov_b32 s11, 0x20000')
    P.I('s_mov_b32 s12, s100'); P.I('s_mov_b32 s13, s101'); P.I('s_mov_b32 s14, %d' % (16 * 112 * 2560)); P.I('s_mov_b32 s15, 0x20000')
    if 1:
        P.I('s_mov_b32 s%d, s90' % sDB); P.I('s_mov_b32 s%d, s91' % (sDB + 1)); P.I('s_mov_b32 s%d, 256' % (sDB + 2)); P.I('s_mov_b32 s%d, 0x20000' % (sDB + 3))
        P.I('s_lshl_b32 s61, s60, 2'); P.I('v_mov_b32_e32 v%d, s61' % RZ2)
        if R.nq == 1:
            poll(['s_mov_b32 s%d, 0' % sU2], None, 1)(P)
        P.I('s_add_u32 s%d, s68, %d' % (sDB, FLGOFF + WSOFF)); P.I('s_addc_u32 s%d, s69, 0' % (sDB + 1))
        P.I('s_mov_b32 s%d, %d' % (sDB + 2, 32 * 256))
    P.I('s_lshl_b32 s62, s6, 2'); P.I('s_add_u32 s62, s62, s%d' % sWAVE)
    P.I('s_lshr_b32 s63, s62, 1'); P.I('s_and_b32 s64, s62, 1')
    P.I('s_cmp_ge_u32 s63, 7'); P.I('s_cselect_b32 s65, 1, 0')
    P.I('s_mul_i32 s66, s65, 7'); P.I('s_sub_u32 s66, s63, s66')
    P.I('s_lshl_b32 s67, s65, 1'); P.I('s_add_u32 s67, s67, s64'); P.I('s_mul_i32 s67, s67, 7'); P.I('s_add_u32 s67, s67, s66')
    P.I('s_lshl_b32 s%d, s67, 10' % sRS)
    P.I('s_mul_i32 s61, s4, %d' % (112 * 2560)); P.I('s_mul_i32 s67, s5, 1280'); P.I('s_add_u32 s61, s61, s67')
    P.I('s_mul_i32 s67, s66, %d' % (16 * 2560)); P.I('s_add_u32 s61, s61, s67')
    P.I('s_lshl_b32 s67, s65, 7'); P.I('s_add_u32 s61, s61, s67')
    P.I('s_lshl_b32 s67, s64, 6'); P.I('s_add_u32 s%d, s61, s67' % sRO)
    P.I('s_sub_u32 s%d, s%d, %d' % (sRS, sRS, 2 * 28672)); P.I('s_sub_u32 s%d, s%d, %d' % (sRO, sRO, 3 * 256))
    P.I('s_cmp_lt_u32 s62, 28')
    P.I('s_cselect_b32 s%d, s%d, %d' % (sRS, sRS, BIG)); P.I('s_cselect_b32 s%d, s%d, %d' % (sRO, sRO, BIG))
    P.I('v_lshlrev_b32_e32 v%d, 4, v0' % RL)
    P.I('v_mul_u32_u24_e32 v%d, 2560, v3' % RO); P.I('v_lshl_add_u32 v%d, v4, 4, v%d' % (RO, RO))
    P.I('s_lshl_b32 s61, s60, 8')
    P.I('v_mov_b32_e32 v%d, s61' % RZ2)
    P.I('v_cmp_eq_u32_e32 vcc, 0, v0'); P.I('v_mov_b32_e32 v5, %d' % BIG)
    P.I('v_cndmask_b32_e32 v%d, v5, v%d, vcc' % (RZ, RZ2))

def post_flag(val_ops):
    return [atomic(val_ops), 'v_mov_b32_e32 v%d, s%d' % (RF, sU),
            ('buffer_atomic_add v%d, v%d, s[%d:%d], 0 offen sc1' % (RF, RZ, sDB, sDB + 3), 'flag')]

_pn = [0]
POLLSLEEP = 4
def poll(shift_ops, skip_ops=None, need=8):
    def f(P):
        _pn[0] += 1; n = _pn[0]
        n0 = len(P.ins)
        if skip_ops:
            for o in skip_ops: P.I(o)
            P.I('s_cbranch_scc1 L_poll_done%d' % n)
        for o in shift_ops: P.I(o)
        P.I('s_mov_b32 s%d, 0' % sSP)
        P.label('L_poll%d' % n)
        P.I('buffer_load_dword v%d, v%d, s[%d:%d], 0 offen sc1' % (RG, RZ2, sDB, sDB + 3))
        P.I('s_waitcnt vmcnt(0)')
        P.I('v_readfirstlane_b32 s%d, v%d' % (sU, RG))
        P.I('s_add_u32 s%d, s%d, 1' % (sSP, sSP))
        P.I('s_lshr_b32 s%d, s%d, s%d' % (sU, sU, sU2)); P.I('s_and_b32 s%d, s%d, 15' % (sU, sU))
        P.I('s_cmp_ge_u32 s%d, %d' % (sU, need))
        P.I('s_cbranch_scc1 L_poll_done%d' % n)
        if POLLSLEEP: P.I('s_sleep %d' % POLLSLEEP)
        P.I('s_cmp_lt_u32 s%d, %d' % (sSP, SPIN))
        P.I('s_cbranch_scc1 L_poll%d' % n)
        P.label('L_poll_done%d' % n)
        for i in P.ins[n0:]:
            if i.kind in ('vmem', 'wait'): i.ignore = True
    f.cost = 60
    return f

def poll_early():
    return [('buffer_load_dword v%d, v%d, s[%d:%d], 0 offen sc1' % (RG, RZ2, sDB, sDB + 3), 'pl')]

def poll_check(shift_ops, skip_ops):
    def f(P):
        _pn[0] += 1; n = _pn[0]
        P.wait_vm('pl')
        for o in skip_ops: P.I(o)
        P.I('s_cbranch_scc1 L_chk_done%d' % n)
        for o in shift_ops: P.I(o)
        P.I('v_readfirstlane_b32 s%d, v%d' % (sU, RG))
        P.I('s_lshr_b32 s%d, s%d, s%d' % (sU, sU, sU2)); P.I('s_and_b32 s%d, s%d, 15' % (sU, sU))
        P.I('s_cmp_ge_u32 s%d, 8' % sU)
        P.I('s_cbranch_scc1 L_chk_done%d' % n)
        poll(shift_ops)(P)
        P.label('L_chk_done%d' % n)
    f.cost = 40
    return f

def unit_loads(src):
    ops = []
    for hg in range(8):
        ops.append('s_add_u32 s%d, s%d, %d' % (sU2, src, hg * PART))
        ops.append(('buffer_load_dwordx4 %s, v%d, s[8:11], s%d offen %s' % (vr(RV + 4 * hg, 4), RL, sU2, RLPOL), 'ru%d' % hg))
    return ops

def unit_sum(dst):
    ops = []
    for hg in range(8):
        ops.append(('WAITVM', 'ru%d' % hg))
        for j in range(4):
            r = RV + 4 * hg + j
            if hg == 0:
                ops.append('v_lshlrev_b32_e32 v%d, 16, v%d' % (RA + 2 * j, r)); ops.append('v_and_b32_e32 v%d, 0xffff0000, v%d' % (RA + 2 * j + 1, r))
            else:
                ops.append('v_lshlrev_b32_e32 v%d, 16, v%d' % (RT, r)); ops.append('v_and_b32_e32 v%d, 0xffff0000, v%d' % (RT + 1, r))
                ops.append('v_add_f32_e32 v%d, v%d, v%d' % (RA + 2 * j, RA + 2 * j, RT)); ops.append('v_add_f32_e32 v%d, v%d, v%d' % (RA + 2 * j + 1, RA + 2 * j + 1, RT + 1))
    for j in range(4): ops.append('v_cvt_pk_bf16_f32 v%d, v%d, v%d' % (RP + j, RA + 2 * j, RA + 2 * j + 1))
    ops += swaps([(RP, RP + 2), (RP + 1, RP + 3)])
    ops.append(('buffer_store_dwordx4 %s, v%d, s[12:15], s%d offen %s' % (vr(RP, 4), RO, dst, RSPOL), 'rst'))
    return ops

SUMPOS = 6; PLPOS = 8
def sum_block(R):
    def f(P):
        _pn[0] += 1; n = _pn[0]
        P.I('s_cmp_lt_u32 s%d, 3' % sNg); P.I('s_cbranch_scc1 L_sum_done%d' % n)
        for o in unit_sum(sRO):
            if isinstance(o, tuple) and o[0] == 'WAITVM':
                if o[1] in ('ru0', 'ru7'): P.wait_vm('ru7').cond = True
            elif isinstance(o, tuple): P.I(o[0]).ignore = True
            else: P.I(o)
        P.label('L_sum_done%d' % n)
    f.cost = 100
    return f

def pfuse_tail(P):
    E = Emitter(P, Role('T', 1))
    def emit(ops):
        for o in ops: E.emit_op(o)
    def summ(dst, wait):
        ops = [o for o in unit_sum(dst) if not (isinstance(o, tuple) and o[0] == 'WAITVM')]
        P.I(wait)
        emit(ops)
    def only3(lab, ops):
        P.I('s_cmp_eq_u32 s%d, 3' % sWAVE); P.I('s_cbranch_scc0 %s' % lab)
        emit(ops)
        P.label(lab)
    P.label('L_red')
    only3('L_t0', post_flag(['s_mov_b32 s%d, %d' % (sU, 1 << 12)]))
    P.I('s_cmp_eq_u32 s%d, 3' % sWAVE); P.I('s_cbranch_scc1 L_t0b')
    summ(sRO, 's_waitcnt vmcnt(8)')
    P.I('s_branch L_t0c')
    P.label('L_t0b')
    summ(sRO, 's_waitcnt vmcnt(5)')
    P.label('L_t0c')
    only3('L_t1', [poll(['s_mov_b32 s%d, 12' % sU2])])
    P.I('s_barrier')
    P.I('s_add_u32 s%d, s%d, 256' % (sRO, sRO))
    emit(unit_loads(sRS))
    P.I('s_waitcnt vmcnt(8)')
    P.I('s_barrier')
    only3('L_t2', post_flag(['s_mov_b32 s%d, %d' % (sU, 1 << 16)]))
    summ(sRO, 's_waitcnt vmcnt(0)')
    only3('L_t3', [poll(['s_mov_b32 s%d, 16' % sU2])])
    P.I('s_barrier')
    P.I('s_add_u32 s%d, s%d, 28672' % (sRS, sRS)); P.I('s_add_u32 s%d, s%d, 256' % (sRO, sRO))
    emit(unit_loads(sRS))
    summ(sRO, 's_waitcnt vmcnt(0)')
    P.I('s_waitcnt vmcnt(0)')

PK = SB[0]
def ostore(R, n):
    jp, u = n // R.nq, n % R.nq
    return ['s_add_u32 s%d, s%d, %d' % (sT, sOo, (jp * 7 + u) * 1024),
            ('buffer_store_dwordx4 %s, v%d, s[%d:%d], s%d offen %s' % (vr(PK + (u * 4 + jp) * 4, 4), OST, sO, sO + 3, sT, PSTPOL), 'pst')]

OSLOT = 32768; ONSLOT = 5; OLA = 4
STPOS = 0
def make_O(hh, R):
    th = (hh + 3) & 3 if OSTATIC else hh
    tgt = 'ld_O%d' % th
    adv = 163840 if th != 3 else 256 - 3 * 163840
    pre = []
    if th == 0: pre = [atomic(['s_cmp_ge_u32 s%d, 4' % sNg, 's_cselect_b32 s%d, 0, s%d' % (sW + 2, sW + 2)])]
    loads = odma(tgt, adv, R, hh * OSLOT if OSTATIC else None)
    fixed = {}
    ns = 4 * R.nq
    if hh == 0: fixed[0] = [atomic(['s_cmp_eq_u32 s%d, 0' % sNg, 's_cselect_b32 s%d, 0, %d' % (sO + 2, PART)])]
    for n in range(ns):
        gpos = int((n + 0.5) * STSPAN / ns)
        if gpos // 32 == hh: fixed.setdefault(min(gpos % 32, 27), []).extend(ostore(R, n))
    if hh == 3: fixed.setdefault(12, []).append('s_add_u32 s%d, s%d, %d' % (sOo, sOo, 4 * 7 * 1024))
    if PFUSE:
        if hh == 0 and R.nq == 1:
            fixed[0] = fixed.get(0, []) + post_flag(['s_sub_u32 s%d, s%d, 2' % (sU, sNg), 's_lshl_b32 s%d, s%d, 2' % (sU, sU), 's_lshl_b32 s%d, 1, s%d' % (sU, sU),
                                                    's_cmp_ge_u32 s%d, 2' % sNg, 's_cselect_b32 s%d, s%d, 0' % (sU, sU)])
        if hh == 1:
            fixed.setdefault(SUMPOS, []).append(sum_block(R))
        if hh == 2 and R.nq == 1:
            fixed.setdefault(PLPOS, []).extend(poll_early())
            fixed.setdefault(27, []).append(poll_check(['s_sub_u32 s%d, s%d, 2' % (sU2, sNg), 's_lshl_b32 s%d, s%d, 2' % (sU2, sU2)], ['s_cmp_lt_u32 s%d, 2' % sNg]))
        if hh == 3:
            fixed[0] = fixed.get(0, []) + [atomic(['s_cmp_ge_u32 s%d, 2' % sNg, 's_cselect_b32 s%d, s%d, %d' % (sE1, sRS, BIG)])]
            ul = unit_loads(sE1)
            for n in range(8): fixed.setdefault(1 + n, []).extend([atomic([ul[2 * n]]), ul[2 * n + 1]])
            fixed.setdefault(27, []).extend(['s_add_u32 s%d, s%d, 28672' % (sRS, sRS), 's_add_u32 s%d, s%d, 256' % (sRO, sRO)])
    st = Step('O%d' % hh, fr_O(hh, R.nq), pre + loads, fixed)
    if PFUSE and hh == 0: st.wait_stores = True
    st.static = bool(OSTATIC)
    return st

STSPAN = 96
OFIRST = 9
def valu_O(R):
    q = []; b = 96
    for jp in range(4):
        est = b + 4 * (2 * jp + 1) + 3 + 2
        for u in range(R.nq):
            p = PK + (u * 4 + jp) * 4
            for t in range(2):
                for j in range(2):
                    r = qa(u, 2 * jp + t) + 2 * j
                    q.append(('v_cvt_pk_bf16_f32 v%d, v%d, v%d' % (p + 2 * t + j, r, r + 1), est, 127))
    return q

def final_stores(P, E, R):
    P.I('s_mov_b32 s%d, %d' % (sO + 2, PART))
    for n in range(4 * R.nq):
        for o in ostore(R, n): E.emit_op(o)

def lane_ids(P):
    P.I('v_mbcnt_lo_u32_b32 v0, -1, 0'); P.I('v_mbcnt_hi_u32_b32 v0, -1, v0')
    P.I('v_and_b32_e32 v3, 15, v0'); P.I('v_lshrrev_b32_e32 v4, 4, v0')

def swz8(P, dst, p):
    P.I('v_add_u32_e32 v5, %d, v4' % (4 * p)); P.I('v_lshlrev_b32_e32 v5, 1, v5')
    P.I('v_xor_b32_e32 v5, v5, v3'); P.I('v_lshlrev_b32_e32 v%d, 4, v5' % dst)

def retag(P, start, old, new):
    for ins in P.ins[start:]:
        if ins.tag == old: ins.tag = new
        if ins.wait and ins.wait[1] == old: ins.wait = (ins.wait[0], new)

def oproj_phase(P, E, R):
    nq = R.nq
    P.I('s_waitcnt vmcnt(0) lgkmcnt(0)')
    P.I('s_barrier')
    lane_ids(P)
    if nq == 2:
        P.I('s_mul_i32 s%d, s%d, %d' % (sW4096, sWAVE, OGA * 4096)); P.I('s_mul_i32 s7, s%d, %d' % (sWAVE, OGA * 20480))
    else:
        P.I('s_mov_b32 s%d, 0' % sW4096); P.I('s_mov_b32 s7, 0')
    P.I('v_mul_u32_u24_e32 v11, 1280, v4')
    for i in range(4):
        swz8(P, 12, i & 1)
        P.I('v_add3_u32 v12, v12, v11, s7'); P.I('v_add_u32_e32 v%d, %d, v12' % (OD + i, i * (5120 - 1024)))
    P.I('s_mov_b32 s%d, s82' % sW); P.I('s_mov_b32 s%d, s83' % (sW + 1))
    P.I('s_mov_b32 s%d, 655360' % (sW + 2)); P.I('s_mov_b32 s%d, 0x20000' % (sW + 3))
    P.I('s_mov_b32 s%d, 0' % sWo)
    for n in range(4):
        P.I('s_add_u32 s%d, s%d, %d' % (sWrK, sW4096, n * OSLOT))
        for o in odma('ld_O%d' % n, 163840 if n != 3 else 256 - 3 * 163840, R): E.emit_op(o)
        if n == OFIRST: P.wait_vm('ld_O0'); P.I('s_barrier')
    P.I('s_mov_b32 s%d, %d' % (sSlot, OSLOT)); P.I('s_mov_b32 s%d, %d' % (sWrap, (-(ONSLOT - 1) * OSLOT) & 0xffffffff))
    E.ring_total = ONSLOT * OSLOT
    va_regs(P, 0)
    P.I('s_lshl_b32 s7, s%d, 11' % sWAVE)
    P.I('v_lshlrev_b32_e32 v11, 4, v0'); P.I('v_add_u32_e32 v%d, s7, v11' % OST)
    P.I('s_mov_b32 s%d, %d' % (sOo, (-4 * 7 * 1024) & 0xffffffff)); P.I('s_mov_b32 s%d, 0' % sNg); P.I('s_mov_b32 s%d, 0' % sRd)
    P.I('s_add_u32 s%d, s%d, %d' % (sWrK, sW4096, 4 * OSLOT))
    P.wait_vm('ld_O0')
    P.I('s_barrier')
    E.addr_regs = list(range(VA, VA + 8))
    osteps = [make_O(hh, R) for hh in range(4)]
    o0 = make_O(0, R)
    n_pre = len(P.ins)
    for i in range(D_BAR): E.issue_reads(osteps[0].fr[i], set())
    first = [(osteps[0].fr[i].tag, osteps[0].fr[i].frag) for i in range(D_BAR)]
    for i in range(D_BAR):
        retag(P, n_pre, first[i][0], '%so0pre%d' % (R.name, i)); osteps[0].fr[i].tag = '%so0pre%d' % (R.name, i)
    n0 = len(P.ins)
    P.label(R.lab('ng'))
    upd = E.run(osteps, o0, D_BAR, set(), valu_O(R))
    for a in sorted(upd): P.I('v_add_u32_e32 v%d, s%d, v%d' % (a, sDelta, a))
    for i in range(D_BAR):
        assert o0.fr[i].frag == first[i][1], (o0.fr[i].frag, first[i][1])
        retag(P, n0, o0.fr[i].tag, '%so0pre%d' % (R.name, i))
    P.I('s_add_u32 s%d, s%d, 1' % (sNg, sNg))
    P.I('s_cmp_lt_u32 s%d, 5' % sNg)
    P.I('s_cbranch_scc1 %s' % R.lab('ng'))
    n1 = len(P.ins)
    final_stores(P, E, R)
    return n0, n1

def va_regs(P, base, dst=None):
    P.I('v_lshrrev_b32_e32 v6, 2, v3'); P.I('v_and_b32_e32 v7, 3, v0')
    P.I('v_lshl_add_u32 v9, v4, 2, v6'); P.I('v_and_b32_e32 v8, 7, v9')
    P.I('v_lshlrev_b32_e32 v9, 8, v9'); P.I('v_lshl_add_u32 v9, v7, 3, v9')
    for t in range(8):
        P.I('v_xor_b32_e32 v11, %d, v8' % t)
        P.I('v_lshl_add_u32 v%d, v11, 5, v9' % (VA + t if dst is None else dst[t]))

sS2 = 88; sSI = 89
def slow_path(P, R):
    S0, S1 = SB
    P.label(R.lab('slow'))
    P.I('s_nop 15'); P.I('s_nop 15')
    T0, T1 = S1 + 22, S1 + 23
    P.I('v_mbcnt_lo_u32_b32 v%d, -1, 0' % T0); P.I('v_mbcnt_hi_u32_b32 v%d, -1, v%d' % (T0, T0))
    P.I('v_and_b32_e32 v%d, 15, v%d' % (T1, T0)); P.I('v_lshrrev_b32_e32 v%d, 4, v%d' % (T0, T0))
    KO, VO, VO2, MX, TM = S1 + 16, S1 + 17, S1 + 18, S1 + 19, S1 + 20
    P.I('v_lshlrev_b32_e32 v%d, 8, v%d' % (KO, T1)); P.I('v_lshl_add_u32 v%d, v%d, 4, v%d' % (KO, T0, KO))
    P.I('v_lshlrev_b32_e32 v%d, 10, v%d' % (VO, T0)); P.I('v_lshl_add_u32 v%d, v%d, 1, v%d' % (VO, T1, VO))
    P.I('v_add_u32_e32 v%d, 0x1000, v%d' % (VO2, VO))
    P.I('s_lshl_b32 s%d, s%d, 17' % (sHb, sHead))
    def s_tile(u, dst):
        for ks in range(4):
            P.I('buffer_load_dwordx4 %s, v%d, s[%d:%d], s%d offen offset:%d' % (vr(S0 + 4 * ks, 4), KO, sK, sK + 3, sS2, ks * 64))
        P.I('s_waitcnt vmcnt(0)')
        for ks in range(4):
            P.I('v_mfma_f32_16x16x32_bf16 %s, %s, %s, %s' % (vr(dst, 4), vr(S0 + 4 * ks, 4), vr(qf(u, ks), 4), '0' if ks == 0 else vr(dst, 4)))
        P.I('s_nop 15')
    for u in range(R.nq):
        P.I('v_mov_b32_e32 v%d, 0xff800000' % MX)
        P.I('s_mov_b32 s%d, 0' % sSI)
        P.label(R.lab('slow_max%d' % u))
        P.I('s_lshl_b32 s%d, s%d, 12' % (sS2, sSI)); P.I('s_add_u32 s%d, s%d, s%d' % (sS2, sS2, sHb))
        s_tile(u, S0 + 16)
        P.I('v_max3_f32 v%d, v%d, v%d, v%d' % (MX, MX, S0 + 16, S0 + 17)); P.I('v_max3_f32 v%d, v%d, v%d, v%d' % (MX, MX, S0 + 18, S0 + 19))
        P.I('s_add_u32 s%d, s%d, 1' % (sSI, sSI)); P.I('s_cmp_lt_u32 s%d, 32' % sSI); P.I('s_cbranch_scc1 %s' % R.lab('slow_max%d' % u))
        lane_reduce(P, MX, TM, 'v_max_f32_e32')
        P.I('v_mov_b32_e32 v%d, 0' % lt(u))
        for r in range(32): P.I('v_mov_b32_e32 v%d, 0' % (oa(u, 0) + r))
        P.I('s_mov_b32 s%d, 0' % sSI)
        P.label(R.lab('slow_pv%d' % u))
        P.I('s_lshl_b32 s%d, s%d, 13' % (sS2, sSI)); P.I('s_add_u32 s%d, s%d, s%d' % (sS2, sS2, sHb))
        s_tile(u, S0 + 16)
        P.I('s_add_u32 s%d, s%d, 4096' % (sS2, sS2))
        s_tile(u, S0 + 20)
        P.I('s_sub_u32 s%d, s%d, 4096' % (sS2, sS2))
        for r in range(8): P.I('v_sub_f32_e32 v%d, v%d, v%d' % (S0 + 16 + r, S0 + 16 + r, MX))
        for r in range(8): P.I('v_exp_f32_e32 v%d, v%d' % (S0 + 16 + r, S0 + 16 + r))
        P.I('s_nop 0')
        for r in range(8): P.I('v_add_f32_e32 v%d, v%d, v%d' % (lt(u), lt(u), S0 + 16 + r))
        for j in range(4): P.I('v_cvt_pk_bf16_f32 v%d, v%d, v%d' % (S0 + 24 + j, S0 + 16 + 2 * j, S0 + 17 + 2 * j))
        for t in range(8):
            for i in range(8):
                P.I('buffer_load_ushort v%d, v%d, s[%d:%d], s%d offen offset:%d' % (S1 + i, VO if i < 4 else VO2, sV, sV + 3, sS2, (i & 3) * 256 + t * 32))
            P.I('s_waitcnt vmcnt(0)')
            for j in range(4): P.I('v_lshl_or_b32 v%d, v%d, 16, v%d' % (S1 + 8 + j, S1 + 2 * j + 1, S1 + 2 * j))
            P.I('s_nop 1')
            P.I('v_mfma_f32_16x16x32_bf16 %s, %s, %s, %s' % (vr(oa(u, t), 4), vr(S1 + 8, 4), vr(S0 + 24, 4), vr(oa(u, t), 4)))
            P.I('s_nop 7')
        P.I('s_add_u32 s%d, s%d, 1' % (sSI, sSI)); P.I('s_cmp_lt_u32 s%d, 16' % sSI); P.I('s_cbranch_scc1 %s' % R.lab('slow_pv%d' % u))
        lane_reduce(P, lt(u), TM, 'v_add_f32_e32')
    for u in range(R.nq):
        for s in range(2):
            for j in range(4): P.I('v_mov_b32_e32 v%d, 0' % (preg(1, u, s) + j))
    P.I('s_nop 15')
    P.I('s_cmp_eq_u32 s%d, 0' % sRet)
    P.I('s_cbranch_scc1 %s' % R.lab('slow_ret0'))
    P.I('s_branch %s' % R.lab('slow_ret1'))

def final_stamps(P):
    stamp(P, 60, True); stamp(P, 61)
    P.I('v_writelane_b32 v%d, s78, 1' % T4); P.I('v_writelane_b32 v%d, s76, 0' % T4)
    P.I('s_lshl_b32 s72, s2, 2'); P.I('s_add_u32 s72, s72, s%d' % sWAVE); P.I('s_lshl_b32 s72, s72, 8')
    P.I('s_add_u32 s72, s72, 0x4000000')
    P.I('s_add_u32 s68, s68, s72'); P.I('s_addc_u32 s69, s69, 0')
    P.I('v_mbcnt_lo_u32_b32 v0, -1, 0'); P.I('v_mbcnt_hi_u32_b32 v0, -1, v0'); P.I('v_lshlrev_b32_e32 v0, 2, v0')
    P.I('global_store_dword v0, v%d, s[68:69]' % T4)
    P.I('s_waitcnt vmcnt(0)')

def role_code(P, R):
    nq = R.nq
    start = len(P.ins)
    P.label(R.lab('start'))
    E = Emitter(P, R)
    if nq == 1 and TOUCH:
        P.I('v_lshrrev_b32_e32 v5, 1, v0'); P.I('s_mul_i32 s7, s4, 40'); P.I('v_add_u32_e32 v5, s7, v5')
        P.I('v_lshlrev_b32_e32 v5, 13, v5'); P.I('v_and_b32_e32 v11, 1, v0'); P.I('v_lshl_add_u32 v5, v11, 7, v5')
        P.I('v_add_u32_e32 v11, %d, v5' % (32 * 8192))
        P.I('v_cmp_gt_u32_e32 vcc, 16, v0'); P.I('v_mov_b32_e32 v12, 0x40000000'); P.I('v_cndmask_b32_e32 v11, v12, v11, vcc')
        P.I('buffer_load_dword v40, v5, s[%d:%d], 0 offen' % (sW, sW + 3), 'touch')
        P.I('buffer_load_dword v41, v11, s[%d:%d], 0 offen' % (sW, sW + 3), 'touch')
    for o in dma_x(0, nq): E.emit_op(o)
    if nq == 1:
        for i in range(4):
            swz8(P, 12, i & 1)
            P.I('v_lshl_add_u32 v12, v4, 13, v12'); P.I('v_add_u32_e32 v%d, %d, v12' % (WD + i, i * (32768 - 1024)))
        for o in dma_Warea(nm('P', 0), 0, sWc, SLOT_C(0)): E.emit_op(o)
    if STAMP: stamp(P, 3)
    if nq == 1 and CTOUCH:
        P.I('s_getpc_b64 s[96:97]')
        P.label('L_pc_here')
        P.I('s_sub_u32 s96, s96, L_pc_here-L_code_start'); P.I('s_subb_u32 s97, s97, 0')
        P.I('s_lshr_b32 s7, s2, 3'); P.I('s_mul_i32 s7, s7, %d' % (CT_LINES * 128))
        P.I('v_lshlrev_b32_e32 v5, 7, v0'); P.I('v_add_u32_e32 v5, s7, v5')
        P.I('v_min_u32_e32 v5, L_end-L_code_start-4, v5'); P.I('v_and_b32_e32 v5, 0xfffffffc, v5')
        P.I('global_load_dword v42, v5, s[96:97]', 'touch')
    late_setup(P)
    if PFUSE and nq == 1:
        P.I('s_cmp_eq_u32 s6, 0'); P.I('s_cbranch_scc0 L_noinit')
        n0 = len(P.ins)
        P.I('s_lshl_b32 s60, s5, 4'); P.I('s_add_u32 s60, s60, s4')
        P.I('s_lshl_b32 s61, s60, 8'); P.I('s_add_u32 s61, s61, %d' % (FLGOFF + WSOFF))
        P.I('s_add_u32 s96, s68, s61'); P.I('s_addc_u32 s97, s69, 0'); P.I('s_mov_b32 s98, 256'); P.I('s_mov_b32 s99, 0x20000')
        P.I('v_mov_b32_e32 v44, 0'); P.I('v_lshlrev_b32_e32 v45, 2, v0')
        P.I('buffer_store_dword v44, v45, s[96:99], 0 offen sc0 sc1')
        P.I('s_waitcnt vmcnt(0)')
        P.I('s_mov_b32 s96, s90'); P.I('s_mov_b32 s97, s91')
        P.I('s_lshl_b32 s61, s60, 2'); P.I('v_mov_b32_e32 v45, s61'); P.I('v_mov_b32_e32 v44, 1')
        P.I('v_cmp_eq_u32_e32 vcc, 0, v0'); P.I('v_mov_b32_e32 v46, %d' % BIG); P.I('v_cndmask_b32_e32 v45, v46, v45, vcc')
        P.I('buffer_atomic_add v44, v45, s[96:99], 0 offen sc1')
        for i in P.ins[n0:]:
            if i.kind in ('vmem', 'wait'): i.ignore = True
        P.label('L_noinit')
    for ks in range(4):
        P.I('v_add_u32_e32 v5, %d, v4' % (4 * ks)); P.I('v_xor_b32_e32 v5, v5, v3'); P.I('v_lshlrev_b32_e32 v5, 4, v5')
        P.I('v_lshl_add_u32 v%d, v3, 8, v5' % (KA + ks))
    va_regs(P, 0)
    for kq in range(4):
        for e in range(2):
            P.I('v_lshrrev_b32_e32 v5, 1, v4'); P.I('v_add_u32_e32 v5, %d, v5' % (4 * kq + 2 * e))
            P.I('v_xor_b32_e32 v5, v5, v3'); P.I('v_lshlrev_b32_e32 v5, 4, v5')
            P.I('v_lshl_add_u32 v5, v3, 8, v5'); P.I('v_and_b32_e32 v11, 1, v4'); P.I('v_lshl_add_u32 v5, v11, 3, v5')
            P.I('v_add_u32_e32 v%d, s70, v5' % (XR + 2 * kq + e))
            P.I('v_add_u32_e32 v%d, %d, v%d' % (XR2 + 2 * kq + e, 2 * SLOT, XR + 2 * kq + e))
    for j in range(4):
        P.I('v_add_u32_e32 v5, %d, v4' % (4 * j)); P.I('v_xor_b32_e32 v5, v5, v3'); P.I('v_lshlrev_b32_e32 v5, 4, v5')
        P.I('v_lshl_add_u32 v5, v4, 8, v5'); P.I('v_add_u32_e32 v%d, s%d, v5' % (KD + j, sW4096))
    for p in range(2):
        swz8(P, 12, p)
        P.I('v_lshl_add_u32 v12, v4, 8, v12'); P.I('v_add_u32_e32 v%d, s%d, v12' % (VD + p, sW4096))
    for j in range(4): P.I('v_mov_b32_e32 v%d, 0x3f803f80' % (ONES + j))
    if nq == 1 and OTOUCH:
        P.I('s_mul_i32 s7, s4, %d' % (320 * 128)); P.I('v_lshlrev_b32_e32 v40, 7, v0'); P.I('v_add_u32_e32 v40, s7, v40')
        P.I('s_mov_b32 s92, s82'); P.I('s_mov_b32 s93, s83'); P.I('s_mov_b32 s94, 0'); P.I('s_mov_b32 s95, 0x20000')
    for o in read_x(0, nq): E.emit_op(o)
    if STAMP: P.I('s_waitcnt lgkmcnt(0)'); stamp(P, 44)
    P.wait_vm(nm('P', 0))
    P.I('s_barrier')
    if STAMP: P.I('s_waitcnt lgkmcnt(0)'); stamp(P, 2)
    psteps = [make_P(g, R) for g in range(8)]
    gsteps = [make_G(g, R) for g in range(8)]
    for i in range(D_BAR): E.issue_reads(psteps[0].fr[i], set())
    g0 = make_G(0, R)
    n_pre = len(P.ins)
    upd = E.run(psteps, g0, D_BAR, set(), valu_P(psteps, R))
    for i in range(D_BAR):
        gsteps[0].fr[i].frag = g0.fr[i].frag; gsteps[0].fr[i].tag = '%sg0pre%d' % (R.name, i)
        retag(P, n_pre, g0.fr[i].tag, '%sg0pre%d' % (R.name, i))
    if STAMP: P.I('s_waitcnt lgkmcnt(0)'); stamp(P, 56, True); stamp(P, 57)
    pro_end = len(P.ins)
    P.label(R.lab('head'))
    vq = valu_G(gsteps, R)
    g6 = make_G(6, R)
    upd6, vp = E.run(gsteps[:6], g6, D_BAR, set(upd), vq, allow_left=True)
    off6 = sum(len(s_.fr) for s_ in gsteps[:6])
    lsteps = [make_GL(6, R), make_GL(7, R)]
    for i in range(D_BAR):
        retag(P, pro_end, g6.fr[i].tag, '%sg6pre%d' % (R.name, i))
        for st_ in (gsteps[6], lsteps[0]):
            st_.fr[i].frag = g6.fr[i].frag; st_.fr[i].tag = '%sg6pre%d' % (R.name, i)
    fr6 = E.fr
    P.I('s_cmp_eq_u32 s%d, 3' % sHead)
    P.I('s_cbranch_scc1 %s' % R.lab('last'))
    p1_end = len(P.ins)
    g0n = make_G(0, R)
    upd2 = E.run(gsteps[6:], g0n, D_BAR, set(upd6), shift_q(vq[vp:], off6))
    assert upd2 == upd, (upd2, upd)
    for i in range(D_BAR):
        assert g0n.fr[i].frag == g0.fr[i].frag, (g0n.fr[i].frag, g0.fr[i].frag)
        retag(P, p1_end, g0n.fr[i].tag, '%sg0pre%d' % (R.name, i))
    P.I('s_add_u32 s%d, s%d, 1' % (sHead, sHead))
    P.I('s_branch %s' % R.lab('head'))
    p2_end = len(P.ins)
    P.label(R.lab('last'))
    E.fr = fr6
    vql = valu_G(gsteps[:6] + lsteps, R, last=True)
    for a_, b_ in zip(vq[:vp], vql[:vp]): assert a_[0] == b_[0] or callable(a_[0]), (a_[0], b_[0])
    osteps = [make_O(hh, R) for hh in range(4)]
    o0 = make_O(0, R); o0.ring_total = ONSLOT * OSLOT
    updo = E.run(lsteps, o0, D_BAR, set(upd6), shift_q(vql[vp:], off6))
    for a in sorted(updo): P.I('v_add_u32_e32 v%d, s%d, v%d' % (a, sDelta, a))
    for i in range(D_BAR):
        retag(P, p2_end, o0.fr[i].tag, '%so0pre%d' % (R.name, i))
        osteps[0].fr[i].frag = o0.fr[i].frag; osteps[0].fr[i].tag = '%so0pre%d' % (R.name, i)
    if STAMP: P.I('s_waitcnt lgkmcnt(0)'); stamp(P, 58, True); stamp(P, 59)
    if PFUSE: red_setup(P, R)
    body_end = len(P.ins)
    on0 = len(P.ins)
    P.label(R.lab('ng'))
    o0n = make_O(0, R)
    updn = E.run(osteps, o0n, D_BAR, set(), valu_O(R))
    for a in sorted(updn): P.I('v_add_u32_e32 v%d, s%d, v%d' % (a, sDelta, a))
    for i in range(D_BAR):
        assert o0n.fr[i].frag == o0.fr[i].frag, (o0n.fr[i].frag, o0.fr[i].frag)
        retag(P, on0, o0n.fr[i].tag, '%so0pre%d' % (R.name, i))
    P.I('s_add_u32 s%d, s%d, 1' % (sNg, sNg))
    P.I('s_cmp_lt_u32 s%d, 5' % sNg)
    P.I('s_cbranch_scc1 %s' % R.lab('ng'))
    on1 = len(P.ins)
    final_stores(P, E, R)
    P.I('s_waitcnt lgkmcnt(0)' if PFUSE else 's_waitcnt vmcnt(0) lgkmcnt(0)')
    if FUSE or PFUSE:
        if STAMP: stamp(P, 62, True)
        P.I('s_branch L_red')
    else:
        if STAMP: final_stamps(P)
        P.I('s_endpgm')
    slow_path(P, R)
    end = len(P.ins)
    I = P.ins
    marks = [I[start], I[pro_end], I[p1_end], I[p2_end], I[on0], I[on1]]
    return dict(marks=marks)

def dyn_seq(parts):
    pro, p1, p2, lastp, ng = parts
    return pro + (p1 + p2) * 2 + p1 + lastp + ng * 3

BALANCE = 1
def split_parts(P, info):
    pos = [next(k for k, i in enumerate(P.ins) if i is m) for m in info['marks']]
    return pos, [P.ins[pos[n]:pos[n + 1]] for n in range(5)]

def rebalance(P, info):
    pos, parts = split_parts(P, info)
    firsts = [P.ins[p] for p in pos]
    out = []
    for seg in parts:
        seg2, moved = balance_gaps(seg)
        out.append(seg2)
    P.ins[pos[0]:pos[5]] = sum(out, [])
    n = pos[0]; marks = []
    for seg in out:
        marks.append(P.ins[n]); n += len(seg)
    marks.append(P.ins[n])
    info['marks'] = marks


FUSE = 0
SPIN = 400000
RLPOL = 'sc1'; RSPOL = ''
def fused_tail(P):
    P.label('L_red')
    P.I('s_load_dwordx2 s[96:97], s[0:1], 80')
    P.I('s_load_dwordx2 s[90:91], s[0:1], 88')
    P.I('s_lshl_b32 s52, s5, 4'); P.I('s_add_u32 s52, s52, s4')
    P.I('s_lshl_b32 s53, s52, 2')
    P.I('v_mbcnt_lo_u32_b32 v0, -1, 0'); P.I('v_mbcnt_hi_u32_b32 v0, -1, v0')
    P.I('v_mov_b32_e32 v1, s53'); P.I('v_mov_b32_e32 v2, 1')
    P.I('s_barrier')
    P.I('s_waitcnt lgkmcnt(0)')
    P.I('s_cmp_eq_u32 s%d, 0' % sWAVE)
    P.I('s_cbranch_scc0 L_red_wait')
    P.I('s_mov_b64 s[54:55], exec')
    P.I('s_mov_b64 exec, 1')
    P.I('global_atomic_add v1, v2, s[90:91] sc1')
    P.I('s_mov_b32 s56, 0')
    P.label('L_red_poll')
    P.I('global_load_dword v3, v1, s[90:91] sc1')
    P.I('s_waitcnt vmcnt(0)')
    P.I('v_readfirstlane_b32 s57, v3')
    P.I('s_add_u32 s56, s56, 1')
    P.I('s_cmp_ge_u32 s57, 8')
    P.I('s_cbranch_scc1 L_red_go')
    P.I('s_cmp_lt_u32 s56, %d' % SPIN)
    P.I('s_cbranch_scc0 L_red_go')
    P.I('s_sleep 2')
    P.I('s_branch L_red_poll')
    P.label('L_red_go')
    P.I('s_mov_b64 exec, s[54:55]')
    P.label('L_red_wait')
    P.I('s_barrier')
    P.I('s_mul_i32 s58, s52, %d' % (8 * PART))
    if WSOFF: P.I('s_add_u32 s58, s58, %d' % WSOFF)
    P.I('s_add_u32 s8, s68, s58'); P.I('s_addc_u32 s9, s69, 0')
    P.I('s_mov_b32 s10, %d' % (8 * PART)); P.I('s_mov_b32 s11, 0x20000')
    P.I('s_mov_b32 s12, s96'); P.I('s_mov_b32 s13, s97'); P.I('s_mov_b32 s14, %d' % (16 * 112 * 2560)); P.I('s_mov_b32 s15, 0x20000')
    P.I('v_lshlrev_b32_e32 v2, 4, v0')
    P.I('v_and_b32_e32 v3, 15, v0'); P.I('v_lshrrev_b32_e32 v4, 4, v0')
    P.I('v_mul_u32_u24_e32 v5, 2560, v3'); P.I('v_lshl_add_u32 v5, v4, 4, v5')
    P.I('s_lshl_b32 s59, s6, 2'); P.I('s_add_u32 s59, s59, s%d' % sWAVE)
    P.I('s_mul_i32 s60, s4, %d' % (112 * 2560)); P.I('s_mul_i32 s61, s5, 1280'); P.I('s_add_u32 s60, s60, s61')
    for k in range(3):
        P.I('s_add_u32 s61, s59, %d' % (32 * k))
        P.I('s_mul_i32 s62, s61, 37'); P.I('s_lshr_b32 s62, s62, 8')
        P.I('s_mul_i32 s63, s62, 7'); P.I('s_sub_u32 s63, s61, s63')
        P.I('s_mul_i32 s64, s62, 14'); P.I('s_add_u32 s64, s64, s63'); P.I('s_lshl_b32 s64, s64, 10')
        P.I('s_lshl_b32 s65, s62, 7'); P.I('s_mul_i32 s66, s63, %d' % (16 * 2560)); P.I('s_add_u32 s65, s65, s66'); P.I('s_add_u32 s65, s65, s60')
        P.I('s_cmp_lt_u32 s61, 70')
        P.I('s_cselect_b32 s64, s64, 0x40000000'); P.I('s_cselect_b32 s%d, s65, 0x40000000' % (98 + k))
        for half in range(2):
            for hg in range(8):
                r = 16 + ((k * 2 + half) * 8 + hg) * 4
                P.I('s_add_u32 s66, s64, %d' % (hg * PART + half * 7168))
                P.I('buffer_load_dwordx4 v[%d:%d], v2, s[8:11], s66 offen %s' % (r, r + 3, RLPOL), 'rl%d_%d_%d' % (k, half, hg))
    for k in range(3):
        for half in range(2):
            acc = 208 + half * 8
            for hg in range(8):
                P.wait_vm('rl%d_%d_%d' % (k, half, hg))
                r = 16 + ((k * 2 + half) * 8 + hg) * 4
                for j in range(4):
                    if hg == 0:
                        P.I('v_lshlrev_b32_e32 v%d, 16, v%d' % (acc + 2 * j, r + j))
                        P.I('v_and_b32_e32 v%d, 0xffff0000, v%d' % (acc + 2 * j + 1, r + j))
                    else:
                        P.I('v_lshlrev_b32_e32 v7, 16, v%d' % (r + j))
                        P.I('v_and_b32_e32 v8, 0xffff0000, v%d' % (r + j))
                        P.I('v_add_f32_e32 v%d, v%d, v7' % (acc + 2 * j, acc + 2 * j))
                        P.I('v_add_f32_e32 v%d, v%d, v8' % (acc + 2 * j + 1, acc + 2 * j + 1))
            o = 224 + ((k * 2 + half) & 1) * 4
            for j in range(4): P.I('v_cvt_pk_bf16_f32 v%d, v%d, v%d' % (o + j, acc + 2 * j, acc + 2 * j + 1))
            for op in ('v_permlane32_swap_b32_e32', 'v_permlane16_swap_b32_e32'):
                P.I('%s v%d, v%d' % (op, o, o + 2)); P.I('%s v%d, v%d' % (op, o + 1, o + 3))
            P.I('buffer_store_dwordx4 v[%d:%d], v5, s[12:15], s%d offen offset:%d %s' % (o, o + 3, 98 + k, half * 64, RSPOL), 'rst')
    P.I('s_waitcnt vmcnt(0)')

def late_setup(P):
    P.I('s_lshl_b32 s7, s4, 5'); P.I('s_add_u32 s7, s7, s86'); P.I('s_lshl_b32 s71, s7, 17')
    P.I('s_add_u32 s%d, s54, s71' % sK); P.I('s_addc_u32 s%d, s55, 0' % (sK + 1))
    P.I('s_mov_b32 s%d, 524288' % (sK + 2)); P.I('s_mov_b32 s%d, 0x20000' % (sK + 3))
    P.I('s_add_u32 s%d, s56, s71' % sV); P.I('s_addc_u32 s%d, s57, 0' % (sV + 1))
    P.I('s_mov_b32 s%d, 524288' % (sV + 2)); P.I('s_mov_b32 s%d, 0x20000' % (sV + 3))
    P.I('s_mul_i32 s71, s86, 163840')
    P.I('s_add_u32 s82, s82, s71'); P.I('s_addc_u32 s83, s83, 0')
    P.I('s_lshl_b32 s71, s5, 4'); P.I('s_add_u32 s71, s71, s4'); P.I('s_lshl_b32 s71, s71, 3'); P.I('s_add_u32 s71, s71, s6')
    P.I('s_mul_i32 s71, s71, %d' % PART)
    if WSOFF: P.I('s_add_u32 s71, s71, %d' % WSOFF)
    P.I('s_add_u32 s%d, s68, s71' % sO); P.I('s_addc_u32 s%d, s69, 0' % (sO + 1))
    P.I('s_mov_b32 s%d, %d' % (sO + 2, PART)); P.I('s_mov_b32 s%d, 0x20000' % (sO + 3))
    if KVA == 1: P.I('s_lshl_b32 s%d, s%d, 12' % (sW4096, sWAVE))
    else: P.I('s_mov_b32 s%d, 0' % sW4096)
    P.I('s_mov_b32 s%d, %d' % (sSlot, SLOT)); P.I('s_mov_b32 s%d, %d' % (sWrap, (-2 * SLOT) & 0xffffffff))
    P.I('s_mov_b32 s%d, 0x%x' % (sC, QSCALE))
    P.I('s_mov_b32 s%d, 0' % sHead); P.I('s_mov_b32 s%d, 0' % sRd)
    P.I('s_mov_b32 s%d, %d' % (sKo, 3 * 16384)); P.I('s_mov_b32 s%d, %d' % (sVo, 2 * 16384))

def gen_k16(name='attn_kernel'):
    P = Prog()
    P.label('L_code_start')
    P.I('s_cmp_ge_u32 s2, 256')
    P.I('s_cbranch_scc1 L_end')
    P.I('s_load_dwordx8 s[52:59], s[0:1], 0')
    P.I('s_load_dwordx8 s[60:67], s[0:1], 40')
    P.I('s_load_dwordx2 s[68:69], s[0:1], 96')
    P.I('s_load_dwordx2 s[82:83], s[0:1], 32')
    P.I('s_load_dwordx2 s[84:85], s[0:1], 72')
    if PFUSE:
        P.I('s_load_dwordx2 s[100:101], s[0:1], 80')
        P.I('s_load_dwordx2 s[90:91], s[0:1], 88')
    if STAMP:
        P.I('s_memtime s[76:77]'); P.I('s_memrealtime s[78:79]'); P.I('s_mov_b32 s74, 4')
    P.I('v_lshrrev_b32_e32 v1, 6, v0')
    P.I('v_and_b32_e32 v0, 63, v0')
    P.I('s_and_b32 s3, s2, 7')
    P.I('v_readfirstlane_b32 s%d, v1' % sWAVE)
    P.I('s_lshr_b32 s4, s2, 3'); P.I('s_lshr_b32 s5, s3, 2')
    P.I('s_and_b32 s6, s3, 3'); P.I('s_lshl_b32 s6, s6, 1'); P.I('s_and_b32 s7, s4, 1'); P.I('s_add_u32 s6, s6, s7')
    P.I('s_lshr_b32 s4, s4, 1')
    P.I('v_and_b32_e32 v3, 15, v0'); P.I('v_lshrrev_b32_e32 v4, 4, v0')
    P.I('s_lshl_b32 s70, s%d, 13' % sWAVE)
    P.I('s_mul_i32 s71, s%d, %d' % (sWAVE, 32 * 1280))
    P.I('v_mul_u32_u24_e32 v11, 1280, v4')
    for jj in range(4):
        P.I('v_add_u32_e32 v5, %d, v4' % (4 * jj)); P.I('v_xor_b32_e32 v5, v5, v3'); P.I('v_lshlrev_b32_e32 v5, 4, v5')
        P.I('v_add3_u32 v%d, v5, v11, s71' % (XV + jj))
    P.I('s_waitcnt lgkmcnt(0)')
    P.I('s_cmp_eq_u32 s5, 0')
    for i in range(8): P.I('s_cselect_b32 s%d, s%d, s%d' % (52 + i, 52 + i, 60 + i))
    P.I('s_cselect_b32 s82, s82, s84'); P.I('s_cselect_b32 s83, s83, s85')
    P.I('s_mul_i32 s7, s4, 143360')
    P.I('s_add_u32 s%d, s52, s7' % sX); P.I('s_addc_u32 s%d, s53, 0' % (sX + 1))
    P.I('s_mov_b32 s%d, 143360' % (sX + 2)); P.I('s_mov_b32 s%d, 0x20000' % (sX + 3))
    P.I('s_lshl_b32 s86, s6, 2')
    P.I('s_lshl_b32 s71, s86, 8')
    P.I('s_add_u32 s%d, s58, s71' % sW); P.I('s_addc_u32 s%d, s59, 0' % (sW + 1))
    P.I('s_sub_u32 s%d, 5242880, s71' % (sW + 2)); P.I('s_mov_b32 s%d, 0x20000' % (sW + 3))
    P.I('s_mov_b32 s%d, 0' % sWc); P.I('s_mov_b32 s%d, 256' % sWn)
    P.I('s_cmp_eq_u32 s%d, 3' % sWAVE)
    P.I('s_cbranch_scc0 L_A_start')
    P.I('s_branch L_B_start')
    head = list(P.ins)
    RA, RB = Role('A', 2), Role('B', 1)
    a = role_code(P, RA)
    b = role_code(P, RB)
    if BALANCE:
        for info in (a, b): rebalance(P, info)
    red0 = len(P.ins)
    if FUSE or PFUSE:
        if PFUSE: pfuse_tail(P)
        else: fused_tail(P)
        if STAMP: final_stamps(P)
        P.I('s_endpgm')
    red_ins = P.ins[red0:]
    P.label('L_end')
    P.I('s_endpgm')
    for info in (a, b):
        pos, parts = split_parts(P, info)
        info['tail'] = P.ins[pos[5]:pos[5] + 40]
        resolve_waits(head + dyn_seq(parts))
    if FUSE: resolve_waits(red_ins)
    if PFUSE: resolve_waits(red_ins)
    drop_optional(P)
    P.pad()
    bad = 0
    def at(lab): return [k for k, i in enumerate(P.ins) if i.label == lab][0]
    for R in (RA, RB):
        h, l, n_ = at(R.lab('head')), at(R.lab('last')), at(R.lab('ng'))
        br_last = [k for k, i in enumerate(P.ins) if i.op == 's_cbranch_scc1' and i.text.endswith(R.lab('last'))][0]
        br_ng = [k for k, i in enumerate(P.ins) if i.op == 's_cbranch_scc1' and i.text.endswith(R.lab('ng'))][0]
        I = P.ins
        bad += check_hazards(I[h - 60:l], name)
        bad += check_hazards(I[l - 60:l] + I[h:h + 80], name)
        bad += check_hazards(I[br_last - 60:br_last + 1] + I[l:br_ng + 1], name)
        bad += check_hazards(I[br_ng - 60:br_ng + 1] + I[n_:n_ + 80], name)
    if FUSE or PFUSE: bad += check_hazards(P.ins[at('L_red'):], name)
    assert bad == 0
    return P

if __name__ == '__main__':
    print(gen_k16().text())
```

```python
from asmlib import *
import struct, math

SLOT = 53248
KOFF, VOFF, WOFF = 0, 16384, 32768
XBASE = 3 * SLOT
NSLOT = 3
LDS_BYTES = 163840
PART = 143360

QACC = 0; OACC = 64; SB = (128, 160); Q = 192
KA = 224; VA = 228; KD = 236; VD = 240; ONES = 242; LS = 246
T2 = 254; T4 = 255
WD = 32
OST = KA; OD = KD
def lt(u): return LS + 4 * u
XR = 128; XR2 = 136; XV = 144
XA = 0; POOL = 160; NPOOL = 8
STASH = [192, 224, 0, 32]
sK = 8; sV = 12; sW = 16; sO = 20; sX = 24
sWAVE = 28; sKo = 29; sVo = 30; sWc = 31; sRd = 32; sDelta = 33; sWrK = 34; sHead = 35
sT = 36; sT2 = 37; sW4096 = 38; sXc = 39; sOo = 40; sC = 41; sSlot = 42; sWrap = 43
sRet = 87; sM = 44; sHb = 48; sI = 49; sWr = 50; sNg = 51; sWn = 46; sWo = 47
QSCALE = struct.unpack('<I', struct.pack('<f', math.log2(math.e) / math.sqrt(128.0)))[0]

STAMP = False
EXP = {}
D_AHEAD = 6
D_BAR = 3
WAITW = 4
SPLITR = 0; LEAD = 0
CAP1 = 8; CAP2 = 24; LATE = 16
BUDGET_A = 12
BUDGET_B = 26
KVPOL = 'nt'; WPOL = ''; XPOL = ''; OPOL = ''; PSTPOL = 'sc0 sc1'
ODMA_A = 6
WSOFF = 0

def vr(b, n): return 'v[%d:%d]' % (b, b + n - 1)
def ar(b, n): return 'a[%d:%d]' % (b, b + n - 1)
def qa(u, t): return QACC + (u * 8 + t) * 4
def oa(u, t): return OACC + (u * 8 + t) * 4
def sreg(buf, u, kt): return SB[buf] + (u * 2 + (kt >> 1)) * 8 + (kt & 1) * 4
def preg(buf, u, s): return SB[buf] + (u * 2 + s) * 8
def qf(u, ks): return Q + (u * 4 + ks) * 4
def xf(kk, u): return XA + (kk * 2 + u) * 4

class F:
    def __init__(self, reads, mfmas):
        self.reads = reads
        self.mfmas = mfmas

def tr(e, addr, imm): return ('ds_read_b64_tr_b16', 2 * e, 2, addr, imm)

def fr_S(buf, nq):
    out = []
    for kt in range(4):
        for ks in range(4):
            out.append(F([('ds_read_b128', 0, 4, KA + ks, KOFF + kt * 4096)],
                         [(vr(sreg(buf, u, kt), 4), vr(qf(u, ks), 4), ks == 0) for u in range(nq)]))
    return out

def q_ksteps(g):
    a = g >> 1
    if g % 2 == 0: return [(5 * a, 0, 1), (5 * a + 1, 2, 3)]
    return [(5 * a + 2, 'X', 0), (5 * a + 3, 1, 2), (5 * a + 4, 3, 4)]

def fr_Q(g, nq, tmajor=False):
    ks = q_ksteps(g)
    order = [(k, t) for t in range(8) for k in ks] if tmajor else [(k, t) for k in ks for t in range(8)]
    out = []
    for ((kk, b0, b1), t) in order:
        reads = []
        for e, b in enumerate((b0, b1)):
            if b == 'X': reads.append(tr(e, ('X', VA + t), 0))
            else: reads.append(tr(e, VA + t, WOFF + b * 4096))
        out.append(F(reads, [(vr(qa(u, t), 4), ar(xf(kk, u), 4), kk == 0) for u in range(nq)]))
    return out

def fr_PV(g, nq, tmajor=False):
    buf = g & 1
    order = [(s, t) for t in range(8) for s in range(2)] if tmajor else [(s, t) for s in range(2) for t in range(8)]
    return [F([tr(e, VA + t, VOFF + (2 * s + e) * 4096) for e in range(2)],
              [(vr(oa(u, t), 4), vr(preg(buf, u, s), 4), g == 0 and s == 0) for u in range(nq)]) for (s, t) in order]

VA2 = [225, 226, 227, 240, 241, 242, 243, 244]
OSTATIC = 1
def fr_O(hh, nq):
    order = [(s, t) for t in range(8) for s in range(4)] if hh in (0, 3) else [(s, t) for s in range(4) for t in range(8)]
    slot = (hh + 1) & 3
    hi = OSTATIC and slot >= 2
    off = (slot & 1) * 32768 if OSTATIC else 0
    return [F([tr(e, VA2[t] if hi else VA + t, off + (2 * s + e) * 4096) for e in range(2)],
              [(vr(qa(u, t), 4), ar(STASH[hh] + (u * 4 + s) * 4, 4), hh == 0 and s == 0) for u in range(nq)]) for (s, t) in order]

SUMV = 0
def softmax_chunk(buf, u, s, first):
    b = preg(buf, u, s); first_u = first
    e = ['v_exp_f32_e32 v%d, v%d' % (b + i, b + i) for i in range(8)]
    c = ['v_cvt_pk_bf16_f32 v%d, v%d, v%d' % (b + j, b + 2 * j, b + 2 * j + 1) for j in range(4)]
    if SUMV:
        a = ['v_add_f32_e32 v%d, v%d, v%d' % (lt(u) + (i & 1), b + i, lt(u) + (i & 1)) for i in range(8)]
        if first_u: a[0] = 'v_mov_b32_e32 v%d, v%d' % (lt(u), b); a[1] = 'v_mov_b32_e32 v%d, v%d' % (lt(u) + 1, b + 1)
        seq = [e[0], e[1]]
        for i in range(2, 8): seq += [e[i], a[i - 2]]
        return seq + [a[6], a[7]] + c, None
    m = 'v_mfma_f32_16x16x32_bf16 %s, %s, %s, %s' % (vr(lt(u), 4), vr(ONES, 4), vr(b, 4), '0' if first else vr(lt(u), 4))
    return e[:4] + [c[0]] + e[4:6] + [c[1]] + e[6:] + [c[2], c[3]], m

def swaps(pairs):
    return ['v_permlane32_swap_b32_e32 v%d, v%d' % p for p in pairs] + ['v_permlane16_swap_b32_e32 v%d, v%d' % p for p in pairs]

def qconv(ks, nq):
    ops = []
    for u in range(nq):
        for t in (2 * ks, 2 * ks + 1):
            for r in range(4): ops.append('v_mul_f32_e32 v%d, s%d, v%d' % (qa(u, t) + r, sC, qa(u, t) + r))
    for u in range(nq):
        for t in range(2):
            for j in range(2):
                r = qa(u, 2 * ks + t) + 2 * j
                ops.append('v_cvt_pk_bf16_f32 v%d, v%d, v%d' % (qf(u, ks) + 2 * t + j, r, r + 1))
    ops += swaps([(qf(u, ks) + j, qf(u, ks) + 2 + j) for u in range(nq) for j in range(2)])
    return ops

def ofin(s, nq):
    ops = []
    for u in range(nq):
        b = oa(u, 2 * s)
        for r in range(8): ops.append('v_mul_f32_e32 v%d, v%d, v%d' % (b + r, lt(u), b + r))
        for j in range(4): ops.append('v_cvt_pk_bf16_f32 v%d, v%d, v%d' % (b + j, b + 2 * j, b + 2 * j + 1))
    return ops

class Role:
    def __init__(self, name, nq):
        self.name = name; self.nq = nq
        self.budget = BUDGET_A if nq == 2 else BUDGET_B
    def lab(self, s): return 'L_%s_%s' % (self.name, s)

def mk_stash(R):
    def f(P):
        for h in range(2):
            P.I('s_cmp_eq_u32 s%d, %d' % (sHead, h)); P.I('s_cbranch_scc1 %s' % R.lab('st%d' % h))
        for h in (2, 0, 1):
            if h != 2: P.label(R.lab('st%d' % h))
            for u in range(R.nq):
                for s in range(4):
                    for j in range(4): P.I('v_accvgpr_write_b32 a%d, v%d' % (STASH[h] + (u * 4 + s) * 4 + j, oa(u, 2 * s) + j))
            if h != 1: P.I('s_branch %s' % R.lab('st_done'))
        P.label(R.lab('st_done'))
    return f

def lane_reduce(P, reg, tmp, op):
    P.I('v_mov_b32_e32 v%d, v%d' % (tmp, reg))
    P.I('v_permlane32_swap_b32_e32 v%d, v%d' % (reg, tmp))
    P.I('%s v%d, v%d, v%d' % (op, reg, reg, tmp))
    P.I('v_mov_b32_e32 v%d, v%d' % (tmp, reg))
    P.I('v_permlane16_swap_b32_e32 v%d, v%d' % (reg, tmp))
    P.I('%s v%d, v%d, v%d' % (op, reg, reg, tmp))

def mk_check(R, site=0):
    def f(P):
        if SUMV:
            for u in range(R.nq): P.I('v_add_f32_e32 v%d, v%d, v%d' % (lt(u), lt(u), lt(u) + 1))
            for u in range(R.nq): lane_reduce(P, lt(u), lt(u) + 2, 'v_add_f32_e32')
        P.I('s_mov_b64 s[%d:%d], -1' % (sM, sM + 1))
        for u in range(R.nq):
            P.I('v_cmp_le_f32_e32 vcc, 0x33800000, v%d' % lt(u))
            P.I('s_and_b64 s[%d:%d], s[%d:%d], vcc' % (sM, sM + 1, sM, sM + 1))
            P.I('v_cmp_ge_f32_e32 vcc, 0x4b800000, v%d' % lt(u))
            P.I('s_and_b64 s[%d:%d], s[%d:%d], vcc' % (sM, sM + 1, sM, sM + 1))
        P.I('s_cmp_eq_u64 s[%d:%d], -1' % (sM, sM + 1))
        if not (EXP.get('nohook') or EXP.get('dropm') or EXP.get('nosm') or EXP.get('nokv') or EXP.get('nord')):
            P.I('s_cbranch_scc1 %s' % R.lab('fast_ok%d' % site))
            P.I('s_mov_b32 s%d, %d' % (sRet, site))
            P.I('s_branch %s' % R.lab('slow'))
        P.label(R.lab('slow_ret%d' % site))
        P.label(R.lab('fast_ok%d' % site))
        for u in range(R.nq): P.I('v_rcp_f32_e32 v%d, v%d' % (lt(u), lt(u)))
    return f

def dma(v, srd, soff, imm, pol, tag):
    return ('buffer_load_dwordx4 v%d, s[%d:%d], s%d offen offset:%d %s lds' % (v, srd, srd + 3, soff, imm, pol), tag)

OTOUCH = 1; OTPOL = ''
CTOUCH = 1; CT_LINES = 24
TOUCH = 1
KVA = 1
def kv_groups(R):
    if KVA == 1: return [0]
    return [] if R.nq == 2 else [0, 1, 2, 3]

def dma_K(tag, R, wr=sWrK, soff=sKo, adv=True):
    ops = []
    for G in kv_groups(R):
        ops.append('s_add_u32 m0, s%d, %d' % (wr, G * 4096))
        if G: ops.append('s_add_u32 s%d, s%d, %d' % (sT2, soff, G * 4096))
        ops += [dma(KD + j, sK, sT2 if G else soff, j * 1024, KVPOL, tag) for j in range(4)]
    if adv and ops: ops.append('s_add_u32 s%d, s%d, 16384' % (sKo, sKo))
    return ops

def dma_V(tag, R, wr=sWrK, soff=sVo, adv=True):
    ops = []
    for G in kv_groups(R):
        ops.append('s_add_u32 m0, s%d, %d' % (wr, VOFF + G * 4096))
        if G: ops.append('s_add_u32 s%d, s%d, %d' % (sT2, soff, G * 4096))
        ops += [dma(VD + (j & 1), sV, sT2 if G else soff, j * 1024, KVPOL, tag) for j in range(4)]
    if adv and ops: ops.append('s_add_u32 s%d, s%d, 16384' % (sVo, sVo))
    return ops

def dma_Wrows(tag, row0, nrows, hreg, dest):
    ops = []
    for G in range(nrows // 16):
        if isinstance(dest, tuple) and len(dest) > 2:
            ops.append(atomic(['s_add_u32 s%d, s%d, %d' % (sT, dest[1], WOFF + G * 4096), 's_cmp_eq_u32 s%d, 3' % sHead, 's_cselect_b32 m0, %d, s%d' % (XBASE, sT)]))
        elif isinstance(dest, tuple): ops.append('s_add_u32 m0, s%d, %d' % (dest[1], WOFF + G * 4096))
        else: ops.append('s_mov_b32 m0, %d' % (dest + G * 4096))
        ops.append('s_add_u32 s%d, s%d, %d' % (sT2, hreg, (row0 + 16 * G) * 8192))
        for i in range(4): ops.append(dma(WD + i, sW, sT2, i * 1024, WPOL, tag))
    return ops

def dma_Warea(tag, g, hreg, dest):
    a = g >> 1
    if g % 2 == 0: return dma_Wrows(tag, 160 * a, 64, hreg, dest)
    return dma_Wrows(tag, 160 * a + 80, 80, hreg, dest)
def dma_WX(tag, g, hreg):
    return dma_Wrows(tag, 160 * (g >> 1) + 64, 16, hreg, XBASE)

X_SLOT = [0, 1, 2, 0, 2]
def dma_x(kt, nq):
    ops = []
    for j in range(4 * nq):
        ops.append('s_add_u32 m0, s70, %d' % (X_SLOT[kt] * SLOT + j * 1024))
        ops.append('s_mov_b32 s7, %d' % (j * 5120 + kt * 256))
        ops.append(('buffer_load_dwordx4 v%d, s[%d:%d], s7 offen %s lds' % (XV + (j & 3), sX, sX + 3, XPOL), 'x%d' % kt))
    return ops

def read_x(kt, nq):
    ops = [('WAITVM', 'x%d' % kt)]
    for kq in range(4):
        for u in range(nq):
            for e in range(2):
                if X_SLOT[kt] == 2: a, off = XR2 + 2 * kq + e, 0
                else: a, off = XR + 2 * kq + e, X_SLOT[kt] * SLOT
                d = xf(4 * kt + kq, u) + 2 * e
                ops.append(('ds_read_b64 %s, v%d offset:%d' % (ar(d, 2), a, off + u * 4096), 'xr%d' % kt))
    return ops

def fixed_kv(slot, kind, off, tag, R):
    fn = dma_K if kind == 'K' else dma_V
    ops = fn(tag, R, wr=sT, soff=sI, adv=False)
    if not ops: return []
    return ['s_add_u32 s%d, s%d, %d' % (sT, sW4096, slot * SLOT), 's_mov_b32 s%d, %d' % (sI, off)] + ops

def ring_advance(total=NSLOT * SLOT):
    return ['s_mov_b32 s%d, s%d' % (sWr, sRd),
            's_add_u32 s%d, s%d, s%d' % (sWrK, sRd, sW4096),
            's_add_u32 s%d, s%d, s%d' % (sRd, sRd, sSlot),
            's_cmp_eq_u32 s%d, %d' % (sRd, total),
            's_cselect_b32 s%d, s%d, s%d' % (sDelta, sWrap, sSlot),
            's_cselect_b32 s%d, 0, s%d' % (sRd, sRd)]

def atomic(ops):
    def f(P):
        for o in ops: P.I(o)
    f.cost = 4 * len(ops)
    return f

def cost_of(op):
    if callable(op): return getattr(op, 'cost', 60)
    t = op[0] if isinstance(op, tuple) else op
    if t.startswith('v_mfma'): return 8
    if t.startswith('buffer_'): return 20
    if t.startswith('v_exp') or t.startswith('v_rcp'): return 8
    return 4

class Step:
    def __init__(self, name, fr, paced=None, fixed=None, usesX=False):
        self.name = name; self.fr = fr; self.paced = paced or []; self.fixed = fixed or {}; self.usesX = usesX

def stamp(P, lane, real=False):
    P.I('%s s[72:73]' % ('s_memrealtime' if real else 's_memtime')); P.I('s_waitcnt lgkmcnt(0)')
    if isinstance(lane, int): P.I('v_writelane_b32 v%d, s72, %d' % (T4, lane))
    else: P.I('s_mov_b32 m0, s74'); P.I('v_writelane_b32 v%d, s72, m0' % T4)

class Emitter:
    def __init__(self, P, R):
        self.P = P; self.R = R
        self.fr = 0; self.uid = 0; self.ring_total = NSLOT * SLOT
        self.addr_regs = list(range(KA, KA + 4)) + list(range(VA, VA + 8))
    def emit_op(self, op):
        if isinstance(op, tuple):
            if op[0] == 'WAITVM': self.P.wait_vm(op[1])
            elif op[0] == 'WAITLGKM': self.P.wait_lgkm(op[1])
            else: self.P.I(op[0], op[1])
        elif callable(op): op(self.P)
        else: self.P.I(op)
    def issue_reads(self, f, upd, part=None):
        P = self.P; c = 0
        if part in (None, 0):
            f.frag = POOL + 4 * (self.fr % NPOOL); self.fr += 1
            self.uid += 1; f.tag = '%sf%d' % (self.R.name, self.uid)
        reads = f.reads if part is None else (f.reads[:1] if part == 0 else f.reads[1:])
        for (op, off, n, addr, imm) in reads:
            isx = isinstance(addr, tuple)
            a = addr[1] if isx else addr
            if a in upd:
                P.I('v_add_u32_e32 v%d, s%d, v%d' % (a, sDelta, a)); upd.discard(a); c += 4
            if isx:
                P.I('v_add_u32_e32 v%d, s%d, v%d' % (T2, sXc, a)); c += 4; a = T2
            if EXP.get('nord') and self.uid % int(EXP['nord']) != 0 and self.uid > 300: continue
            P.I('%s %s, v%d offset:%d' % (op, ar(f.frag + off, n), a, imm), f.tag); c += 4
        return c
    def boundary(self, nxt):
        P = self.P
        P.wait_lgkm('ALL')
        st = STAMP and not EXP.get('lite') and ((nxt.name[0] == 'O') == bool(EXP.get('ostamp')))
        arr = bool(EXP.get('arr'))
        if st and arr: stamp(P, 'dyn', bool(EXP.get('rt'))); P.I('s_add_u32 s74, s74, 1')
        P.wait_vm('ld_' + nxt.name)
        if getattr(nxt, 'wait_stores', False): P.wait_vm('pst')
        P.I('s_barrier')
        if st and not arr: stamp(P, 'dyn', bool(EXP.get('rt'))); P.I('s_add_u32 s74, s74, 1')
        if getattr(nxt, 'static', False): return set()
        if getattr(nxt, 'ring_total', None): self.ring_total = nxt.ring_total
        if getattr(nxt, 'va_only', False): self.addr_regs = list(range(VA, VA + 8))
        for o in ring_advance(self.ring_total): P.I(o)
        if nxt.usesX: P.I('s_sub_u32 s%d, %d, s%d' % (sXc, XBASE, sRd))
        return set(self.addr_regs)
    def run(self, steps, nxt_after, pre_issued, upd, valu, allow_left=False):
        P = self.P; R = self.R
        allf = []
        for si, s in enumerate(steps):
            for i, f in enumerate(s.fr): allf.append((si, i, f))
        n = len(allf)
        seq = allf + [(len(steps), i, f) for i, f in enumerate(nxt_after.fr)]
        first_of = {}
        for k, (si, i, f) in enumerate(seq):
            if i == 0: first_of[si] = k
        nread = pre_issued; entered = 0
        vq = list(valu); vp = 0; ppos = 0
        jobcost = {}; jobdone = {}
        for it in vq:
            if len(it) > 3: jobcost[it[3]] = jobcost.get(it[3], 0) + cost_of(it[0])
        for k in range(n):
            si, i, f = allf[k]
            s = steps[si]
            if i == 0: ppos = 0
            used = 0
            tgt = k
            if i % WAITW == 0:
                for d in range(1, WAITW):
                    if k + d < n and allf[k + d][0] == si and k + d < nread: tgt = k + d
                used += 4
            P.wait_lgkm(seq[tgt][2].tag)
            for mi, (d, b, c0) in enumerate(f.mfmas):
                if not (EXP.get('dropm') and s.name[0] == 'G' and (k * 2 + mi) % int(EXP['dropm']) == 0):
                    P.I('v_mfma_f32_16x16x32_bf16 %s, %s, %s, %s' % (d, ar(f.frag, 4), b, '0' if c0 else d))
                lastm = mi == len(f.mfmas) - 1
                if lastm:
                    nf = len(s.fr); last = getattr(s, 'paced_end', nf - 2 - D_BAR)
                    for o in s.fixed.get(i, []):
                        used += cost_of(o); self.emit_op(o)
                    p0 = getattr(s, 'paced_start', 0)
                    if p0 <= i <= last:
                        want = len(s.paced) if i == last else int(math.ceil(len(s.paced) * (i - p0 + 1) / float(last - p0 + 1)))
                        while ppos < want:
                            used += cost_of(s.paced[ppos]); self.emit_op(s.paced[ppos]); ppos += 1
                    if si + 1 in first_of and k == first_of[si + 1] - 1 - D_BAR and entered == si:
                        assert ppos == len(s.paced), (s.name, ppos, len(s.paced))
                        for a in sorted(upd): P.I('v_add_u32_e32 v%d, s%d, v%d' % (a, sDelta, a)); used += 4
                        nx = steps[si + 1] if si + 1 < len(steps) else nxt_after
                        upd = self.boundary(nx); entered = si + 1; used += 40
                if mi == 0:
                    ready = []
                    while nread < len(seq) and nread <= k + D_AHEAD and seq[nread][0] <= entered and (seq[nread][0] < len(steps) or nread - n < D_BAR):
                        ready.append(seq[nread][2]); nread += 1
                    at_bar = si + 1 in first_of and k == first_of[si + 1] - 1 - D_BAR
                    half = None
                    if SPLITR and len(f.mfmas) == 2 and len(ready) == 1 and len(ready[0].reads) == 2 and not at_bar:
                        half = ready[0]; used += self.issue_reads(half, upd, 0)
                    else:
                        for r in ready: used += self.issue_reads(r, upd)
                elif half is not None:
                    used += self.issue_reads(half, upd, 1); half = None
                while vp < len(vq):
                    it = vq[vp]; c = cost_of(it[0])
                    go = lastm and it[2] <= k
                    if not go and it[1] <= k:
                        if len(it) > 3:
                            js, je = it[3]
                            pos = k + (mi + 1) / float(len(f.mfmas))
                            due = jobcost[it[3]] * min(1.0, max(0.0, (pos - js) / float(je - js))) - jobdone.get(it[3], 0)
                            go = (due > 0 and used + c <= CAP1) or (due > LATE and used + c <= CAP2) or (used < 8 and due > -LEAD)
                        else: go = used + c <= R.budget
                    if not go: break
                    used += c; self.emit_op(it[0]); vp += 1
                    if len(it) > 3: jobdone[it[3]] = jobdone.get(it[3], 0) + c
                used = 0
            while nread < len(seq) and nread <= k + D_AHEAD and seq[nread][0] <= entered and (seq[nread][0] < len(steps) or nread - n < D_BAR):
                self.issue_reads(seq[nread][2], upd); nread += 1
        if allow_left: return upd, vp
        assert vp == len(vq), (vp, len(vq))
        return upd

def nm(k, g): return 'ld_%s%d' % (k, g)

def make_P(g, R):
    nq = R.nq; B = nq == 1
    fr = fr_Q(g, nq, tmajor=(g == 7))
    paced = []; fixed = {}
    wr = ('slot', sWr)
    if g == 0:
        if B: paced += dma_WX(nm('P', 1), 1, sWc) + dma_Warea(nm('P', 1), 1, sWc, SLOT_C(1))
        paced += dma_x(1, nq)
        if B: paced += dma_Warea(nm('P', 2), 2, sWc, SLOT_C(2))
        paced += dma_x(2, nq)
    if g == 1: fixed[0] = read_x(1, nq)
    if B and 1 <= g <= 5: paced += dma_Warea(nm('P', g + 2), g + 2, sWc, wr)
    if B and g in (2, 4, 6): paced = dma_WX(nm('P', g + 1), g + 1, sWc) + paced
    if g == 1: paced += dma_x(3, nq)
    if g == 2: fixed[0] = read_x(2, nq); paced += [('WAITLGKM', 'xr2')] + dma_x(4, nq)
    if g == 3: paced += fixed_kv(1, 'K', 0, nm('P', 7), R); fixed[8] = read_x(3, nq)
    if g == 4: paced += fixed_kv(0, 'K', 2 * 16384, nm('G', 1), R) + fixed_kv(0, 'V', 16384, nm('G', 1), R); fixed[4] = read_x(4, nq)
    if g == 5: paced += fixed_kv(2, 'K', 16384, nm('G', 0), R) + fixed_kv(2, 'V', 0, nm('G', 0), R)
    if B and g == 6: paced += dma_Warea(nm('G', 0), 0, sWn, wr)
    if B and g == 7: paced += dma_Warea(nm('G', 1), 1, sWn, wr) + ['s_mov_b32 s%d, s%d' % (sWc, sWn), 's_add_u32 s%d, s%d, 256' % (sWn, sWn)]
    if g == 7: fr = fr + fr_S(0, nq)
    return Step('P%d' % g, fr, paced, fixed, usesX=(g % 2 == 1))

def SLOT_C(n): return n * SLOT + WOFF

def make_G(g, R):
    nq = R.nq; B = nq == 1
    tgt = nm('G', (g + 2) % 8)
    paced = []
    if B and g % 2 == 0: paced += dma_WX(nm('G', g + 1), g + 1, sWc)
    if B and g == 6:
        paced += [atomic(['s_cmp_ge_u32 s%d, 2' % sHead, 's_cselect_b32 s%d, 0, s%d' % (sW + 2, sW + 2)])]
    if not EXP.get('nokv'): paced += dma_K(tgt, R) + dma_V(tgt, R)
    if B and OTOUCH and g < 5:
        if g == 0: paced.append(atomic(['s_cmp_eq_u32 s%d, 3' % sHead, 's_cselect_b32 s94, 655360, 0']))
        paced.append('s_mov_b32 s%d, %d' % (sT, g * 8192))
        paced.append(('buffer_load_dword v41, v40, s[92:95], s%d offen %s' % (sT, OTPOL), 'touch'))
    if B: paced += dma_Warea(tgt, (g + 2) % 8, sWc if g + 2 < 8 else sWn, ('slot', sWr, 'redirect') if g == 5 else ('slot', sWr))
    if B and g == 7: paced += ['s_mov_b32 s%d, s%d' % (sWc, sWn), 's_add_u32 s%d, s%d, 256' % (sWn, sWn)]
    if g < 7: fr = fr_S((g + 1) & 1, nq) + fr_Q(g, nq) + fr_PV(g, nq)
    else: fr = fr_Q(7, nq, True) + fr_PV(7, nq, True) + fr_S(0, nq)
    return Step('G%d' % g, fr, paced, usesX=(g % 2 == 1))

def o_setup(R):
    def f(P):
        lane_ids(P)
        if R.nq == 2:
            P.I('s_mul_i32 s%d, s%d, %d' % (sW4096, sWAVE, OGA * 4096)); P.I('s_mul_i32 s7, s%d, %d' % (sWAVE, OGA * 20480))
        else:
            P.I('s_mov_b32 s%d, 0' % sW4096); P.I('s_mov_b32 s7, 0')
        P.I('v_mul_u32_u24_e32 v11, 1280, v4')
        for i in range(4):
            swz8(P, 12, i & 1)
            P.I('v_add3_u32 v12, v12, v11, s7'); P.I('v_add_u32_e32 v%d, %d, v12' % (OD + i, i * (5120 - 1024)))
        P.I('s_mov_b32 s%d, s82' % sW); P.I('s_mov_b32 s%d, s83' % (sW + 1))
        P.I('s_mov_b32 s%d, 655360' % (sW + 2)); P.I('s_mov_b32 s%d, 0x20000' % (sW + 3))
        P.I('s_mov_b32 s%d, 0' % sWo)
    f.cost = 140
    return f

def o_setup2(R):
    def f(P):
        lane_ids(P)
        P.I('s_lshl_b32 s7, s%d, 11' % sWAVE)
        P.I('v_lshlrev_b32_e32 v11, 4, v0'); P.I('v_add_u32_e32 v%d, s7, v11' % OST)
        P.I('s_mov_b32 s%d, %d' % (sOo, (-4 * 7 * 1024) & 0xffffffff)); P.I('s_mov_b32 s%d, 0' % sNg)
        if OSTATIC:
            va_regs(P, 0, VA2)
            for t in range(8): P.I('v_add_u32_e32 v%d, 0x10000, v%d' % (VA2[t], VA2[t]))
        P.I('s_mov_b32 s%d, %d' % (sSlot, OSLOT)); P.I('s_mov_b32 s%d, %d' % (sWrap, (-(ONSLOT - 1) * OSLOT) & 0xffffffff))
    f.cost = 40
    return f

def make_GL(g, R):
    nq = R.nq
    paced = []
    for n in ((0, 1) if g == 6 else ((2,) if OSTATIC else (2, 3))):
        paced.append('s_add_u32 s%d, s%d, %d' % (sWrK, sW4096, (n + 1) * OSLOT))
        paced += odma('ld_O%d' % n, 163840 if n != 3 else 256 - 3 * 163840, R)
    if g == 6:
        return Step('G6', fr_S(1, nq) + fr_PV(6, nq), paced, {0: [o_setup(R)]})
    st = Step('G7', fr_PV(7, nq, True), paced, {0: [o_setup2(R)]})
    st.paced_end = 9; st.va_only = True
    return st

def valu_P(steps, R):
    base7 = sum(len(s.fr) for s in steps[:7])
    q = []
    for ks in range(4):
        for o in qconv(ks, R.nq): q.append((o, base7 + 6 * ks + 5 + 2, base7 + 23))
    return q

def valu_G(steps, R, last=False):
    nq = R.nq
    base = [0]
    for s in steps: base.append(base[-1] + len(s.fr))
    q = []; pend = []
    for g in range(8):
        nqf = 16 if g % 2 == 0 else 24
        if last and g >= 6: nqf = 0
        if g == 0: job = (0, JOB0)
        elif g == 1: job = (JOB0, base[1] + JOBS)
        elif last and g == 6: job = (base[5] + JOBS, base[6] + 14)
        elif last and g == 7: job = (base[6] + 14, base[7] - 2)
        elif g < 7: job = (base[g - 1] + JOBS, base[g] + JOBS)
        else: job = (base[6] + JOBS, base[7] + 5)
        for s in range(2):
            for u in range(nq):
                est = 0 if g == 0 else base[g - 1] + 8 * s + 7 + 3
                if g < 7: ddl = base[g] + 16 + nqf + 8 * s - 1
                elif last: ddl = base[7] - 1
                else: ddl = base[7] + 6
                if not EXP.get('nosm'):
                    ops, m = softmax_chunk(g & 1, u, s, g == 0 and s == 0)
                    for n, o in enumerate(ops):
                        q.append((o, est, ddl, job))
                        if n == 1 and pend: q.append((pend.pop(), est, ddl, job))
                    if m: pend.append(m)
            if g == 7 and s == 1 and pend: q.append((pend.pop(), est, ddl, job))
    b = base[7]
    if last:
        q.append((mk_check(R, 1), b, b + 1))
        job = (b + 4, b + 14)
        for s in range(4):
            for o in ofin(s, nq): q.append((o, b + 4 * s + 3 + 2, b + 15, job))
        def st3(P):
            for u in range(nq):
                for s in range(4):
                    for j in range(4): P.I('v_accvgpr_write_b32 a%d, v%d' % (STASH[3] + (u * 4 + s) * 4 + j, oa(u, 2 * s) + j))
        q.append((st3, b + 15, b + 15))
        return q
    q.append((mk_check(R), b, b + 7))
    job = (b + 8, b + QJOB)
    for ks in range(4):
        for o in qconv(ks, nq): q.append((o, b + 6 * ks + 5 + 2, b + 39, job))
    job = (b + QJOB, b + 54)
    for s in range(4):
        for o in ofin(s, nq): q.append((o, b + 24 + 4 * s + 3 + 2, b + 55, job))
    q.append((mk_stash(R), b + 54, b + 55))
    return q

def shift_q(q, off):
    out = []
    for it in q:
        if len(it) > 3: out.append((it[0], it[1] - off, it[2] - off, (it[3][0] - off, it[3][1] - off)))
        else: out.append((it[0], it[1] - off, it[2] - off))
    return out
JOB0 = 22; JOBS = 20; QJOB = 34

OGA = 1
def odma(tag, adv, R, dest=None):
    ops = []
    groups = list(range(OGA)) if R.nq == 2 else list(range(3 * OGA, 8))
    for G in groups:
        if dest is None: ops.append('s_add_u32 m0, s%d, %d' % (sWrK, G * 4096))
        else: ops.append('s_add_u32 m0, s%d, %d' % (sW4096, dest + G * 4096))
        ops.append('s_add_u32 s%d, s%d, %d' % (sT2, sWo, G * 20480))
        for i in range(4): ops.append(dma(OD + i, sW, sT2, i * 1024, OPOL, tag))
    ops.append('s_add_u32 s%d, s%d, %d' % (sWo, sWo, adv & 0xffffffff))
    return ops

PFUSE = 1
RV = 64; RA = 96; RP = 104; RT = 108; RL = 110; RO = 111; RF = 112; RZ = 113; RZ2 = 114; RG = 115
sRS = 52; sRO = 53; sE1 = 54; sE2 = 55; sU = 56; sU2 = 57; sSP = 58; sDB = 96
BIG = 0x40000000
RLPOL = 'sc1'; RSPOL = ''

FLGOFF = 256 * PART
def red_setup(P, R):
    lane_ids(P)
    P.I('s_lshl_b32 s60, s5, 4'); P.I('s_add_u32 s60, s60, s4')
    P.I('s_mul_i32 s61, s60, %d' % (8 * PART))
    if WSOFF: P.I('s_add_u32 s61, s61, %d' % WSOFF)
    P.I('s_add_u32 s8, s68, s61'); P.I('s_addc_u32 s9, s69, 0')
    P.I('s_mov_b32 s10, %d' % (8 * PART)); P.I('s_mov_b32 s11, 0x20000')
    P.I('s_mov_b32 s12, s100'); P.I('s_mov_b32 s13, s101'); P.I('s_mov_b32 s14, %d' % (16 * 112 * 2560)); P.I('s_mov_b32 s15, 0x20000')
    if 1:
        P.I('s_mov_b32 s%d, s90' % sDB); P.I('s_mov_b32 s%d, s91' % (sDB + 1)); P.I('s_mov_b32 s%d, 256' % (sDB + 2)); P.I('s_mov_b32 s%d, 0x20000' % (sDB + 3))
        P.I('s_lshl_b32 s61, s60, 2'); P.I('v_mov_b32_e32 v%d, s61' % RZ2)
        if R.nq == 1:
            poll(['s_mov_b32 s%d, 0' % sU2], None, 1)(P)
        P.I('s_add_u32 s%d, s68, %d' % (sDB, FLGOFF + WSOFF)); P.I('s_addc_u32 s%d, s69, 0' % (sDB + 1))
        P.I('s_mov_b32 s%d, %d' % (sDB + 2, 32 * 256))
    P.I('s_lshl_b32 s62, s6, 2'); P.I('s_add_u32 s62, s62, s%d' % sWAVE)
    P.I('s_lshr_b32 s63, s62, 1'); P.I('s_and_b32 s64, s62, 1')
    P.I('s_cmp_ge_u32 s63, 7'); P.I('s_cselect_b32 s65, 1, 0')
    P.I('s_mul_i32 s66, s65, 7'); P.I('s_sub_u32 s66, s63, s66')
    P.I('s_lshl_b32 s67, s65, 1'); P.I('s_add_u32 s67, s67, s64'); P.I('s_mul_i32 s67, s67, 7'); P.I('s_add_u32 s67, s67, s66')
    P.I('s_lshl_b32 s%d, s67, 10' % sRS)
    P.I('s_mul_i32 s61, s4, %d' % (112 * 2560)); P.I('s_mul_i32 s67, s5, 1280'); P.I('s_add_u32 s61, s61, s67')
    P.I('s_mul_i32 s67, s66, %d' % (16 * 2560)); P.I('s_add_u32 s61, s61, s67')
    P.I('s_lshl_b32 s67, s65, 7'); P.I('s_add_u32 s61, s61, s67')
    P.I('s_lshl_b32 s67, s64, 6'); P.I('s_add_u32 s%d, s61, s67' % sRO)
    P.I('s_sub_u32 s%d, s%d, %d' % (sRS, sRS, 2 * 28672)); P.I('s_sub_u32 s%d, s%d, %d' % (sRO, sRO, 3 * 256))
    P.I('s_cmp_lt_u32 s62, 28')
    P.I('s_cselect_b32 s%d, s%d, %d' % (sRS, sRS, BIG)); P.I('s_cselect_b32 s%d, s%d, %d' % (sRO, sRO, BIG))
    P.I('v_lshlrev_b32_e32 v%d, 4, v0' % RL)
    P.I('v_mul_u32_u24_e32 v%d, 2560, v3' % RO); P.I('v_lshl_add_u32 v%d, v4, 4, v%d' % (RO, RO))
    P.I('s_lshl_b32 s61, s60, 8')
    P.I('v_mov_b32_e32 v%d, s61' % RZ2)
    P.I('v_cmp_eq_u32_e32 vcc, 0, v0'); P.I('v_mov_b32_e32 v5, %d' % BIG)
    P.I('v_cndmask_b32_e32 v%d, v5, v%d, vcc' % (RZ, RZ2))

def post_flag(val_ops):
    return [atomic(val_ops), 'v_mov_b32_e32 v%d, s%d' % (RF, sU),
            ('buffer_atomic_add v%d, v%d, s[%d:%d], 0 offen sc1' % (RF, RZ, sDB, sDB + 3), 'flag')]

_pn = [0]
POLLSLEEP = 4
def poll(shift_ops, skip_ops=None, need=8):
    def f(P):
        _pn[0] += 1; n = _pn[0]
        n0 = len(P.ins)
        if skip_ops:
            for o in skip_ops: P.I(o)
            P.I('s_cbranch_scc1 L_poll_done%d' % n)
        for o in shift_ops: P.I(o)
        P.I('s_mov_b32 s%d, 0' % sSP)
        P.label('L_poll%d' % n)
        P.I('buffer_load_dword v%d, v%d, s[%d:%d], 0 offen sc1' % (RG, RZ2, sDB, sDB + 3))
        P.I('s_waitcnt vmcnt(0)')
        P.I('v_readfirstlane_b32 s%d, v%d' % (sU, RG))
        P.I('s_add_u32 s%d, s%d, 1' % (sSP, sSP))
        P.I('s_lshr_b32 s%d, s%d, s%d' % (sU, sU, sU2)); P.I('s_and_b32 s%d, s%d, 15' % (sU, sU))
        P.I('s_cmp_ge_u32 s%d, %d' % (sU, need))
        P.I('s_cbranch_scc1 L_poll_done%d' % n)
        if POLLSLEEP: P.I('s_sleep %d' % POLLSLEEP)
        P.I('s_cmp_lt_u32 s%d, %d' % (sSP, SPIN))
        P.I('s_cbranch_scc1 L_poll%d' % n)
        P.label('L_poll_done%d' % n)
        for i in P.ins[n0:]:
            if i.kind in ('vmem', 'wait'): i.ignore = True
    f.cost = 60
    return f

def poll_early():
    return [('buffer_load_dword v%d, v%d, s[%d:%d], 0 offen sc1' % (RG, RZ2, sDB, sDB + 3), 'pl')]

def poll_check(shift_ops, skip_ops):
    def f(P):
        _pn[0] += 1; n = _pn[0]
        P.wait_vm('pl')
        for o in skip_ops: P.I(o)
        P.I('s_cbranch_scc1 L_chk_done%d' % n)
        for o in shift_ops: P.I(o)
        P.I('v_readfirstlane_b32 s%d, v%d' % (sU, RG))
        P.I('s_lshr_b32 s%d, s%d, s%d' % (sU, sU, sU2)); P.I('s_and_b32 s%d, s%d, 15' % (sU, sU))
        P.I('s_cmp_ge_u32 s%d, 8' % sU)
        P.I('s_cbranch_scc1 L_chk_done%d' % n)
        poll(shift_ops)(P)
        P.label('L_chk_done%d' % n)
    f.cost = 40
    return f

def unit_loads(src):
    ops = []
    for hg in range(8):
        ops.append('s_add_u32 s%d, s%d, %d' % (sU2, src, hg * PART))
        ops.append(('buffer_load_dwordx4 %s, v%d, s[8:11], s%d offen %s' % (vr(RV + 4 * hg, 4), RL, sU2, RLPOL), 'ru%d' % hg))
    return ops

def unit_sum(dst):
    ops = []
    for hg in range(8):
        ops.append(('WAITVM', 'ru%d' % hg))
        for j in range(4):
            r = RV + 4 * hg + j
            if hg == 0:
                ops.append('v_lshlrev_b32_e32 v%d, 16, v%d' % (RA + 2 * j, r)); ops.append('v_and_b32_e32 v%d, 0xffff0000, v%d' % (RA + 2 * j + 1, r))
            else:
                ops.append('v_lshlrev_b32_e32 v%d, 16, v%d' % (RT, r)); ops.append('v_and_b32_e32 v%d, 0xffff0000, v%d' % (RT + 1, r))
                ops.append('v_add_f32_e32 v%d, v%d, v%d' % (RA + 2 * j, RA + 2 * j, RT)); ops.append('v_add_f32_e32 v%d, v%d, v%d' % (RA + 2 * j + 1, RA + 2 * j + 1, RT + 1))
    for j in range(4): ops.append('v_cvt_pk_bf16_f32 v%d, v%d, v%d' % (RP + j, RA + 2 * j, RA + 2 * j + 1))
    ops += swaps([(RP, RP + 2), (RP + 1, RP + 3)])
    ops.append(('buffer_store_dwordx4 %s, v%d, s[12:15], s%d offen %s' % (vr(RP, 4), RO, dst, RSPOL), 'rst'))
    return ops

SUMPOS = 6; PLPOS = 8
def sum_block(R):
    def f(P):
        _pn[0] += 1; n = _pn[0]
        P.I('s_cmp_lt_u32 s%d, 3' % sNg); P.I('s_cbranch_scc1 L_sum_done%d' % n)
        for o in unit_sum(sRO):
            if isinstance(o, tuple) and o[0] == 'WAITVM':
                if o[1] in ('ru0', 'ru7'): P.wait_vm('ru7').cond = True
            elif isinstance(o, tuple): P.I(o[0]).ignore = True
            else: P.I(o)
        P.label('L_sum_done%d' % n)
    f.cost = 100
    return f

def pfuse_tail(P):
    E = Emitter(P, Role('T', 1))
    def emit(ops):
        for o in ops: E.emit_op(o)
    def summ(dst, wait):
        ops = [o for o in unit_sum(dst) if not (isinstance(o, tuple) and o[0] == 'WAITVM')]
        P.I(wait)
        emit(ops)
    def only3(lab, ops):
        P.I('s_cmp_eq_u32 s%d, 3' % sWAVE); P.I('s_cbranch_scc0 %s' % lab)
        emit(ops)
        P.label(lab)
    P.label('L_red')
    only3('L_t0', post_flag(['s_mov_b32 s%d, %d' % (sU, 1 << 12)]))
    P.I('s_cmp_eq_u32 s%d, 3' % sWAVE); P.I('s_cbranch_scc1 L_t0b')
    summ(sRO, 's_waitcnt vmcnt(8)')
    P.I('s_branch L_t0c')
    P.label('L_t0b')
    summ(sRO, 's_waitcnt vmcnt(5)')
    P.label('L_t0c')
    only3('L_t1', [poll(['s_mov_b32 s%d, 12' % sU2])])
    P.I('s_barrier')
    P.I('s_add_u32 s%d, s%d, 256' % (sRO, sRO))
    emit(unit_loads(sRS))
    P.I('s_waitcnt vmcnt(8)')
    P.I('s_barrier')
    only3('L_t2', post_flag(['s_mov_b32 s%d, %d' % (sU, 1 << 16)]))
    summ(sRO, 's_waitcnt vmcnt(0)')
    only3('L_t3', [poll(['s_mov_b32 s%d, 16' % sU2])])
    P.I('s_barrier')
    P.I('s_add_u32 s%d, s%d, 28672' % (sRS, sRS)); P.I('s_add_u32 s%d, s%d, 256' % (sRO, sRO))
    emit(unit_loads(sRS))
    summ(sRO, 's_waitcnt vmcnt(0)')
    P.I('s_waitcnt vmcnt(0)')

PK = SB[0]
def ostore(R, n):
    jp, u = n // R.nq, n % R.nq
    return ['s_add_u32 s%d, s%d, %d' % (sT, sOo, (jp * 7 + u) * 1024),
            ('buffer_store_dwordx4 %s, v%d, s[%d:%d], s%d offen %s' % (vr(PK + (u * 4 + jp) * 4, 4), OST, sO, sO + 3, sT, PSTPOL), 'pst')]

OSLOT = 32768; ONSLOT = 5; OLA = 4
STPOS = 0
def make_O(hh, R):
    th = (hh + 3) & 3 if OSTATIC else hh
    tgt = 'ld_O%d' % th
    adv = 163840 if th != 3 else 256 - 3 * 163840
    pre = []
    if th == 0: pre = [atomic(['s_cmp_ge_u32 s%d, 4' % sNg, 's_cselect_b32 s%d, 0, s%d' % (sW + 2, sW + 2)])]
    loads = odma(tgt, adv, R, hh * OSLOT if OSTATIC else None)
    fixed = {}
    ns = 4 * R.nq
    if hh == 0: fixed[0] = [atomic(['s_cmp_eq_u32 s%d, 0' % sNg, 's_cselect_b32 s%d, 0, %d' % (sO + 2, PART)])]
    for n in range(ns):
        gpos = int((n + 0.5) * STSPAN / ns)
        if gpos // 32 == hh: fixed.setdefault(min(gpos % 32, 27), []).extend(ostore(R, n))
    if hh == 3: fixed.setdefault(12, []).append('s_add_u32 s%d, s%d, %d' % (sOo, sOo, 4 * 7 * 1024))
    if PFUSE:
        if hh == 0 and R.nq == 1:
            fixed[0] = fixed.get(0, []) + post_flag(['s_sub_u32 s%d, s%d, 2' % (sU, sNg), 's_lshl_b32 s%d, s%d, 2' % (sU, sU), 's_lshl_b32 s%d, 1, s%d' % (sU, sU),
                                                    's_cmp_ge_u32 s%d, 2' % sNg, 's_cselect_b32 s%d, s%d, 0' % (sU, sU)])
        if hh == 1:
            fixed.setdefault(SUMPOS, []).append(sum_block(R))
        if hh == 2 and R.nq == 1:
            fixed.setdefault(PLPOS, []).extend(poll_early())
            fixed.setdefault(27, []).append(poll_check(['s_sub_u32 s%d, s%d, 2' % (sU2, sNg), 's_lshl_b32 s%d, s%d, 2' % (sU2, sU2)], ['s_cmp_lt_u32 s%d, 2' % sNg]))
        if hh == 3:
            fixed[0] = fixed.get(0, []) + [atomic(['s_cmp_ge_u32 s%d, 2' % sNg, 's_cselect_b32 s%d, s%d, %d' % (sE1, sRS, BIG)])]
            ul = unit_loads(sE1)
            for n in range(8): fixed.setdefault(1 + n, []).extend([atomic([ul[2 * n]]), ul[2 * n + 1]])
            fixed.setdefault(27, []).extend(['s_add_u32 s%d, s%d, 28672' % (sRS, sRS), 's_add_u32 s%d, s%d, 256' % (sRO, sRO)])
    st = Step('O%d' % hh, fr_O(hh, R.nq), pre + loads, fixed)
    if PFUSE and hh == 0: st.wait_stores = True
    st.static = bool(OSTATIC)
    return st

STSPAN = 96
OFIRST = 9
def valu_O(R):
    q = []; b = 96
    for jp in range(4):
        est = b + 4 * (2 * jp + 1) + 3 + 2
        for u in range(R.nq):
            p = PK + (u * 4 + jp) * 4
            for t in range(2):
                for j in range(2):
                    r = qa(u, 2 * jp + t) + 2 * j
                    q.append(('v_cvt_pk_bf16_f32 v%d, v%d, v%d' % (p + 2 * t + j, r, r + 1), est, 127))
    return q

def final_stores(P, E, R):
    P.I('s_mov_b32 s%d, %d' % (sO + 2, PART))
    for n in range(4 * R.nq):
        for o in ostore(R, n): E.emit_op(o)

def lane_ids(P):
    P.I('v_mbcnt_lo_u32_b32 v0, -1, 0'); P.I('v_mbcnt_hi_u32_b32 v0, -1, v0')
    P.I('v_and_b32_e32 v3, 15, v0'); P.I('v_lshrrev_b32_e32 v4, 4, v0')

def swz8(P, dst, p):
    P.I('v_add_u32_e32 v5, %d, v4' % (4 * p)); P.I('v_lshlrev_b32_e32 v5, 1, v5')
    P.I('v_xor_b32_e32 v5, v5, v3'); P.I('v_lshlrev_b32_e32 v%d, 4, v5' % dst)

def retag(P, start, old, new):
    for ins in P.ins[start:]:
        if ins.tag == old: ins.tag = new
        if ins.wait and ins.wait[1] == old: ins.wait = (ins.wait[0], new)

def oproj_phase(P, E, R):
    nq = R.nq
    P.I('s_waitcnt vmcnt(0) lgkmcnt(0)')
    P.I('s_barrier')
    lane_ids(P)
    if nq == 2:
        P.I('s_mul_i32 s%d, s%d, %d' % (sW4096, sWAVE, OGA * 4096)); P.I('s_mul_i32 s7, s%d, %d' % (sWAVE, OGA * 20480))
    else:
        P.I('s_mov_b32 s%d, 0' % sW4096); P.I('s_mov_b32 s7, 0')
    P.I('v_mul_u32_u24_e32 v11, 1280, v4')
    for i in range(4):
        swz8(P, 12, i & 1)
        P.I('v_add3_u32 v12, v12, v11, s7'); P.I('v_add_u32_e32 v%d, %d, v12' % (OD + i, i * (5120 - 1024)))
    P.I('s_mov_b32 s%d, s82' % sW); P.I('s_mov_b32 s%d, s83' % (sW + 1))
    P.I('s_mov_b32 s%d, 655360' % (sW + 2)); P.I('s_mov_b32 s%d, 0x20000' % (sW + 3))
    P.I('s_mov_b32 s%d, 0' % sWo)
    for n in range(4):
        P.I('s_add_u32 s%d, s%d, %d' % (sWrK, sW4096, n * OSLOT))
        for o in odma('ld_O%d' % n, 163840 if n != 3 else 256 - 3 * 163840, R): E.emit_op(o)
        if n == OFIRST: P.wait_vm('ld_O0'); P.I('s_barrier')
    P.I('s_mov_b32 s%d, %d' % (sSlot, OSLOT)); P.I('s_mov_b32 s%d, %d' % (sWrap, (-(ONSLOT - 1) * OSLOT) & 0xffffffff))
    E.ring_total = ONSLOT * OSLOT
    va_regs(P, 0)
    P.I('s_lshl_b32 s7, s%d, 11' % sWAVE)
    P.I('v_lshlrev_b32_e32 v11, 4, v0'); P.I('v_add_u32_e32 v%d, s7, v11' % OST)
    P.I('s_mov_b32 s%d, %d' % (sOo, (-4 * 7 * 1024) & 0xffffffff)); P.I('s_mov_b32 s%d, 0' % sNg); P.I('s_mov_b32 s%d, 0' % sRd)
    P.I('s_add_u32 s%d, s%d, %d' % (sWrK, sW4096, 4 * OSLOT))
    P.wait_vm('ld_O0')
    P.I('s_barrier')
    E.addr_regs = list(range(VA, VA + 8))
    osteps = [make_O(hh, R) for hh in range(4)]
    o0 = make_O(0, R)
    n_pre = len(P.ins)
    for i in range(D_BAR): E.issue_reads(osteps[0].fr[i], set())
    first = [(osteps[0].fr[i].tag, osteps[0].fr[i].frag) for i in range(D_BAR)]
    for i in range(D_BAR):
        retag(P, n_pre, first[i][0], '%so0pre%d' % (R.name, i)); osteps[0].fr[i].tag = '%so0pre%d' % (R.name, i)
    n0 = len(P.ins)
    P.label(R.lab('ng'))
    upd = E.run(osteps, o0, D_BAR, set(), valu_O(R))
    for a in sorted(upd): P.I('v_add_u32_e32 v%d, s%d, v%d' % (a, sDelta, a))
    for i in range(D_BAR):
        assert o0.fr[i].frag == first[i][1], (o0.fr[i].frag, first[i][1])
        retag(P, n0, o0.fr[i].tag, '%so0pre%d' % (R.name, i))
    P.I('s_add_u32 s%d, s%d, 1' % (sNg, sNg))
    P.I('s_cmp_lt_u32 s%d, 5' % sNg)
    P.I('s_cbranch_scc1 %s' % R.lab('ng'))
    n1 = len(P.ins)
    final_stores(P, E, R)
    return n0, n1

def va_regs(P, base, dst=None):
    P.I('v_lshrrev_b32_e32 v6, 2, v3'); P.I('v_and_b32_e32 v7, 3, v0')
    P.I('v_lshl_add_u32 v9, v4, 2, v6'); P.I('v_and_b32_e32 v8, 7, v9')
    P.I('v_lshlrev_b32_e32 v9, 8, v9'); P.I('v_lshl_add_u32 v9, v7, 3, v9')
    for t in range(8):
        P.I('v_xor_b32_e32 v11, %d, v8' % t)
        P.I('v_lshl_add_u32 v%d, v11, 5, v9' % (VA + t if dst is None else dst[t]))

sS2 = 88; sSI = 89
def slow_path(P, R):
    S0, S1 = SB
    P.label(R.lab('slow'))
    P.I('s_nop 15'); P.I('s_nop 15')
    T0, T1 = S1 + 22, S1 + 23
    P.I('v_mbcnt_lo_u32_b32 v%d, -1, 0' % T0); P.I('v_mbcnt_hi_u32_b32 v%d, -1, v%d' % (T0, T0))
    P.I('v_and_b32_e32 v%d, 15, v%d' % (T1, T0)); P.I('v_lshrrev_b32_e32 v%d, 4, v%d' % (T0, T0))
    KO, VO, VO2, MX, TM = S1 + 16, S1 + 17, S1 + 18, S1 + 19, S1 + 20
    P.I('v_lshlrev_b32_e32 v%d, 8, v%d' % (KO, T1)); P.I('v_lshl_add_u32 v%d, v%d, 4, v%d' % (KO, T0, KO))
    P.I('v_lshlrev_b32_e32 v%d, 10, v%d' % (VO, T0)); P.I('v_lshl_add_u32 v%d, v%d, 1, v%d' % (VO, T1, VO))
    P.I('v_add_u32_e32 v%d, 0x1000, v%d' % (VO2, VO))
    P.I('s_lshl_b32 s%d, s%d, 17' % (sHb, sHead))
    def s_tile(u, dst):
        for ks in range(4):
            P.I('buffer_load_dwordx4 %s, v%d, s[%d:%d], s%d offen offset:%d' % (vr(S0 + 4 * ks, 4), KO, sK, sK + 3, sS2, ks * 64))
        P.I('s_waitcnt vmcnt(0)')
        for ks in range(4):
            P.I('v_mfma_f32_16x16x32_bf16 %s, %s, %s, %s' % (vr(dst, 4), vr(S0 + 4 * ks, 4), vr(qf(u, ks), 4), '0' if ks == 0 else vr(dst, 4)))
        P.I('s_nop 15')
    for u in range(R.nq):
        P.I('v_mov_b32_e32 v%d, 0xff800000' % MX)
        P.I('s_mov_b32 s%d, 0' % sSI)
        P.label(R.lab('slow_max%d' % u))
        P.I('s_lshl_b32 s%d, s%d, 12' % (sS2, sSI)); P.I('s_add_u32 s%d, s%d, s%d' % (sS2, sS2, sHb))
        s_tile(u, S0 + 16)
        P.I('v_max3_f32 v%d, v%d, v%d, v%d' % (MX, MX, S0 + 16, S0 + 17)); P.I('v_max3_f32 v%d, v%d, v%d, v%d' % (MX, MX, S0 + 18, S0 + 19))
        P.I('s_add_u32 s%d, s%d, 1' % (sSI, sSI)); P.I('s_cmp_lt_u32 s%d, 32' % sSI); P.I('s_cbranch_scc1 %s' % R.lab('slow_max%d' % u))
        lane_reduce(P, MX, TM, 'v_max_f32_e32')
        P.I('v_mov_b32_e32 v%d, 0' % lt(u))
        for r in range(32): P.I('v_mov_b32_e32 v%d, 0' % (oa(u, 0) + r))
        P.I('s_mov_b32 s%d, 0' % sSI)
        P.label(R.lab('slow_pv%d' % u))
        P.I('s_lshl_b32 s%d, s%d, 13' % (sS2, sSI)); P.I('s_add_u32 s%d, s%d, s%d' % (sS2, sS2, sHb))
        s_tile(u, S0 + 16)
        P.I('s_add_u32 s%d, s%d, 4096' % (sS2, sS2))
        s_tile(u, S0 + 20)
        P.I('s_sub_u32 s%d, s%d, 4096' % (sS2, sS2))
        for r in range(8): P.I('v_sub_f32_e32 v%d, v%d, v%d' % (S0 + 16 + r, S0 + 16 + r, MX))
        for r in range(8): P.I('v_exp_f32_e32 v%d, v%d' % (S0 + 16 + r, S0 + 16 + r))
        P.I('s_nop 0')
        for r in range(8): P.I('v_add_f32_e32 v%d, v%d, v%d' % (lt(u), lt(u), S0 + 16 + r))
        for j in range(4): P.I('v_cvt_pk_bf16_f32 v%d, v%d, v%d' % (S0 + 24 + j, S0 + 16 + 2 * j, S0 + 17 + 2 * j))
        for t in range(8):
            for i in range(8):
                P.I('buffer_load_ushort v%d, v%d, s[%d:%d], s%d offen offset:%d' % (S1 + i, VO if i < 4 else VO2, sV, sV + 3, sS2, (i & 3) * 256 + t * 32))
            P.I('s_waitcnt vmcnt(0)')
            for j in range(4): P.I('v_lshl_or_b32 v%d, v%d, 16, v%d' % (S1 + 8 + j, S1 + 2 * j + 1, S1 + 2 * j))
            P.I('s_nop 1')
            P.I('v_mfma_f32_16x16x32_bf16 %s, %s, %s, %s' % (vr(oa(u, t), 4), vr(S1 + 8, 4), vr(S0 + 24, 4), vr(oa(u, t), 4)))
            P.I('s_nop 7')
        P.I('s_add_u32 s%d, s%d, 1' % (sSI, sSI)); P.I('s_cmp_lt_u32 s%d, 16' % sSI); P.I('s_cbranch_scc1 %s' % R.lab('slow_pv%d' % u))
        lane_reduce(P, lt(u), TM, 'v_add_f32_e32')
    for u in range(R.nq):
        for s in range(2):
            for j in range(4): P.I('v_mov_b32_e32 v%d, 0' % (preg(1, u, s) + j))
    P.I('s_nop 15')
    P.I('s_cmp_eq_u32 s%d, 0' % sRet)
    P.I('s_cbranch_scc1 %s' % R.lab('slow_ret0'))
    P.I('s_branch %s' % R.lab('slow_ret1'))

def final_stamps(P):
    stamp(P, 60, True); stamp(P, 61)
    P.I('v_writelane_b32 v%d, s78, 1' % T4); P.I('v_writelane_b32 v%d, s76, 0' % T4)
    P.I('s_lshl_b32 s72, s2, 2'); P.I('s_add_u32 s72, s72, s%d' % sWAVE); P.I('s_lshl_b32 s72, s72, 8')
    P.I('s_add_u32 s72, s72, 0x4000000')
    P.I('s_add_u32 s68, s68, s72'); P.I('s_addc_u32 s69, s69, 0')
    P.I('v_mbcnt_lo_u32_b32 v0, -1, 0'); P.I('v_mbcnt_hi_u32_b32 v0, -1, v0'); P.I('v_lshlrev_b32_e32 v0, 2, v0')
    P.I('global_store_dword v0, v%d, s[68:69]' % T4)
    P.I('s_waitcnt vmcnt(0)')

def role_code(P, R):
    nq = R.nq
    start = len(P.ins)
    P.label(R.lab('start'))
    E = Emitter(P, R)
    for o in dma_x(0, nq): E.emit_op(o)
    if nq == 1:
        for i in range(4):
            swz8(P, 12, i & 1)
            P.I('v_lshl_add_u32 v12, v4, 13, v12'); P.I('v_add_u32_e32 v%d, %d, v12' % (WD + i, i * (32768 - 1024)))
        for o in dma_Warea(nm('P', 0), 0, sWc, SLOT_C(0)): E.emit_op(o)
    if nq == 1 and TOUCH:
        P.I('v_lshrrev_b32_e32 v5, 1, v0'); P.I('s_mul_i32 s7, s4, 40'); P.I('v_add_u32_e32 v5, s7, v5')
        P.I('v_lshlrev_b32_e32 v5, 13, v5'); P.I('v_and_b32_e32 v11, 1, v0'); P.I('v_lshl_add_u32 v5, v11, 7, v5')
        P.I('v_add_u32_e32 v11, %d, v5' % (32 * 8192))
        P.I('v_cmp_gt_u32_e32 vcc, 16, v0'); P.I('v_mov_b32_e32 v12, 0x40000000'); P.I('v_cndmask_b32_e32 v11, v12, v11, vcc')
        P.I('buffer_load_dword v47, v5, s[%d:%d], 0 offen' % (sW, sW + 3), 'touch')
        P.I('buffer_load_dword v48, v11, s[%d:%d], 0 offen' % (sW, sW + 3), 'touch')
    if STAMP: stamp(P, 3)
    if nq == 1 and CTOUCH:
        P.I('s_getpc_b64 s[96:97]')
        P.label('L_pc_here')
        P.I('s_sub_u32 s96, s96, L_pc_here-L_code_start'); P.I('s_subb_u32 s97, s97, 0')
        P.I('s_lshr_b32 s7, s2, 3'); P.I('s_mul_i32 s7, s7, %d' % (CT_LINES * 128))
        P.I('v_lshlrev_b32_e32 v5, 7, v0'); P.I('v_add_u32_e32 v5, s7, v5')
        P.I('v_min_u32_e32 v5, L_end-L_code_start-4, v5'); P.I('v_and_b32_e32 v5, 0xfffffffc, v5')
        P.I('global_load_dword v42, v5, s[96:97]', 'touch')
    late_setup(P)
    if PFUSE and nq == 1:
        P.I('s_cmp_eq_u32 s6, 0'); P.I('s_cbranch_scc0 L_noinit')
        n0 = len(P.ins)
        P.I('s_lshl_b32 s60, s5, 4'); P.I('s_add_u32 s60, s60, s4')
        P.I('s_lshl_b32 s61, s60, 8'); P.I('s_add_u32 s61, s61, %d' % (FLGOFF + WSOFF))
        P.I('s_add_u32 s96, s68, s61'); P.I('s_addc_u32 s97, s69, 0'); P.I('s_mov_b32 s98, 256'); P.I('s_mov_b32 s99, 0x20000')
        P.I('v_mov_b32_e32 v44, 0'); P.I('v_lshlrev_b32_e32 v45, 2, v0')
        P.I('buffer_store_dword v44, v45, s[96:99], 0 offen sc0 sc1')
        P.I('s_waitcnt vmcnt(0)')
        P.I('s_mov_b32 s96, s90'); P.I('s_mov_b32 s97, s91')
        P.I('s_lshl_b32 s61, s60, 2'); P.I('v_mov_b32_e32 v45, s61'); P.I('v_mov_b32_e32 v44, 1')
        P.I('v_cmp_eq_u32_e32 vcc, 0, v0'); P.I('v_mov_b32_e32 v46, %d' % BIG); P.I('v_cndmask_b32_e32 v45, v46, v45, vcc')
        P.I('buffer_atomic_add v44, v45, s[96:99], 0 offen sc1')
        for i in P.ins[n0:]:
            if i.kind in ('vmem', 'wait'): i.ignore = True
        P.label('L_noinit')
    for ks in range(4):
        P.I('v_add_u32_e32 v5, %d, v4' % (4 * ks)); P.I('v_xor_b32_e32 v5, v5, v3'); P.I('v_lshlrev_b32_e32 v5, 4, v5')
        P.I('v_lshl_add_u32 v%d, v3, 8, v5' % (KA + ks))
    va_regs(P, 0)
    for kq in range(4):
        for e in range(2):
            P.I('v_lshrrev_b32_e32 v5, 1, v4'); P.I('v_add_u32_e32 v5, %d, v5' % (4 * kq + 2 * e))
            P.I('v_xor_b32_e32 v5, v5, v3'); P.I('v_lshlrev_b32_e32 v5, 4, v5')
            P.I('v_lshl_add_u32 v5, v3, 8, v5'); P.I('v_and_b32_e32 v11, 1, v4'); P.I('v_lshl_add_u32 v5, v11, 3, v5')
            P.I('v_add_u32_e32 v%d, s70, v5' % (XR + 2 * kq + e))
            P.I('v_add_u32_e32 v%d, %d, v%d' % (XR2 + 2 * kq + e, 2 * SLOT, XR + 2 * kq + e))
    for j in range(4):
        P.I('v_add_u32_e32 v5, %d, v4' % (4 * j)); P.I('v_xor_b32_e32 v5, v5, v3'); P.I('v_lshlrev_b32_e32 v5, 4, v5')
        P.I('v_lshl_add_u32 v5, v4, 8, v5'); P.I('v_add_u32_e32 v%d, s%d, v5' % (KD + j, sW4096))
    for p in range(2):
        swz8(P, 12, p)
        P.I('v_lshl_add_u32 v12, v4, 8, v12'); P.I('v_add_u32_e32 v%d, s%d, v12' % (VD + p, sW4096))
    for j in range(4): P.I('v_mov_b32_e32 v%d, 0x3f803f80' % (ONES + j))
    if nq == 1 and OTOUCH:
        P.I('s_mul_i32 s7, s4, %d' % (320 * 128)); P.I('v_lshlrev_b32_e32 v40, 7, v0'); P.I('v_add_u32_e32 v40, s7, v40')
        P.I('s_mov_b32 s92, s82'); P.I('s_mov_b32 s93, s83'); P.I('s_mov_b32 s94, 0'); P.I('s_mov_b32 s95, 0x20000')
    for o in read_x(0, nq): E.emit_op(o)
    if STAMP: P.I('s_waitcnt lgkmcnt(0)'); stamp(P, 44)
    P.wait_vm(nm('P', 0))
    P.I('s_barrier')
    if STAMP: P.I('s_waitcnt lgkmcnt(0)'); stamp(P, 2)
    psteps = [make_P(g, R) for g in range(8)]
    gsteps = [make_G(g, R) for g in range(8)]
    for i in range(D_BAR): E.issue_reads(psteps[0].fr[i], set())
    g0 = make_G(0, R)
    n_pre = len(P.ins)
    upd = E.run(psteps, g0, D_BAR, set(), valu_P(psteps, R))
    for i in range(D_BAR):
        gsteps[0].fr[i].frag = g0.fr[i].frag; gsteps[0].fr[i].tag = '%sg0pre%d' % (R.name, i)
        retag(P, n_pre, g0.fr[i].tag, '%sg0pre%d' % (R.name, i))
    if STAMP: P.I('s_waitcnt lgkmcnt(0)'); stamp(P, 56, True); stamp(P, 57)
    pro_end = len(P.ins)
    P.label(R.lab('head'))
    vq = valu_G(gsteps, R)
    g6 = make_G(6, R)
    upd6, vp = E.run(gsteps[:6], g6, D_BAR, set(upd), vq, allow_left=True)
    off6 = sum(len(s_.fr) for s_ in gsteps[:6])
    lsteps = [make_GL(6, R), make_GL(7, R)]
    for i in range(D_BAR):
        retag(P, pro_end, g6.fr[i].tag, '%sg6pre%d' % (R.name, i))
        for st_ in (gsteps[6], lsteps[0]):
            st_.fr[i].frag = g6.fr[i].frag; st_.fr[i].tag = '%sg6pre%d' % (R.name, i)
    fr6 = E.fr
    P.I('s_cmp_eq_u32 s%d, 3' % sHead)
    P.I('s_cbranch_scc1 %s' % R.lab('last'))
    p1_end = len(P.ins)
    g0n = make_G(0, R)
    upd2 = E.run(gsteps[6:], g0n, D_BAR, set(upd6), shift_q(vq[vp:], off6))
    assert upd2 == upd, (upd2, upd)
    for i in range(D_BAR):
        assert g0n.fr[i].frag == g0.fr[i].frag, (g0n.fr[i].frag, g0.fr[i].frag)
        retag(P, p1_end, g0n.fr[i].tag, '%sg0pre%d' % (R.name, i))
    P.I('s_add_u32 s%d, s%d, 1' % (sHead, sHead))
    P.I('s_branch %s' % R.lab('head'))
    p2_end = len(P.ins)
    P.label(R.lab('last'))
    E.fr = fr6
    vql = valu_G(gsteps[:6] + lsteps, R, last=True)
    for a_, b_ in zip(vq[:vp], vql[:vp]): assert a_[0] == b_[0] or callable(a_[0]), (a_[0], b_[0])
    osteps = [make_O(hh, R) for hh in range(4)]
    o0 = make_O(0, R); o0.ring_total = ONSLOT * OSLOT
    updo = E.run(lsteps, o0, D_BAR, set(upd6), shift_q(vql[vp:], off6))
    for a in sorted(updo): P.I('v_add_u32_e32 v%d, s%d, v%d' % (a, sDelta, a))
    for i in range(D_BAR):
        retag(P, p2_end, o0.fr[i].tag, '%so0pre%d' % (R.name, i))
        osteps[0].fr[i].frag = o0.fr[i].frag; osteps[0].fr[i].tag = '%so0pre%d' % (R.name, i)
    if STAMP: P.I('s_waitcnt lgkmcnt(0)'); stamp(P, 58, True); stamp(P, 59)
    if PFUSE: red_setup(P, R)
    body_end = len(P.ins)
    on0 = len(P.ins)
    P.label(R.lab('ng'))
    o0n = make_O(0, R)
    updn = E.run(osteps, o0n, D_BAR, set(), valu_O(R))
    for a in sorted(updn): P.I('v_add_u32_e32 v%d, s%d, v%d' % (a, sDelta, a))
    for i in range(D_BAR):
        assert o0n.fr[i].frag == o0.fr[i].frag, (o0n.fr[i].frag, o0.fr[i].frag)
        retag(P, on0, o0n.fr[i].tag, '%so0pre%d' % (R.name, i))
    P.I('s_add_u32 s%d, s%d, 1' % (sNg, sNg))
    P.I('s_cmp_lt_u32 s%d, 5' % sNg)
    P.I('s_cbranch_scc1 %s' % R.lab('ng'))
    on1 = len(P.ins)
    final_stores(P, E, R)
    P.I('s_waitcnt lgkmcnt(0)' if PFUSE else 's_waitcnt vmcnt(0) lgkmcnt(0)')
    if FUSE or PFUSE:
        if STAMP: stamp(P, 62, True)
        P.I('s_branch L_red')
    else:
        if STAMP: final_stamps(P)
        P.I('s_endpgm')
    slow_path(P, R)
    end = len(P.ins)
    I = P.ins
    marks = [I[start], I[pro_end], I[p1_end], I[p2_end], I[on0], I[on1]]
    return dict(marks=marks)

def dyn_seq(parts):
    pro, p1, p2, lastp, ng = parts
    return pro + (p1 + p2) * 2 + p1 + lastp + ng * 3

BALANCE = 1
def split_parts(P, info):
    pos = [next(k for k, i in enumerate(P.ins) if i is m) for m in info['marks']]
    return pos, [P.ins[pos[n]:pos[n + 1]] for n in range(5)]

def rebalance(P, info):
    pos, parts = split_parts(P, info)
    firsts = [P.ins[p] for p in pos]
    out = []
    for seg in parts:
        seg2, moved = balance_gaps(seg)
        out.append(seg2)
    P.ins[pos[0]:pos[5]] = sum(out, [])
    n = pos[0]; marks = []
    for seg in out:
        marks.append(P.ins[n]); n += len(seg)
    marks.append(P.ins[n])
    info['marks'] = marks


FUSE = 0
SPIN = 400000
RLPOL = 'sc1'; RSPOL = ''
def fused_tail(P):
    P.label('L_red')
    P.I('s_load_dwordx2 s[96:97], s[0:1], 80')
    P.I('s_load_dwordx2 s[90:91], s[0:1], 88')
    P.I('s_lshl_b32 s52, s5, 4'); P.I('s_add_u32 s52, s52, s4')
    P.I('s_lshl_b32 s53, s52, 2')
    P.I('v_mbcnt_lo_u32_b32 v0, -1, 0'); P.I('v_mbcnt_hi_u32_b32 v0, -1, v0')
    P.I('v_mov_b32_e32 v1, s53'); P.I('v_mov_b32_e32 v2, 1')
    P.I('s_barrier')
    P.I('s_waitcnt lgkmcnt(0)')
    P.I('s_cmp_eq_u32 s%d, 0' % sWAVE)
    P.I('s_cbranch_scc0 L_red_wait')
    P.I('s_mov_b64 s[54:55], exec')
    P.I('s_mov_b64 exec, 1')
    P.I('global_atomic_add v1, v2, s[90:91] sc1')
    P.I('s_mov_b32 s56, 0')
    P.label('L_red_poll')
    P.I('global_load_dword v3, v1, s[90:91] sc1')
    P.I('s_waitcnt vmcnt(0)')
    P.I('v_readfirstlane_b32 s57, v3')
    P.I('s_add_u32 s56, s56, 1')
    P.I('s_cmp_ge_u32 s57, 8')
    P.I('s_cbranch_scc1 L_red_go')
    P.I('s_cmp_lt_u32 s56, %d' % SPIN)
    P.I('s_cbranch_scc0 L_red_go')
    P.I('s_sleep 2')
    P.I('s_branch L_red_poll')
    P.label('L_red_go')
    P.I('s_mov_b64 exec, s[54:55]')
    P.label('L_red_wait')
    P.I('s_barrier')
    P.I('s_mul_i32 s58, s52, %d' % (8 * PART))
    if WSOFF: P.I('s_add_u32 s58, s58, %d' % WSOFF)
    P.I('s_add_u32 s8, s68, s58'); P.I('s_addc_u32 s9, s69, 0')
    P.I('s_mov_b32 s10, %d' % (8 * PART)); P.I('s_mov_b32 s11, 0x20000')
    P.I('s_mov_b32 s12, s96'); P.I('s_mov_b32 s13, s97'); P.I('s_mov_b32 s14, %d' % (16 * 112 * 2560)); P.I('s_mov_b32 s15, 0x20000')
    P.I('v_lshlrev_b32_e32 v2, 4, v0')
    P.I('v_and_b32_e32 v3, 15, v0'); P.I('v_lshrrev_b32_e32 v4, 4, v0')
    P.I('v_mul_u32_u24_e32 v5, 2560, v3'); P.I('v_lshl_add_u32 v5, v4, 4, v5')
    P.I('s_lshl_b32 s59, s6, 2'); P.I('s_add_u32 s59, s59, s%d' % sWAVE)
    P.I('s_mul_i32 s60, s4, %d' % (112 * 2560)); P.I('s_mul_i32 s61, s5, 1280'); P.I('s_add_u32 s60, s60, s61')
    for k in range(3):
        P.I('s_add_u32 s61, s59, %d' % (32 * k))
        P.I('s_mul_i32 s62, s61, 37'); P.I('s_lshr_b32 s62, s62, 8')
        P.I('s_mul_i32 s63, s62, 7'); P.I('s_sub_u32 s63, s61, s63')
        P.I('s_mul_i32 s64, s62, 14'); P.I('s_add_u32 s64, s64, s63'); P.I('s_lshl_b32 s64, s64, 10')
        P.I('s_lshl_b32 s65, s62, 7'); P.I('s_mul_i32 s66, s63, %d' % (16 * 2560)); P.I('s_add_u32 s65, s65, s66'); P.I('s_add_u32 s65, s65, s60')
        P.I('s_cmp_lt_u32 s61, 70')
        P.I('s_cselect_b32 s64, s64, 0x40000000'); P.I('s_cselect_b32 s%d, s65, 0x40000000' % (98 + k))
        for half in range(2):
            for hg in range(8):
                r = 16 + ((k * 2 + half) * 8 + hg) * 4
                P.I('s_add_u32 s66, s64, %d' % (hg * PART + half * 7168))
                P.I('buffer_load_dwordx4 v[%d:%d], v2, s[8:11], s66 offen %s' % (r, r + 3, RLPOL), 'rl%d_%d_%d' % (k, half, hg))
    for k in range(3):
        for half in range(2):
            acc = 208 + half * 8
            for hg in range(8):
                P.wait_vm('rl%d_%d_%d' % (k, half, hg))
                r = 16 + ((k * 2 + half) * 8 + hg) * 4
                for j in range(4):
                    if hg == 0:
                        P.I('v_lshlrev_b32_e32 v%d, 16, v%d' % (acc + 2 * j, r + j))
                        P.I('v_and_b32_e32 v%d, 0xffff0000, v%d' % (acc + 2 * j + 1, r + j))
                    else:
                        P.I('v_lshlrev_b32_e32 v7, 16, v%d' % (r + j))
                        P.I('v_and_b32_e32 v8, 0xffff0000, v%d' % (r + j))
                        P.I('v_add_f32_e32 v%d, v%d, v7' % (acc + 2 * j, acc + 2 * j))
                        P.I('v_add_f32_e32 v%d, v%d, v8' % (acc + 2 * j + 1, acc + 2 * j + 1))
            o = 224 + ((k * 2 + half) & 1) * 4
            for j in range(4): P.I('v_cvt_pk_bf16_f32 v%d, v%d, v%d' % (o + j, acc + 2 * j, acc + 2 * j + 1))
            for op in ('v_permlane32_swap_b32_e32', 'v_permlane16_swap_b32_e32'):
                P.I('%s v%d, v%d' % (op, o, o + 2)); P.I('%s v%d, v%d' % (op, o + 1, o + 3))
            P.I('buffer_store_dwordx4 v[%d:%d], v5, s[12:15], s%d offen offset:%d %s' % (o, o + 3, 98 + k, half * 64, RSPOL), 'rst')
    P.I('s_waitcnt vmcnt(0)')

def late_setup(P):
    P.I('s_lshl_b32 s7, s4, 5'); P.I('s_add_u32 s7, s7, s86'); P.I('s_lshl_b32 s71, s7, 17')
    P.I('s_add_u32 s%d, s54, s71' % sK); P.I('s_addc_u32 s%d, s55, 0' % (sK + 1))
    P.I('s_mov_b32 s%d, 524288' % (sK + 2)); P.I('s_mov_b32 s%d, 0x20000' % (sK + 3))
    P.I('s_add_u32 s%d, s56, s71' % sV); P.I('s_addc_u32 s%d, s57, 0' % (sV + 1))
    P.I('s_mov_b32 s%d, 524288' % (sV + 2)); P.I('s_mov_b32 s%d, 0x20000' % (sV + 3))
    P.I('s_mul_i32 s71, s86, 163840')
    P.I('s_add_u32 s82, s82, s71'); P.I('s_addc_u32 s83, s83, 0')
    P.I('s_lshl_b32 s71, s5, 4'); P.I('s_add_u32 s71, s71, s4'); P.I('s_lshl_b32 s71, s71, 3'); P.I('s_add_u32 s71, s71, s6')
    P.I('s_mul_i32 s71, s71, %d' % PART)
    if WSOFF: P.I('s_add_u32 s71, s71, %d' % WSOFF)
    P.I('s_add_u32 s%d, s68, s71' % sO); P.I('s_addc_u32 s%d, s69, 0' % (sO + 1))
    P.I('s_mov_b32 s%d, %d' % (sO + 2, PART)); P.I('s_mov_b32 s%d, 0x20000' % (sO + 3))
    if KVA == 1: P.I('s_lshl_b32 s%d, s%d, 12' % (sW4096, sWAVE))
    else: P.I('s_mov_b32 s%d, 0' % sW4096)
    P.I('s_mov_b32 s%d, %d' % (sSlot, SLOT)); P.I('s_mov_b32 s%d, %d' % (sWrap, (-2 * SLOT) & 0xffffffff))
    P.I('s_mov_b32 s%d, 0x%x' % (sC, QSCALE))
    P.I('s_mov_b32 s%d, 0' % sHead); P.I('s_mov_b32 s%d, 0' % sRd)
    P.I('s_mov_b32 s%d, %d' % (sKo, 3 * 16384)); P.I('s_mov_b32 s%d, %d' % (sVo, 2 * 16384))

def gen_k16(name='attn_kernel'):
    P = Prog()
    P.label('L_code_start')
    P.I('s_cmp_ge_u32 s2, 256')
    P.I('s_cbranch_scc1 L_end')
    P.I('s_load_dwordx8 s[52:59], s[0:1], 0')
    P.I('s_load_dwordx8 s[60:67], s[0:1], 40')
    P.I('s_load_dwordx2 s[68:69], s[0:1], 96')
    P.I('s_load_dwordx2 s[82:83], s[0:1], 32')
    P.I('s_load_dwordx2 s[84:85], s[0:1], 72')
    if PFUSE:
        P.I('s_load_dwordx2 s[100:101], s[0:1], 80')
        P.I('s_load_dwordx2 s[90:91], s[0:1], 88')
    if STAMP:
        P.I('s_memtime s[76:77]'); P.I('s_memrealtime s[78:79]'); P.I('s_mov_b32 s74, 4')
    P.I('v_lshrrev_b32_e32 v1, 6, v0')
    P.I('v_and_b32_e32 v0, 63, v0')
    P.I('s_and_b32 s3, s2, 7')
    P.I('v_readfirstlane_b32 s%d, v1' % sWAVE)
    P.I('s_lshr_b32 s4, s2, 3'); P.I('s_lshr_b32 s5, s3, 2')
    P.I('s_and_b32 s6, s3, 3'); P.I('s_lshl_b32 s6, s6, 1'); P.I('s_and_b32 s7, s4, 1'); P.I('s_add_u32 s6, s6, s7')
    P.I('s_lshr_b32 s4, s4, 1')
    P.I('v_and_b32_e32 v3, 15, v0'); P.I('v_lshrrev_b32_e32 v4, 4, v0')
    P.I('s_lshl_b32 s70, s%d, 13' % sWAVE)
    P.I('s_mul_i32 s71, s%d, %d' % (sWAVE, 32 * 1280))
    P.I('v_mul_u32_u24_e32 v11, 1280, v4')
    for jj in range(4):
        P.I('v_add_u32_e32 v5, %d, v4' % (4 * jj)); P.I('v_xor_b32_e32 v5, v5, v3'); P.I('v_lshlrev_b32_e32 v5, 4, v5')
        P.I('v_add3_u32 v%d, v5, v11, s71' % (XV + jj))
    P.I('s_waitcnt lgkmcnt(0)')
    P.I('s_cmp_eq_u32 s5, 0')
    for i in range(8): P.I('s_cselect_b32 s%d, s%d, s%d' % (52 + i, 52 + i, 60 + i))
    P.I('s_cselect_b32 s82, s82, s84'); P.I('s_cselect_b32 s83, s83, s85')
    P.I('s_mul_i32 s7, s4, 143360')
    P.I('s_add_u32 s%d, s52, s7' % sX); P.I('s_addc_u32 s%d, s53, 0' % (sX + 1))
    P.I('s_mov_b32 s%d, 143360' % (sX + 2)); P.I('s_mov_b32 s%d, 0x20000' % (sX + 3))
    P.I('s_lshl_b32 s86, s6, 2')
    P.I('s_lshl_b32 s71, s86, 8')
    P.I('s_add_u32 s%d, s58, s71' % sW); P.I('s_addc_u32 s%d, s59, 0' % (sW + 1))
    P.I('s_sub_u32 s%d, 5242880, s71' % (sW + 2)); P.I('s_mov_b32 s%d, 0x20000' % (sW + 3))
    P.I('s_mov_b32 s%d, 0' % sWc); P.I('s_mov_b32 s%d, 256' % sWn)
    P.I('s_cmp_eq_u32 s%d, 3' % sWAVE)
    P.I('s_cbranch_scc0 L_A_start')
    P.I('s_branch L_B_start')
    head = list(P.ins)
    RA, RB = Role('A', 2), Role('B', 1)
    a = role_code(P, RA)
    b = role_code(P, RB)
    if BALANCE:
        for info in (a, b): rebalance(P, info)
    red0 = len(P.ins)
    if FUSE or PFUSE:
        if PFUSE: pfuse_tail(P)
        else: fused_tail(P)
        if STAMP: final_stamps(P)
        P.I('s_endpgm')
    red_ins = P.ins[red0:]
    P.label('L_end')
    P.I('s_endpgm')
    for info in (a, b):
        pos, parts = split_parts(P, info)
        info['tail'] = P.ins[pos[5]:pos[5] + 40]
        resolve_waits(head + dyn_seq(parts))
    if FUSE: resolve_waits(red_ins)
    if PFUSE: resolve_waits(red_ins)
    drop_optional(P)
    P.pad()
    bad = 0
    def at(lab): return [k for k, i in enumerate(P.ins) if i.label == lab][0]
    for R in (RA, RB):
        h, l, n_ = at(R.lab('head')), at(R.lab('last')), at(R.lab('ng'))
        br_last = [k for k, i in enumerate(P.ins) if i.op == 's_cbranch_scc1' and i.text.endswith(R.lab('last'))][0]
        br_ng = [k for k, i in enumerate(P.ins) if i.op == 's_cbranch_scc1' and i.text.endswith(R.lab('ng'))][0]
        I = P.ins
        bad += check_hazards(I[h - 60:l], name)
        bad += check_hazards(I[l - 60:l] + I[h:h + 80], name)
        bad += check_hazards(I[br_last - 60:br_last + 1] + I[l:br_ng + 1], name)
        bad += check_hazards(I[br_ng - 60:br_ng + 1] + I[n_:n_ + 80], name)
    if FUSE or PFUSE: bad += check_hazards(P.ins[at('L_red'):], name)
    assert bad == 0
    return P

if __name__ == '__main__':
    print(gen_k16().text())
```

```python
import sys, os
sys.path.insert(0, os.path.dirname(os.path.abspath(__file__)))
import k1

NAME = 'concat_heads__gqa_block_cached__mha_block_cached__near_ridge'
REF = 'cdna_kernels/%s.s.ref' % NAME

def header_comments():
    out = []
    for l in open(REF).read().splitlines():
        if not l.startswith(';'): break
        if '@launch' in l or l.startswith('; Override') or l.startswith('; grid='): continue
        out.append(l)
    return out

def kernel_text(name, body, nv=512, acc=256, nsgpr=102):
    t = ['.globl %s' % name, '.p2align 8', '.type %s,@function' % name, '%s:' % name, body]
    return '\n'.join(t)

def descriptor(name, nv, acc, nsgpr=102):
    return '''.amdhsa_kernel %s
  .amdhsa_next_free_vgpr %d
  .amdhsa_next_free_sgpr %d
  .amdhsa_accum_offset %d
  .amdhsa_group_segment_fixed_size 0
  .amdhsa_kernarg_size 104
  .amdhsa_user_sgpr_count 2
  .amdhsa_user_sgpr_kernarg_segment_ptr 1
  .amdhsa_system_sgpr_workgroup_id_x 1
.end_amdhsa_kernel''' % (name, nv, nsgpr, acc)

def build(kernels):
    out = header_comments()
    for (name, body, grid, block, lds, nv, acc) in kernels:
        if len(kernels) == 1 and name == NAME + '_kernel':
            out.append('; @launch grid=(%d,1,1) block=(%d,1,1) lds=%d' % (grid, block, lds))
        else:
            out.append('; @launch kernel=%s grid=(%d,1,1) block=(%d,1,1) lds=%d' % (name, grid, block, lds))
    out.append('.amdgcn_target "amdgcn-amd-amdhsa--gfx950"')
    out.append('.text')
    for (name, body, grid, block, lds, nv, acc) in kernels:
        out.append(kernel_text(name, body))
    out.append('.section .rodata,"a"')
    for (name, body, grid, block, lds, nv, acc) in kernels:
        out.append('.p2align 6')
        out.append(descriptor(name, nv, acc))
    return '\n'.join(out) + '\n'

def relabel(text, prefix):
    import re
    return re.sub(r'\bL_', prefix + '_', text)

def apply_env(mods):
    for m in mods:
        if os.environ.get('STAMP') and hasattr(m, 'STAMP'): m.STAMP = True
    for kv in os.environ.get('EXP', '').split(','):
        if '=' in kv:
            k, v = kv.split('=')
            hit = False
            for m in mods:
                if hasattr(m, k):
                    setattr(m, k, type(getattr(m, k))(v.replace('+', ' '))); hit = True
            if not hit:
                for m in mods:
                    if hasattr(m, 'EXP'): m.EXP[k] = v

if __name__ == '__main__':
    which = sys.argv[1] if len(sys.argv) > 1 else 'a'
    dst = sys.argv[2] if len(sys.argv) > 2 else 'cdna_kernels/%s.s' % NAME
    ks = []
    if which == 'k1':
        apply_env([k1])
        P1 = k1.gen_k1()
        ks.append(('attn_kernel', relabel(P1.text(), 'A'), 256, 256, k1.LDS_BYTES, 512, 256))
    elif which == 'a':
        import k1a, k3
        apply_env([k1a, k3])
        P1 = k1a.gen_k1()
        ks.append(('attn_kernel', relabel(P1.text(), 'A'), 256, 256, k1a.LDS_BYTES, 512, 256))
        P3 = k3.gen_k3()
        ks.append(('red_kernel', relabel(P3.text(), 'R'), k3.GRID, 256, 0, 104, 104))
        for i in range(int(os.environ.get('NOPK', '0'))):
            ks.append(('nop%d_kernel' % i, '    s_endpgm', int(os.environ.get('NOPG', '1')), 64, 0, 8, 8))
    if which == 'b':
        import k16, k3b
        apply_env([k16, k3b])
        P1 = k16.gen_k16()
        single = os.environ.get('SINGLE') and (k16.FUSE or k16.PFUSE)
        ks.append((NAME + '_kernel' if single else 'attn_kernel', relabel(P1.text(), 'A'), 256, 256, k16.LDS_BYTES, 512, 256))
        if not (k16.FUSE or k16.PFUSE):
            P3 = k3b.gen_k3()
            ks.append(('red_kernel', relabel(P3.text(), 'R'), k3b.GRID, 256, 0, 104, 104))
    open(dst, 'w').write(build(ks))
    print('wrote', dst, os.path.getsize(dst), 'bytes; nops', P1.nops)
```

```python
from asmlib import *
import struct, math

SLOT = 53248
KOFF, VOFF, WOFF = 0, 16384, 32768
XBASE = 3 * SLOT
NSLOT = 3
LDS_BYTES = 163840
PART = 143360

QACC = 0; OACC = 64; SB = (128, 160); Q = 192
KA = 224; VA = 228; KD = 236; VD = 240; ONES = 242; LS = 246
T2 = 254; T4 = 255
WD = 32
OST = KA; OD = KD
def lt(u): return LS + 4 * u
XR = 128; XR2 = 136; XV = 144
XA = 0; POOL = 160; NPOOL = 8
STASH = [192, 224, 0, 32]
sK = 8; sV = 12; sW = 16; sO = 20; sX = 24
sWAVE = 28; sKo = 29; sVo = 30; sWc = 31; sRd = 32; sDelta = 33; sWrK = 34; sHead = 35
sT = 36; sT2 = 37; sW4096 = 38; sXc = 39; sOo = 40; sC = 41; sSlot = 42; sWrap = 43
sRet = 87; sM = 44; sHb = 48; sI = 49; sWr = 50; sNg = 51; sWn = 46; sWo = 47
QSCALE = struct.unpack('<I', struct.pack('<f', math.log2(math.e) / math.sqrt(128.0)))[0]

STAMP = False
EXP = {}
D_AHEAD = 6
D_BAR = 3
WAITW = 4
SPLITR = 0; LEAD = 0
CAP1 = 8; CAP2 = 24; LATE = 16
BUDGET_A = 12
BUDGET_B = 26
KVPOL = 'nt'; WPOL = ''; XPOL = ''; OPOL = ''; PSTPOL = 'sc0 sc1'
ODMA_A = 6
WSOFF = 0

def vr(b, n): return 'v[%d:%d]' % (b, b + n - 1)
def ar(b, n): return 'a[%d:%d]' % (b, b + n - 1)
def qa(u, t): return QACC + (u * 8 + t) * 4
def oa(u, t): return OACC + (u * 8 + t) * 4
def sreg(buf, u, kt): return SB[buf] + (u * 2 + (kt >> 1)) * 8 + (kt & 1) * 4
def preg(buf, u, s): return SB[buf] + (u * 2 + s) * 8
def qf(u, ks): return Q + (u * 4 + ks) * 4
def xf(kk, u): return XA + (kk * 2 + u) * 4

class F:
    def __init__(self, reads, mfmas):
        self.reads = reads
        self.mfmas = mfmas

def tr(e, addr, imm): return ('ds_read_b64_tr_b16', 2 * e, 2, addr, imm)

def fr_S(buf, nq):
    out = []
    for kt in range(4):
        for ks in range(4):
            out.append(F([('ds_read_b128', 0, 4, KA + ks, KOFF + kt * 4096)],
                         [(vr(sreg(buf, u, kt), 4), vr(qf(u, ks), 4), ks == 0) for u in range(nq)]))
    return out

def q_ksteps(g):
    a = g >> 1
    if g % 2 == 0: return [(5 * a, 0, 1), (5 * a + 1, 2, 3)]
    return [(5 * a + 2, 'X', 0), (5 * a + 3, 1, 2), (5 * a + 4, 3, 4)]

def fr_Q(g, nq, tmajor=False):
    ks = q_ksteps(g)
    order = [(k, t) for t in range(8) for k in ks] if tmajor else [(k, t) for k in ks for t in range(8)]
    out = []
    for ((kk, b0, b1), t) in order:
        reads = []
        for e, b in enumerate((b0, b1)):
            if b == 'X': reads.append(tr(e, ('X', VA + t), 0))
            else: reads.append(tr(e, VA + t, WOFF + b * 4096))
        out.append(F(reads, [(vr(qa(u, t), 4), ar(xf(kk, u), 4), kk == 0) for u in range(nq)]))
    return out

def fr_PV(g, nq, tmajor=False):
    buf = g & 1
    order = [(s, t) for t in range(8) for s in range(2)] if tmajor else [(s, t) for s in range(2) for t in range(8)]
    return [F([tr(e, VA + t, VOFF + (2 * s + e) * 4096) for e in range(2)],
              [(vr(oa(u, t), 4), vr(preg(buf, u, s), 4), g == 0 and s == 0) for u in range(nq)]) for (s, t) in order]

VA2 = [225, 226, 227, 240, 241, 242, 243, 244]
OSTATIC = 1
O32 = 1
BVA = list(range(50, 58))
def fr_O(hh, nq):
    slot = (hh + 1) & 3
    hi = OSTATIC and slot >= 2
    off = (slot & 1) * 32768 if OSTATIC else 0
    if O32 and nq == 2:
        order = [(ks, nt) for nt in range(4) for ks in range(8)] if hh in (0, 3) else [(ks, nt) for ks in range(8) for nt in range(4)]
        out = []
        for (ks, nt) in order:
            f = F([tr(e, VA2[4 + nt] if hi else VA2[nt], off + (16 * ks + 8 * e) * 256) for e in range(2)],
                  [(vr(QACC + 16 * nt, 16), ar(STASH[hh] + 4 * ks, 4), hh == 0 and ks == 0)])
            f.shape = 32; out.append(f)
        return out
    order = [(s, t) for t in range(8) for s in range(4)] if hh in (0, 3) else [(s, t) for s in range(4) for t in range(8)]
    lo = BVA if O32 else list(range(VA, VA + 8))
    return [F([tr(e, VA2[t] if hi else lo[t], off + (2 * s + e) * 4096) for e in range(2)],
              [(vr(qa(u, t), 4), ar(STASH[hh] + (u * 4 + s) * 4, 4), hh == 0 and s == 0) for u in range(nq)]) for (s, t) in order]

SUMV = 0
def softmax_chunk(buf, u, s, first):
    b = preg(buf, u, s); first_u = first
    e = ['v_exp_f32_e32 v%d, v%d' % (b + i, b + i) for i in range(8)]
    c = ['v_cvt_pk_bf16_f32 v%d, v%d, v%d' % (b + j, b + 2 * j, b + 2 * j + 1) for j in range(4)]
    if SUMV:
        a = ['v_add_f32_e32 v%d, v%d, v%d' % (lt(u) + (i & 1), b + i, lt(u) + (i & 1)) for i in range(8)]
        if first_u: a[0] = 'v_mov_b32_e32 v%d, v%d' % (lt(u), b); a[1] = 'v_mov_b32_e32 v%d, v%d' % (lt(u) + 1, b + 1)
        seq = [e[0], e[1]]
        for i in range(2, 8): seq += [e[i], a[i - 2]]
        return seq + [a[6], a[7]] + c, None
    m = 'v_mfma_f32_16x16x32_bf16 %s, %s, %s, %s' % (vr(lt(u), 4), vr(ONES, 4), vr(b, 4), '0' if first else vr(lt(u), 4))
    return e[:4] + [c[0]] + e[4:6] + [c[1]] + e[6:] + [c[2], c[3]], m

def swaps(pairs):
    return ['v_permlane32_swap_b32_e32 v%d, v%d' % p for p in pairs] + ['v_permlane16_swap_b32_e32 v%d, v%d' % p for p in pairs]

def qconv(ks, nq):
    ops = []
    for u in range(nq):
        for t in (2 * ks, 2 * ks + 1):
            for r in range(4): ops.append('v_mul_f32_e32 v%d, s%d, v%d' % (qa(u, t) + r, sC, qa(u, t) + r))
    for u in range(nq):
        for t in range(2):
            for j in range(2):
                r = qa(u, 2 * ks + t) + 2 * j
                ops.append('v_cvt_pk_bf16_f32 v%d, v%d, v%d' % (qf(u, ks) + 2 * t + j, r, r + 1))
    ops += swaps([(qf(u, ks) + j, qf(u, ks) + 2 + j) for u in range(nq) for j in range(2)])
    return ops

def ofin(s, nq):
    ops = []
    for u in range(nq):
        b = oa(u, 2 * s)
        for r in range(8): ops.append('v_mul_f32_e32 v%d, v%d, v%d' % (b + r, lt(u), b + r))
        for j in range(4): ops.append('v_cvt_pk_bf16_f32 v%d, v%d, v%d' % (b + j, b + 2 * j, b + 2 * j + 1))
    if O32 and nq == 2:
        pairs = [(oa(0, 2 * s) + j, oa(1, 2 * s) + j) for j in range(4)]
        ops += ['v_permlane16_swap_b32_e32 v%d, v%d' % p for p in pairs] + ['v_permlane32_swap_b32_e32 v%d, v%d' % p for p in pairs]
    return ops

def stash_moves(h, nq):
    ops = []
    if O32 and nq == 2:
        for t in range(8):
            srcs = [oa(0, 2 * (t >> 1)) + 2 * (t & 1), oa(0, 2 * (t >> 1)) + 2 * (t & 1) + 1, oa(1, 2 * (t >> 1)) + 2 * (t & 1), oa(1, 2 * (t >> 1)) + 2 * (t & 1) + 1]
            for j in range(4): ops.append('v_accvgpr_write_b32 a%d, v%d' % (STASH[h] + 4 * t + j, srcs[j]))
        return ops
    for u in range(nq):
        for s in range(4):
            for j in range(4): ops.append('v_accvgpr_write_b32 a%d, v%d' % (STASH[h] + (u * 4 + s) * 4 + j, oa(u, 2 * s) + j))
    return ops

class Role:
    def __init__(self, name, nq):
        self.name = name; self.nq = nq
        self.budget = BUDGET_A if nq == 2 else BUDGET_B
    def lab(self, s): return 'L_%s_%s' % (self.name, s)

def mk_stash(R):
    def f(P):
        for h in range(2):
            P.I('s_cmp_eq_u32 s%d, %d' % (sHead, h)); P.I('s_cbranch_scc1 %s' % R.lab('st%d' % h))
        for h in (2, 0, 1):
            if h != 2: P.label(R.lab('st%d' % h))
            for o in stash_moves(h, R.nq): P.I(o)
            if h != 1: P.I('s_branch %s' % R.lab('st_done'))
        P.label(R.lab('st_done'))
    return f

def lane_reduce(P, reg, tmp, op):
    P.I('v_mov_b32_e32 v%d, v%d' % (tmp, reg))
    P.I('v_permlane32_swap_b32_e32 v%d, v%d' % (reg, tmp))
    P.I('%s v%d, v%d, v%d' % (op, reg, reg, tmp))
    P.I('v_mov_b32_e32 v%d, v%d' % (tmp, reg))
    P.I('v_permlane16_swap_b32_e32 v%d, v%d' % (reg, tmp))
    P.I('%s v%d, v%d, v%d' % (op, reg, reg, tmp))

def mk_check(R, site=0):
    def f(P):
        if SUMV:
            for u in range(R.nq): P.I('v_add_f32_e32 v%d, v%d, v%d' % (lt(u), lt(u), lt(u) + 1))
            for u in range(R.nq): lane_reduce(P, lt(u), lt(u) + 2, 'v_add_f32_e32')
        P.I('s_mov_b64 s[%d:%d], -1' % (sM, sM + 1))
        for u in range(R.nq):
            P.I('v_cmp_le_f32_e32 vcc, 0x33800000, v%d' % lt(u))
            P.I('s_and_b64 s[%d:%d], s[%d:%d], vcc' % (sM, sM + 1, sM, sM + 1))
            P.I('v_cmp_ge_f32_e32 vcc, 0x4b800000, v%d' % lt(u))
            P.I('s_and_b64 s[%d:%d], s[%d:%d], vcc' % (sM, sM + 1, sM, sM + 1))
        P.I('s_cmp_eq_u64 s[%d:%d], -1' % (sM, sM + 1))
        if not (EXP.get('nohook') or EXP.get('dropm') or EXP.get('nosm') or EXP.get('nokv') or EXP.get('nord')):
            P.I('s_cbranch_scc1 %s' % R.lab('fast_ok%d' % site))
            P.I('s_mov_b32 s%d, %d' % (sRet, site))
            P.I('s_branch %s' % R.lab('slow'))
        P.label(R.lab('slow_ret%d' % site))
        P.label(R.lab('fast_ok%d' % site))
        for u in range(R.nq): P.I('v_rcp_f32_e32 v%d, v%d' % (lt(u), lt(u)))
    return f

def dma(v, srd, soff, imm, pol, tag):
    return ('buffer_load_dwordx4 v%d, s[%d:%d], s%d offen offset:%d %s lds' % (v, srd, srd + 3, soff, imm, pol), tag)

OTOUCH = 1; OTPOL = ''
CTOUCH = 1; CT_LINES = 24
TOUCH = 1
KVA = 1
def kv_groups(R, kind='K'):
    if KVA == 1 or (KVA == 2 and kind == 'K'): return [0]
    if R.nq == 2: return []
    return [0, 1, 2, 3] if KVA == 0 else [-3, -2, -1, 0]

def dma_K(tag, R, wr=sWrK, soff=sKo, adv=True):
    ops = []
    for G in kv_groups(R, 'K'):
        ops.append('s_add_u32 m0, s%d, %d' % (wr, (G * 4096) & 0xffffffff))
        if G: ops.append('s_add_u32 s%d, s%d, %d' % (sT2, soff, (G * 4096) & 0xffffffff))
        ops += [dma(KD + j, sK, sT2 if G else soff, j * 1024, KVPOL, tag) for j in range(4)]
    if adv and ops: ops.append('s_add_u32 s%d, s%d, 16384' % (sKo, sKo))
    return ops

def dma_V(tag, R, wr=sWrK, soff=sVo, adv=True):
    ops = []
    for G in kv_groups(R, 'V'):
        ops.append('s_add_u32 m0, s%d, %d' % (wr, VOFF + G * 4096))
        Gs = G + 3 if KVA == 2 else G
        if Gs: ops.append('s_add_u32 s%d, s%d, %d' % (sT2, soff, Gs * 4096))
        ops += [dma(VD + (j & 1), sV, sT2 if Gs else soff, j * 1024, KVPOL, tag) for j in range(4)]
    if adv and ops: ops.append('s_add_u32 s%d, s%d, 16384' % (sVo, sVo))
    return ops

def dma_Wrows(tag, row0, nrows, hreg, dest):
    ops = []
    for G in range(nrows // 16):
        if isinstance(dest, tuple) and len(dest) > 2:
            ops.append(atomic(['s_add_u32 s%d, s%d, %d' % (sT, dest[1], WOFF + G * 4096), 's_cmp_eq_u32 s%d, 3' % sHead, 's_cselect_b32 m0, %d, s%d' % (XBASE, sT)]))
        elif isinstance(dest, tuple): ops.append('s_add_u32 m0, s%d, %d' % (dest[1], WOFF + G * 4096))
        else: ops.append('s_mov_b32 m0, %d' % (dest + G * 4096))
        ops.append('s_add_u32 s%d, s%d, %d' % (sT2, hreg, (row0 + 16 * G) * 8192))
        for i in range(4): ops.append(dma(WD + i, sW, sT2, i * 1024, WPOL, tag))
    return ops

def dma_Warea(tag, g, hreg, dest):
    a = g >> 1
    if g % 2 == 0: return dma_Wrows(tag, 160 * a, 64, hreg, dest)
    return dma_Wrows(tag, 160 * a + 80, 80, hreg, dest)
def dma_WX(tag, g, hreg):
    return dma_Wrows(tag, 160 * (g >> 1) + 64, 16, hreg, XBASE)

X_SLOT = [0, 1, 2, 0, 2]
def dma_x(kt, nq):
    ops = []
    for j in range(4 * nq):
        ops.append('s_add_u32 m0, s70, %d' % (X_SLOT[kt] * SLOT + j * 1024))
        ops.append('s_mov_b32 s7, %d' % (j * 5120 + kt * 256))
        ops.append(('buffer_load_dwordx4 v%d, s[%d:%d], s7 offen %s lds' % (XV + (j & 3), sX, sX + 3, XPOL), 'x%d' % kt))
    return ops

def read_x(kt, nq):
    ops = [('WAITVM', 'x%d' % kt)]
    for kq in range(4):
        for u in range(nq):
            for e in range(2):
                if X_SLOT[kt] == 2: a, off = XR2 + 2 * kq + e, 0
                else: a, off = XR + 2 * kq + e, X_SLOT[kt] * SLOT
                d = xf(4 * kt + kq, u) + 2 * e
                ops.append(('ds_read_b64 %s, v%d offset:%d' % (ar(d, 2), a, off + u * 4096), 'xr%d' % kt))
    return ops

def fixed_kv(slot, kind, off, tag, R):
    fn = dma_K if kind == 'K' else dma_V
    ops = fn(tag, R, wr=sT, soff=sI, adv=False)
    if not ops: return []
    return ['s_add_u32 s%d, s%d, %d' % (sT, sW4096, slot * SLOT), 's_mov_b32 s%d, %d' % (sI, off)] + ops

def ring_advance(total=NSLOT * SLOT):
    return ['s_mov_b32 s%d, s%d' % (sWr, sRd),
            's_add_u32 s%d, s%d, s%d' % (sWrK, sRd, sW4096),
            's_add_u32 s%d, s%d, s%d' % (sRd, sRd, sSlot),
            's_cmp_eq_u32 s%d, %d' % (sRd, total),
            's_cselect_b32 s%d, s%d, s%d' % (sDelta, sWrap, sSlot),
            's_cselect_b32 s%d, 0, s%d' % (sRd, sRd)]

def atomic(ops):
    def f(P):
        for o in ops: P.I(o)
    f.cost = 4 * len(ops)
    return f

def cost_of(op):
    if callable(op): return getattr(op, 'cost', 60)
    t = op[0] if isinstance(op, tuple) else op
    if t.startswith('v_mfma'): return 8
    if t.startswith('buffer_'): return 20
    if t.startswith('v_exp') or t.startswith('v_rcp'): return 8
    return 4

class Step:
    def __init__(self, name, fr, paced=None, fixed=None, usesX=False):
        self.name = name; self.fr = fr; self.paced = paced or []; self.fixed = fixed or {}; self.usesX = usesX

def stamp(P, lane, real=False):
    P.I('%s s[72:73]' % ('s_memrealtime' if real else 's_memtime')); P.I('s_waitcnt lgkmcnt(0)')
    if isinstance(lane, int): P.I('v_writelane_b32 v%d, s72, %d' % (T4, lane))
    else: P.I('s_mov_b32 m0, s74'); P.I('v_writelane_b32 v%d, s72, m0' % T4)

class Emitter:
    def __init__(self, P, R):
        self.P = P; self.R = R
        self.fr = 0; self.uid = 0; self.ring_total = NSLOT * SLOT
        self.addr_regs = list(range(KA, KA + 4)) + list(range(VA, VA + 8))
    def emit_op(self, op):
        if isinstance(op, tuple):
            if op[0] == 'WAITVM': self.P.wait_vm(op[1])
            elif op[0] == 'WAITLGKM': self.P.wait_lgkm(op[1])
            else: self.P.I(op[0], op[1])
        elif callable(op): op(self.P)
        else: self.P.I(op)
    def issue_reads(self, f, upd, part=None):
        P = self.P; c = 0
        if part in (None, 0):
            f.frag = POOL + 4 * (self.fr % NPOOL); self.fr += 1
            self.uid += 1; f.tag = '%sf%d' % (self.R.name, self.uid)
        reads = f.reads if part is None else (f.reads[:1] if part == 0 else f.reads[1:])
        for (op, off, n, addr, imm) in reads:
            isx = isinstance(addr, tuple)
            a = addr[1] if isx else addr
            if a in upd:
                P.I('v_add_u32_e32 v%d, s%d, v%d' % (a, sDelta, a)); upd.discard(a); c += 4
            if isx:
                P.I('v_add_u32_e32 v%d, s%d, v%d' % (T2, sXc, a)); c += 4; a = T2
            if EXP.get('nord') and self.uid % int(EXP['nord']) != 0 and self.uid > 300: continue
            P.I('%s %s, v%d offset:%d' % (op, ar(f.frag + off, n), a, imm), f.tag); c += 4
        return c
    def boundary(self, nxt):
        P = self.P
        P.wait_lgkm('ALL')
        st = STAMP and not EXP.get('lite') and ((nxt.name[0] == 'O') == bool(EXP.get('ostamp')))
        arr = bool(EXP.get('arr'))
        if st and arr: stamp(P, 'dyn', bool(EXP.get('rt'))); P.I('s_add_u32 s74, s74, 1')
        P.wait_vm('ld_' + nxt.name)
        if getattr(nxt, 'wait_stores', False): P.wait_vm('pst')
        P.I('s_barrier')
        if st and not arr: stamp(P, 'dyn', bool(EXP.get('rt'))); P.I('s_add_u32 s74, s74, 1')
        if getattr(nxt, 'static', False): return set()
        if getattr(nxt, 'ring_total', None): self.ring_total = nxt.ring_total
        if getattr(nxt, 'va_only', False): self.addr_regs = list(range(VA, VA + 8))
        for o in ring_advance(self.ring_total): P.I(o)
        if nxt.usesX: P.I('s_sub_u32 s%d, %d, s%d' % (sXc, XBASE, sRd))
        return set(self.addr_regs)
    def run(self, steps, nxt_after, pre_issued, upd, valu, allow_left=False):
        P = self.P; R = self.R
        allf = []
        for si, s in enumerate(steps):
            for i, f in enumerate(s.fr): allf.append((si, i, f))
        n = len(allf)
        seq = allf + [(len(steps), i, f) for i, f in enumerate(nxt_after.fr)]
        first_of = {}
        for k, (si, i, f) in enumerate(seq):
            if i == 0: first_of[si] = k
        nread = pre_issued; entered = 0
        vq = list(valu); vp = 0; ppos = 0
        jobcost = {}; jobdone = {}
        for it in vq:
            if len(it) > 3: jobcost[it[3]] = jobcost.get(it[3], 0) + cost_of(it[0])
        for k in range(n):
            si, i, f = allf[k]
            s = steps[si]
            if i == 0: ppos = 0
            used = 0
            tgt = k
            if i % WAITW == 0:
                for d in range(1, WAITW):
                    if k + d < n and allf[k + d][0] == si and k + d < nread: tgt = k + d
                used += 4
            P.wait_lgkm(seq[tgt][2].tag)
            for mi, (d, b, c0) in enumerate(f.mfmas):
                if not (EXP.get('dropm') and s.name[0] == 'G' and (k * 2 + mi) % int(EXP['dropm']) == 0):
                    P.I('%s %s, %s, %s, %s' % ('v_mfma_f32_32x32x16_bf16' if getattr(f, 'shape', 16) == 32 else 'v_mfma_f32_16x16x32_bf16', d, ar(f.frag, 4), b, '0' if c0 else d))
                if EXP.get('padnop') and s.name[0] == 'G' and R.nq == 2 and mi == 1 and k % int(EXP['padnop']) == 0: P.I('s_nop 7')
                lastm = mi == len(f.mfmas) - 1
                if lastm:
                    nf = len(s.fr); last = getattr(s, 'paced_end', nf - 2 - D_BAR)
                    for o in s.fixed.get(i, []):
                        used += cost_of(o); self.emit_op(o)
                    p0 = getattr(s, 'paced_start', 0)
                    if p0 <= i <= last:
                        want = len(s.paced) if i == last else int(math.ceil(len(s.paced) * (i - p0 + 1) / float(last - p0 + 1)))
                        while ppos < want:
                            used += cost_of(s.paced[ppos]); self.emit_op(s.paced[ppos]); ppos += 1
                    if si + 1 in first_of and k == first_of[si + 1] - 1 - D_BAR and entered == si:
                        assert ppos == len(s.paced), (s.name, ppos, len(s.paced))
                        for a in sorted(upd): P.I('v_add_u32_e32 v%d, s%d, v%d' % (a, sDelta, a)); used += 4
                        nx = steps[si + 1] if si + 1 < len(steps) else nxt_after
                        upd = self.boundary(nx); entered = si + 1; used += 40
                if mi == 0:
                    ready = []
                    while nread < len(seq) and nread <= k + D_AHEAD and seq[nread][0] <= entered and (seq[nread][0] < len(steps) or nread - n < D_BAR):
                        ready.append(seq[nread][2]); nread += 1
                    at_bar = si + 1 in first_of and k == first_of[si + 1] - 1 - D_BAR
                    half = None
                    if SPLITR and len(f.mfmas) == 2 and len(ready) == 1 and len(ready[0].reads) == 2 and not at_bar:
                        half = ready[0]; used += self.issue_reads(half, upd, 0)
                    else:
                        for r in ready: used += self.issue_reads(r, upd)
                elif half is not None:
                    used += self.issue_reads(half, upd, 1); half = None
                while vp < len(vq):
                    it = vq[vp]; c = cost_of(it[0])
                    go = lastm and it[2] <= k
                    if not go and it[1] <= k:
                        if len(it) > 3:
                            js, je = it[3]
                            pos = k + (mi + 1) / float(len(f.mfmas))
                            due = jobcost[it[3]] * min(1.0, max(0.0, (pos - js) / float(je - js))) - jobdone.get(it[3], 0)
                            go = (due > 0 and used + c <= CAP1) or (due > LATE and used + c <= CAP2) or (used < 8 and due > -LEAD)
                        else: go = used + c <= R.budget
                    if not go: break
                    used += c; self.emit_op(it[0]); vp += 1
                    if len(it) > 3: jobdone[it[3]] = jobdone.get(it[3], 0) + c
                used = 0
            while nread < len(seq) and nread <= k + D_AHEAD and seq[nread][0] <= entered and (seq[nread][0] < len(steps) or nread - n < D_BAR):
                self.issue_reads(seq[nread][2], upd); nread += 1
        if allow_left: return upd, vp
        assert vp == len(vq), (vp, len(vq))
        return upd

def nm(k, g): return 'ld_%s%d' % (k, g)

PORD = 3
def make_P(g, R):
    nq = R.nq; B = nq == 1
    fr = fr_Q(g, nq, tmajor=(g == 7))
    paced = []; fixed = {}
    wr = ('slot', sWr)
    if g == 0:
        if B: paced += dma_WX(nm('P', 1), 1, sWc) + dma_Warea(nm('P', 1), 1, sWc, SLOT_C(1))
        paced += dma_x(1, nq)
        if B: paced += dma_Warea(nm('P', 2), 2, sWc, SLOT_C(2))
        paced += dma_x(2, nq)
    if g == 1: fixed[0] = read_x(1, nq)
    if B and 1 <= g <= 5: paced += dma_Warea(nm('P', g + 2), g + 2, sWc, wr)
    if B and g in (2, 4, 6): paced = dma_WX(nm('P', g + 1), g + 1, sWc) + paced
    if g == 1: paced += dma_x(3, nq)
    if g == 2: fixed[0] = read_x(2, nq); paced += [('WAITLGKM', 'xr2')] + dma_x(4, nq)
    K0 = fixed_kv(1, 'K', 0, nm('P', 7), R)
    KV0 = fixed_kv(2, 'K', 16384, nm('G', 0), R) + fixed_kv(2, 'V', 0, nm('G', 0), R)
    KV1 = fixed_kv(0, 'K', 2 * 16384, nm('G', 1), R) + fixed_kv(0, 'V', 16384, nm('G', 1), R)
    when = {0: (3, 5, 4), 1: (5, 6, 7), 2: (4, 5, 6), 3: (4, 6, 7), 4: (5, 5, 7)}[PORD]
    if g == 3: fixed[8] = read_x(3, nq)
    if g == 4: fixed[4] = read_x(4, nq)
    if g == when[0]: paced += K0
    if g == when[1]: paced += KV0
    if B and g == 6: paced += dma_Warea(nm('G', 0), 0, sWn, wr)
    if g == when[2]: paced += KV1
    if B and g == 7: paced += dma_Warea(nm('G', 1), 1, sWn, wr) + ['s_mov_b32 s%d, s%d' % (sWc, sWn), 's_add_u32 s%d, s%d, 256' % (sWn, sWn)]
    if PFUSE and B and g == 5:
        fixed.setdefault(1, []).extend([atomic(['s_mov_b32 s%d, s90' % sDB, 's_mov_b32 s%d, s91' % (sDB + 1), 's_mov_b32 s%d, 256' % (sDB + 2), 's_mov_b32 s%d, 0x20000' % (sDB + 3),
                                                's_lshl_b32 s61, s5, 4', 's_add_u32 s61, s61, s4', 's_lshl_b32 s61, s61, 2', 'v_mov_b32_e32 v%d, s61' % RZ2])] + poll_early())
    if PFUSE and B and g == 7:
        fixed.setdefault(30, []).append(poll_check(['s_mov_b32 s%d, 0' % sU2], None, 1))
    if g == 7: fr = fr + fr_S(0, nq)
    return Step('P%d' % g, fr, paced, fixed, usesX=(g % 2 == 1))

def SLOT_C(n): return n * SLOT + WOFF

def make_G(g, R):
    nq = R.nq; B = nq == 1
    tgt = nm('G', (g + 2) % 8)
    paced = []
    if B and g % 2 == 0: paced += dma_WX(nm('G', g + 1), g + 1, sWc)
    if B and g == 6:
        paced += [atomic(['s_cmp_ge_u32 s%d, 2' % sHead, 's_cselect_b32 s%d, 0, s%d' % (sW + 2, sW + 2)])]
    if not EXP.get('nokv'): paced += dma_K(tgt, R) + dma_V(tgt, R)
    if B and OTOUCH and g < 5:
        if g == 0: paced.append(atomic(['s_cmp_eq_u32 s%d, 3' % sHead, 's_cselect_b32 s94, 655360, 0']))
        paced.append('s_mov_b32 s%d, %d' % (sT, g * 8192))
        paced.append(('buffer_load_dword v41, v40, s[92:95], s%d offen %s' % (sT, OTPOL), 'touch'))
    if B: paced += dma_Warea(tgt, (g + 2) % 8, sWc if g + 2 < 8 else sWn, ('slot', sWr, 'redirect') if g == 5 else ('slot', sWr))
    if B and g == 7: paced += ['s_mov_b32 s%d, s%d' % (sWc, sWn), 's_add_u32 s%d, s%d, 256' % (sWn, sWn)]
    if g < 7: fr = fr_S((g + 1) & 1, nq) + fr_Q(g, nq) + fr_PV(g, nq)
    else: fr = fr_Q(7, nq, True) + fr_PV(7, nq, True) + fr_S(0, nq)
    return Step('G%d' % g, fr, paced, usesX=(g % 2 == 1))

def o_setup(R):
    def f(P):
        lane_ids(P)
        if R.nq == 2:
            P.I('s_mul_i32 s%d, s%d, %d' % (sW4096, sWAVE, OGA * 4096)); P.I('s_mul_i32 s7, s%d, %d' % (sWAVE, OGA * 20480))
        else:
            P.I('s_mov_b32 s%d, 0' % sW4096); P.I('s_mov_b32 s7, 0')
        P.I('v_mul_u32_u24_e32 v11, 1280, v4')
        for i in range(4):
            if O32:
                P.I('v_lshlrev_b32_e32 v5, 1, v4'); P.I('v_add_u32_e32 v5, %d, v5' % (i & 1)); P.I('v_lshlrev_b32_e32 v5, 1, v5')
                P.I('v_xor_b32_e32 v5, v5, v3'); P.I('v_lshlrev_b32_e32 v12, 4, v5')
            else: swz8(P, 12, i & 1)
            P.I('v_add3_u32 v12, v12, v11, s7'); P.I('v_add_u32_e32 v%d, %d, v12' % (OD + i, i * (5120 - 1024)))
        P.I('s_mov_b32 s%d, s82' % sW); P.I('s_mov_b32 s%d, s83' % (sW + 1))
        P.I('s_mov_b32 s%d, 655360' % (sW + 2)); P.I('s_mov_b32 s%d, 0x20000' % (sW + 3))
        P.I('s_mov_b32 s%d, 0' % sWo)
    f.cost = 140
    return f

def o_setup2(R):
    def f(P):
        lane_ids(P)
        P.I('s_lshl_b32 s7, s%d, 11' % sWAVE)
        P.I('v_lshlrev_b32_e32 v11, 4, v0'); P.I('v_add_u32_e32 v%d, s7, v11' % OST)
        P.I('s_mov_b32 s%d, %d' % (sOo, (-4 * 7 * 1024) & 0xffffffff)); P.I('s_mov_b32 s%d, 0' % sNg)
        if O32 and R.nq == 2:
            P.I('v_lshrrev_b32_e32 v2, 5, v0'); P.I('v_lshrrev_b32_e32 v6, 2, v3'); P.I('v_and_b32_e32 v7, 3, v0'); P.I('v_and_b32_e32 v8, 1, v4')
            P.I('v_lshl_add_u32 v9, v2, 2, v6'); P.I('v_lshlrev_b32_e32 v9, 8, v9'); P.I('v_lshl_add_u32 v9, v7, 3, v9')
            P.I('v_xor_b32_e32 v8, v8, v2'); P.I('v_lshl_add_u32 v9, v8, 5, v9')
            for nt in range(4):
                P.I('v_xor_b32_e32 v11, %d, v6' % nt); P.I('v_lshl_add_u32 v%d, v11, 6, v9' % VA2[nt])
                P.I('v_add_u32_e32 v%d, 0x10000, v%d' % (VA2[4 + nt], VA2[nt]))
        elif O32:
            P.I('v_lshrrev_b32_e32 v6, 2, v3'); P.I('v_and_b32_e32 v7, 3, v0')
            P.I('v_lshl_add_u32 v9, v4, 2, v6'); P.I('v_lshlrev_b32_e32 v9, 8, v9'); P.I('v_lshl_add_u32 v9, v7, 3, v9')
            P.I('v_and_b32_e32 v8, 1, v4'); P.I('v_lshl_add_u32 v8, v6, 1, v8')
            for t in range(8):
                P.I('v_xor_b32_e32 v11, %d, v8' % t); P.I('v_lshl_add_u32 v%d, v11, 5, v9' % BVA[t])
                P.I('v_add_u32_e32 v%d, 0x10000, v%d' % (VA2[t], BVA[t]))
        elif OSTATIC:
            va_regs(P, 0, VA2)
            for t in range(8): P.I('v_add_u32_e32 v%d, 0x10000, v%d' % (VA2[t], VA2[t]))
        P.I('s_mov_b32 s%d, %d' % (sSlot, OSLOT)); P.I('s_mov_b32 s%d, %d' % (sWrap, (-(ONSLOT - 1) * OSLOT) & 0xffffffff))
    f.cost = 40
    return f

def make_GL(g, R):
    nq = R.nq
    paced = []
    for n in ((0, 1) if g == 6 else ((2,) if OSTATIC else (2, 3))):
        paced.append('s_add_u32 s%d, s%d, %d' % (sWrK, sW4096, (n + 1) * OSLOT))
        paced += odma('ld_O%d' % n, 163840 if n != 3 else 256 - 3 * 163840, R)
    if g == 6:
        return Step('G6', fr_S(1, nq) + fr_PV(6, nq), paced, {0: [o_setup(R)]})
    st = Step('G7', fr_PV(7, nq, True), paced, {0: [o_setup2(R)]})
    st.paced_end = 9; st.va_only = True
    return st

def valu_P(steps, R):
    base7 = sum(len(s.fr) for s in steps[:7])
    q = []
    for ks in range(4):
        for o in qconv(ks, R.nq): q.append((o, base7 + 6 * ks + 5 + 2, base7 + 23))
    return q

def valu_G(steps, R, last=False):
    nq = R.nq
    base = [0]
    for s in steps: base.append(base[-1] + len(s.fr))
    q = []; pend = []
    for g in range(8):
        nqf = 16 if g % 2 == 0 else 24
        if last and g >= 6: nqf = 0
        if g == 0: job = (0, JOB0)
        elif g == 1: job = (JOB0, base[1] + JOBS)
        elif last and g == 6: job = (base[5] + JOBS, base[6] + 14)
        elif last and g == 7: job = (base[6] + 14, base[7] - 2)
        elif g < 7: job = (base[g - 1] + JOBS, base[g] + JOBS)
        else: job = (base[6] + JOBS, base[7] + 5)
        for s in range(2):
            for u in range(nq):
                est = 0 if g == 0 else base[g - 1] + 8 * s + 7 + 3
                if g < 7: ddl = base[g] + 16 + nqf + 8 * s - 1
                elif last: ddl = base[7] - 1
                else: ddl = base[7] + 6
                if not EXP.get('nosm'):
                    ops, m = softmax_chunk(g & 1, u, s, g == 0 and s == 0)
                    for n, o in enumerate(ops):
                        q.append((o, est, ddl, job))
                        if n == 1 and pend: q.append((pend.pop(), est, ddl, job))
                    if m: pend.append(m)
            if g == 7 and s == 1 and pend: q.append((pend.pop(), est, ddl, job))
    b = base[7]
    if last:
        q.append((mk_check(R, 1), b, b + 1))
        job = (b + 4, b + 14)
        for s in range(4):
            for o in ofin(s, nq): q.append((o, b + 4 * s + 3 + 2, b + 15, job))
        def st3(P):
            for o in stash_moves(3, nq): P.I(o)
        q.append((st3, b + 15, b + 15))
        return q
    q.append((mk_check(R), b, b + 7))
    job = (b + 8, b + QJOB)
    for ks in range(4):
        for o in qconv(ks, nq): q.append((o, b + 6 * ks + 5 + 2, b + 39, job))
    job = (b + QJOB, b + 54)
    for s in range(4):
        for o in ofin(s, nq): q.append((o, b + 24 + 4 * s + 3 + 2, b + 55, job))
    q.append((mk_stash(R), b + 54, b + 55))
    return q

def shift_q(q, off):
    out = []
    for it in q:
        if len(it) > 3: out.append((it[0], it[1] - off, it[2] - off, (it[3][0] - off, it[3][1] - off)))
        else: out.append((it[0], it[1] - off, it[2] - off))
    return out
JOB0 = 22; JOBS = 20; QJOB = 34

OGA = 1
def odma(tag, adv, R, dest=None):
    ops = []
    groups = list(range(OGA)) if R.nq == 2 else list(range(3 * OGA, 8))
    for G in groups:
        if dest is None: ops.append('s_add_u32 m0, s%d, %d' % (sWrK, G * 4096))
        else: ops.append('s_add_u32 m0, s%d, %d' % (sW4096, dest + G * 4096))
        ops.append('s_add_u32 s%d, s%d, %d' % (sT2, sWo, G * 20480))
        for i in range(4): ops.append(dma(OD + i, sW, sT2, i * 1024, OPOL, tag))
    ops.append('s_add_u32 s%d, s%d, %d' % (sWo, sWo, adv & 0xffffffff))
    return ops

PFUSE = 1
RV = 64; RA = 96; RP = 104; RT = 108; RL = 110; RO = 111; RF = 112; RZ = 113; RZ2 = 114; RG = 115
sRS = 52; sRO = 53; sE1 = 54; sE2 = 55; sU = 56; sU2 = 57; sSP = 58; sDB = 96
BIG = 0x40000000
RLPOL = 'sc1'; RSPOL = ''

FLGOFF = 256 * PART
def red_setup(P, R):
    lane_ids(P)
    P.I('s_lshl_b32 s60, s5, 4'); P.I('s_add_u32 s60, s60, s4')
    P.I('s_mul_i32 s61, s60, %d' % (8 * PART))
    if WSOFF: P.I('s_add_u32 s61, s61, %d' % WSOFF)
    P.I('s_add_u32 s8, s68, s61'); P.I('s_addc_u32 s9, s69, 0')
    P.I('s_mov_b32 s10, %d' % (8 * PART)); P.I('s_mov_b32 s11, 0x20000')
    P.I('s_mov_b32 s12, s100'); P.I('s_mov_b32 s13, s101'); P.I('s_mov_b32 s14, %d' % (16 * 112 * 2560)); P.I('s_mov_b32 s15, 0x20000')
    if 1:
        P.I('s_mov_b32 s%d, s90' % sDB); P.I('s_mov_b32 s%d, s91' % (sDB + 1)); P.I('s_mov_b32 s%d, 256' % (sDB + 2)); P.I('s_mov_b32 s%d, 0x20000' % (sDB + 3))
        P.I('s_lshl_b32 s61, s60, 2'); P.I('v_mov_b32_e32 v%d, s61' % RZ2)
        P.I('s_add_u32 s%d, s68, %d' % (sDB, FLGOFF + WSOFF)); P.I('s_addc_u32 s%d, s69, 0' % (sDB + 1))
        P.I('s_mov_b32 s%d, %d' % (sDB + 2, 32 * 256))
    P.I('s_lshl_b32 s62, s6, 2'); P.I('s_add_u32 s62, s62, s%d' % sWAVE)
    P.I('s_lshr_b32 s63, s62, 1'); P.I('s_and_b32 s64, s62, 1')
    P.I('s_cmp_ge_u32 s63, 7'); P.I('s_cselect_b32 s65, 1, 0')
    P.I('s_mul_i32 s66, s65, 7'); P.I('s_sub_u32 s66, s63, s66')
    P.I('s_lshl_b32 s67, s65, 1'); P.I('s_add_u32 s67, s67, s64'); P.I('s_mul_i32 s67, s67, 7'); P.I('s_add_u32 s67, s67, s66')
    P.I('s_lshl_b32 s%d, s67, 10' % sRS)
    P.I('s_mul_i32 s61, s4, %d' % (112 * 2560)); P.I('s_mul_i32 s67, s5, 1280'); P.I('s_add_u32 s61, s61, s67')
    P.I('s_mul_i32 s67, s66, %d' % (16 * 2560)); P.I('s_add_u32 s61, s61, s67')
    P.I('s_lshl_b32 s67, s65, 7'); P.I('s_add_u32 s61, s61, s67')
    P.I('s_lshl_b32 s67, s64, 6'); P.I('s_add_u32 s%d, s61, s67' % sRO)
    P.I('s_sub_u32 s%d, s%d, %d' % (sRS, sRS, 2 * 28672)); P.I('s_sub_u32 s%d, s%d, %d' % (sRO, sRO, 3 * 256))
    P.I('s_cmp_lt_u32 s62, 28')
    P.I('s_cselect_b32 s%d, s%d, %d' % (sRS, sRS, BIG)); P.I('s_cselect_b32 s%d, s%d, %d' % (sRO, sRO, BIG))
    P.I('v_lshlrev_b32_e32 v%d, 4, v0' % RL)
    P.I('v_mul_u32_u24_e32 v%d, 2560, v3' % RO); P.I('v_lshl_add_u32 v%d, v4, 4, v%d' % (RO, RO))
    P.I('s_lshl_b32 s61, s60, 8')
    P.I('v_mov_b32_e32 v%d, s61' % RZ2)
    P.I('v_cmp_eq_u32_e32 vcc, 0, v0'); P.I('v_mov_b32_e32 v5, %d' % BIG)
    P.I('v_cndmask_b32_e32 v%d, v5, v%d, vcc' % (RZ, RZ2))

def post_flag(val_ops):
    return [atomic(val_ops), 'v_mov_b32_e32 v%d, s%d' % (RF, sU),
            ('buffer_atomic_add v%d, v%d, s[%d:%d], 0 offen sc1' % (RF, RZ, sDB, sDB + 3), 'flag')]

_pn = [0]
POLLSLEEP = 4
def poll(shift_ops, skip_ops=None, need=8):
    def f(P):
        _pn[0] += 1; n = _pn[0]
        n0 = len(P.ins)
        if skip_ops:
            for o in skip_ops: P.I(o)
            P.I('s_cbranch_scc1 L_poll_done%d' % n)
        for o in shift_ops: P.I(o)
        P.I('s_mov_b32 s%d, 0' % sSP)
        P.label('L_poll%d' % n)
        P.I('buffer_load_dword v%d, v%d, s[%d:%d], 0 offen sc1' % (RG, RZ2, sDB, sDB + 3))
        P.I('s_waitcnt vmcnt(0)')
        P.I('v_readfirstlane_b32 s%d, v%d' % (sU, RG))
        P.I('s_add_u32 s%d, s%d, 1' % (sSP, sSP))
        P.I('s_lshr_b32 s%d, s%d, s%d' % (sU, sU, sU2)); P.I('s_and_b32 s%d, s%d, 15' % (sU, sU))
        P.I('s_cmp_ge_u32 s%d, %d' % (sU, need))
        P.I('s_cbranch_scc1 L_poll_done%d' % n)
        if POLLSLEEP: P.I('s_sleep %d' % POLLSLEEP)
        P.I('s_cmp_lt_u32 s%d, %d' % (sSP, SPIN))
        P.I('s_cbranch_scc1 L_poll%d' % n)
        P.label('L_poll_done%d' % n)
        for i in P.ins[n0:]:
            if i.kind in ('vmem', 'wait'): i.ignore = True
    f.cost = 60
    return f

def poll_early():
    return [('buffer_load_dword v%d, v%d, s[%d:%d], 0 offen sc1' % (RG, RZ2, sDB, sDB + 3), 'pl')]

def poll_check(shift_ops, skip_ops, need=8):
    def f(P):
        _pn[0] += 1; n = _pn[0]
        P.wait_vm('pl')
        if skip_ops:
            for o in skip_ops: P.I(o)
            P.I('s_cbranch_scc1 L_chk_done%d' % n)
        for o in shift_ops: P.I(o)
        P.I('v_readfirstlane_b32 s%d, v%d' % (sU, RG))
        P.I('s_lshr_b32 s%d, s%d, s%d' % (sU, sU, sU2)); P.I('s_and_b32 s%d, s%d, 15' % (sU, sU))
        P.I('s_cmp_ge_u32 s%d, %d' % (sU, need))
        P.I('s_cbranch_scc1 L_chk_done%d' % n)
        poll(shift_ops, None, need)(P)
        P.label('L_chk_done%d' % n)
    f.cost = 40
    return f

def unit_loads(src):
    ops = []
    for hg in range(8):
        ops.append('s_add_u32 s%d, s%d, %d' % (sU2, src, hg * PART))
        ops.append(('buffer_load_dwordx4 %s, v%d, s[8:11], s%d offen %s' % (vr(RV + 4 * hg, 4), RL, sU2, RLPOL), 'ru%d' % hg))
    return ops

def unit_sum(dst):
    ops = []
    for hg in range(8):
        ops.append(('WAITVM', 'ru%d' % hg))
        for j in range(4):
            r = RV + 4 * hg + j
            if hg == 0:
                ops.append('v_lshlrev_b32_e32 v%d, 16, v%d' % (RA + 2 * j, r)); ops.append('v_and_b32_e32 v%d, 0xffff0000, v%d' % (RA + 2 * j + 1, r))
            else:
                ops.append('v_lshlrev_b32_e32 v%d, 16, v%d' % (RT, r)); ops.append('v_and_b32_e32 v%d, 0xffff0000, v%d' % (RT + 1, r))
                ops.append('v_add_f32_e32 v%d, v%d, v%d' % (RA + 2 * j, RA + 2 * j, RT)); ops.append('v_add_f32_e32 v%d, v%d, v%d' % (RA + 2 * j + 1, RA + 2 * j + 1, RT + 1))
    for j in range(4): ops.append('v_cvt_pk_bf16_f32 v%d, v%d, v%d' % (RP + j, RA + 2 * j, RA + 2 * j + 1))
    ops += swaps([(RP, RP + 2), (RP + 1, RP + 3)])
    ops.append(('buffer_store_dwordx4 %s, v%d, s[12:15], s%d offen %s' % (vr(RP, 4), RO, dst, RSPOL), 'rst'))
    return ops

SUMPOS = 6; PLPOS = 8
def sum_block(R):
    def f(P):
        _pn[0] += 1; n = _pn[0]
        P.I('s_cmp_lt_u32 s%d, 3' % sNg); P.I('s_cbranch_scc1 L_sum_done%d' % n)
        for o in unit_sum(sRO):
            if isinstance(o, tuple) and o[0] == 'WAITVM':
                if o[1] in ('ru0', 'ru7'): P.wait_vm('ru7').cond = True
            elif isinstance(o, tuple): P.I(o[0]).ignore = True
            else: P.I(o)
        P.label('L_sum_done%d' % n)
    f.cost = 100
    return f

def pfuse_tail(P):
    E = Emitter(P, Role('T', 1))
    def emit(ops):
        for o in ops: E.emit_op(o)
    def summ(dst, wait):
        ops = [o for o in unit_sum(dst) if not (isinstance(o, tuple) and o[0] == 'WAITVM')]
        P.I(wait)
        emit(ops)
    def only3(lab, ops):
        P.I('s_cmp_eq_u32 s%d, 3' % sWAVE); P.I('s_cbranch_scc0 %s' % lab)
        emit(ops)
        P.label(lab)
    P.label('L_red')
    only3('L_t0', post_flag(['s_mov_b32 s%d, %d' % (sU, 1 << 12)]))
    P.I('s_cmp_eq_u32 s%d, 3' % sWAVE); P.I('s_cbranch_scc1 L_t0b')
    summ(sRO, 's_waitcnt vmcnt(8)')
    P.I('s_branch L_t0c')
    P.label('L_t0b')
    summ(sRO, 's_waitcnt vmcnt(5)')
    P.label('L_t0c')
    only3('L_t1', [poll(['s_mov_b32 s%d, 12' % sU2])])
    P.I('s_barrier')
    P.I('s_add_u32 s%d, s%d, 256' % (sRO, sRO))
    emit(unit_loads(sRS))
    P.I('s_waitcnt vmcnt(8)')
    P.I('s_barrier')
    only3('L_t2', post_flag(['s_mov_b32 s%d, %d' % (sU, 1 << 16)]))
    summ(sRO, 's_waitcnt vmcnt(0)')
    only3('L_t3', [poll(['s_mov_b32 s%d, 16' % sU2])])
    P.I('s_barrier')
    P.I('s_add_u32 s%d, s%d, 28672' % (sRS, sRS)); P.I('s_add_u32 s%d, s%d, 256' % (sRO, sRO))
    emit(unit_loads(sRS))
    summ(sRO, 's_waitcnt vmcnt(0)')
    P.I('s_waitcnt vmcnt(0)')

PK = SB[0]
def ostore(R, n):
    jp, u = n // R.nq, n % R.nq
    return ['s_add_u32 s%d, s%d, %d' % (sT, sOo, (jp * 7 + u) * 1024),
            ('buffer_store_dwordx4 %s, v%d, s[%d:%d], s%d offen %s' % (vr(PK + (u * 4 + jp) * 4, 4), OST, sO, sO + 3, sT, PSTPOL), 'pst')]

OSLOT = 32768; ONSLOT = 5; OLA = 4
STPOS = 0
def make_O(hh, R):
    th = (hh + 3) & 3 if OSTATIC else hh
    tgt = 'ld_O%d' % th
    adv = 163840 if th != 3 else 256 - 3 * 163840
    pre = []
    if th == 0: pre = [atomic(['s_cmp_ge_u32 s%d, 4' % sNg, 's_cselect_b32 s%d, 0, s%d' % (sW + 2, sW + 2)])]
    loads = odma(tgt, adv, R, hh * OSLOT if OSTATIC else None)
    fixed = {}
    ns = 4 * R.nq
    if hh == 0: fixed[0] = [atomic(['s_cmp_eq_u32 s%d, 0' % sNg, 's_cselect_b32 s%d, 0, %d' % (sO + 2, PART)])]
    for n in range(ns):
        gpos = int((n + 0.5) * STSPAN / ns)
        if gpos // 32 == hh: fixed.setdefault(min(gpos % 32, 27), []).extend(ostore(R, n))
    if hh == 3: fixed.setdefault(12, []).append('s_add_u32 s%d, s%d, %d' % (sOo, sOo, 4 * 7 * 1024))
    if PFUSE:
        if hh == 0 and R.nq == 1:
            fixed[0] = fixed.get(0, []) + post_flag(['s_sub_u32 s%d, s%d, 2' % (sU, sNg), 's_lshl_b32 s%d, s%d, 2' % (sU, sU), 's_lshl_b32 s%d, 1, s%d' % (sU, sU),
                                                    's_cmp_ge_u32 s%d, 2' % sNg, 's_cselect_b32 s%d, s%d, 0' % (sU, sU)])
        if hh == 1:
            fixed.setdefault(SUMPOS, []).append(sum_block(R))
        if hh == 2 and R.nq == 1:
            fixed.setdefault(PLPOS, []).extend(poll_early())
            fixed.setdefault(27, []).append(poll_check(['s_sub_u32 s%d, s%d, 2' % (sU2, sNg), 's_lshl_b32 s%d, s%d, 2' % (sU2, sU2)], ['s_cmp_lt_u32 s%d, 2' % sNg]))
        if hh == 3:
            fixed[0] = fixed.get(0, []) + [atomic(['s_cmp_ge_u32 s%d, 2' % sNg, 's_cselect_b32 s%d, s%d, %d' % (sE1, sRS, BIG)])]
            ul = unit_loads(sE1)
            for n in range(8): fixed.setdefault(1 + n, []).extend([atomic([ul[2 * n]]), ul[2 * n + 1]])
            fixed.setdefault(27, []).extend(['s_add_u32 s%d, s%d, 28672' % (sRS, sRS), 's_add_u32 s%d, s%d, 256' % (sRO, sRO)])
    st = Step('O%d' % hh, fr_O(hh, R.nq), pre + loads, fixed)
    if PFUSE and hh == 0: st.wait_stores = True
    st.static = bool(OSTATIC)
    return st

STSPAN = 96
OFIRST = 9
def valu_O(R):
    q = []; b = 96
    for jp in range(4):
        est = b + 4 * (2 * jp + 1) + 3 + 2
        if O32 and R.nq == 2:
            d = QACC + 16 * jp
            dst = [PK + jp * 4, PK + jp * 4 + 1, PK + (4 + jp) * 4, PK + (4 + jp) * 4 + 1, PK + jp * 4 + 2, PK + jp * 4 + 3, PK + (4 + jp) * 4 + 2, PK + (4 + jp) * 4 + 3]
            for j in range(8): q.append(('v_cvt_pk_bf16_f32 v%d, v%d, v%d' % (dst[j], d + 2 * j, d + 2 * j + 1), est, 127))
            for o in swaps([(PK + jp * 4 + k, PK + (4 + jp) * 4 + k) for k in range(4)]): q.append((o, est, 127))
            continue
        for u in range(R.nq):
            p = PK + (u * 4 + jp) * 4
            for t in range(2):
                for j in range(2):
                    r = qa(u, 2 * jp + t) + 2 * j
                    q.append(('v_cvt_pk_bf16_f32 v%d, v%d, v%d' % (p + 2 * t + j, r, r + 1), est, 127))
    return q

def final_stores(P, E, R):
    P.I('s_mov_b32 s%d, %d' % (sO + 2, PART))
    for n in range(4 * R.nq):
        for o in ostore(R, n): E.emit_op(o)

def lane_ids(P):
    P.I('v_mbcnt_lo_u32_b32 v0, -1, 0'); P.I('v_mbcnt_hi_u32_b32 v0, -1, v0')
    P.I('v_and_b32_e32 v3, 15, v0'); P.I('v_lshrrev_b32_e32 v4, 4, v0')

def swz8(P, dst, p):
    P.I('v_add_u32_e32 v5, %d, v4' % (4 * p)); P.I('v_lshlrev_b32_e32 v5, 1, v5')
    P.I('v_xor_b32_e32 v5, v5, v3'); P.I('v_lshlrev_b32_e32 v%d, 4, v5' % dst)

def retag(P, start, old, new):
    for ins in P.ins[start:]:
        if ins.tag == old: ins.tag = new
        if ins.wait and ins.wait[1] == old: ins.wait = (ins.wait[0], new)

def oproj_phase(P, E, R):
    nq = R.nq
    P.I('s_waitcnt vmcnt(0) lgkmcnt(0)')
    P.I('s_barrier')
    lane_ids(P)
    if nq == 2:
        P.I('s_mul_i32 s%d, s%d, %d' % (sW4096, sWAVE, OGA * 4096)); P.I('s_mul_i32 s7, s%d, %d' % (sWAVE, OGA * 20480))
    else:
        P.I('s_mov_b32 s%d, 0' % sW4096); P.I('s_mov_b32 s7, 0')
    P.I('v_mul_u32_u24_e32 v11, 1280, v4')
    for i in range(4):
        swz8(P, 12, i & 1)
        P.I('v_add3_u32 v12, v12, v11, s7'); P.I('v_add_u32_e32 v%d, %d, v12' % (OD + i, i * (5120 - 1024)))
    P.I('s_mov_b32 s%d, s82' % sW); P.I('s_mov_b32 s%d, s83' % (sW + 1))
    P.I('s_mov_b32 s%d, 655360' % (sW + 2)); P.I('s_mov_b32 s%d, 0x20000' % (sW + 3))
    P.I('s_mov_b32 s%d, 0' % sWo)
    for n in range(4):
        P.I('s_add_u32 s%d, s%d, %d' % (sWrK, sW4096, n * OSLOT))
        for o in odma('ld_O%d' % n, 163840 if n != 3 else 256 - 3 * 163840, R): E.emit_op(o)
        if n == OFIRST: P.wait_vm('ld_O0'); P.I('s_barrier')
    P.I('s_mov_b32 s%d, %d' % (sSlot, OSLOT)); P.I('s_mov_b32 s%d, %d' % (sWrap, (-(ONSLOT - 1) * OSLOT) & 0xffffffff))
    E.ring_total = ONSLOT * OSLOT
    va_regs(P, 0)
    P.I('s_lshl_b32 s7, s%d, 11' % sWAVE)
    P.I('v_lshlrev_b32_e32 v11, 4, v0'); P.I('v_add_u32_e32 v%d, s7, v11' % OST)
    P.I('s_mov_b32 s%d, %d' % (sOo, (-4 * 7 * 1024) & 0xffffffff)); P.I('s_mov_b32 s%d, 0' % sNg); P.I('s_mov_b32 s%d, 0' % sRd)
    P.I('s_add_u32 s%d, s%d, %d' % (sWrK, sW4096, 4 * OSLOT))
    P.wait_vm('ld_O0')
    P.I('s_barrier')
    E.addr_regs = list(range(VA, VA + 8))
    osteps = [make_O(hh, R) for hh in range(4)]
    o0 = make_O(0, R)
    n_pre = len(P.ins)
    for i in range(D_BAR): E.issue_reads(osteps[0].fr[i], set())
    first = [(osteps[0].fr[i].tag, osteps[0].fr[i].frag) for i in range(D_BAR)]
    for i in range(D_BAR):
        retag(P, n_pre, first[i][0], '%so0pre%d' % (R.name, i)); osteps[0].fr[i].tag = '%so0pre%d' % (R.name, i)
    n0 = len(P.ins)
    P.label(R.lab('ng'))
    upd = E.run(osteps, o0, D_BAR, set(), valu_O(R))
    for a in sorted(upd): P.I('v_add_u32_e32 v%d, s%d, v%d' % (a, sDelta, a))
    for i in range(D_BAR):
        assert o0.fr[i].frag == first[i][1], (o0.fr[i].frag, first[i][1])
        retag(P, n0, o0.fr[i].tag, '%so0pre%d' % (R.name, i))
    P.I('s_add_u32 s%d, s%d, 1' % (sNg, sNg))
    P.I('s_cmp_lt_u32 s%d, 5' % sNg)
    P.I('s_cbranch_scc1 %s' % R.lab('ng'))
    n1 = len(P.ins)
    final_stores(P, E, R)
    return n0, n1

def va_regs(P, base, dst=None):
    P.I('v_lshrrev_b32_e32 v6, 2, v3'); P.I('v_and_b32_e32 v7, 3, v0')
    P.I('v_lshl_add_u32 v9, v4, 2, v6'); P.I('v_and_b32_e32 v8, 7, v9')
    P.I('v_lshlrev_b32_e32 v9, 8, v9'); P.I('v_lshl_add_u32 v9, v7, 3, v9')
    for t in range(8):
        P.I('v_xor_b32_e32 v11, %d, v8' % t)
        P.I('v_lshl_add_u32 v%d, v11, 5, v9' % (VA + t if dst is None else dst[t]))

sS2 = 88; sSI = 89
def slow_path(P, R):
    S0, S1 = SB
    P.label(R.lab('slow'))
    P.I('s_nop 15'); P.I('s_nop 15')
    T0, T1 = S1 + 22, S1 + 23
    P.I('v_mbcnt_lo_u32_b32 v%d, -1, 0' % T0); P.I('v_mbcnt_hi_u32_b32 v%d, -1, v%d' % (T0, T0))
    P.I('v_and_b32_e32 v%d, 15, v%d' % (T1, T0)); P.I('v_lshrrev_b32_e32 v%d, 4, v%d' % (T0, T0))
    KO, VO, VO2, MX, TM = S1 + 16, S1 + 17, S1 + 18, S1 + 19, S1 + 20
    P.I('v_lshlrev_b32_e32 v%d, 8, v%d' % (KO, T1)); P.I('v_lshl_add_u32 v%d, v%d, 4, v%d' % (KO, T0, KO))
    P.I('v_lshlrev_b32_e32 v%d, 10, v%d' % (VO, T0)); P.I('v_lshl_add_u32 v%d, v%d, 1, v%d' % (VO, T1, VO))
    P.I('v_add_u32_e32 v%d, 0x1000, v%d' % (VO2, VO))
    P.I('s_lshl_b32 s%d, s%d, 17' % (sHb, sHead))
    def s_tile(u, dst):
        for ks in range(4):
            P.I('buffer_load_dwordx4 %s, v%d, s[%d:%d], s%d offen offset:%d' % (vr(S0 + 4 * ks, 4), KO, sK, sK + 3, sS2, ks * 64))
        P.I('s_waitcnt vmcnt(0)')
        for ks in range(4):
            P.I('v_mfma_f32_16x16x32_bf16 %s, %s, %s, %s' % (vr(dst, 4), vr(S0 + 4 * ks, 4), vr(qf(u, ks), 4), '0' if ks == 0 else vr(dst, 4)))
        P.I('s_nop 15')
    for u in range(R.nq):
        P.I('v_mov_b32_e32 v%d, 0xff800000' % MX)
        P.I('s_mov_b32 s%d, 0' % sSI)
        P.label(R.lab('slow_max%d' % u))
        P.I('s_lshl_b32 s%d, s%d, 12' % (sS2, sSI)); P.I('s_add_u32 s%d, s%d, s%d' % (sS2, sS2, sHb))
        s_tile(u, S0 + 16)
        P.I('v_max3_f32 v%d, v%d, v%d, v%d' % (MX, MX, S0 + 16, S0 + 17)); P.I('v_max3_f32 v%d, v%d, v%d, v%d' % (MX, MX, S0 + 18, S0 + 19))
        P.I('s_add_u32 s%d, s%d, 1' % (sSI, sSI)); P.I('s_cmp_lt_u32 s%d, 32' % sSI); P.I('s_cbranch_scc1 %s' % R.lab('slow_max%d' % u))
        lane_reduce(P, MX, TM, 'v_max_f32_e32')
        P.I('v_mov_b32_e32 v%d, 0' % lt(u))
        for r in range(32): P.I('v_mov_b32_e32 v%d, 0' % (oa(u, 0) + r))
        P.I('s_mov_b32 s%d, 0' % sSI)
        P.label(R.lab('slow_pv%d' % u))
        P.I('s_lshl_b32 s%d, s%d, 13' % (sS2, sSI)); P.I('s_add_u32 s%d, s%d, s%d' % (sS2, sS2, sHb))
        s_tile(u, S0 + 16)
        P.I('s_add_u32 s%d, s%d, 4096' % (sS2, sS2))
        s_tile(u, S0 + 20)
        P.I('s_sub_u32 s%d, s%d, 4096' % (sS2, sS2))
        for r in range(8): P.I('v_sub_f32_e32 v%d, v%d, v%d' % (S0 + 16 + r, S0 + 16 + r, MX))
        for r in range(8): P.I('v_exp_f32_e32 v%d, v%d' % (S0 + 16 + r, S0 + 16 + r))
        P.I('s_nop 0')
        for r in range(8): P.I('v_add_f32_e32 v%d, v%d, v%d' % (lt(u), lt(u), S0 + 16 + r))
        for j in range(4): P.I('v_cvt_pk_bf16_f32 v%d, v%d, v%d' % (S0 + 24 + j, S0 + 16 + 2 * j, S0 + 17 + 2 * j))
        for t in range(8):
            for i in range(8):
                P.I('buffer_load_ushort v%d, v%d, s[%d:%d], s%d offen offset:%d' % (S1 + i, VO if i < 4 else VO2, sV, sV + 3, sS2, (i & 3) * 256 + t * 32))
            P.I('s_waitcnt vmcnt(0)')
            for j in range(4): P.I('v_lshl_or_b32 v%d, v%d, 16, v%d' % (S1 + 8 + j, S1 + 2 * j + 1, S1 + 2 * j))
            P.I('s_nop 1')
            P.I('v_mfma_f32_16x16x32_bf16 %s, %s, %s, %s' % (vr(oa(u, t), 4), vr(S1 + 8, 4), vr(S0 + 24, 4), vr(oa(u, t), 4)))
            P.I('s_nop 7')
        P.I('s_add_u32 s%d, s%d, 1' % (sSI, sSI)); P.I('s_cmp_lt_u32 s%d, 16' % sSI); P.I('s_cbranch_scc1 %s' % R.lab('slow_pv%d' % u))
        lane_reduce(P, lt(u), TM, 'v_add_f32_e32')
    for u in range(R.nq):
        for s in range(2):
            for j in range(4): P.I('v_mov_b32_e32 v%d, 0' % (preg(1, u, s) + j))
    P.I('s_nop 15')
    P.I('s_cmp_eq_u32 s%d, 0' % sRet)
    P.I('s_cbranch_scc1 %s' % R.lab('slow_ret0'))
    P.I('s_branch %s' % R.lab('slow_ret1'))

def final_stamps(P):
    stamp(P, 60, True); stamp(P, 61)
    P.I('v_writelane_b32 v%d, s78, 1' % T4); P.I('v_writelane_b32 v%d, s76, 0' % T4)
    P.I('s_lshl_b32 s72, s2, 2'); P.I('s_add_u32 s72, s72, s%d' % sWAVE); P.I('s_lshl_b32 s72, s72, 8')
    P.I('s_add_u32 s72, s72, 0x4000000')
    P.I('s_add_u32 s68, s68, s72'); P.I('s_addc_u32 s69, s69, 0')
    P.I('v_mbcnt_lo_u32_b32 v0, -1, 0'); P.I('v_mbcnt_hi_u32_b32 v0, -1, v0'); P.I('v_lshlrev_b32_e32 v0, 2, v0')
    P.I('global_store_dword v0, v%d, s[68:69]' % T4)
    P.I('s_waitcnt vmcnt(0)')

def role_code(P, R):
    nq = R.nq
    start = len(P.ins)
    P.label(R.lab('start'))
    E = Emitter(P, R)
    if nq == 1:
        for o in dma_Warea(nm('P', 0), 0, sWc, SLOT_C(0)): E.emit_op(o)
    for o in dma_x(0, nq): E.emit_op(o)
    if nq == 1 and TOUCH:
        P.I('v_lshrrev_b32_e32 v5, 1, v0'); P.I('s_mul_i32 s7, s4, 40'); P.I('v_add_u32_e32 v5, s7, v5')
        P.I('v_lshlrev_b32_e32 v5, 13, v5'); P.I('v_and_b32_e32 v11, 1, v0'); P.I('v_lshl_add_u32 v5, v11, 7, v5')
        P.I('v_add_u32_e32 v11, %d, v5' % (32 * 8192))
        P.I('v_cmp_gt_u32_e32 vcc, 16, v0'); P.I('v_mov_b32_e32 v12, 0x40000000'); P.I('v_cndmask_b32_e32 v11, v12, v11, vcc')
        P.I('buffer_load_dword v47, v5, s[%d:%d], 0 offen' % (sW, sW + 3), 'touch')
        P.I('buffer_load_dword v48, v11, s[%d:%d], 0 offen' % (sW, sW + 3), 'touch')
    if STAMP: stamp(P, 3)
    if nq == 1 and CTOUCH:
        P.I('s_getpc_b64 s[96:97]')
        P.label('L_pc_here')
        P.I('s_sub_u32 s96, s96, L_pc_here-L_code_start'); P.I('s_subb_u32 s97, s97, 0')
        P.I('s_lshr_b32 s7, s2, 3'); P.I('s_mul_i32 s7, s7, %d' % (CT_LINES * 128))
        P.I('v_lshlrev_b32_e32 v5, 7, v0'); P.I('v_add_u32_e32 v5, s7, v5')
        P.I('v_min_u32_e32 v5, L_end-L_code_start-4, v5'); P.I('v_and_b32_e32 v5, 0xfffffffc, v5')
        P.I('global_load_dword v42, v5, s[96:97]', 'touch')
    late_setup(P)
    if PFUSE and nq == 1:
        P.I('s_cmp_eq_u32 s6, 0'); P.I('s_cbranch_scc0 L_noinit')
        n0 = len(P.ins)
        P.I('s_lshl_b32 s60, s5, 4'); P.I('s_add_u32 s60, s60, s4')
        P.I('s_lshl_b32 s61, s60, 8'); P.I('s_add_u32 s61, s61, %d' % (FLGOFF + WSOFF))
        P.I('s_add_u32 s96, s68, s61'); P.I('s_addc_u32 s97, s69, 0'); P.I('s_mov_b32 s98, 256'); P.I('s_mov_b32 s99, 0x20000')
        P.I('v_mov_b32_e32 v44, 0'); P.I('v_lshlrev_b32_e32 v45, 2, v0')
        P.I('buffer_store_dword v44, v45, s[96:99], 0 offen sc0 sc1')
        P.I('s_waitcnt vmcnt(0)')
        P.I('s_mov_b32 s96, s90'); P.I('s_mov_b32 s97, s91')
        P.I('s_lshl_b32 s61, s60, 2'); P.I('v_mov_b32_e32 v45, s61'); P.I('v_mov_b32_e32 v44, 1')
        P.I('v_cmp_eq_u32_e32 vcc, 0, v0'); P.I('v_mov_b32_e32 v46, %d' % BIG); P.I('v_cndmask_b32_e32 v45, v46, v45, vcc')
        P.I('buffer_atomic_add v44, v45, s[96:99], 0 offen sc1')
        for i in P.ins[n0:]:
            if i.kind in ('vmem', 'wait'): i.ignore = True
        P.label('L_noinit')
    for ks in range(4):
        P.I('v_add_u32_e32 v5, %d, v4' % (4 * ks)); P.I('v_xor_b32_e32 v5, v5, v3'); P.I('v_lshlrev_b32_e32 v5, 4, v5')
        P.I('v_lshl_add_u32 v%d, v3, 8, v5' % (KA + ks))
    va_regs(P, 0)
    for kq in range(4):
        for e in range(2):
            P.I('v_lshrrev_b32_e32 v5, 1, v4'); P.I('v_add_u32_e32 v5, %d, v5' % (4 * kq + 2 * e))
            P.I('v_xor_b32_e32 v5, v5, v3'); P.I('v_lshlrev_b32_e32 v5, 4, v5')
            P.I('v_lshl_add_u32 v5, v3, 8, v5'); P.I('v_and_b32_e32 v11, 1, v4'); P.I('v_lshl_add_u32 v5, v11, 3, v5')
            P.I('v_add_u32_e32 v%d, s70, v5' % (XR + 2 * kq + e))
            P.I('v_add_u32_e32 v%d, %d, v%d' % (XR2 + 2 * kq + e, 2 * SLOT, XR + 2 * kq + e))
    for j in range(4):
        P.I('v_add_u32_e32 v5, %d, v4' % (4 * j)); P.I('v_xor_b32_e32 v5, v5, v3'); P.I('v_lshlrev_b32_e32 v5, 4, v5')
        P.I('v_lshl_add_u32 v5, v4, 8, v5'); P.I('v_add_u32_e32 v%d, s%d, v5' % (KD + j, sW4096))
    for p in range(2):
        swz8(P, 12, p)
        P.I('v_lshl_add_u32 v12, v4, 8, v12')
        if KVA == 2: P.I('v_mov_b32_e32 v%d, v12' % (VD + p))
        else: P.I('v_add_u32_e32 v%d, s%d, v12' % (VD + p, sW4096))
    for j in range(4): P.I('v_mov_b32_e32 v%d, 0x3f803f80' % (ONES + j))
    if nq == 1 and OTOUCH:
        P.I('s_mul_i32 s7, s4, %d' % (320 * 128)); P.I('v_lshlrev_b32_e32 v40, 7, v0'); P.I('v_add_u32_e32 v40, s7, v40')
        P.I('s_mov_b32 s92, s82'); P.I('s_mov_b32 s93, s83'); P.I('s_mov_b32 s94, 0'); P.I('s_mov_b32 s95, 0x20000')
    for o in read_x(0, nq): E.emit_op(o)
    if STAMP: P.I('s_waitcnt lgkmcnt(0)'); stamp(P, 44)
    P.wait_vm(nm('P', 0))
    P.I('s_barrier')
    if STAMP: P.I('s_waitcnt lgkmcnt(0)'); stamp(P, 2)
    psteps = [make_P(g, R) for g in range(8)]
    gsteps = [make_G(g, R) for g in range(8)]
    for i in range(D_BAR): E.issue_reads(psteps[0].fr[i], set())
    g0 = make_G(0, R)
    n_pre = len(P.ins)
    upd = E.run(psteps, g0, D_BAR, set(), valu_P(psteps, R))
    for i in range(D_BAR):
        gsteps[0].fr[i].frag = g0.fr[i].frag; gsteps[0].fr[i].tag = '%sg0pre%d' % (R.name, i)
        retag(P, n_pre, g0.fr[i].tag, '%sg0pre%d' % (R.name, i))
    if STAMP: P.I('s_waitcnt lgkmcnt(0)'); stamp(P, 56, True); stamp(P, 57)
    pro_end = len(P.ins)
    P.label(R.lab('head'))
    vq = valu_G(gsteps, R)
    g6 = make_G(6, R)
    upd6, vp = E.run(gsteps[:6], g6, D_BAR, set(upd), vq, allow_left=True)
    off6 = sum(len(s_.fr) for s_ in gsteps[:6])
    lsteps = [make_GL(6, R), make_GL(7, R)]
    for i in range(D_BAR):
        retag(P, pro_end, g6.fr[i].tag, '%sg6pre%d' % (R.name, i))
        for st_ in (gsteps[6], lsteps[0]):
            st_.fr[i].frag = g6.fr[i].frag; st_.fr[i].tag = '%sg6pre%d' % (R.name, i)
    fr6 = E.fr
    P.I('s_cmp_eq_u32 s%d, 3' % sHead)
    P.I('s_cbranch_scc1 %s' % R.lab('last'))
    p1_end = len(P.ins)
    g0n = make_G(0, R)
    upd2 = E.run(gsteps[6:], g0n, D_BAR, set(upd6), shift_q(vq[vp:], off6))
    assert upd2 == upd, (upd2, upd)
    for i in range(D_BAR):
        assert g0n.fr[i].frag == g0.fr[i].frag, (g0n.fr[i].frag, g0.fr[i].frag)
        retag(P, p1_end, g0n.fr[i].tag, '%sg0pre%d' % (R.name, i))
    P.I('s_add_u32 s%d, s%d, 1' % (sHead, sHead))
    P.I('s_branch %s' % R.lab('head'))
    p2_end = len(P.ins)
    P.label(R.lab('last'))
    E.fr = fr6
    vql = valu_G(gsteps[:6] + lsteps, R, last=True)
    for a_, b_ in zip(vq[:vp], vql[:vp]): assert a_[0] == b_[0] or callable(a_[0]), (a_[0], b_[0])
    osteps = [make_O(hh, R) for hh in range(4)]
    o0 = make_O(0, R); o0.ring_total = ONSLOT * OSLOT
    updo = E.run(lsteps, o0, D_BAR, set(upd6), shift_q(vql[vp:], off6))
    for a in sorted(updo): P.I('v_add_u32_e32 v%d, s%d, v%d' % (a, sDelta, a))
    for i in range(D_BAR):
        retag(P, p2_end, o0.fr[i].tag, '%so0pre%d' % (R.name, i))
        osteps[0].fr[i].frag = o0.fr[i].frag; osteps[0].fr[i].tag = '%so0pre%d' % (R.name, i)
    if STAMP: P.I('s_waitcnt lgkmcnt(0)'); stamp(P, 58, True); stamp(P, 59)
    if PFUSE: red_setup(P, R)
    body_end = len(P.ins)
    on0 = len(P.ins)
    P.label(R.lab('ng'))
    o0n = make_O(0, R)
    bsave = R.budget
    if O32 and nq == 2: R.budget = 24
    updn = E.run(osteps, o0n, D_BAR, set(), valu_O(R))
    R.budget = bsave
    for a in sorted(updn): P.I('v_add_u32_e32 v%d, s%d, v%d' % (a, sDelta, a))
    for i in range(D_BAR):
        assert o0n.fr[i].frag == o0.fr[i].frag, (o0n.fr[i].frag, o0.fr[i].frag)
        retag(P, on0, o0n.fr[i].tag, '%so0pre%d' % (R.name, i))
    P.I('s_add_u32 s%d, s%d, 1' % (sNg, sNg))
    P.I('s_cmp_lt_u32 s%d, 5' % sNg)
    P.I('s_cbranch_scc1 %s' % R.lab('ng'))
    on1 = len(P.ins)
    final_stores(P, E, R)
    P.I('s_waitcnt lgkmcnt(0)' if PFUSE else 's_waitcnt vmcnt(0) lgkmcnt(0)')
    if FUSE or PFUSE:
        if STAMP: stamp(P, 62, True)
        P.I('s_branch L_red')
    else:
        if STAMP: final_stamps(P)
        P.I('s_endpgm')
    slow_path(P, R)
    end = len(P.ins)
    I = P.ins
    marks = [I[start], I[pro_end], I[p1_end], I[p2_end], I[on0], I[on1]]
    return dict(marks=marks)

def dyn_seq(parts):
    pro, p1, p2, lastp, ng = parts
    return pro + (p1 + p2) * 2 + p1 + lastp + ng * 3

BALANCE = 1
def split_parts(P, info):
    pos = [next(k for k, i in enumerate(P.ins) if i is m) for m in info['marks']]
    return pos, [P.ins[pos[n]:pos[n + 1]] for n in range(5)]

def rebalance(P, info):
    pos, parts = split_parts(P, info)
    firsts = [P.ins[p] for p in pos]
    out = []
    for n_, seg in enumerate(parts):
        has32 = any(i.kind == 'mfma' and i.passes == 8 for i in seg)
        seg2, moved = balance_gaps(seg, free=24 if (has32 and n_ == 4) else 8)
        out.append(seg2)
    P.ins[pos[0]:pos[5]] = sum(out, [])
    n = pos[0]; marks = []
    for seg in out:
        marks.append(P.ins[n]); n += len(seg)
    marks.append(P.ins[n])
    info['marks'] = marks


FUSE = 0
SPIN = 400000
RLPOL = 'sc1'; RSPOL = ''
def fused_tail(P):
    P.label('L_red')
    P.I('s_load_dwordx2 s[96:97], s[0:1], 80')
    P.I('s_load_dwordx2 s[90:91], s[0:1], 88')
    P.I('s_lshl_b32 s52, s5, 4'); P.I('s_add_u32 s52, s52, s4')
    P.I('s_lshl_b32 s53, s52, 2')
    P.I('v_mbcnt_lo_u32_b32 v0, -1, 0'); P.I('v_mbcnt_hi_u32_b32 v0, -1, v0')
    P.I('v_mov_b32_e32 v1, s53'); P.I('v_mov_b32_e32 v2, 1')
    P.I('s_barrier')
    P.I('s_waitcnt lgkmcnt(0)')
    P.I('s_cmp_eq_u32 s%d, 0' % sWAVE)
    P.I('s_cbranch_scc0 L_red_wait')
    P.I('s_mov_b64 s[54:55], exec')
    P.I('s_mov_b64 exec, 1')
    P.I('global_atomic_add v1, v2, s[90:91] sc1')
    P.I('s_mov_b32 s56, 0')
    P.label('L_red_poll')
    P.I('global_load_dword v3, v1, s[90:91] sc1')
    P.I('s_waitcnt vmcnt(0)')
    P.I('v_readfirstlane_b32 s57, v3')
    P.I('s_add_u32 s56, s56, 1')
    P.I('s_cmp_ge_u32 s57, 8')
    P.I('s_cbranch_scc1 L_red_go')
    P.I('s_cmp_lt_u32 s56, %d' % SPIN)
    P.I('s_cbranch_scc0 L_red_go')
    P.I('s_sleep 2')
    P.I('s_branch L_red_poll')
    P.label('L_red_go')
    P.I('s_mov_b64 exec, s[54:55]')
    P.label('L_red_wait')
    P.I('s_barrier')
    P.I('s_mul_i32 s58, s52, %d' % (8 * PART))
    if WSOFF: P.I('s_add_u32 s58, s58, %d' % WSOFF)
    P.I('s_add_u32 s8, s68, s58'); P.I('s_addc_u32 s9, s69, 0')
    P.I('s_mov_b32 s10, %d' % (8 * PART)); P.I('s_mov_b32 s11, 0x20000')
    P.I('s_mov_b32 s12, s96'); P.I('s_mov_b32 s13, s97'); P.I('s_mov_b32 s14, %d' % (16 * 112 * 2560)); P.I('s_mov_b32 s15, 0x20000')
    P.I('v_lshlrev_b32_e32 v2, 4, v0')
    P.I('v_and_b32_e32 v3, 15, v0'); P.I('v_lshrrev_b32_e32 v4, 4, v0')
    P.I('v_mul_u32_u24_e32 v5, 2560, v3'); P.I('v_lshl_add_u32 v5, v4, 4, v5')
    P.I('s_lshl_b32 s59, s6, 2'); P.I('s_add_u32 s59, s59, s%d' % sWAVE)
    P.I('s_mul_i32 s60, s4, %d' % (112 * 2560)); P.I('s_mul_i32 s61, s5, 1280'); P.I('s_add_u32 s60, s60, s61')
    for k in range(3):
        P.I('s_add_u32 s61, s59, %d' % (32 * k))
        P.I('s_mul_i32 s62, s61, 37'); P.I('s_lshr_b32 s62, s62, 8')
        P.I('s_mul_i32 s63, s62, 7'); P.I('s_sub_u32 s63, s61, s63')
        P.I('s_mul_i32 s64, s62, 14'); P.I('s_add_u32 s64, s64, s63'); P.I('s_lshl_b32 s64, s64, 10')
        P.I('s_lshl_b32 s65, s62, 7'); P.I('s_mul_i32 s66, s63, %d' % (16 * 2560)); P.I('s_add_u32 s65, s65, s66'); P.I('s_add_u32 s65, s65, s60')
        P.I('s_cmp_lt_u32 s61, 70')
        P.I('s_cselect_b32 s64, s64, 0x40000000'); P.I('s_cselect_b32 s%d, s65, 0x40000000' % (98 + k))
        for half in range(2):
            for hg in range(8):
                r = 16 + ((k * 2 + half) * 8 + hg) * 4
                P.I('s_add_u32 s66, s64, %d' % (hg * PART + half * 7168))
                P.I('buffer_load_dwordx4 v[%d:%d], v2, s[8:11], s66 offen %s' % (r, r + 3, RLPOL), 'rl%d_%d_%d' % (k, half, hg))
    for k in range(3):
        for half in range(2):
            acc = 208 + half * 8
            for hg in range(8):
                P.wait_vm('rl%d_%d_%d' % (k, half, hg))
                r = 16 + ((k * 2 + half) * 8 + hg) * 4
                for j in range(4):
                    if hg == 0:
                        P.I('v_lshlrev_b32_e32 v%d, 16, v%d' % (acc + 2 * j, r + j))
                        P.I('v_and_b32_e32 v%d, 0xffff0000, v%d' % (acc + 2 * j + 1, r + j))
                    else:
                        P.I('v_lshlrev_b32_e32 v7, 16, v%d' % (r + j))
                        P.I('v_and_b32_e32 v8, 0xffff0000, v%d' % (r + j))
                        P.I('v_add_f32_e32 v%d, v%d, v7' % (acc + 2 * j, acc + 2 * j))
                        P.I('v_add_f32_e32 v%d, v%d, v8' % (acc + 2 * j + 1, acc + 2 * j + 1))
            o = 224 + ((k * 2 + half) & 1) * 4
            for j in range(4): P.I('v_cvt_pk_bf16_f32 v%d, v%d, v%d' % (o + j, acc + 2 * j, acc + 2 * j + 1))
            for op in ('v_permlane32_swap_b32_e32', 'v_permlane16_swap_b32_e32'):
                P.I('%s v%d, v%d' % (op, o, o + 2)); P.I('%s v%d, v%d' % (op, o + 1, o + 3))
            P.I('buffer_store_dwordx4 v[%d:%d], v5, s[12:15], s%d offen offset:%d %s' % (o, o + 3, 98 + k, half * 64, RSPOL), 'rst')
    P.I('s_waitcnt vmcnt(0)')

def late_setup(P):
    P.I('s_lshl_b32 s7, s4, 5'); P.I('s_add_u32 s7, s7, s86'); P.I('s_lshl_b32 s71, s7, 17')
    P.I('s_add_u32 s%d, s54, s71' % sK); P.I('s_addc_u32 s%d, s55, 0' % (sK + 1))
    P.I('s_mov_b32 s%d, 524288' % (sK + 2)); P.I('s_mov_b32 s%d, 0x20000' % (sK + 3))
    P.I('s_add_u32 s%d, s56, s71' % sV); P.I('s_addc_u32 s%d, s57, 0' % (sV + 1))
    P.I('s_mov_b32 s%d, 524288' % (sV + 2)); P.I('s_mov_b32 s%d, 0x20000' % (sV + 3))
    P.I('s_mul_i32 s71, s86, 163840')
    P.I('s_add_u32 s82, s82, s71'); P.I('s_addc_u32 s83, s83, 0')
    P.I('s_lshl_b32 s71, s5, 4'); P.I('s_add_u32 s71, s71, s4'); P.I('s_lshl_b32 s71, s71, 3'); P.I('s_add_u32 s71, s71, s6')
    P.I('s_mul_i32 s71, s71, %d' % PART)
    if WSOFF: P.I('s_add_u32 s71, s71, %d' % WSOFF)
    P.I('s_add_u32 s%d, s68, s71' % sO); P.I('s_addc_u32 s%d, s69, 0' % (sO + 1))
    P.I('s_mov_b32 s%d, %d' % (sO + 2, PART)); P.I('s_mov_b32 s%d, 0x20000' % (sO + 3))
    if KVA >= 1: P.I('s_lshl_b32 s%d, s%d, 12' % (sW4096, sWAVE))
    else: P.I('s_mov_b32 s%d, 0' % sW4096)
    P.I('s_mov_b32 s%d, %d' % (sSlot, SLOT)); P.I('s_mov_b32 s%d, %d' % (sWrap, (-2 * SLOT) & 0xffffffff))
    P.I('s_mov_b32 s%d, 0x%x' % (sC, QSCALE))
    P.I('s_mov_b32 s%d, 0' % sHead); P.I('s_mov_b32 s%d, 0' % sRd)
    P.I('s_mov_b32 s%d, %d' % (sKo, 3 * 16384)); P.I('s_mov_b32 s%d, %d' % (sVo, 2 * 16384))

def gen_k16(name='attn_kernel'):
    P = Prog()
    P.label('L_code_start')
    P.I('s_cmp_ge_u32 s2, 256')
    P.I('s_cbranch_scc1 L_end')
    P.I('s_load_dwordx8 s[52:59], s[0:1], 0')
    P.I('s_load_dwordx8 s[60:67], s[0:1], 40')
    P.I('s_load_dwordx2 s[68:69], s[0:1], 96')
    P.I('s_load_dwordx2 s[82:83], s[0:1], 32')
    P.I('s_load_dwordx2 s[84:85], s[0:1], 72')
    if PFUSE:
        P.I('s_load_dwordx2 s[100:101], s[0:1], 80')
        P.I('s_load_dwordx2 s[90:91], s[0:1], 88')
    if STAMP:
        P.I('s_memtime s[76:77]'); P.I('s_memrealtime s[78:79]'); P.I('s_mov_b32 s74, 4')
    P.I('v_lshrrev_b32_e32 v1, 6, v0')
    P.I('v_and_b32_e32 v0, 63, v0')
    P.I('s_and_b32 s3, s2, 7')
    P.I('v_readfirstlane_b32 s%d, v1' % sWAVE)
    P.I('s_lshr_b32 s4, s2, 3'); P.I('s_lshr_b32 s5, s3, 2')
    P.I('s_and_b32 s6, s3, 3'); P.I('s_lshl_b32 s6, s6, 1'); P.I('s_and_b32 s7, s4, 1'); P.I('s_add_u32 s6, s6, s7')
    P.I('s_lshr_b32 s4, s4, 1')
    P.I('v_and_b32_e32 v3, 15, v0'); P.I('v_lshrrev_b32_e32 v4, 4, v0')
    P.I('s_lshl_b32 s70, s%d, 13' % sWAVE)
    P.I('s_mul_i32 s71, s%d, %d' % (sWAVE, 32 * 1280))
    P.I('v_mul_u32_u24_e32 v11, 1280, v4')
    for jj in range(4):
        P.I('v_add_u32_e32 v5, %d, v4' % (4 * jj)); P.I('v_xor_b32_e32 v5, v5, v3'); P.I('v_lshlrev_b32_e32 v5, 4, v5')
        P.I('v_add3_u32 v%d, v5, v11, s71' % (XV + jj))
    for i in range(4):
        swz8(P, 12, i & 1)
        P.I('v_lshl_add_u32 v12, v4, 13, v12'); P.I('v_add_u32_e32 v%d, %d, v12' % (WD + i, i * (32768 - 1024)))
    P.I('s_waitcnt lgkmcnt(0)')
    P.I('s_cmp_eq_u32 s5, 0')
    for i in range(8): P.I('s_cselect_b32 s%d, s%d, s%d' % (52 + i, 52 + i, 60 + i))
    P.I('s_cselect_b32 s82, s82, s84'); P.I('s_cselect_b32 s83, s83, s85')
    P.I('s_mul_i32 s7, s4, 143360')
    P.I('s_add_u32 s%d, s52, s7' % sX); P.I('s_addc_u32 s%d, s53, 0' % (sX + 1))
    P.I('s_mov_b32 s%d, 143360' % (sX + 2)); P.I('s_mov_b32 s%d, 0x20000' % (sX + 3))
    P.I('s_lshl_b32 s86, s6, 2')
    P.I('s_lshl_b32 s71, s86, 8')
    P.I('s_add_u32 s%d, s58, s71' % sW); P.I('s_addc_u32 s%d, s59, 0' % (sW + 1))
    P.I('s_sub_u32 s%d, 5242880, s71' % (sW + 2)); P.I('s_mov_b32 s%d, 0x20000' % (sW + 3))
    P.I('s_mov_b32 s%d, 0' % sWc); P.I('s_mov_b32 s%d, 256' % sWn)
    P.I('s_cmp_eq_u32 s%d, 3' % sWAVE)
    P.I('s_cbranch_scc0 L_A_start')
    P.I('s_branch L_B_start')
    head = list(P.ins)
    RA, RB = Role('A', 2), Role('B', 1)
    a = role_code(P, RA)
    b = role_code(P, RB)
    if BALANCE:
        for info in (a, b): rebalance(P, info)
    red0 = len(P.ins)
    if FUSE or PFUSE:
        if PFUSE: pfuse_tail(P)
        else: fused_tail(P)
        if STAMP: final_stamps(P)
        P.I('s_endpgm')
    red_ins = P.ins[red0:]
    P.label('L_end')
    P.I('s_endpgm')
    for info in (a, b):
        pos, parts = split_parts(P, info)
        info['tail'] = P.ins[pos[5]:pos[5] + 40]
        resolve_waits(head + dyn_seq(parts))
    if FUSE: resolve_waits(red_ins)
    if PFUSE: resolve_waits(red_ins)
    drop_optional(P)
    P.pad()
    bad = 0
    def at(lab): return [k for k, i in enumerate(P.ins) if i.label == lab][0]
    for R in (RA, RB):
        h, l, n_ = at(R.lab('head')), at(R.lab('last')), at(R.lab('ng'))
        br_last = [k for k, i in enumerate(P.ins) if i.op == 's_cbranch_scc1' and i.text.endswith(R.lab('last'))][0]
        br_ng = [k for k, i in enumerate(P.ins) if i.op == 's_cbranch_scc1' and i.text.endswith(R.lab('ng'))][0]
        I = P.ins
        bad += check_hazards(I[h - 60:l], name)
        bad += check_hazards(I[l - 60:l] + I[h:h + 80], name)
        bad += check_hazards(I[br_last - 60:br_last + 1] + I[l:br_ng + 1], name)
        bad += check_hazards(I[br_ng - 60:br_ng + 1] + I[n_:n_ + 80], name)
    if FUSE or PFUSE: bad += check_hazards(P.ins[at('L_red'):], name)
    assert bad == 0
    return P

if __name__ == '__main__':
    print(gen_k16().text())
```

```python
from asmlib import *
import struct, math

SLOT = 53248
KOFF, VOFF, WOFF = 0, 16384, 32768
XBASE = 3 * SLOT
NSLOT = 3
LDS_BYTES = 163840
PART = 143360

QACC = 0; OACC = 64; SB = (128, 160); Q = 192
KA = 224; VA = 228; KD = 236; VD = 240; ONES = 242; LS = 246
T2 = 254; T4 = 255
WD = 32
OST = KA; OD = KD
def lt(u): return LS + 4 * u
XR = 128; XR2 = 136; XV = 144
XA = 0; POOL = 160; NPOOL = 8
STASH = [192, 224, 0, 32]
sK = 8; sV = 12; sW = 16; sO = 20; sX = 24
sWAVE = 28; sKo = 29; sVo = 30; sWc = 31; sRd = 32; sDelta = 33; sWrK = 34; sHead = 35
sT = 36; sT2 = 37; sW4096 = 38; sXc = 39; sOo = 40; sC = 41; sSlot = 42; sWrap = 43
sRet = 87; sM = 44; sHb = 48; sI = 49; sWr = 50; sNg = 51; sWn = 46; sWo = 47
QSCALE = struct.unpack('<I', struct.pack('<f', math.log2(math.e) / math.sqrt(128.0)))[0]

STAMP = False
EXP = {}
D_AHEAD = 6
D_BAR = 3
WAITW = 4
SPLITR = 0; LEAD = 0
CAP1 = 8; CAP2 = 24; LATE = 16
BUDGET_A = 12
BUDGET_B = 26
KVPOL = 'nt'; WPOL = ''; XPOL = ''; OPOL = ''; PSTPOL = 'sc0 sc1'
ODMA_A = 6
WSOFF = 0

def vr(b, n): return 'v[%d:%d]' % (b, b + n - 1)
def ar(b, n): return 'a[%d:%d]' % (b, b + n - 1)
def qa(u, t): return QACC + (u * 8 + t) * 4
def oa(u, t): return OACC + (u * 8 + t) * 4
def sreg(buf, u, kt): return SB[buf] + (u * 2 + (kt >> 1)) * 8 + (kt & 1) * 4
def preg(buf, u, s): return SB[buf] + (u * 2 + s) * 8
def qf(u, ks): return Q + (u * 4 + ks) * 4
def xf(kk, u): return XA + (kk * 2 + u) * 4

class F:
    def __init__(self, reads, mfmas):
        self.reads = reads
        self.mfmas = mfmas

def tr(e, addr, imm): return ('ds_read_b64_tr_b16', 2 * e, 2, addr, imm)

def fr_S(buf, nq):
    out = []
    for kt in range(4):
        for ks in range(4):
            out.append(F([('ds_read_b128', 0, 4, KA + ks, KOFF + kt * 4096)],
                         [(vr(sreg(buf, u, kt), 4), vr(qf(u, ks), 4), ks == 0) for u in range(nq)]))
    return out

def q_ksteps(g):
    a = g >> 1
    if g % 2 == 0: return [(5 * a, 0, 1), (5 * a + 1, 2, 3)]
    return [(5 * a + 2, 'X', 0), (5 * a + 3, 1, 2), (5 * a + 4, 3, 4)]

def fr_Q(g, nq, tmajor=False):
    ks = q_ksteps(g)
    order = [(k, t) for t in range(8) for k in ks] if tmajor else [(k, t) for k in ks for t in range(8)]
    out = []
    for ((kk, b0, b1), t) in order:
        reads = []
        for e, b in enumerate((b0, b1)):
            if b == 'X': reads.append(tr(e, ('X', VA + t), 0))
            else: reads.append(tr(e, VA + t, WOFF + b * 4096))
        out.append(F(reads, [(vr(qa(u, t), 4), ar(xf(kk, u), 4), kk == 0) for u in range(nq)]))
    return out

def fr_PV(g, nq, tmajor=False):
    buf = g & 1
    order = [(s, t) for t in range(8) for s in range(2)] if tmajor else [(s, t) for s in range(2) for t in range(8)]
    return [F([tr(e, VA + t, VOFF + (2 * s + e) * 4096) for e in range(2)],
              [(vr(oa(u, t), 4), vr(preg(buf, u, s), 4), g == 0 and s == 0) for u in range(nq)]) for (s, t) in order]

VA2 = [225, 226, 227, 240, 241, 242, 243, 244]
OSTATIC = 1
O32 = 1
BVA = list(range(50, 58))
def fr_O(hh, nq):
    slot = (hh + 1) & 3
    hi = OSTATIC and slot >= 2
    off = (slot & 1) * 32768 if OSTATIC else 0
    if O32 and nq == 2:
        order = [(ks, nt) for nt in range(4) for ks in range(8)] if hh in (0, 3) else [(ks, nt) for ks in range(8) for nt in range(4)]
        out = []
        for (ks, nt) in order:
            f = F([tr(e, VA2[4 + nt] if hi else VA2[nt], off + (16 * ks + 8 * e) * 256) for e in range(2)],
                  [(vr(QACC + 16 * nt, 16), ar(STASH[hh] + 4 * ks, 4), hh == 0 and ks == 0)])
            f.shape = 32; out.append(f)
        return out
    order = [(s, t) for t in range(8) for s in range(4)] if hh in (0, 3) else [(s, t) for s in range(4) for t in range(8)]
    lo = BVA if O32 else list(range(VA, VA + 8))
    return [F([tr(e, VA2[t] if hi else lo[t], off + (2 * s + e) * 4096) for e in range(2)],
              [(vr(qa(u, t), 4), ar(STASH[hh] + (u * 4 + s) * 4, 4), hh == 0 and s == 0) for u in range(nq)]) for (s, t) in order]

SUMV = 0
def softmax_chunk(buf, u, s, first):
    b = preg(buf, u, s); first_u = first
    e = ['v_exp_f32_e32 v%d, v%d' % (b + i, b + i) for i in range(8)]
    c = ['v_cvt_pk_bf16_f32 v%d, v%d, v%d' % (b + j, b + 2 * j, b + 2 * j + 1) for j in range(4)]
    if SUMV:
        a = ['v_add_f32_e32 v%d, v%d, v%d' % (lt(u) + (i & 1), b + i, lt(u) + (i & 1)) for i in range(8)]
        if first_u: a[0] = 'v_mov_b32_e32 v%d, v%d' % (lt(u), b); a[1] = 'v_mov_b32_e32 v%d, v%d' % (lt(u) + 1, b + 1)
        seq = [e[0], e[1]]
        for i in range(2, 8): seq += [e[i], a[i - 2]]
        return seq + [a[6], a[7]] + c, None
    m = 'v_mfma_f32_16x16x32_bf16 %s, %s, %s, %s' % (vr(lt(u), 4), vr(ONES, 4), vr(b, 4), '0' if first else vr(lt(u), 4))
    return e[:4] + [c[0]] + e[4:6] + [c[1]] + e[6:] + [c[2], c[3]], m

def swaps(pairs):
    return ['v_permlane32_swap_b32_e32 v%d, v%d' % p for p in pairs] + ['v_permlane16_swap_b32_e32 v%d, v%d' % p for p in pairs]

def qconv(ks, nq):
    ops = []
    for u in range(nq):
        for t in (2 * ks, 2 * ks + 1):
            for r in range(4): ops.append('v_mul_f32_e32 v%d, s%d, v%d' % (qa(u, t) + r, sC, qa(u, t) + r))
    for u in range(nq):
        for t in range(2):
            for j in range(2):
                r = qa(u, 2 * ks + t) + 2 * j
                ops.append('v_cvt_pk_bf16_f32 v%d, v%d, v%d' % (qf(u, ks) + 2 * t + j, r, r + 1))
    ops += swaps([(qf(u, ks) + j, qf(u, ks) + 2 + j) for u in range(nq) for j in range(2)])
    return ops

def ofin(s, nq):
    ops = []
    for u in range(nq):
        b = oa(u, 2 * s)
        for r in range(8): ops.append('v_mul_f32_e32 v%d, v%d, v%d' % (b + r, lt(u), b + r))
        for j in range(4): ops.append('v_cvt_pk_bf16_f32 v%d, v%d, v%d' % (b + j, b + 2 * j, b + 2 * j + 1))
    if O32 and nq == 2:
        pairs = [(oa(0, 2 * s) + j, oa(1, 2 * s) + j) for j in range(4)]
        ops += ['v_permlane16_swap_b32_e32 v%d, v%d' % p for p in pairs] + ['v_permlane32_swap_b32_e32 v%d, v%d' % p for p in pairs]
    return ops

def stash_moves(h, nq):
    ops = []
    if O32 and nq == 2:
        for t in range(8):
            srcs = [oa(0, 2 * (t >> 1)) + 2 * (t & 1), oa(0, 2 * (t >> 1)) + 2 * (t & 1) + 1, oa(1, 2 * (t >> 1)) + 2 * (t & 1), oa(1, 2 * (t >> 1)) + 2 * (t & 1) + 1]
            for j in range(4): ops.append('v_accvgpr_write_b32 a%d, v%d' % (STASH[h] + 4 * t + j, srcs[j]))
        return ops
    for u in range(nq):
        for s in range(4):
            for j in range(4): ops.append('v_accvgpr_write_b32 a%d, v%d' % (STASH[h] + (u * 4 + s) * 4 + j, oa(u, 2 * s) + j))
    return ops

class Role:
    def __init__(self, name, nq):
        self.name = name; self.nq = nq
        self.budget = BUDGET_A if nq == 2 else BUDGET_B
    def lab(self, s): return 'L_%s_%s' % (self.name, s)

def mk_stash(R):
    def f(P):
        for h in range(2):
            P.I('s_cmp_eq_u32 s%d, %d' % (sHead, h)); P.I('s_cbranch_scc1 %s' % R.lab('st%d' % h))
        for h in (2, 0, 1):
            if h != 2: P.label(R.lab('st%d' % h))
            for o in stash_moves(h, R.nq): P.I(o)
            if h != 1: P.I('s_branch %s' % R.lab('st_done'))
        P.label(R.lab('st_done'))
    return f

def lane_reduce(P, reg, tmp, op):
    P.I('v_mov_b32_e32 v%d, v%d' % (tmp, reg))
    P.I('v_permlane32_swap_b32_e32 v%d, v%d' % (reg, tmp))
    P.I('%s v%d, v%d, v%d' % (op, reg, reg, tmp))
    P.I('v_mov_b32_e32 v%d, v%d' % (tmp, reg))
    P.I('v_permlane16_swap_b32_e32 v%d, v%d' % (reg, tmp))
    P.I('%s v%d, v%d, v%d' % (op, reg, reg, tmp))

def mk_check(R, site=0):
    def f(P):
        if SUMV:
            for u in range(R.nq): P.I('v_add_f32_e32 v%d, v%d, v%d' % (lt(u), lt(u), lt(u) + 1))
            for u in range(R.nq): lane_reduce(P, lt(u), lt(u) + 2, 'v_add_f32_e32')
        P.I('s_mov_b64 s[%d:%d], -1' % (sM, sM + 1))
        for u in range(R.nq):
            P.I('v_cmp_le_f32_e32 vcc, 0x33800000, v%d' % lt(u))
            P.I('s_and_b64 s[%d:%d], s[%d:%d], vcc' % (sM, sM + 1, sM, sM + 1))
            P.I('v_cmp_ge_f32_e32 vcc, 0x4b800000, v%d' % lt(u))
            P.I('s_and_b64 s[%d:%d], s[%d:%d], vcc' % (sM, sM + 1, sM, sM + 1))
        P.I('s_cmp_eq_u64 s[%d:%d], -1' % (sM, sM + 1))
        if not (EXP.get('nohook') or EXP.get('dropm') or EXP.get('nosm') or EXP.get('nokv') or EXP.get('nord')):
            P.I('s_cbranch_scc1 %s' % R.lab('fast_ok%d' % site))
            P.I('s_mov_b32 s%d, %d' % (sRet, site))
            P.I('s_branch %s' % R.lab('slow'))
        P.label(R.lab('slow_ret%d' % site))
        P.label(R.lab('fast_ok%d' % site))
        for u in range(R.nq): P.I('v_rcp_f32_e32 v%d, v%d' % (lt(u), lt(u)))
    return f

def dma(v, srd, soff, imm, pol, tag):
    return ('buffer_load_dwordx4 v%d, s[%d:%d], s%d offen offset:%d %s lds' % (v, srd, srd + 3, soff, imm, pol), tag)

OTOUCH = 1; OTPOL = ''
CTOUCH = 1; CT_LINES = 24
TOUCH = 1
KVA = 1
def kv_groups(R, kind='K'):
    if KVA == 1 or (KVA == 2 and kind == 'K'): return [0]
    if R.nq == 2: return []
    return [0, 1, 2, 3] if KVA == 0 else [-3, -2, -1, 0]

def dma_K(tag, R, wr=sWrK, soff=sKo, adv=True):
    ops = []
    for G in kv_groups(R, 'K'):
        ops.append('s_add_u32 m0, s%d, %d' % (wr, (G * 4096) & 0xffffffff))
        if G: ops.append('s_add_u32 s%d, s%d, %d' % (sT2, soff, (G * 4096) & 0xffffffff))
        ops += [dma(KD + j, sK, sT2 if G else soff, j * 1024, KVPOL, tag) for j in range(4)]
    if adv and ops: ops.append('s_add_u32 s%d, s%d, 16384' % (sKo, sKo))
    return ops

def dma_V(tag, R, wr=sWrK, soff=sVo, adv=True):
    ops = []
    for G in kv_groups(R, 'V'):
        ops.append('s_add_u32 m0, s%d, %d' % (wr, VOFF + G * 4096))
        Gs = G + 3 if KVA == 2 else G
        if Gs: ops.append('s_add_u32 s%d, s%d, %d' % (sT2, soff, Gs * 4096))
        ops += [dma(VD + (j & 1), sV, sT2 if Gs else soff, j * 1024, KVPOL, tag) for j in range(4)]
    if adv and ops: ops.append('s_add_u32 s%d, s%d, 16384' % (sVo, sVo))
    return ops

def dma_Wrows(tag, row0, nrows, hreg, dest):
    ops = []
    for G in range(nrows // 16):
        if isinstance(dest, tuple) and len(dest) > 2:
            ops.append(atomic(['s_add_u32 s%d, s%d, %d' % (sT, dest[1], WOFF + G * 4096), 's_cmp_eq_u32 s%d, 3' % sHead, 's_cselect_b32 m0, %d, s%d' % (XBASE, sT)]))
        elif isinstance(dest, tuple): ops.append('s_add_u32 m0, s%d, %d' % (dest[1], WOFF + G * 4096))
        else: ops.append('s_mov_b32 m0, %d' % (dest + G * 4096))
        ops.append('s_add_u32 s%d, s%d, %d' % (sT2, hreg, (row0 + 16 * G) * 8192))
        for i in range(4): ops.append(dma(WD + i, sW, sT2, i * 1024, WPOL, tag))
    return ops

def dma_Warea(tag, g, hreg, dest):
    a = g >> 1
    if g % 2 == 0: return dma_Wrows(tag, 160 * a, 64, hreg, dest)
    return dma_Wrows(tag, 160 * a + 80, 80, hreg, dest)
def dma_WX(tag, g, hreg):
    return dma_Wrows(tag, 160 * (g >> 1) + 64, 16, hreg, XBASE)

X_SLOT = [0, 1, 2, 0, 2]
def dma_x(kt, nq):
    ops = []
    for j in range(4 * nq):
        ops.append('s_add_u32 m0, s70, %d' % (X_SLOT[kt] * SLOT + j * 1024))
        ops.append('s_mov_b32 s7, %d' % (j * 5120 + kt * 256))
        ops.append(('buffer_load_dwordx4 v%d, s[%d:%d], s7 offen %s lds' % (XV + (j & 3), sX, sX + 3, XPOL), 'x%d' % kt))
    return ops

def read_x(kt, nq):
    ops = [('WAITVM', 'x%d' % kt)]
    for kq in range(4):
        for u in range(nq):
            for e in range(2):
                if X_SLOT[kt] == 2: a, off = XR2 + 2 * kq + e, 0
                else: a, off = XR + 2 * kq + e, X_SLOT[kt] * SLOT
                d = xf(4 * kt + kq, u) + 2 * e
                ops.append(('ds_read_b64 %s, v%d offset:%d' % (ar(d, 2), a, off + u * 4096), 'xr%d' % kt))
    return ops

def fixed_kv(slot, kind, off, tag, R):
    fn = dma_K if kind == 'K' else dma_V
    ops = fn(tag, R, wr=sT, soff=sI, adv=False)
    if not ops: return []
    return ['s_add_u32 s%d, s%d, %d' % (sT, sW4096, slot * SLOT), 's_mov_b32 s%d, %d' % (sI, off)] + ops

def ring_advance(total=NSLOT * SLOT):
    return ['s_mov_b32 s%d, s%d' % (sWr, sRd),
            's_add_u32 s%d, s%d, s%d' % (sWrK, sRd, sW4096),
            's_add_u32 s%d, s%d, s%d' % (sRd, sRd, sSlot),
            's_cmp_eq_u32 s%d, %d' % (sRd, total),
            's_cselect_b32 s%d, s%d, s%d' % (sDelta, sWrap, sSlot),
            's_cselect_b32 s%d, 0, s%d' % (sRd, sRd)]

def atomic(ops):
    def f(P):
        for o in ops: P.I(o)
    f.cost = 4 * len(ops)
    return f

def cost_of(op):
    if callable(op): return getattr(op, 'cost', 60)
    t = op[0] if isinstance(op, tuple) else op
    if t.startswith('v_mfma'): return 8
    if t.startswith('buffer_'): return 20
    if t.startswith('v_exp') or t.startswith('v_rcp'): return 8
    return 4

class Step:
    def __init__(self, name, fr, paced=None, fixed=None, usesX=False):
        self.name = name; self.fr = fr; self.paced = paced or []; self.fixed = fixed or {}; self.usesX = usesX

def stamp(P, lane, real=False):
    P.I('%s s[72:73]' % ('s_memrealtime' if real else 's_memtime')); P.I('s_waitcnt lgkmcnt(0)')
    if isinstance(lane, int): P.I('v_writelane_b32 v%d, s72, %d' % (T4, lane))
    else: P.I('s_mov_b32 m0, s74'); P.I('v_writelane_b32 v%d, s72, m0' % T4)

class Emitter:
    def __init__(self, P, R):
        self.P = P; self.R = R
        self.fr = 0; self.uid = 0; self.ring_total = NSLOT * SLOT
        self.addr_regs = list(range(KA, KA + 4)) + list(range(VA, VA + 8))
    def emit_op(self, op):
        if isinstance(op, tuple):
            if op[0] == 'WAITVM': self.P.wait_vm(op[1])
            elif op[0] == 'WAITLGKM': self.P.wait_lgkm(op[1])
            else: self.P.I(op[0], op[1])
        elif callable(op): op(self.P)
        else: self.P.I(op)
    def issue_reads(self, f, upd, part=None):
        P = self.P; c = 0
        if part in (None, 0):
            f.frag = POOL + 4 * (self.fr % NPOOL); self.fr += 1
            self.uid += 1; f.tag = '%sf%d' % (self.R.name, self.uid)
        reads = f.reads if part is None else (f.reads[:1] if part == 0 else f.reads[1:])
        for (op, off, n, addr, imm) in reads:
            isx = isinstance(addr, tuple)
            a = addr[1] if isx else addr
            if a in upd:
                P.I('v_add_u32_e32 v%d, s%d, v%d' % (a, sDelta, a)); upd.discard(a); c += 4
            if isx:
                P.I('v_add_u32_e32 v%d, s%d, v%d' % (T2, sXc, a)); c += 4; a = T2
            if EXP.get('nord') and self.uid % int(EXP['nord']) != 0 and self.uid > 300: continue
            P.I('%s %s, v%d offset:%d' % (op, ar(f.frag + off, n), a, imm), f.tag); c += 4
        return c
    def boundary(self, nxt):
        P = self.P
        P.wait_lgkm('ALL')
        st = STAMP and not EXP.get('lite') and ((nxt.name[0] == 'O') == bool(EXP.get('ostamp')))
        arr = bool(EXP.get('arr'))
        if st and arr: stamp(P, 'dyn', bool(EXP.get('rt'))); P.I('s_add_u32 s74, s74, 1')
        P.wait_vm('ld_' + nxt.name)
        if getattr(nxt, 'wait_stores', False): P.wait_vm('pst')
        P.I('s_barrier')
        if st and not arr: stamp(P, 'dyn', bool(EXP.get('rt'))); P.I('s_add_u32 s74, s74, 1')
        if getattr(nxt, 'static', False): return set()
        if getattr(nxt, 'ring_total', None): self.ring_total = nxt.ring_total
        if getattr(nxt, 'va_only', False): self.addr_regs = list(range(VA, VA + 8))
        for o in ring_advance(self.ring_total): P.I(o)
        if nxt.usesX: P.I('s_sub_u32 s%d, %d, s%d' % (sXc, XBASE, sRd))
        return set(self.addr_regs)
    def run(self, steps, nxt_after, pre_issued, upd, valu, allow_left=False):
        P = self.P; R = self.R
        allf = []
        for si, s in enumerate(steps):
            for i, f in enumerate(s.fr): allf.append((si, i, f))
        n = len(allf)
        seq = allf + [(len(steps), i, f) for i, f in enumerate(nxt_after.fr)]
        first_of = {}
        for k, (si, i, f) in enumerate(seq):
            if i == 0: first_of[si] = k
        nread = pre_issued; entered = 0
        vq = list(valu); vp = 0; ppos = 0
        jobcost = {}; jobdone = {}
        for it in vq:
            if len(it) > 3: jobcost[it[3]] = jobcost.get(it[3], 0) + cost_of(it[0])
        for k in range(n):
            si, i, f = allf[k]
            s = steps[si]
            if i == 0: ppos = 0
            used = 0
            tgt = k
            if i % WAITW == 0:
                for d in range(1, WAITW):
                    if k + d < n and allf[k + d][0] == si and k + d < nread: tgt = k + d
                used += 4
            P.wait_lgkm(seq[tgt][2].tag)
            for mi, (d, b, c0) in enumerate(f.mfmas):
                if not (EXP.get('dropm') and s.name[0] == 'G' and (k * 2 + mi) % int(EXP['dropm']) == 0):
                    P.I('%s %s, %s, %s, %s' % ('v_mfma_f32_32x32x16_bf16' if getattr(f, 'shape', 16) == 32 else 'v_mfma_f32_16x16x32_bf16', d, ar(f.frag, 4), b, '0' if c0 else d))
                if EXP.get('padnop') and s.name[0] == 'G' and R.nq == 2 and mi == 1 and k % int(EXP['padnop']) == 0: P.I('s_nop 7')
                lastm = mi == len(f.mfmas) - 1
                if lastm:
                    nf = len(s.fr); last = getattr(s, 'paced_end', nf - 2 - D_BAR)
                    for o in s.fixed.get(i, []):
                        used += cost_of(o); self.emit_op(o)
                    eq = getattr(s, 'early', [])
                    if eq:
                        e_end = min(last, getattr(s, 'early_end', 8))
                        if i == 0: epos = 0
                        wante = len(eq) if i >= e_end else int(math.ceil(len(eq) * (i + 1) / float(e_end + 1)))
                        while epos < wante:
                            used += cost_of(eq[epos]); self.emit_op(eq[epos]); epos += 1
                    p0 = getattr(s, 'paced_start', 0)
                    if p0 <= i <= last:
                        want = len(s.paced) if i == last else int(math.ceil(len(s.paced) * (i - p0 + 1) / float(last - p0 + 1)))
                        while ppos < want:
                            used += cost_of(s.paced[ppos]); self.emit_op(s.paced[ppos]); ppos += 1
                    if si + 1 in first_of and k == first_of[si + 1] - 1 - D_BAR and entered == si:
                        assert ppos == len(s.paced), (s.name, ppos, len(s.paced))
                        for a in sorted(upd): P.I('v_add_u32_e32 v%d, s%d, v%d' % (a, sDelta, a)); used += 4
                        nx = steps[si + 1] if si + 1 < len(steps) else nxt_after
                        upd = self.boundary(nx); entered = si + 1; used += 40
                if mi == 0:
                    ready = []
                    while nread < len(seq) and nread <= k + D_AHEAD and seq[nread][0] <= entered and (seq[nread][0] < len(steps) or nread - n < D_BAR):
                        ready.append(seq[nread][2]); nread += 1
                    at_bar = si + 1 in first_of and k == first_of[si + 1] - 1 - D_BAR
                    half = None
                    if SPLITR and len(f.mfmas) == 2 and len(ready) == 1 and len(ready[0].reads) == 2 and not at_bar:
                        half = ready[0]; used += self.issue_reads(half, upd, 0)
                    else:
                        for r in ready: used += self.issue_reads(r, upd)
                elif half is not None:
                    used += self.issue_reads(half, upd, 1); half = None
                while vp < len(vq):
                    it = vq[vp]; c = cost_of(it[0])
                    go = lastm and it[2] <= k
                    if not go and it[1] <= k:
                        if len(it) > 3:
                            js, je = it[3]
                            pos = k + (mi + 1) / float(len(f.mfmas))
                            due = jobcost[it[3]] * min(1.0, max(0.0, (pos - js) / float(je - js))) - jobdone.get(it[3], 0)
                            go = (due > 0 and used + c <= CAP1) or (due > LATE and used + c <= CAP2) or (used < 8 and due > -LEAD)
                        else: go = used + c <= R.budget
                    if not go: break
                    used += c; self.emit_op(it[0]); vp += 1
                    if len(it) > 3: jobdone[it[3]] = jobdone.get(it[3], 0) + c
                used = 0
            while nread < len(seq) and nread <= k + D_AHEAD and seq[nread][0] <= entered and (seq[nread][0] < len(steps) or nread - n < D_BAR):
                self.issue_reads(seq[nread][2], upd); nread += 1
        if allow_left: return upd, vp
        assert vp == len(vq), (vp, len(vq))
        return upd

def nm(k, g): return 'ld_%s%d' % (k, g)

PORD = 3
def make_P(g, R):
    nq = R.nq; B = nq == 1
    fr = fr_Q(g, nq, tmajor=(g == 7))
    paced = []; fixed = {}
    wr = ('slot', sWr)
    if g == 0:
        if B: paced += dma_WX(nm('P', 1), 1, sWc) + dma_Warea(nm('P', 1), 1, sWc, SLOT_C(1))
        paced += dma_x(1, nq)
        if B: paced += dma_Warea(nm('P', 2), 2, sWc, SLOT_C(2))
        paced += dma_x(2, nq)
    if g == 1: fixed[0] = read_x(1, nq)
    if B and 1 <= g <= 5: paced += dma_Warea(nm('P', g + 2), g + 2, sWc, wr)
    if B and g in (2, 4, 6): paced = dma_WX(nm('P', g + 1), g + 1, sWc) + paced
    if g == 1: paced += dma_x(3, nq)
    if g == 2: fixed[0] = read_x(2, nq); paced += [('WAITLGKM', 'xr2')] + dma_x(4, nq)
    K0 = fixed_kv(1, 'K', 0, nm('P', 7), R)
    KV0 = fixed_kv(2, 'K', 16384, nm('G', 0), R) + fixed_kv(2, 'V', 0, nm('G', 0), R)
    KV1 = fixed_kv(0, 'K', 2 * 16384, nm('G', 1), R) + fixed_kv(0, 'V', 16384, nm('G', 1), R)
    when = {0: (3, 5, 4), 1: (5, 6, 7), 2: (4, 5, 6), 3: (4, 6, 7), 4: (5, 5, 7)}[PORD]
    if g == 3: fixed[8] = read_x(3, nq)
    if g == 4: fixed[4] = read_x(4, nq)
    if g == when[0]: paced += K0
    if g == when[1]: paced += KV0
    if B and g == 6: paced += dma_Warea(nm('G', 0), 0, sWn, wr)
    if g == when[2]: paced += KV1
    if B and g == 7: paced += dma_Warea(nm('G', 1), 1, sWn, wr) + ['s_mov_b32 s%d, s%d' % (sWc, sWn), 's_add_u32 s%d, s%d, 256' % (sWn, sWn)]
    if PFUSE and B and g == 5:
        fixed.setdefault(1, []).extend([atomic(['s_mov_b32 s%d, s90' % sDB, 's_mov_b32 s%d, s91' % (sDB + 1), 's_mov_b32 s%d, 256' % (sDB + 2), 's_mov_b32 s%d, 0x20000' % (sDB + 3),
                                                's_lshl_b32 s61, s5, 4', 's_add_u32 s61, s61, s4', 's_lshl_b32 s61, s61, 2', 'v_mov_b32_e32 v%d, s61' % RZ2])] + poll_early())
    if PFUSE and B and g == 7:
        fixed.setdefault(30, []).append(poll_check(['s_mov_b32 s%d, 0' % sU2], None, 1))
    if g == 7: fr = fr + fr_S(0, nq)
    return Step('P%d' % g, fr, paced, fixed, usesX=(g % 2 == 1))

def SLOT_C(n): return n * SLOT + WOFF

KVEARLY = 16; WSTART = 65
def make_G(g, R):
    nq = R.nq; B = nq == 1
    tgt = nm('G', (g + 2) % 8)
    paced = []
    xq = dma_WX(nm('G', g + 1), g + 1, sWc) if (B and g % 2 == 0) else []
    if not KVEARLY: paced += xq
    if B and g == 6:
        paced += [atomic(['s_cmp_ge_u32 s%d, 2' % sHead, 's_cselect_b32 s%d, 0, s%d' % (sW + 2, sW + 2)])]
    early = xq if KVEARLY else []
    if not EXP.get('nokv'):
        if KVEARLY: early = xq + dma_K(tgt, R) + dma_V(tgt, R)
        else: paced += dma_K(tgt, R) + dma_V(tgt, R)
    if B and OTOUCH and g < 5:
        if g == 0: paced.append(atomic(['s_cmp_eq_u32 s%d, 3' % sHead, 's_cselect_b32 s94, 655360, 0']))
        paced.append('s_mov_b32 s%d, %d' % (sT, g * 8192))
        paced.append(('buffer_load_dword v41, v40, s[92:95], s%d offen %s' % (sT, OTPOL), 'touch'))
    if B: paced += dma_Warea(tgt, (g + 2) % 8, sWc if g + 2 < 8 else sWn, ('slot', sWr, 'redirect') if g == 5 else ('slot', sWr))
    if B and g == 7: paced += ['s_mov_b32 s%d, s%d' % (sWc, sWn), 's_add_u32 s%d, s%d, 256' % (sWn, sWn)]
    if g < 7: fr = fr_S((g + 1) & 1, nq) + fr_Q(g, nq) + fr_PV(g, nq)
    else: fr = fr_Q(7, nq, True) + fr_PV(7, nq, True) + fr_S(0, nq)
    st = Step('G%d' % g, fr, paced, usesX=(g % 2 == 1))
    if KVEARLY:
        st.early = early; st.early_end = KVEARLY
        st.paced_start = max(KVEARLY + 1, int(len(fr) * WSTART / 100.0))
    return st

def o_setup(R):
    def f(P):
        lane_ids(P)
        if R.nq == 2:
            P.I('s_mul_i32 s%d, s%d, %d' % (sW4096, sWAVE, OGA * 4096)); P.I('s_mul_i32 s7, s%d, %d' % (sWAVE, OGA * 20480))
        else:
            P.I('s_mov_b32 s%d, 0' % sW4096); P.I('s_mov_b32 s7, 0')
        P.I('v_mul_u32_u24_e32 v11, 1280, v4')
        for i in range(4):
            if O32:
                P.I('v_lshlrev_b32_e32 v5, 1, v4'); P.I('v_add_u32_e32 v5, %d, v5' % (i & 1)); P.I('v_lshlrev_b32_e32 v5, 1, v5')
                P.I('v_xor_b32_e32 v5, v5, v3'); P.I('v_lshlrev_b32_e32 v12, 4, v5')
            else: swz8(P, 12, i & 1)
            P.I('v_add3_u32 v12, v12, v11, s7'); P.I('v_add_u32_e32 v%d, %d, v12' % (OD + i, i * (5120 - 1024)))
        P.I('s_mov_b32 s%d, s82' % sW); P.I('s_mov_b32 s%d, s83' % (sW + 1))
        P.I('s_mov_b32 s%d, 655360' % (sW + 2)); P.I('s_mov_b32 s%d, 0x20000' % (sW + 3))
        P.I('s_mov_b32 s%d, 0' % sWo)
    f.cost = 140
    return f

def o_setup2(R):
    def f(P):
        lane_ids(P)
        P.I('s_lshl_b32 s7, s%d, 11' % sWAVE)
        P.I('v_lshlrev_b32_e32 v11, 4, v0'); P.I('v_add_u32_e32 v%d, s7, v11' % OST)
        P.I('s_mov_b32 s%d, %d' % (sOo, (-4 * 7 * 1024) & 0xffffffff)); P.I('s_mov_b32 s%d, 0' % sNg)
        if O32 and R.nq == 2:
            P.I('v_lshrrev_b32_e32 v2, 5, v0'); P.I('v_lshrrev_b32_e32 v6, 2, v3'); P.I('v_and_b32_e32 v7, 3, v0'); P.I('v_and_b32_e32 v8, 1, v4')
            P.I('v_lshl_add_u32 v9, v2, 2, v6'); P.I('v_lshlrev_b32_e32 v9, 8, v9'); P.I('v_lshl_add_u32 v9, v7, 3, v9')
            P.I('v_xor_b32_e32 v8, v8, v2'); P.I('v_lshl_add_u32 v9, v8, 5, v9')
            for nt in range(4):
                P.I('v_xor_b32_e32 v11, %d, v6' % nt); P.I('v_lshl_add_u32 v%d, v11, 6, v9' % VA2[nt])
                P.I('v_add_u32_e32 v%d, 0x10000, v%d' % (VA2[4 + nt], VA2[nt]))
        elif O32:
            P.I('v_lshrrev_b32_e32 v6, 2, v3'); P.I('v_and_b32_e32 v7, 3, v0')
            P.I('v_lshl_add_u32 v9, v4, 2, v6'); P.I('v_lshlrev_b32_e32 v9, 8, v9'); P.I('v_lshl_add_u32 v9, v7, 3, v9')
            P.I('v_and_b32_e32 v8, 1, v4'); P.I('v_lshl_add_u32 v8, v6, 1, v8')
            for t in range(8):
                P.I('v_xor_b32_e32 v11, %d, v8' % t); P.I('v_lshl_add_u32 v%d, v11, 5, v9' % BVA[t])
                P.I('v_add_u32_e32 v%d, 0x10000, v%d' % (VA2[t], BVA[t]))
        elif OSTATIC:
            va_regs(P, 0, VA2)
            for t in range(8): P.I('v_add_u32_e32 v%d, 0x10000, v%d' % (VA2[t], VA2[t]))
        P.I('s_mov_b32 s%d, %d' % (sSlot, OSLOT)); P.I('s_mov_b32 s%d, %d' % (sWrap, (-(ONSLOT - 1) * OSLOT) & 0xffffffff))
    f.cost = 40
    return f

def make_GL(g, R):
    nq = R.nq
    paced = []
    for n in ((0, 1) if g == 6 else ((2,) if OSTATIC else (2, 3))):
        paced.append('s_add_u32 s%d, s%d, %d' % (sWrK, sW4096, (n + 1) * OSLOT))
        paced += odma('ld_O%d' % n, 163840 if n != 3 else 256 - 3 * 163840, R)
    if g == 6:
        return Step('G6', fr_S(1, nq) + fr_PV(6, nq), paced, {0: [o_setup(R)]})
    st = Step('G7', fr_PV(7, nq, True), paced, {0: [o_setup2(R)]})
    st.paced_end = 9; st.va_only = True
    return st

def valu_P(steps, R):
    base7 = sum(len(s.fr) for s in steps[:7])
    q = []
    for ks in range(4):
        for o in qconv(ks, R.nq): q.append((o, base7 + 6 * ks + 5 + 2, base7 + 23))
    return q

def valu_G(steps, R, last=False):
    nq = R.nq
    base = [0]
    for s in steps: base.append(base[-1] + len(s.fr))
    q = []; pend = []
    for g in range(8):
        nqf = 16 if g % 2 == 0 else 24
        if last and g >= 6: nqf = 0
        if g == 0: job = (0, JOB0)
        elif g == 1: job = (JOB0, base[1] + JOBS)
        elif last and g == 6: job = (base[5] + JOBS, base[6] + 14)
        elif last and g == 7: job = (base[6] + 14, base[7] - 2)
        elif g < 7: job = (base[g - 1] + JOBS, base[g] + JOBS)
        else: job = (base[6] + JOBS, base[7] + 5)
        for s in range(2):
            for u in range(nq):
                est = 0 if g == 0 else base[g - 1] + 8 * s + 7 + 3
                if g < 7: ddl = base[g] + 16 + nqf + 8 * s - 1
                elif last: ddl = base[7] - 1
                else: ddl = base[7] + 6
                if not EXP.get('nosm'):
                    ops, m = softmax_chunk(g & 1, u, s, g == 0 and s == 0)
                    for n, o in enumerate(ops):
                        q.append((o, est, ddl, job))
                        if n == 1 and pend: q.append((pend.pop(), est, ddl, job))
                    if m: pend.append(m)
            if g == 7 and s == 1 and pend: q.append((pend.pop(), est, ddl, job))
    b = base[7]
    if last:
        q.append((mk_check(R, 1), b, b + 1))
        job = (b + 4, b + 14)
        for s in range(4):
            for o in ofin(s, nq): q.append((o, b + 4 * s + 3 + 2, b + 15, job))
        def st3(P):
            for o in stash_moves(3, nq): P.I(o)
        q.append((st3, b + 15, b + 15))
        return q
    q.append((mk_check(R), b, b + 7))
    job = (b + 8, b + QJOB)
    for ks in range(4):
        for o in qconv(ks, nq): q.append((o, b + 6 * ks + 5 + 2, b + 39, job))
    job = (b + QJOB, b + 54)
    for s in range(4):
        for o in ofin(s, nq): q.append((o, b + 24 + 4 * s + 3 + 2, b + 55, job))
    q.append((mk_stash(R), b + 54, b + 55))
    return q

def shift_q(q, off):
    out = []
    for it in q:
        if len(it) > 3: out.append((it[0], it[1] - off, it[2] - off, (it[3][0] - off, it[3][1] - off)))
        else: out.append((it[0], it[1] - off, it[2] - off))
    return out
JOB0 = 22; JOBS = 20; QJOB = 34

OGA = 1
def odma(tag, adv, R, dest=None):
    ops = []
    groups = list(range(OGA)) if R.nq == 2 else list(range(3 * OGA, 8))
    for G in groups:
        if dest is None: ops.append('s_add_u32 m0, s%d, %d' % (sWrK, G * 4096))
        else: ops.append('s_add_u32 m0, s%d, %d' % (sW4096, dest + G * 4096))
        ops.append('s_add_u32 s%d, s%d, %d' % (sT2, sWo, G * 20480))
        for i in range(4): ops.append(dma(OD + i, sW, sT2, i * 1024, OPOL, tag))
    ops.append('s_add_u32 s%d, s%d, %d' % (sWo, sWo, adv & 0xffffffff))
    return ops

PFUSE = 1
RV = 64; RA = 96; RP = 104; RT = 108; RL = 110; RO = 111; RF = 112; RZ = 113; RZ2 = 114; RG = 115
sRS = 52; sRO = 53; sE1 = 54; sE2 = 55; sU = 56; sU2 = 57; sSP = 58; sDB = 96
BIG = 0x40000000
RLPOL = 'sc1'; RSPOL = ''

FLGOFF = 256 * PART
def red_setup(P, R):
    lane_ids(P)
    P.I('s_lshl_b32 s60, s5, 4'); P.I('s_add_u32 s60, s60, s4')
    P.I('s_mul_i32 s61, s60, %d' % (8 * PART))
    if WSOFF: P.I('s_add_u32 s61, s61, %d' % WSOFF)
    P.I('s_add_u32 s8, s68, s61'); P.I('s_addc_u32 s9, s69, 0')
    P.I('s_mov_b32 s10, %d' % (8 * PART)); P.I('s_mov_b32 s11, 0x20000')
    P.I('s_mov_b32 s12, s100'); P.I('s_mov_b32 s13, s101'); P.I('s_mov_b32 s14, %d' % (16 * 112 * 2560)); P.I('s_mov_b32 s15, 0x20000')
    if 1:
        P.I('s_mov_b32 s%d, s90' % sDB); P.I('s_mov_b32 s%d, s91' % (sDB + 1)); P.I('s_mov_b32 s%d, 256' % (sDB + 2)); P.I('s_mov_b32 s%d, 0x20000' % (sDB + 3))
        P.I('s_lshl_b32 s61, s60, 2'); P.I('v_mov_b32_e32 v%d, s61' % RZ2)
        P.I('s_add_u32 s%d, s68, %d' % (sDB, FLGOFF + WSOFF)); P.I('s_addc_u32 s%d, s69, 0' % (sDB + 1))
        P.I('s_mov_b32 s%d, %d' % (sDB + 2, 32 * 256))
    P.I('s_lshl_b32 s62, s6, 2'); P.I('s_add_u32 s62, s62, s%d' % sWAVE)
    P.I('s_lshr_b32 s63, s62, 1'); P.I('s_and_b32 s64, s62, 1')
    P.I('s_cmp_ge_u32 s63, 7'); P.I('s_cselect_b32 s65, 1, 0')
    P.I('s_mul_i32 s66, s65, 7'); P.I('s_sub_u32 s66, s63, s66')
    P.I('s_lshl_b32 s67, s65, 1'); P.I('s_add_u32 s67, s67, s64'); P.I('s_mul_i32 s67, s67, 7'); P.I('s_add_u32 s67, s67, s66')
    P.I('s_lshl_b32 s%d, s67, 10' % sRS)
    P.I('s_mul_i32 s61, s4, %d' % (112 * 2560)); P.I('s_mul_i32 s67, s5, 1280'); P.I('s_add_u32 s61, s61, s67')
    P.I('s_mul_i32 s67, s66, %d' % (16 * 2560)); P.I('s_add_u32 s61, s61, s67')
    P.I('s_lshl_b32 s67, s65, 7'); P.I('s_add_u32 s61, s61, s67')
    P.I('s_lshl_b32 s67, s64, 6'); P.I('s_add_u32 s%d, s61, s67' % sRO)
    P.I('s_sub_u32 s%d, s%d, %d' % (sRS, sRS, 2 * 28672)); P.I('s_sub_u32 s%d, s%d, %d' % (sRO, sRO, 3 * 256))
    P.I('s_cmp_lt_u32 s62, 28')
    P.I('s_cselect_b32 s%d, s%d, %d' % (sRS, sRS, BIG)); P.I('s_cselect_b32 s%d, s%d, %d' % (sRO, sRO, BIG))
    P.I('v_lshlrev_b32_e32 v%d, 4, v0' % RL)
    P.I('v_mul_u32_u24_e32 v%d, 2560, v3' % RO); P.I('v_lshl_add_u32 v%d, v4, 4, v%d' % (RO, RO))
    P.I('s_lshl_b32 s61, s60, 8')
    P.I('v_mov_b32_e32 v%d, s61' % RZ2)
    P.I('v_cmp_eq_u32_e32 vcc, 0, v0'); P.I('v_mov_b32_e32 v5, %d' % BIG)
    P.I('v_cndmask_b32_e32 v%d, v5, v%d, vcc' % (RZ, RZ2))

def post_flag(val_ops):
    return [atomic(val_ops), 'v_mov_b32_e32 v%d, s%d' % (RF, sU),
            ('buffer_atomic_add v%d, v%d, s[%d:%d], 0 offen sc1' % (RF, RZ, sDB, sDB + 3), 'flag')]

_pn = [0]
POLLSLEEP = 4
def poll(shift_ops, skip_ops=None, need=8):
    def f(P):
        _pn[0] += 1; n = _pn[0]
        n0 = len(P.ins)
        if skip_ops:
            for o in skip_ops: P.I(o)
            P.I('s_cbranch_scc1 L_poll_done%d' % n)
        for o in shift_ops: P.I(o)
        P.I('s_mov_b32 s%d, 0' % sSP)
        P.label('L_poll%d' % n)
        P.I('buffer_load_dword v%d, v%d, s[%d:%d], 0 offen sc1' % (RG, RZ2, sDB, sDB + 3))
        P.I('s_waitcnt vmcnt(0)')
        P.I('v_readfirstlane_b32 s%d, v%d' % (sU, RG))
        P.I('s_add_u32 s%d, s%d, 1' % (sSP, sSP))
        P.I('s_lshr_b32 s%d, s%d, s%d' % (sU, sU, sU2)); P.I('s_and_b32 s%d, s%d, 15' % (sU, sU))
        P.I('s_cmp_ge_u32 s%d, %d' % (sU, need))
        P.I('s_cbranch_scc1 L_poll_done%d' % n)
        if POLLSLEEP: P.I('s_sleep %d' % POLLSLEEP)
        P.I('s_cmp_lt_u32 s%d, %d' % (sSP, SPIN))
        P.I('s_cbranch_scc1 L_poll%d' % n)
        P.label('L_poll_done%d' % n)
        for i in P.ins[n0:]:
            if i.kind in ('vmem', 'wait'): i.ignore = True
    f.cost = 60
    return f

def poll_early():
    return [('buffer_load_dword v%d, v%d, s[%d:%d], 0 offen sc1' % (RG, RZ2, sDB, sDB + 3), 'pl')]

def poll_check(shift_ops, skip_ops, need=8):
    def f(P):
        _pn[0] += 1; n = _pn[0]
        P.wait_vm('pl')
        if skip_ops:
            for o in skip_ops: P.I(o)
            P.I('s_cbranch_scc1 L_chk_done%d' % n)
        for o in shift_ops: P.I(o)
        P.I('v_readfirstlane_b32 s%d, v%d' % (sU, RG))
        P.I('s_lshr_b32 s%d, s%d, s%d' % (sU, sU, sU2)); P.I('s_and_b32 s%d, s%d, 15' % (sU, sU))
        P.I('s_cmp_ge_u32 s%d, %d' % (sU, need))
        P.I('s_cbranch_scc1 L_chk_done%d' % n)
        poll(shift_ops, None, need)(P)
        P.label('L_chk_done%d' % n)
    f.cost = 40
    return f

def unit_loads(src):
    ops = []
    for hg in range(8):
        ops.append('s_add_u32 s%d, s%d, %d' % (sU2, src, hg * PART))
        ops.append(('buffer_load_dwordx4 %s, v%d, s[8:11], s%d offen %s' % (vr(RV + 4 * hg, 4), RL, sU2, RLPOL), 'ru%d' % hg))
    return ops

def unit_sum(dst):
    ops = []
    for hg in range(8):
        ops.append(('WAITVM', 'ru%d' % hg))
        for j in range(4):
            r = RV + 4 * hg + j
            if hg == 0:
                ops.append('v_lshlrev_b32_e32 v%d, 16, v%d' % (RA + 2 * j, r)); ops.append('v_and_b32_e32 v%d, 0xffff0000, v%d' % (RA + 2 * j + 1, r))
            else:
                ops.append('v_lshlrev_b32_e32 v%d, 16, v%d' % (RT, r)); ops.append('v_and_b32_e32 v%d, 0xffff0000, v%d' % (RT + 1, r))
                ops.append('v_add_f32_e32 v%d, v%d, v%d' % (RA + 2 * j, RA + 2 * j, RT)); ops.append('v_add_f32_e32 v%d, v%d, v%d' % (RA + 2 * j + 1, RA + 2 * j + 1, RT + 1))
    for j in range(4): ops.append('v_cvt_pk_bf16_f32 v%d, v%d, v%d' % (RP + j, RA + 2 * j, RA + 2 * j + 1))
    ops += swaps([(RP, RP + 2), (RP + 1, RP + 3)])
    ops.append(('buffer_store_dwordx4 %s, v%d, s[12:15], s%d offen %s' % (vr(RP, 4), RO, dst, RSPOL), 'rst'))
    return ops

SUMPOS = 6; PLPOS = 8
def sum_block(R):
    def f(P):
        _pn[0] += 1; n = _pn[0]
        P.I('s_cmp_lt_u32 s%d, 3' % sNg); P.I('s_cbranch_scc1 L_sum_done%d' % n)
        for o in unit_sum(sRO):
            if isinstance(o, tuple) and o[0] == 'WAITVM':
                if o[1] in ('ru0', 'ru7'): P.wait_vm('ru7').cond = True
            elif isinstance(o, tuple): P.I(o[0]).ignore = True
            else: P.I(o)
        P.label('L_sum_done%d' % n)
    f.cost = 100
    return f

def pfuse_tail(P):
    E = Emitter(P, Role('T', 1))
    def emit(ops):
        for o in ops: E.emit_op(o)
    def summ(dst, wait):
        ops = [o for o in unit_sum(dst) if not (isinstance(o, tuple) and o[0] == 'WAITVM')]
        P.I(wait)
        emit(ops)
    def only3(lab, ops):
        P.I('s_cmp_eq_u32 s%d, 3' % sWAVE); P.I('s_cbranch_scc0 %s' % lab)
        emit(ops)
        P.label(lab)
    P.label('L_red')
    only3('L_t0', post_flag(['s_mov_b32 s%d, %d' % (sU, 1 << 12)]))
    P.I('s_cmp_eq_u32 s%d, 3' % sWAVE); P.I('s_cbranch_scc1 L_t0b')
    summ(sRO, 's_waitcnt vmcnt(8)')
    P.I('s_branch L_t0c')
    P.label('L_t0b')
    summ(sRO, 's_waitcnt vmcnt(5)')
    P.label('L_t0c')
    only3('L_t1', [poll(['s_mov_b32 s%d, 12' % sU2])])
    P.I('s_barrier')
    P.I('s_add_u32 s%d, s%d, 256' % (sRO, sRO))
    emit(unit_loads(sRS))
    P.I('s_waitcnt vmcnt(8)')
    P.I('s_barrier')
    only3('L_t2', post_flag(['s_mov_b32 s%d, %d' % (sU, 1 << 16)]))
    summ(sRO, 's_waitcnt vmcnt(0)')
    only3('L_t3', [poll(['s_mov_b32 s%d, 16' % sU2])])
    P.I('s_barrier')
    P.I('s_add_u32 s%d, s%d, 28672' % (sRS, sRS)); P.I('s_add_u32 s%d, s%d, 256' % (sRO, sRO))
    emit(unit_loads(sRS))
    summ(sRO, 's_waitcnt vmcnt(0)')
    P.I('s_waitcnt vmcnt(0)')

PK = SB[0]
def ostore(R, n):
    jp, u = n // R.nq, n % R.nq
    return ['s_add_u32 s%d, s%d, %d' % (sT, sOo, (jp * 7 + u) * 1024),
            ('buffer_store_dwordx4 %s, v%d, s[%d:%d], s%d offen %s' % (vr(PK + (u * 4 + jp) * 4, 4), OST, sO, sO + 3, sT, PSTPOL), 'pst')]

OSLOT = 32768; ONSLOT = 5; OLA = 4
STPOS = 0
def make_O(hh, R):
    th = (hh + 3) & 3 if OSTATIC else hh
    tgt = 'ld_O%d' % th
    adv = 163840 if th != 3 else 256 - 3 * 163840
    pre = []
    if th == 0: pre = [atomic(['s_cmp_ge_u32 s%d, 4' % sNg, 's_cselect_b32 s%d, 0, s%d' % (sW + 2, sW + 2)])]
    loads = odma(tgt, adv, R, hh * OSLOT if OSTATIC else None)
    fixed = {}
    ns = 4 * R.nq
    if hh == 0: fixed[0] = [atomic(['s_cmp_eq_u32 s%d, 0' % sNg, 's_cselect_b32 s%d, 0, %d' % (sO + 2, PART)])]
    for n in range(ns):
        gpos = int((n + 0.5) * STSPAN / ns)
        if gpos // 32 == hh: fixed.setdefault(min(gpos % 32, 27), []).extend(ostore(R, n))
    if hh == 3: fixed.setdefault(12, []).append('s_add_u32 s%d, s%d, %d' % (sOo, sOo, 4 * 7 * 1024))
    if PFUSE:
        if hh == 0 and R.nq == 1:
            fixed[0] = fixed.get(0, []) + post_flag(['s_sub_u32 s%d, s%d, 2' % (sU, sNg), 's_lshl_b32 s%d, s%d, 2' % (sU, sU), 's_lshl_b32 s%d, 1, s%d' % (sU, sU),
                                                    's_cmp_ge_u32 s%d, 2' % sNg, 's_cselect_b32 s%d, s%d, 0' % (sU, sU)])
        if hh == 1:
            fixed.setdefault(SUMPOS, []).append(sum_block(R))
        if hh == 2 and R.nq == 1:
            fixed.setdefault(PLPOS, []).extend(poll_early())
            fixed.setdefault(27, []).append(poll_check(['s_sub_u32 s%d, s%d, 2' % (sU2, sNg), 's_lshl_b32 s%d, s%d, 2' % (sU2, sU2)], ['s_cmp_lt_u32 s%d, 2' % sNg]))
        if hh == 3:
            fixed[0] = fixed.get(0, []) + [atomic(['s_cmp_ge_u32 s%d, 2' % sNg, 's_cselect_b32 s%d, s%d, %d' % (sE1, sRS, BIG)])]
            ul = unit_loads(sE1)
            for n in range(8): fixed.setdefault(1 + n, []).extend([atomic([ul[2 * n]]), ul[2 * n + 1]])
            fixed.setdefault(27, []).extend(['s_add_u32 s%d, s%d, 28672' % (sRS, sRS), 's_add_u32 s%d, s%d, 256' % (sRO, sRO)])
    st = Step('O%d' % hh, fr_O(hh, R.nq), pre + loads, fixed)
    if PFUSE and hh == 0: st.wait_stores = True
    st.static = bool(OSTATIC)
    return st

STSPAN = 96
OFIRST = 9
def valu_O(R):
    q = []; b = 96
    for jp in range(4):
        est = b + 4 * (2 * jp + 1) + 3 + 2
        if O32 and R.nq == 2:
            d = QACC + 16 * jp
            dst = [PK + jp * 4, PK + jp * 4 + 1, PK + (4 + jp) * 4, PK + (4 + jp) * 4 + 1, PK + jp * 4 + 2, PK + jp * 4 + 3, PK + (4 + jp) * 4 + 2, PK + (4 + jp) * 4 + 3]
            for j in range(8): q.append(('v_cvt_pk_bf16_f32 v%d, v%d, v%d' % (dst[j], d + 2 * j, d + 2 * j + 1), est, 127))
            for o in swaps([(PK + jp * 4 + k, PK + (4 + jp) * 4 + k) for k in range(4)]): q.append((o, est, 127))
            continue
        for u in range(R.nq):
            p = PK + (u * 4 + jp) * 4
            for t in range(2):
                for j in range(2):
                    r = qa(u, 2 * jp + t) + 2 * j
                    q.append(('v_cvt_pk_bf16_f32 v%d, v%d, v%d' % (p + 2 * t + j, r, r + 1), est, 127))
    return q

def final_stores(P, E, R):
    P.I('s_mov_b32 s%d, %d' % (sO + 2, PART))
    for n in range(4 * R.nq):
        for o in ostore(R, n): E.emit_op(o)

def lane_ids(P):
    P.I('v_mbcnt_lo_u32_b32 v0, -1, 0'); P.I('v_mbcnt_hi_u32_b32 v0, -1, v0')
    P.I('v_and_b32_e32 v3, 15, v0'); P.I('v_lshrrev_b32_e32 v4, 4, v0')

def swz8(P, dst, p):
    P.I('v_add_u32_e32 v5, %d, v4' % (4 * p)); P.I('v_lshlrev_b32_e32 v5, 1, v5')
    P.I('v_xor_b32_e32 v5, v5, v3'); P.I('v_lshlrev_b32_e32 v%d, 4, v5' % dst)

def retag(P, start, old, new):
    for ins in P.ins[start:]:
        if ins.tag == old: ins.tag = new
        if ins.wait and ins.wait[1] == old: ins.wait = (ins.wait[0], new)

def oproj_phase(P, E, R):
    nq = R.nq
    P.I('s_waitcnt vmcnt(0) lgkmcnt(0)')
    P.I('s_barrier')
    lane_ids(P)
    if nq == 2:
        P.I('s_mul_i32 s%d, s%d, %d' % (sW4096, sWAVE, OGA * 4096)); P.I('s_mul_i32 s7, s%d, %d' % (sWAVE, OGA * 20480))
    else:
        P.I('s_mov_b32 s%d, 0' % sW4096); P.I('s_mov_b32 s7, 0')
    P.I('v_mul_u32_u24_e32 v11, 1280, v4')
    for i in range(4):
        swz8(P, 12, i & 1)
        P.I('v_add3_u32 v12, v12, v11, s7'); P.I('v_add_u32_e32 v%d, %d, v12' % (OD + i, i * (5120 - 1024)))
    P.I('s_mov_b32 s%d, s82' % sW); P.I('s_mov_b32 s%d, s83' % (sW + 1))
    P.I('s_mov_b32 s%d, 655360' % (sW + 2)); P.I('s_mov_b32 s%d, 0x20000' % (sW + 3))
    P.I('s_mov_b32 s%d, 0' % sWo)
    for n in range(4):
        P.I('s_add_u32 s%d, s%d, %d' % (sWrK, sW4096, n * OSLOT))
        for o in odma('ld_O%d' % n, 163840 if n != 3 else 256 - 3 * 163840, R): E.emit_op(o)
        if n == OFIRST: P.wait_vm('ld_O0'); P.I('s_barrier')
    P.I('s_mov_b32 s%d, %d' % (sSlot, OSLOT)); P.I('s_mov_b32 s%d, %d' % (sWrap, (-(ONSLOT - 1) * OSLOT) & 0xffffffff))
    E.ring_total = ONSLOT * OSLOT
    va_regs(P, 0)
    P.I('s_lshl_b32 s7, s%d, 11' % sWAVE)
    P.I('v_lshlrev_b32_e32 v11, 4, v0'); P.I('v_add_u32_e32 v%d, s7, v11' % OST)
    P.I('s_mov_b32 s%d, %d' % (sOo, (-4 * 7 * 1024) & 0xffffffff)); P.I('s_mov_b32 s%d, 0' % sNg); P.I('s_mov_b32 s%d, 0' % sRd)
    P.I('s_add_u32 s%d, s%d, %d' % (sWrK, sW4096, 4 * OSLOT))
    P.wait_vm('ld_O0')
    P.I('s_barrier')
    E.addr_regs = list(range(VA, VA + 8))
    osteps = [make_O(hh, R) for hh in range(4)]
    o0 = make_O(0, R)
    n_pre = len(P.ins)
    for i in range(D_BAR): E.issue_reads(osteps[0].fr[i], set())
    first = [(osteps[0].fr[i].tag, osteps[0].fr[i].frag) for i in range(D_BAR)]
    for i in range(D_BAR):
        retag(P, n_pre, first[i][0], '%so0pre%d' % (R.name, i)); osteps[0].fr[i].tag = '%so0pre%d' % (R.name, i)
    n0 = len(P.ins)
    P.label(R.lab('ng'))
    upd = E.run(osteps, o0, D_BAR, set(), valu_O(R))
    for a in sorted(upd): P.I('v_add_u32_e32 v%d, s%d, v%d' % (a, sDelta, a))
    for i in range(D_BAR):
        assert o0.fr[i].frag == first[i][1], (o0.fr[i].frag, first[i][1])
        retag(P, n0, o0.fr[i].tag, '%so0pre%d' % (R.name, i))
    P.I('s_add_u32 s%d, s%d, 1' % (sNg, sNg))
    P.I('s_cmp_lt_u32 s%d, 5' % sNg)
    P.I('s_cbranch_scc1 %s' % R.lab('ng'))
    n1 = len(P.ins)
    final_stores(P, E, R)
    return n0, n1

def va_regs(P, base, dst=None):
    P.I('v_lshrrev_b32_e32 v6, 2, v3'); P.I('v_and_b32_e32 v7, 3, v0')
    P.I('v_lshl_add_u32 v9, v4, 2, v6'); P.I('v_and_b32_e32 v8, 7, v9')
    P.I('v_lshlrev_b32_e32 v9, 8, v9'); P.I('v_lshl_add_u32 v9, v7, 3, v9')
    for t in range(8):
        P.I('v_xor_b32_e32 v11, %d, v8' % t)
        P.I('v_lshl_add_u32 v%d, v11, 5, v9' % (VA + t if dst is None else dst[t]))

sS2 = 88; sSI = 89
def slow_path(P, R):
    S0, S1 = SB
    P.label(R.lab('slow'))
    P.I('s_nop 15'); P.I('s_nop 15')
    T0, T1 = S1 + 22, S1 + 23
    P.I('v_mbcnt_lo_u32_b32 v%d, -1, 0' % T0); P.I('v_mbcnt_hi_u32_b32 v%d, -1, v%d' % (T0, T0))
    P.I('v_and_b32_e32 v%d, 15, v%d' % (T1, T0)); P.I('v_lshrrev_b32_e32 v%d, 4, v%d' % (T0, T0))
    KO, VO, VO2, MX, TM = S1 + 16, S1 + 17, S1 + 18, S1 + 19, S1 + 20
    P.I('v_lshlrev_b32_e32 v%d, 8, v%d' % (KO, T1)); P.I('v_lshl_add_u32 v%d, v%d, 4, v%d' % (KO, T0, KO))
    P.I('v_lshlrev_b32_e32 v%d, 10, v%d' % (VO, T0)); P.I('v_lshl_add_u32 v%d, v%d, 1, v%d' % (VO, T1, VO))
    P.I('v_add_u32_e32 v%d, 0x1000, v%d' % (VO2, VO))
    P.I('s_lshl_b32 s%d, s%d, 17' % (sHb, sHead))
    def s_tile(u, dst):
        for ks in range(4):
            P.I('buffer_load_dwordx4 %s, v%d, s[%d:%d], s%d offen offset:%d' % (vr(S0 + 4 * ks, 4), KO, sK, sK + 3, sS2, ks * 64))
        P.I('s_waitcnt vmcnt(0)')
        for ks in range(4):
            P.I('v_mfma_f32_16x16x32_bf16 %s, %s, %s, %s' % (vr(dst, 4), vr(S0 + 4 * ks, 4), vr(qf(u, ks), 4), '0' if ks == 0 else vr(dst, 4)))
        P.I('s_nop 15')
    for u in range(R.nq):
        P.I('v_mov_b32_e32 v%d, 0xff800000' % MX)
        P.I('s_mov_b32 s%d, 0' % sSI)
        P.label(R.lab('slow_max%d' % u))
        P.I('s_lshl_b32 s%d, s%d, 12' % (sS2, sSI)); P.I('s_add_u32 s%d, s%d, s%d' % (sS2, sS2, sHb))
        s_tile(u, S0 + 16)
        P.I('v_max3_f32 v%d, v%d, v%d, v%d' % (MX, MX, S0 + 16, S0 + 17)); P.I('v_max3_f32 v%d, v%d, v%d, v%d' % (MX, MX, S0 + 18, S0 + 19))
        P.I('s_add_u32 s%d, s%d, 1' % (sSI, sSI)); P.I('s_cmp_lt_u32 s%d, 32' % sSI); P.I('s_cbranch_scc1 %s' % R.lab('slow_max%d' % u))
        lane_reduce(P, MX, TM, 'v_max_f32_e32')
        P.I('v_mov_b32_e32 v%d, 0' % lt(u))
        for r in range(32): P.I('v_mov_b32_e32 v%d, 0' % (oa(u, 0) + r))
        P.I('s_mov_b32 s%d, 0' % sSI)
        P.label(R.lab('slow_pv%d' % u))
        P.I('s_lshl_b32 s%d, s%d, 13' % (sS2, sSI)); P.I('s_add_u32 s%d, s%d, s%d' % (sS2, sS2, sHb))
        s_tile(u, S0 + 16)
        P.I('s_add_u32 s%d, s%d, 4096' % (sS2, sS2))
        s_tile(u, S0 + 20)
        P.I('s_sub_u32 s%d, s%d, 4096' % (sS2, sS2))
        for r in range(8): P.I('v_sub_f32_e32 v%d, v%d, v%d' % (S0 + 16 + r, S0 + 16 + r, MX))
        for r in range(8): P.I('v_exp_f32_e32 v%d, v%d' % (S0 + 16 + r, S0 + 16 + r))
        P.I('s_nop 0')
        for r in range(8): P.I('v_add_f32_e32 v%d, v%d, v%d' % (lt(u), lt(u), S0 + 16 + r))
        for j in range(4): P.I('v_cvt_pk_bf16_f32 v%d, v%d, v%d' % (S0 + 24 + j, S0 + 16 + 2 * j, S0 + 17 + 2 * j))
        for t in range(8):
            for i in range(8):
                P.I('buffer_load_ushort v%d, v%d, s[%d:%d], s%d offen offset:%d' % (S1 + i, VO if i < 4 else VO2, sV, sV + 3, sS2, (i & 3) * 256 + t * 32))
            P.I('s_waitcnt vmcnt(0)')
            for j in range(4): P.I('v_lshl_or_b32 v%d, v%d, 16, v%d' % (S1 + 8 + j, S1 + 2 * j + 1, S1 + 2 * j))
            P.I('s_nop 1')
            P.I('v_mfma_f32_16x16x32_bf16 %s, %s, %s, %s' % (vr(oa(u, t), 4), vr(S1 + 8, 4), vr(S0 + 24, 4), vr(oa(u, t), 4)))
            P.I('s_nop 7')
        P.I('s_add_u32 s%d, s%d, 1' % (sSI, sSI)); P.I('s_cmp_lt_u32 s%d, 16' % sSI); P.I('s_cbranch_scc1 %s' % R.lab('slow_pv%d' % u))
        lane_reduce(P, lt(u), TM, 'v_add_f32_e32')
    for u in range(R.nq):
        for s in range(2):
            for j in range(4): P.I('v_mov_b32_e32 v%d, 0' % (preg(1, u, s) + j))
    P.I('s_nop 15')
    P.I('s_cmp_eq_u32 s%d, 0' % sRet)
    P.I('s_cbranch_scc1 %s' % R.lab('slow_ret0'))
    P.I('s_branch %s' % R.lab('slow_ret1'))

def final_stamps(P):
    stamp(P, 60, True); stamp(P, 61)
    P.I('v_writelane_b32 v%d, s78, 1' % T4); P.I('v_writelane_b32 v%d, s76, 0' % T4)
    P.I('s_lshl_b32 s72, s2, 2'); P.I('s_add_u32 s72, s72, s%d' % sWAVE); P.I('s_lshl_b32 s72, s72, 8')
    P.I('s_add_u32 s72, s72, 0x4000000')
    P.I('s_add_u32 s68, s68, s72'); P.I('s_addc_u32 s69, s69, 0')
    P.I('v_mbcnt_lo_u32_b32 v0, -1, 0'); P.I('v_mbcnt_hi_u32_b32 v0, -1, v0'); P.I('v_lshlrev_b32_e32 v0, 2, v0')
    P.I('global_store_dword v0, v%d, s[68:69]' % T4)
    P.I('s_waitcnt vmcnt(0)')

def role_code(P, R):
    nq = R.nq
    start = len(P.ins)
    P.label(R.lab('start'))
    E = Emitter(P, R)
    if nq == 1:
        for o in dma_Warea(nm('P', 0), 0, sWc, SLOT_C(0)): E.emit_op(o)
    for o in dma_x(0, nq): E.emit_op(o)
    if nq == 1 and TOUCH:
        P.I('v_lshrrev_b32_e32 v5, 1, v0'); P.I('s_mul_i32 s7, s4, 40'); P.I('v_add_u32_e32 v5, s7, v5')
        P.I('v_lshlrev_b32_e32 v5, 13, v5'); P.I('v_and_b32_e32 v11, 1, v0'); P.I('v_lshl_add_u32 v5, v11, 7, v5')
        P.I('v_add_u32_e32 v11, %d, v5' % (32 * 8192))
        P.I('v_cmp_gt_u32_e32 vcc, 16, v0'); P.I('v_mov_b32_e32 v12, 0x40000000'); P.I('v_cndmask_b32_e32 v11, v12, v11, vcc')
        P.I('buffer_load_dword v47, v5, s[%d:%d], 0 offen' % (sW, sW + 3), 'touch')
        P.I('buffer_load_dword v48, v11, s[%d:%d], 0 offen' % (sW, sW + 3), 'touch')
    if STAMP: stamp(P, 3)
    if nq == 1 and CTOUCH:
        P.I('s_getpc_b64 s[96:97]')
        P.label('L_pc_here')
        P.I('s_sub_u32 s96, s96, L_pc_here-L_code_start'); P.I('s_subb_u32 s97, s97, 0')
        P.I('s_lshr_b32 s7, s2, 3'); P.I('s_mul_i32 s7, s7, %d' % (CT_LINES * 128))
        P.I('v_lshlrev_b32_e32 v5, 7, v0'); P.I('v_add_u32_e32 v5, s7, v5')
        P.I('v_min_u32_e32 v5, L_end-L_code_start-4, v5'); P.I('v_and_b32_e32 v5, 0xfffffffc, v5')
        P.I('global_load_dword v42, v5, s[96:97]', 'touch')
    late_setup(P)
    if PFUSE and nq == 1:
        P.I('s_cmp_eq_u32 s6, 0'); P.I('s_cbranch_scc0 L_noinit')
        n0 = len(P.ins)
        P.I('s_lshl_b32 s60, s5, 4'); P.I('s_add_u32 s60, s60, s4')
        P.I('s_lshl_b32 s61, s60, 8'); P.I('s_add_u32 s61, s61, %d' % (FLGOFF + WSOFF))
        P.I('s_add_u32 s96, s68, s61'); P.I('s_addc_u32 s97, s69, 0'); P.I('s_mov_b32 s98, 256'); P.I('s_mov_b32 s99, 0x20000')
        P.I('v_mov_b32_e32 v44, 0'); P.I('v_lshlrev_b32_e32 v45, 2, v0')
        P.I('buffer_store_dword v44, v45, s[96:99], 0 offen sc0 sc1')
        P.I('s_waitcnt vmcnt(0)')
        P.I('s_mov_b32 s96, s90'); P.I('s_mov_b32 s97, s91')
        P.I('s_lshl_b32 s61, s60, 2'); P.I('v_mov_b32_e32 v45, s61'); P.I('v_mov_b32_e32 v44, 1')
        P.I('v_cmp_eq_u32_e32 vcc, 0, v0'); P.I('v_mov_b32_e32 v46, %d' % BIG); P.I('v_cndmask_b32_e32 v45, v46, v45, vcc')
        P.I('buffer_atomic_add v44, v45, s[96:99], 0 offen sc1')
        for i in P.ins[n0:]:
            if i.kind in ('vmem', 'wait'): i.ignore = True
        P.label('L_noinit')
    for ks in range(4):
        P.I('v_add_u32_e32 v5, %d, v4' % (4 * ks)); P.I('v_xor_b32_e32 v5, v5, v3'); P.I('v_lshlrev_b32_e32 v5, 4, v5')
        P.I('v_lshl_add_u32 v%d, v3, 8, v5' % (KA + ks))
    va_regs(P, 0)
    for kq in range(4):
        for e in range(2):
            P.I('v_lshrrev_b32_e32 v5, 1, v4'); P.I('v_add_u32_e32 v5, %d, v5' % (4 * kq + 2 * e))
            P.I('v_xor_b32_e32 v5, v5, v3'); P.I('v_lshlrev_b32_e32 v5, 4, v5')
            P.I('v_lshl_add_u32 v5, v3, 8, v5'); P.I('v_and_b32_e32 v11, 1, v4'); P.I('v_lshl_add_u32 v5, v11, 3, v5')
            P.I('v_add_u32_e32 v%d, s70, v5' % (XR + 2 * kq + e))
            P.I('v_add_u32_e32 v%d, %d, v%d' % (XR2 + 2 * kq + e, 2 * SLOT, XR + 2 * kq + e))
    for j in range(4):
        P.I('v_add_u32_e32 v5, %d, v4' % (4 * j)); P.I('v_xor_b32_e32 v5, v5, v3'); P.I('v_lshlrev_b32_e32 v5, 4, v5')
        P.I('v_lshl_add_u32 v5, v4, 8, v5'); P.I('v_add_u32_e32 v%d, s%d, v5' % (KD + j, sW4096))
    for p in range(2):
        swz8(P, 12, p)
        P.I('v_lshl_add_u32 v12, v4, 8, v12')
        if KVA == 2: P.I('v_mov_b32_e32 v%d, v12' % (VD + p))
        else: P.I('v_add_u32_e32 v%d, s%d, v12' % (VD + p, sW4096))
    for j in range(4): P.I('v_mov_b32_e32 v%d, 0x3f803f80' % (ONES + j))
    if nq == 1 and OTOUCH:
        P.I('s_mul_i32 s7, s4, %d' % (320 * 128)); P.I('v_lshlrev_b32_e32 v40, 7, v0'); P.I('v_add_u32_e32 v40, s7, v40')
        P.I('s_mov_b32 s92, s82'); P.I('s_mov_b32 s93, s83'); P.I('s_mov_b32 s94, 0'); P.I('s_mov_b32 s95, 0x20000')
    for o in read_x(0, nq): E.emit_op(o)
    if STAMP: P.I('s_waitcnt lgkmcnt(0)'); stamp(P, 44)
    P.wait_vm(nm('P', 0))
    P.I('s_barrier')
    if STAMP: P.I('s_waitcnt lgkmcnt(0)'); stamp(P, 2)
    psteps = [make_P(g, R) for g in range(8)]
    gsteps = [make_G(g, R) for g in range(8)]
    for i in range(D_BAR): E.issue_reads(psteps[0].fr[i], set())
    g0 = make_G(0, R)
    n_pre = len(P.ins)
    upd = E.run(psteps, g0, D_BAR, set(), valu_P(psteps, R))
    for i in range(D_BAR):
        gsteps[0].fr[i].frag = g0.fr[i].frag; gsteps[0].fr[i].tag = '%sg0pre%d' % (R.name, i)
        retag(P, n_pre, g0.fr[i].tag, '%sg0pre%d' % (R.name, i))
    if STAMP: P.I('s_waitcnt lgkmcnt(0)'); stamp(P, 56, True); stamp(P, 57)
    pro_end = len(P.ins)
    P.label(R.lab('head'))
    vq = valu_G(gsteps, R)
    g6 = make_G(6, R)
    upd6, vp = E.run(gsteps[:6], g6, D_BAR, set(upd), vq, allow_left=True)
    off6 = sum(len(s_.fr) for s_ in gsteps[:6])
    lsteps = [make_GL(6, R), make_GL(7, R)]
    for i in range(D_BAR):
        retag(P, pro_end, g6.fr[i].tag, '%sg6pre%d' % (R.name, i))
        for st_ in (gsteps[6], lsteps[0]):
            st_.fr[i].frag = g6.fr[i].frag; st_.fr[i].tag = '%sg6pre%d' % (R.name, i)
    fr6 = E.fr
    P.I('s_cmp_eq_u32 s%d, 3' % sHead)
    P.I('s_cbranch_scc1 %s' % R.lab('last'))
    p1_end = len(P.ins)
    g0n = make_G(0, R)
    upd2 = E.run(gsteps[6:], g0n, D_BAR, set(upd6), shift_q(vq[vp:], off6))
    assert upd2 == upd, (upd2, upd)
    for i in range(D_BAR):
        assert g0n.fr[i].frag == g0.fr[i].frag, (g0n.fr[i].frag, g0.fr[i].frag)
        retag(P, p1_end, g0n.fr[i].tag, '%sg0pre%d' % (R.name, i))
    P.I('s_add_u32 s%d, s%d, 1' % (sHead, sHead))
    P.I('s_branch %s' % R.lab('head'))
    p2_end = len(P.ins)
    P.label(R.lab('last'))
    E.fr = fr6
    vql = valu_G(gsteps[:6] + lsteps, R, last=True)
    for a_, b_ in zip(vq[:vp], vql[:vp]): assert a_[0] == b_[0] or callable(a_[0]), (a_[0], b_[0])
    osteps = [make_O(hh, R) for hh in range(4)]
    o0 = make_O(0, R); o0.ring_total = ONSLOT * OSLOT
    updo = E.run(lsteps, o0, D_BAR, set(upd6), shift_q(vql[vp:], off6))
    for a in sorted(updo): P.I('v_add_u32_e32 v%d, s%d, v%d' % (a, sDelta, a))
    for i in range(D_BAR):
        retag(P, p2_end, o0.fr[i].tag, '%so0pre%d' % (R.name, i))
        osteps[0].fr[i].frag = o0.fr[i].frag; osteps[0].fr[i].tag = '%so0pre%d' % (R.name, i)
    if STAMP: P.I('s_waitcnt lgkmcnt(0)'); stamp(P, 58, True); stamp(P, 59)
    if PFUSE: red_setup(P, R)
    body_end = len(P.ins)
    on0 = len(P.ins)
    P.label(R.lab('ng'))
    o0n = make_O(0, R)
    bsave = R.budget
    if O32 and nq == 2: R.budget = 24
    updn = E.run(osteps, o0n, D_BAR, set(), valu_O(R))
    R.budget = bsave
    for a in sorted(updn): P.I('v_add_u32_e32 v%d, s%d, v%d' % (a, sDelta, a))
    for i in range(D_BAR):
        assert o0n.fr[i].frag == o0.fr[i].frag, (o0n.fr[i].frag, o0.fr[i].frag)
        retag(P, on0, o0n.fr[i].tag, '%so0pre%d' % (R.name, i))
    P.I('s_add_u32 s%d, s%d, 1' % (sNg, sNg))
    P.I('s_cmp_lt_u32 s%d, 5' % sNg)
    P.I('s_cbranch_scc1 %s' % R.lab('ng'))
    on1 = len(P.ins)
    final_stores(P, E, R)
    P.I('s_waitcnt lgkmcnt(0)' if PFUSE else 's_waitcnt vmcnt(0) lgkmcnt(0)')
    if FUSE or PFUSE:
        if STAMP: stamp(P, 62, True)
        P.I('s_branch L_red')
    else:
        if STAMP: final_stamps(P)
        P.I('s_endpgm')
    slow_path(P, R)
    end = len(P.ins)
    I = P.ins
    marks = [I[start], I[pro_end], I[p1_end], I[p2_end], I[on0], I[on1]]
    return dict(marks=marks)

def dyn_seq(parts):
    pro, p1, p2, lastp, ng = parts
    return pro + (p1 + p2) * 2 + p1 + lastp + ng * 3

BALANCE = 1
def split_parts(P, info):
    pos = [next(k for k, i in enumerate(P.ins) if i is m) for m in info['marks']]
    return pos, [P.ins[pos[n]:pos[n + 1]] for n in range(5)]

def rebalance(P, info):
    pos, parts = split_parts(P, info)
    firsts = [P.ins[p] for p in pos]
    out = []
    for n_, seg in enumerate(parts):
        has32 = any(i.kind == 'mfma' and i.passes == 8 for i in seg)
        seg2, moved = balance_gaps(seg, free=24 if (has32 and n_ == 4) else 8)
        out.append(seg2)
    P.ins[pos[0]:pos[5]] = sum(out, [])
    n = pos[0]; marks = []
    for seg in out:
        marks.append(P.ins[n]); n += len(seg)
    marks.append(P.ins[n])
    info['marks'] = marks


FUSE = 0
SPIN = 400000
RLPOL = 'sc1'; RSPOL = ''
def fused_tail(P):
    P.label('L_red')
    P.I('s_load_dwordx2 s[96:97], s[0:1], 80')
    P.I('s_load_dwordx2 s[90:91], s[0:1], 88')
    P.I('s_lshl_b32 s52, s5, 4'); P.I('s_add_u32 s52, s52, s4')
    P.I('s_lshl_b32 s53, s52, 2')
    P.I('v_mbcnt_lo_u32_b32 v0, -1, 0'); P.I('v_mbcnt_hi_u32_b32 v0, -1, v0')
    P.I('v_mov_b32_e32 v1, s53'); P.I('v_mov_b32_e32 v2, 1')
    P.I('s_barrier')
    P.I('s_waitcnt lgkmcnt(0)')
    P.I('s_cmp_eq_u32 s%d, 0' % sWAVE)
    P.I('s_cbranch_scc0 L_red_wait')
    P.I('s_mov_b64 s[54:55], exec')
    P.I('s_mov_b64 exec, 1')
    P.I('global_atomic_add v1, v2, s[90:91] sc1')
    P.I('s_mov_b32 s56, 0')
    P.label('L_red_poll')
    P.I('global_load_dword v3, v1, s[90:91] sc1')
    P.I('s_waitcnt vmcnt(0)')
    P.I('v_readfirstlane_b32 s57, v3')
    P.I('s_add_u32 s56, s56, 1')
    P.I('s_cmp_ge_u32 s57, 8')
    P.I('s_cbranch_scc1 L_red_go')
    P.I('s_cmp_lt_u32 s56, %d' % SPIN)
    P.I('s_cbranch_scc0 L_red_go')
    P.I('s_sleep 2')
    P.I('s_branch L_red_poll')
    P.label('L_red_go')
    P.I('s_mov_b64 exec, s[54:55]')
    P.label('L_red_wait')
    P.I('s_barrier')
    P.I('s_mul_i32 s58, s52, %d' % (8 * PART))
    if WSOFF: P.I('s_add_u32 s58, s58, %d' % WSOFF)
    P.I('s_add_u32 s8, s68, s58'); P.I('s_addc_u32 s9, s69, 0')
    P.I('s_mov_b32 s10, %d' % (8 * PART)); P.I('s_mov_b32 s11, 0x20000')
    P.I('s_mov_b32 s12, s96'); P.I('s_mov_b32 s13, s97'); P.I('s_mov_b32 s14, %d' % (16 * 112 * 2560)); P.I('s_mov_b32 s15, 0x20000')
    P.I('v_lshlrev_b32_e32 v2, 4, v0')
    P.I('v_and_b32_e32 v3, 15, v0'); P.I('v_lshrrev_b32_e32 v4, 4, v0')
    P.I('v_mul_u32_u24_e32 v5, 2560, v3'); P.I('v_lshl_add_u32 v5, v4, 4, v5')
    P.I('s_lshl_b32 s59, s6, 2'); P.I('s_add_u32 s59, s59, s%d' % sWAVE)
    P.I('s_mul_i32 s60, s4, %d' % (112 * 2560)); P.I('s_mul_i32 s61, s5, 1280'); P.I('s_add_u32 s60, s60, s61')
    for k in range(3):
        P.I('s_add_u32 s61, s59, %d' % (32 * k))
        P.I('s_mul_i32 s62, s61, 37'); P.I('s_lshr_b32 s62, s62, 8')
        P.I('s_mul_i32 s63, s62, 7'); P.I('s_sub_u32 s63, s61, s63')
        P.I('s_mul_i32 s64, s62, 14'); P.I('s_add_u32 s64, s64, s63'); P.I('s_lshl_b32 s64, s64, 10')
        P.I('s_lshl_b32 s65, s62, 7'); P.I('s_mul_i32 s66, s63, %d' % (16 * 2560)); P.I('s_add_u32 s65, s65, s66'); P.I('s_add_u32 s65, s65, s60')
        P.I('s_cmp_lt_u32 s61, 70')
        P.I('s_cselect_b32 s64, s64, 0x40000000'); P.I('s_cselect_b32 s%d, s65, 0x40000000' % (98 + k))
        for half in range(2):
            for hg in range(8):
                r = 16 + ((k * 2 + half) * 8 + hg) * 4
                P.I('s_add_u32 s66, s64, %d' % (hg * PART + half * 7168))
                P.I('buffer_load_dwordx4 v[%d:%d], v2, s[8:11], s66 offen %s' % (r, r + 3, RLPOL), 'rl%d_%d_%d' % (k, half, hg))
    for k in range(3):
        for half in range(2):
            acc = 208 + half * 8
            for hg in range(8):
                P.wait_vm('rl%d_%d_%d' % (k, half, hg))
                r = 16 + ((k * 2 + half) * 8 + hg) * 4
                for j in range(4):
                    if hg == 0:
                        P.I('v_lshlrev_b32_e32 v%d, 16, v%d' % (acc + 2 * j, r + j))
                        P.I('v_and_b32_e32 v%d, 0xffff0000, v%d' % (acc + 2 * j + 1, r + j))
                    else:
                        P.I('v_lshlrev_b32_e32 v7, 16, v%d' % (r + j))
                        P.I('v_and_b32_e32 v8, 0xffff0000, v%d' % (r + j))
                        P.I('v_add_f32_e32 v%d, v%d, v7' % (acc + 2 * j, acc + 2 * j))
                        P.I('v_add_f32_e32 v%d, v%d, v8' % (acc + 2 * j + 1, acc + 2 * j + 1))
            o = 224 + ((k * 2 + half) & 1) * 4
            for j in range(4): P.I('v_cvt_pk_bf16_f32 v%d, v%d, v%d' % (o + j, acc + 2 * j, acc + 2 * j + 1))
            for op in ('v_permlane32_swap_b32_e32', 'v_permlane16_swap_b32_e32'):
                P.I('%s v%d, v%d' % (op, o, o + 2)); P.I('%s v%d, v%d' % (op, o + 1, o + 3))
            P.I('buffer_store_dwordx4 v[%d:%d], v5, s[12:15], s%d offen offset:%d %s' % (o, o + 3, 98 + k, half * 64, RSPOL), 'rst')
    P.I('s_waitcnt vmcnt(0)')

def late_setup(P):
    P.I('s_lshl_b32 s7, s4, 5'); P.I('s_add_u32 s7, s7, s86'); P.I('s_lshl_b32 s71, s7, 17')
    P.I('s_add_u32 s%d, s54, s71' % sK); P.I('s_addc_u32 s%d, s55, 0' % (sK + 1))
    P.I('s_mov_b32 s%d, 524288' % (sK + 2)); P.I('s_mov_b32 s%d, 0x20000' % (sK + 3))
    P.I('s_add_u32 s%d, s56, s71' % sV); P.I('s_addc_u32 s%d, s57, 0' % (sV + 1))
    P.I('s_mov_b32 s%d, 524288' % (sV + 2)); P.I('s_mov_b32 s%d, 0x20000' % (sV + 3))
    P.I('s_mul_i32 s71, s86, 163840')
    P.I('s_add_u32 s82, s82, s71'); P.I('s_addc_u32 s83, s83, 0')
    P.I('s_lshl_b32 s71, s5, 4'); P.I('s_add_u32 s71, s71, s4'); P.I('s_lshl_b32 s71, s71, 3'); P.I('s_add_u32 s71, s71, s6')
    P.I('s_mul_i32 s71, s71, %d' % PART)
    if WSOFF: P.I('s_add_u32 s71, s71, %d' % WSOFF)
    P.I('s_add_u32 s%d, s68, s71' % sO); P.I('s_addc_u32 s%d, s69, 0' % (sO + 1))
    P.I('s_mov_b32 s%d, %d' % (sO + 2, PART)); P.I('s_mov_b32 s%d, 0x20000' % (sO + 3))
    if KVA >= 1: P.I('s_lshl_b32 s%d, s%d, 12' % (sW4096, sWAVE))
    else: P.I('s_mov_b32 s%d, 0' % sW4096)
    P.I('s_mov_b32 s%d, %d' % (sSlot, SLOT)); P.I('s_mov_b32 s%d, %d' % (sWrap, (-2 * SLOT) & 0xffffffff))
    P.I('s_mov_b32 s%d, 0x%x' % (sC, QSCALE))
    P.I('s_mov_b32 s%d, 0' % sHead); P.I('s_mov_b32 s%d, 0' % sRd)
    P.I('s_mov_b32 s%d, %d' % (sKo, 3 * 16384)); P.I('s_mov_b32 s%d, %d' % (sVo, 2 * 16384))

def gen_k16(name='attn_kernel'):
    P = Prog()
    P.label('L_code_start')
    P.I('s_cmp_ge_u32 s2, 256')
    P.I('s_cbranch_scc1 L_end')
    P.I('s_load_dwordx8 s[52:59], s[0:1], 0')
    P.I('s_load_dwordx8 s[60:67], s[0:1], 40')
    P.I('s_load_dwordx2 s[68:69], s[0:1], 96')
    P.I('s_load_dwordx2 s[82:83], s[0:1], 32')
    P.I('s_load_dwordx2 s[84:85], s[0:1], 72')
    if PFUSE:
        P.I('s_load_dwordx2 s[100:101], s[0:1], 80')
        P.I('s_load_dwordx2 s[90:91], s[0:1], 88')
    if STAMP:
        P.I('s_memtime s[76:77]'); P.I('s_memrealtime s[78:79]'); P.I('s_mov_b32 s74, 4')
    P.I('v_lshrrev_b32_e32 v1, 6, v0')
    P.I('v_and_b32_e32 v0, 63, v0')
    P.I('s_and_b32 s3, s2, 7')
    P.I('v_readfirstlane_b32 s%d, v1' % sWAVE)
    P.I('s_lshr_b32 s4, s2, 3'); P.I('s_lshr_b32 s5, s3, 2')
    P.I('s_and_b32 s6, s3, 3'); P.I('s_lshl_b32 s6, s6, 1'); P.I('s_and_b32 s7, s4, 1'); P.I('s_add_u32 s6, s6, s7')
    P.I('s_lshr_b32 s4, s4, 1')
    P.I('v_and_b32_e32 v3, 15, v0'); P.I('v_lshrrev_b32_e32 v4, 4, v0')
    P.I('s_lshl_b32 s70, s%d, 13' % sWAVE)
    P.I('s_mul_i32 s71, s%d, %d' % (sWAVE, 32 * 1280))
    P.I('v_mul_u32_u24_e32 v11, 1280, v4')
    for jj in range(4):
        P.I('v_add_u32_e32 v5, %d, v4' % (4 * jj)); P.I('v_xor_b32_e32 v5, v5, v3'); P.I('v_lshlrev_b32_e32 v5, 4, v5')
        P.I('v_add3_u32 v%d, v5, v11, s71' % (XV + jj))
    for i in range(4):
        swz8(P, 12, i & 1)
        P.I('v_lshl_add_u32 v12, v4, 13, v12'); P.I('v_add_u32_e32 v%d, %d, v12' % (WD + i, i * (32768 - 1024)))
    P.I('s_waitcnt lgkmcnt(0)')
    P.I('s_cmp_eq_u32 s5, 0')
    for i in range(8): P.I('s_cselect_b32 s%d, s%d, s%d' % (52 + i, 52 + i, 60 + i))
    P.I('s_cselect_b32 s82, s82, s84'); P.I('s_cselect_b32 s83, s83, s85')
    P.I('s_mul_i32 s7, s4, 143360')
    P.I('s_add_u32 s%d, s52, s7' % sX); P.I('s_addc_u32 s%d, s53, 0' % (sX + 1))
    P.I('s_mov_b32 s%d, 143360' % (sX + 2)); P.I('s_mov_b32 s%d, 0x20000' % (sX + 3))
    P.I('s_lshl_b32 s86, s6, 2')
    P.I('s_lshl_b32 s71, s86, 8')
    P.I('s_add_u32 s%d, s58, s71' % sW); P.I('s_addc_u32 s%d, s59, 0' % (sW + 1))
    P.I('s_sub_u32 s%d, 5242880, s71' % (sW + 2)); P.I('s_mov_b32 s%d, 0x20000' % (sW + 3))
    P.I('s_mov_b32 s%d, 0' % sWc); P.I('s_mov_b32 s%d, 256' % sWn)
    P.I('s_cmp_eq_u32 s%d, 3' % sWAVE)
    P.I('s_cbranch_scc0 L_A_start')
    P.I('s_branch L_B_start')
    head = list(P.ins)
    RA, RB = Role('A', 2), Role('B', 1)
    a = role_code(P, RA)
    b = role_code(P, RB)
    if BALANCE:
        for info in (a, b): rebalance(P, info)
    red0 = len(P.ins)
    if FUSE or PFUSE:
        if PFUSE: pfuse_tail(P)
        else: fused_tail(P)
        if STAMP: final_stamps(P)
        P.I('s_endpgm')
    red_ins = P.ins[red0:]
    P.label('L_end')
    P.I('s_endpgm')
    for info in (a, b):
        pos, parts = split_parts(P, info)
        info['tail'] = P.ins[pos[5]:pos[5] + 40]
        resolve_waits(head + dyn_seq(parts))
    if FUSE: resolve_waits(red_ins)
    if PFUSE: resolve_waits(red_ins)
    drop_optional(P)
    P.pad()
    bad = 0
    def at(lab): return [k for k, i in enumerate(P.ins) if i.label == lab][0]
    for R in (RA, RB):
        h, l, n_ = at(R.lab('head')), at(R.lab('last')), at(R.lab('ng'))
        br_last = [k for k, i in enumerate(P.ins) if i.op == 's_cbranch_scc1' and i.text.endswith(R.lab('last'))][0]
        br_ng = [k for k, i in enumerate(P.ins) if i.op == 's_cbranch_scc1' and i.text.endswith(R.lab('ng'))][0]
        I = P.ins
        bad += check_hazards(I[h - 60:l], name)
        bad += check_hazards(I[l - 60:l] + I[h:h + 80], name)
        bad += check_hazards(I[br_last - 60:br_last + 1] + I[l:br_ng + 1], name)
        bad += check_hazards(I[br_ng - 60:br_ng + 1] + I[n_:n_ + 80], name)
    if FUSE or PFUSE: bad += check_hazards(P.ins[at('L_red'):], name)
    assert bad == 0
    return P

if __name__ == '__main__':
    print(gen_k16().text())
```
